```python
import torch

def _softmax(x, axis=-1):
    return torch.softmax(x, dim=axis)
def _gelu(x):
    return torch.nn.functional.gelu(x, approximate="tanh")
def _silu(x):
    return torch.nn.functional.silu(x)
def _sigmoid(x):
    return torch.sigmoid(x)
def _layernorm(x, axis=-1, eps=1e-5):
    m = x.mean(dim=axis, keepdim=True)
    v = x.var(dim=axis, keepdim=True, unbiased=False)
    return (x - m) / torch.sqrt(v + eps)
def _scatter_add(tgt, idx, src, axis=0):
    return tgt.clone().index_add_(axis, idx, src)
def _segment_sum(src, seg, n):
    out = torch.zeros((n,) + src.shape[1:], dtype=src.dtype)
    return out.index_add_(0, seg, src)
def _pad(x, pw):
    flat = tuple(v for pair in reversed(pw) for v in pair)
    return torch.nn.functional.pad(x, flat)

kernel_name = 'concat_heads__mha_block_cached__gqa_block_cached__near_ridge'

def setup_inputs():

    _w = (lambda a: (lambda t: t.to(torch.bfloat16) if t.is_floating_point() else t)(torch.as_tensor(a)))
    def _A_setup():
        B, Sq, D = 8, 112, 1024
        H, Sk, Dh = 32, 1024, 128
        return {
            "x": _w((lambda *s: torch.randn(*s, dtype=torch.bfloat16) * 0.8)(B, Sq, D)),
            "k_cache": _w((lambda *s: torch.randn(*s, dtype=torch.bfloat16) * 0.8)(B, H, Sk, Dh)),
            "v_cache": _w((lambda *s: torch.randn(*s, dtype=torch.bfloat16) * 0.05)(B, H, Sk, Dh)),
            "wq": _w((lambda *s: torch.randn(*s, dtype=torch.bfloat16) * 0.8)(D, H * Dh) * (D ** -0.5)),
            "wo": _w((lambda *s: torch.randn(*s, dtype=torch.bfloat16) * 0.05)(H * Dh, D) * ((H * Dh) ** -0.5)),
        }
    _A_in = _A_setup()

    def _B_setup():
        B, Sq, D = 8, 112, 1024
        Hq, Hkv, Sk, Dh = 32, 32, 1024, 128
        assert Hq % Hkv == 0, (Hq, Hkv)
        return {
            "x": _w((lambda *s: torch.randn(*s, dtype=torch.bfloat16) * 0.8)(B, Sq, D)),
            "k_cache": _w((lambda *s: torch.randn(*s, dtype=torch.bfloat16) * 0.8)(B, Hkv, Sk, Dh)),
            "v_cache": _w((lambda *s: torch.randn(*s, dtype=torch.bfloat16) * 0.05)(B, Hkv, Sk, Dh)),
            "wq": _w((lambda *s: torch.randn(*s, dtype=torch.bfloat16) * 0.8)(D, Hq * Dh) * (D ** -0.5)),
            "wo": _w((lambda *s: torch.randn(*s, dtype=torch.bfloat16) * 0.05)(Hq * Dh, D) * ((Hq * Dh) ** -0.5)),
        }
    _B_in = _B_setup()

    return {
        "A_x": _A_in["x"],
        "A_k_cache": _A_in["k_cache"],
        "A_v_cache": _A_in["v_cache"],
        "A_wq": _A_in["wq"],
        "A_wo": _A_in["wo"],
        "B_x": _B_in["x"],
        "B_k_cache": _B_in["k_cache"],
        "B_v_cache": _B_in["v_cache"],
        "B_wq": _B_in["wq"],
        "B_wo": _B_in["wo"],
    }

def reference(A_x, A_k_cache, A_v_cache, A_wq, A_wo, B_x, B_k_cache, B_v_cache, B_wq, B_wo):
    def _A_ref(x, k_cache, v_cache, wq, wo):
        B, Sq, D = x.shape
        H, Dh = 32, 128
        q = (lambda x, *d: x.permute(*d))((x @ wq).reshape(B, Sq, H, Dh), 0, 2, 1, 3)
        scores = torch.einsum("bhqd,bhkd->bhqk", q, k_cache) * (Dh ** -0.5)
        p = _softmax(scores, axis=-1)
        o = torch.einsum("bhqk,bhkd->bhqd", p, v_cache)
        return (lambda x, *d: x.permute(*d))(o, 0, 2, 1, 3).reshape(B, Sq, H * Dh) @ wo

    def _B_ref(x, k_cache, v_cache, wq, wo):
        B, Sq, D = x.shape
        Hq, Dh = 32, 128
        Hkv = k_cache.shape[1]
        rep = Hq // Hkv
        q = (lambda x, *d: x.permute(*d))((x @ wq).reshape(B, Sq, Hq, Dh), 0, 2, 1, 3)
        k = (lambda x, n, axis: torch.repeat_interleave(x, n, dim=axis))(k_cache, rep, axis=1)
        v = (lambda x, n, axis: torch.repeat_interleave(x, n, dim=axis))(v_cache, rep, axis=1)
        scores = torch.einsum("bhqd,bhkd->bhqk", q, k) * (Dh ** -0.5)
        p = _softmax(scores, axis=-1)
        o = torch.einsum("bhqk,bhkd->bhqd", p, v)
        return (lambda x, *d: x.permute(*d))(o, 0, 2, 1, 3).reshape(B, Sq, Hq * Dh) @ wo

    a = _A_ref(A_x, A_k_cache, A_v_cache, A_wq, A_wo)
    b = _B_ref(B_x, B_k_cache, B_v_cache, B_wq, B_wo)
    return torch.concatenate([a, b], axis=-1)
```

```python
import sys, argparse

KN = "concat_heads__mha_block_cached__gqa_block_cached__near_ridge_kernel"
WS_BYTES = 305659904
O_BYTES = 2 * 28 * 256 * 1024
NT_KINDS = "KV"
SLOT = 16384
LDS = 5 * SLOT
C_SCALE = 0x3e0293ee
import struct, math
C_SCALE = struct.unpack("<I", struct.pack("<f", math.log2(math.e) / math.sqrt(128.0)))[0]
THR = struct.unpack("<I", struct.pack("<f", 8.0))[0]

HEADER = """\
"""


class Asm:
    def __init__(self):
        self.L = []
        self.uid = 0

    def __call__(self, s):
        self.L.append(s)

    def lab(self, name):
        self.L.append(name + ":")

    def newlab(self, p="L"):
        self.uid += 1
        return f"{p}_{self.uid}"

    def text(self):
        return "\n".join(self.L) + "\n"


def vr(a, n=1):
    return f"v{a}" if n == 1 else f"v[{a}:{a+n-1}]"


def sr(a, n=1):
    return f"s{a}" if n == 1 else f"s[{a}:{a+n-1}]"


S_X, S_W, S_K, S_V, S_O, S_WO, S_OUT = 4, 8, 12, 16, 20, 24, 28
sWAVE, sBR, sB, sH, sXCD, sJ = 32, 33, 34, 35, 38, 39
sKA = 36
sDBG = 40
sWS = 42
sT0, sT1, sT2, sT3 = 44, 45, 46, 47
sCUR, sCUR2, sFILL, sFILL2 = 48, 49, 50, 51
sWOFF = 52
sCNT = 53
sXO, sWO_ = 54, 55
sKO, sVO = 56, 57
sC, sTHR = 58, 59
sEX = 60
sST = 64
sREM, sRDY, sCURH, sNXT = 80, 81, 82, 83
sB0, sTWO = 84, 85
sOOFF, sWOOFF = 86, 87
sSPIN = 88
sOB = 89
sMT, sNT = 90, 91
sT4 = 92
sPTR = 94

vTID, vLANE = 0, 1
vKA = 2
vTA = 10
vTB = 14
vKB = 18
vDV = 19
vDK = 20
vDX = 24
vDW = 28
vM, vL = 32, 33
vT = 34
vQ = 40
vS = 72
vP = 104
vF = 120
vO = 184


def sched(A, dsops, mfmas, look=12, fill=None, pre=0):
    fill = fill or {}
    issued = 0
    done = -1
    for m, (txt, need) in enumerate(mfmas):
        want = min(len(dsops), need + 1 + look)
        while issued < want and issued - (done + 1) < 15:
            A(dsops[issued]); issued += 1
        while issued < need + 1:
            A(dsops[issued]); issued += 1
        if need > done:
            A(f"s_waitcnt lgkmcnt({issued - (need + 1)})")
            done = need
        A(txt)
        for f in fill.get(m, []):
            A(f)
    assert issued == len(dsops)


def ring_adv(A, s, n=1):
    A(f"s_add_u32 {sr(s)}, {sr(s)}, {n*SLOT}")
    A(f"s_cmp_ge_u32 {sr(s)}, {LDS}")
    A(f"s_cselect_b32 {sr(sT0)}, {LDS}, 0")
    A(f"s_sub_u32 {sr(s)}, {sr(s)}, {sr(sT0)}")


def dma_item(kind, slot_s, nt=True):
    srd, so = {"X": (S_X, sXO), "W": (S_W, sWO_), "K": (S_K, sKO), "V": (S_V, sVO)}[kind]
    fl = " nt" if (kind in NT_KINDS and nt) else ""
    out = [f"s_add_u32 m0, {sr(slot_s)}, {sr(sWOFF)}", "s_nop 0"]
    for t in range(4):
        va = {"X": vDX + t, "W": vDW + t, "K": vDK + t, "V": vDV}[kind]
        out.append(f"buffer_load_dwordx4 {vr(va)}, {sr(srd,4)}, {sr(so)} offen offset:{t*1024}{fl} lds")
    if kind == "X":
        out += [f"s_add_u32 {sr(sXO)}, {sr(sXO)}, 128", f"s_and_b32 {sr(sXO)}, {sr(sXO)}, 2047"]
    elif kind == "W":
        out += [f"s_add_u32 {sr(sWO_)}, {sr(sWO_)}, 0x80000", f"s_and_b32 {sr(sWO_)}, {sr(sWO_)}, 0x7fffff"]
    else:
        out += [f"s_add_u32 {sr(so)}, {sr(so)}, {SLOT}"]
    return out


def stamp(A, i, on):
    if on:
        A(f"s_memrealtime {sr(sST + 2*i, 2)}")
        A("s_waitcnt lgkmcnt(0)")


def write_stamps(A, on, n, nwg_off):
    if not on:
        return
    l = A.newlab("L_st")
    A(f"s_mov_b32 {sr(sT0)}, {WS_BYTES - 512*64}")
    A(f"s_lshl_b32 {sr(sT1)}, s2, 6")
    A(f"s_add_u32 {sr(sT0)}, {sr(sT0)}, {sr(sT1)}")
    A(f"s_add_u32 {sr(sPTR)}, {sr(sWS)}, {sr(sT0)}")
    A(f"s_addc_u32 {sr(sPTR+1)}, {sr(sWS+1)}, 0")
    A(f"v_mov_b32 v2, 0")
    for i in range(16):
        A(f"v_mov_b32 v{4+i}, {sr(sST+i)}")
    A(f"v_cmp_eq_u32 vcc, 0, v0")
    A(f"s_and_saveexec_b64 {sr(sEX,2)}, vcc")
    A(f"s_cbranch_execz {l}")
    for i in range(4):
        A(f"global_store_dwordx4 v2, v[{4+4*i}:{7+4*i}], {sr(sPTR,2)} offset:{16*i}")
    A.lab(l)
    A(f"s_mov_b64 exec, {sr(sEX,2)}")


def srd(A, d, lo, hi, add, nrec):
    if add is None:
        A(f"s_mov_b32 {sr(d)}, {sr(lo)}"); A(f"s_mov_b32 {sr(d+1)}, {sr(hi)}")
    else:
        A(f"s_add_u32 {sr(d)}, {sr(lo)}, {sr(add)}"); A(f"s_addc_u32 {sr(d+1)}, {sr(hi)}, 0")
    A(f"s_mov_b32 {sr(d+2)}, {nrec}")
    A(f"s_mov_b32 {sr(d+3)}, 0x20000")


def common_ids(A):
    A(f"s_and_b32 {sr(sT0)}, s2, 255")
    A(f"s_and_b32 {sr(sXCD)}, {sr(sT0)}, 7")
    A(f"s_lshr_b32 {sr(sJ)}, {sr(sT0)}, 3")
    A(f"s_load_dwordx2 {sr(sDBG,2)}, s[0:1], 88")
    A(f"s_load_dwordx2 {sr(sWS,2)}, s[0:1], 96")
    A(f"v_lshrrev_b32 v2, 6, v0")
    A(f"v_and_b32 {vr(vLANE)}, 63, v0")
    A(f"v_readfirstlane_b32 {sr(sWAVE)}, v2")


def attention(A, o):
    st = o.stamps
    A(f"s_lshr_b32 {sr(sBR)}, s2, 8")
    A(f"s_mul_i32 {sr(sT0)}, {sr(sBR)}, 40")
    A(f"s_add_u32 {sr(sKA)}, s0, {sr(sT0)}"); A(f"s_addc_u32 {sr(sKA+1)}, s1, 0")
    A(f"s_load_dwordx2 s[64:65], {sr(sKA,2)}, 0")
    A(f"s_load_dwordx2 s[66:67], {sr(sKA,2)}, 8")
    A(f"s_load_dwordx2 s[68:69], {sr(sKA,2)}, 16")
    A(f"s_load_dwordx2 s[70:71], {sr(sKA,2)}, 24")
    common_ids(A)
    if o.prio:
        l = A.newlab("L_pr")
        A("s_setprio 1")
        A(f"s_cmp_eq_u32 {sr(sBR)}, 0"); A(f"s_cbranch_scc0 {l}"); A("s_setprio 2"); A.lab(l)
    hb = o.hbits
    A(f"s_and_b32 {sr(sT1)}, {sr(sJ)}, {(1<<hb)-1}")
    A(f"s_and_b32 {sr(sT2)}, {sr(sXCD)}, {(1<<(5-hb))-1}")
    if o.bflip:
        A(f"s_xor_b32 {sr(sT2)}, {sr(sT2)}, {sr(sBR)}")
    A(f"s_lshl_b32 {sr(sH)}, {sr(sT2)}, {hb}"); A(f"s_add_u32 {sr(sH)}, {sr(sH)}, {sr(sT1)}")
    A(f"s_lshr_b32 {sr(sT2)}, {sr(sXCD)}, {5-hb}")
    A(f"s_lshl_b32 {sr(sT2)}, {sr(sT2)}, {5-hb}")
    A(f"s_lshr_b32 {sr(sB)}, {sr(sJ)}, {hb}"); A(f"s_add_u32 {sr(sB)}, {sr(sB)}, {sr(sT2)}")
    if o.rot == 1:
        A(f"s_lshl_b32 {sr(sT1)}, {sr(sT1)}, 1"); A(f"s_add_u32 {sr(sT1)}, {sr(sT1)}, {sr(sB)}")
        A(f"s_and_b32 {sr(sT2)}, {sr(sXCD)}, 1"); A(f"s_add_u32 {sr(sT1)}, {sr(sT1)}, {sr(sT2)}")
        A(f"s_and_b32 {sr(sT1)}, {sr(sT1)}, 7")
    elif o.rot == 2:
        A(f"s_and_b32 {sr(sT1)}, {sr(sH)}, 7")
    elif o.rot == 3:
        A(f"s_mov_b32 {sr(sT1)}, {sr(sB)}")
    else:
        A(f"s_mov_b32 {sr(sT1)}, 0")
    A(f"s_lshl_b32 {sr(sXO)}, {sr(sT1)}, 8")
    A(f"s_lshl_b32 {sr(sWO_)}, {sr(sT1)}, 20")
    A(f"s_mov_b32 {sr(sKO)}, 0"); A(f"s_mov_b32 {sr(sVO)}, 0")
    A(f"s_lshl_b32 {sr(sWOFF)}, {sr(sWAVE)}, 12")
    A(f"s_mov_b32 {sr(sC)}, {C_SCALE:#x}"); A(f"s_mov_b32 {sr(sTHR)}, {THR:#x}")
    l3, l4, t0, t1 = vT, vT + 1, vT + 2, vT + 3
    A(f"v_lshrrev_b32 {vr(l3)}, 3, {vr(vLANE)}")
    A(f"v_lshrrev_b32 {vr(l4)}, 4, {vr(vLANE)}")
    A(f"s_lshl_b32 {sr(sT2)}, {sr(sWAVE)}, 16")
    A(f"s_lshl_b32 {sr(sT3)}, {sr(sWAVE)}, 17")
    for t in range(4):
        A(f"v_add_u32 {vr(t0)}, {(4*t) & 7}, {vr(l4)}")
        A(f"v_and_b32 {vr(t1)}, 7, {vr(vLANE)}")
        A(f"v_xor_b32 {vr(t0)}, {vr(t0)}, {vr(t1)}")
        A(f"v_lshlrev_b32 {vr(t0)}, 4, {vr(t0)}")
        A(f"v_lshl_add_u32 {vr(t0)}, {vr(l3)}, 11, {vr(t0)}")
        A(f"v_add_u32 {vr(t0)}, {8*t*2048 - 1024*t}, {vr(t0)}")
        A(f"v_add_u32 {vr(vDX+t)}, {sr(sT2)}, {vr(t0)}")
    A(f"v_lshlrev_b32 {vr(t0)}, 2, {vr(l4)}")
    A(f"v_and_b32 {vr(t1)}, 15, {vr(vLANE)}")
    A(f"v_xor_b32 {vr(t0)}, {vr(t0)}, {vr(t1)}")
    A(f"v_lshlrev_b32 {vr(t0)}, 4, {vr(t0)}")
    A(f"v_lshl_add_u32 {vr(vDV)}, {vr(l4)}, 8, {vr(t0)}")
    A(f"v_add_u32 {vr(vDV)}, {sr(sWOFF)}, {vr(vDV)}")
    A(f"v_lshl_add_u32 {vr(t0)}, {vr(l4)}, 13, {vr(t0)}")
    A(f"v_add_u32 {vr(t0)}, {sr(sT3)}, {vr(t0)}")
    for t in range(4):
        A(f"v_add_u32 {vr(vDW+t)}, {4*t*8192 - 1024*t}, {vr(t0)}")
    for t in range(4):
        A(f"v_add_u32 {vr(t0)}, {4*t}, {vr(l4)}")
        A(f"v_xor_b32 {vr(t0)}, {vr(t0)}, {vr(t1)}")
        A(f"v_lshlrev_b32 {vr(t0)}, 4, {vr(t0)}")
        A(f"v_lshl_add_u32 {vr(t0)}, {vr(l4)}, 8, {vr(t0)}")
        A(f"v_add_u32 {vr(vDK+t)}, {sr(sWOFF)}, {vr(t0)}")
    A("s_waitcnt lgkmcnt(0)")
    A(f"s_mul_i32 {sr(sT0)}, {sr(sB)}, 229376")
    srd(A, S_X, 64, 65, sT0, "229376")
    A(f"s_lshl_b32 {sr(sT0)}, {sr(sH)}, 8")
    srd(A, S_W, 70, 71, sT0, "0")
    A(f"s_sub_u32 {sr(S_W+2)}, 0x800000, {sr(sT0)}")
    A(f"s_lshl_b32 {sr(sT0)}, {sr(sB)}, 5"); A(f"s_add_u32 {sr(sT0)}, {sr(sT0)}, {sr(sH)}"); A(f"s_lshl_b32 {sr(sT0)}, {sr(sT0)}, 18")
    srd(A, S_K, 66, 67, sT0, "0x40000")
    srd(A, S_V, 68, 69, sT0, "0x40000")
    srd(A, S_O, sWS, sWS + 1, None, str(O_BYTES))
    stamp(A, 0, st)
    for it in range(5):
        A(f"s_mov_b32 {sr(sFILL)}, {it*SLOT}")
        for s in dma_item("XW"[it & 1], sFILL): A(s)
    hh, q, r, c = vT, vT + 1, vT + 2, vT + 3
    A(f"v_lshrrev_b32 {vr(hh)}, 5, {vr(vLANE)}")
    A(f"v_and_b32 {vr(q)}, 31, {vr(vLANE)}")
    A(f"v_bfe_u32 {vr(r)}, {vr(vLANE)}, 1, 3")
    A(f"v_xor_b32 {vr(r)}, {vr(r)}, {vr(hh)}")
    A(f"v_lshlrev_b32 {vr(r)}, 4, {vr(r)}")
    A(f"v_lshl_add_u32 {vr(vKB)}, {vr(q)}, 7, {vr(r)}")
    A(f"v_add_u32 {vr(vKB)}, {sr(sWOFF)}, {vr(vKB)}")
    A(f"v_bfe_u32 {vr(r)}, {vr(vLANE)}, 2, 2")
    A(f"v_and_b32 {vr(c)}, 1, {vr(vLANE)}")
    A(f"v_lshlrev_b32 {vr(c)}, 4, {vr(c)}")
    A(f"v_bfe_u32 {vr(vT+4)}, {vr(vLANE)}, 1, 1")
    A(f"v_lshl_add_u32 {vr(c)}, {vr(vT+4)}, 3, {vr(c)}")
    A(f"v_bfe_u32 {vr(vT+4)}, {vr(vLANE)}, 4, 1")
    A(f"v_lshl_add_u32 {vr(c)}, {vr(vT+4)}, 5, {vr(c)}")
    A(f"v_lshl_add_u32 {vr(c)}, {vr(hh)}, 11, {vr(c)}")
    A(f"v_lshl_add_u32 {vr(c)}, {vr(r)}, 8, {vr(c)}")
    for dt in range(4):
        A(f"v_xor_b32 {vr(vT+4)}, {dt}, {vr(r)}")
        A(f"v_lshl_add_u32 {vr(vTB+dt)}, {vr(vT+4)}, 6, {vr(c)}")

    def qstep(first, vm, issue):
        A(f"s_waitcnt vmcnt({vm})")
        A("s_barrier")
        A(f"v_add_u32 {vr(vKA)}, {sr(sCUR)}, {vr(vKB)}")
        for dt in range(4):
            A(f"v_add_u32 {vr(vTA+dt)}, {sr(sCUR2)}, {vr(vTB+dt)}")
        for s in range(1, 4):
            A(f"v_xor_b32 {vr(vKA+s)}, {32*s}, {vr(vKA)}")
        ds, mf = [], []
        for s in range(4):
            ds.append(f"ds_read_b128 {vr(vS+4*s,4)}, {vr(vKA+s)}")
            for dt in range(4):
                f = vF + 16 * s + 4 * dt
                for e in range(2):
                    ds.append(f"ds_read_b64_tr_b16 {vr(f+2*e,2)}, {vr(vTA+dt)} offset:{4096*s+1024*e}")
                cin = "0" if (first and s == 0) else vr(vO + 16 * dt, 16)
                mf.append((f"v_mfma_f32_32x32x16_bf16 {vr(vO+16*dt,16)}, {vr(f,4)}, {vr(vS+4*s,4)}, {cin}", len(ds) - 1))
        fill = {}
        pos = 1
        for kind, slot in issue:
            it = dma_item(kind, slot)
            fill.setdefault(pos, []).extend(it[:3]); pos += 1
            fill.setdefault(pos, []).extend(it[3:4]); pos += 1
            fill.setdefault(pos, []).extend(it[4:5]); pos += 1
            fill.setdefault(pos, []).extend(it[5:]); pos += 1
        sched(A, ds, mf, fill=fill)

    def qadv():
        A(f"s_mov_b32 {sr(sFILL)}, {sr(sCUR)}"); A(f"s_mov_b32 {sr(sFILL2)}, {sr(sCUR2)}")
        ring_adv(A, sCUR, 2); ring_adv(A, sCUR2, 2)

    A(f"s_mov_b32 {sr(sCUR)}, 0"); A(f"s_mov_b32 {sr(sCUR2)}, {SLOT}")
    qstep(True, 12, [])
    qadv()
    A(f"s_mov_b32 {sr(sCNT)}, 13")
    A.lab("L_qloop")
    qstep(False, 4, [("W", sFILL), ("X", sFILL2)])
    qadv()
    A(f"s_sub_u32 {sr(sCNT)}, {sr(sCNT)}, 1"); A(f"s_cmp_lg_u32 {sr(sCNT)}, 0"); A("s_cbranch_scc1 L_qloop")
    qstep(False, 4, [("W", sFILL), ("K", sFILL2)])
    qadv()
    qstep(False, 4, [("V", sFILL), ("K", sFILL2)])
    qadv()
    stamp(A, 1, st)
    if o.qonly:
        A("s_waitcnt vmcnt(0)"); A("s_branch L_fin")
    hh, key = vT, vT + 1
    A(f"v_lshrrev_b32 {vr(hh)}, 5, {vr(vLANE)}")
    A(f"v_and_b32 {vr(key)}, 15, {vr(vLANE)}")
    A(f"v_xor_b32 {vr(key)}, {vr(key)}, {vr(hh)}")
    A(f"v_lshlrev_b32 {vr(key)}, 4, {vr(key)}")
    A(f"v_and_b32 {vr(vKB)}, 31, {vr(vLANE)}")
    A(f"v_lshl_add_u32 {vr(vKB)}, {vr(vKB)}, 8, {vr(key)}")
    A(f"v_lshlrev_b32 {vr(hh)}, 10, {vr(hh)}")
    for dt in range(4):
        A(f"v_sub_u32 {vr(vTB+dt)}, {vr(vTB+dt)}, {vr(hh)}")
    A(f"v_mov_b32 {vr(vM)}, 0x7e000000")
    A(f"v_mov_b32 {vr(vL)}, 0")
    A("s_nop 4")
    for i in range(32):
        A(f"v_cvt_pk_bf16_f32 {vr(vQ+i)}, {vr(vO+2*i)}, {vr(vO+2*i+1)}")
    for i in range(64):
        A(f"v_mov_b32 {vr(vO+i)}, 0")

    def kstep(vm, issue):
        A(f"s_waitcnt vmcnt({vm})")
        A("s_barrier")
        A(f"v_add_u32 {vr(vKA)}, {sr(sCUR)}, {vr(vKB)}")
        for s in range(1, 8):
            A(f"v_xor_b32 {vr(vKA+s)}, {32*s}, {vr(vKA)}")
        ds, mf = [], []
        for kt in range(2):
            for s in range(8):
                f = vF + 32 * kt + 4 * s
                ds.append(f"ds_read_b128 {vr(f,4)}, {vr(vKA+s)} offset:{8192*kt}")
                cin = "0" if s == 0 else vr(vS + 16 * kt, 16)
                mf.append((f"v_mfma_f32_32x32x16_bf16 {vr(vS+16*kt,16)}, {vr(f,4)}, {vr(vQ+4*s,4)}, {cin}", len(ds) - 1))
        fill = {}
        pos = 1
        for kind, slot in issue:
            it = dma_item(kind, slot)
            fill.setdefault(pos, []).extend(it[:3]); pos += 1
            fill.setdefault(pos, []).extend(it[3:4]); pos += 1
            fill.setdefault(pos, []).extend(it[4:5]); pos += 1
            fill.setdefault(pos, []).extend(it[5:]); pos += 1
        sched(A, ds, mf, fill=fill)

    def softmax():
        mx = vT
        lr, lb = A.newlab("L_rare"), A.newlab("L_back")
        A(f"v_max3_f32 {vr(mx)}, {vr(vS)}, {vr(vS+1)}, {vr(vS+2)}")
        for i in range(3, 15, 2):
            A(f"v_max3_f32 {vr(mx)}, {vr(mx)}, {vr(vS+i)}, {vr(vS+i+1)}")
        A(f"v_max_f32 {vr(mx)}, {vr(mx)}, {vr(vS+15)}")
        A("s_nop 4")
        for i in range(16, 32, 2):
            A(f"v_max3_f32 {vr(mx)}, {vr(mx)}, {vr(vS+i)}, {vr(vS+i+1)}")
        A(f"v_fma_f32 {vr(vT+1)}, {vr(mx)}, {sr(sC)}, {vr(vM)}")
        A(f"v_cmp_lt_f32 vcc, {sr(sTHR)}, {vr(vT+1)}")
        A(f"s_cbranch_vccnz {lr}")
        A.lab(lb)
        for i in range(32):
            A(f"v_fma_f32 {vr(vS+i)}, {vr(vS+i)}, {sr(sC)}, {vr(vM)}")
        for i in range(32):
            A(f"v_exp_f32 {vr(vS+i)}, {vr(vS+i)}")
        for i in range(16):
            A(f"v_add_f32 {vr(vL)}, {vr(vL)}, {vr(vS+2*i)}")
            A(f"v_cvt_pk_bf16_f32 {vr(vP+i)}, {vr(vS+2*i)}, {vr(vS+2*i+1)}")
            A(f"v_add_f32 {vr(vL)}, {vr(vL)}, {vr(vS+2*i+1)}")
        return lr, lb

    def rare(lr, lb):
        mx, o2, nm = vT, vT + 1, vT + 2
        A.lab(lr)
        A(f"v_mov_b32 {vr(o2)}, {vr(mx)}")
        A("s_nop 1")
        A(f"v_permlane32_swap_b32 {vr(mx)}, {vr(o2)}")
        A("s_nop 1")
        A(f"v_max_f32 {vr(mx)}, {vr(mx)}, {vr(o2)}")
        A(f"v_mul_f32 {vr(mx)}, {sr(sC)}, {vr(mx)}")
        A(f"v_sub_f32 {vr(nm)}, 0, {vr(mx)}")
        A(f"v_min_f32 {vr(nm)}, {vr(nm)}, {vr(vM)}")
        A(f"v_sub_f32 {vr(o2)}, {vr(nm)}, {vr(vM)}")
        A(f"v_exp_f32 {vr(o2)}, {vr(o2)}")
        A(f"v_mov_b32 {vr(vM)}, {vr(nm)}")
        A(f"v_mul_f32 {vr(vL)}, {vr(vL)}, {vr(o2)}")
        for i in range(64):
            A(f"v_mul_f32 {vr(vO+i)}, {vr(vO+i)}, {vr(o2)}")
        A(f"s_branch {lb}")

    def vstep(vm, issue):
        A(f"s_waitcnt vmcnt({vm})")
        A("s_barrier")
        for dt in range(4):
            A(f"v_add_u32 {vr(vTA+dt)}, {sr(sCUR)}, {vr(vTB+dt)}")
        ds, mf = [], []
        for ks in range(4):
            for dt in range(4):
                f = vF + 16 * ks + 4 * dt
                for e in range(2):
                    ds.append(f"ds_read_b64_tr_b16 {vr(f+2*e,2)}, {vr(vTA+dt)} offset:{4096*ks+2048*e}")
                mf.append((f"v_mfma_f32_32x32x16_bf16 {vr(vO+16*dt,16)}, {vr(f,4)}, {vr(vP+4*ks,4)}, {vr(vO+16*dt,16)}", len(ds) - 1))
        fill = {}
        pos = 1
        for kind, slot in issue:
            it = dma_item(kind, slot)
            fill.setdefault(pos, []).extend(it[:3]); pos += 1
            fill.setdefault(pos, []).extend(it[3:4]); pos += 1
            fill.setdefault(pos, []).extend(it[4:5]); pos += 1
            fill.setdefault(pos, []).extend(it[5:]); pos += 1
        sched(A, ds, mf, fill=fill)

    def adv():
        A(f"s_mov_b32 {sr(sFILL)}, {sr(sCUR)}")
        ring_adv(A, sCUR, 1)

    rares = []
    kstep(8, [("V", sFILL), ("K", sFILL2)])
    adv()
    rares.append(softmax())
    vstep(12, [("V", sFILL)])
    adv()
    A(f"s_mov_b32 {sr(sCNT)}, 15")
    A.lab("L_aloop")
    kstep(12, [("K", sFILL)])
    adv()
    rares.append(softmax())
    vstep(12, [("V", sFILL)])
    adv()
    A(f"s_sub_u32 {sr(sCNT)}, {sr(sCNT)}, 1"); A(f"s_cmp_lg_u32 {sr(sCNT)}, 0"); A("s_cbranch_scc1 L_aloop")
    stamp(A, 2, st)
    a, b2, R, hh = vT, vT + 1, vT + 2, vT + 3
    A(f"v_mov_b32 {vr(b2)}, {vr(vL)}")
    A(f"v_and_b32 {vr(R)}, 31, {vr(vLANE)}")
    A(f"v_lshrrev_b32 {vr(hh)}, 5, {vr(vLANE)}")
    A(f"v_permlane32_swap_b32 {vr(vL)}, {vr(b2)}")
    A(f"s_lshl_b32 {sr(sT0)}, {sr(sWAVE)}, 5")
    A(f"v_add_u32 {vr(R)}, {sr(sT0)}, {vr(R)}")
    A(f"v_add_f32 {vr(vL)}, {vr(vL)}, {vr(b2)}")
    A(f"v_cmp_gt_u32 vcc, 112, {vr(R)}")
    A(f"v_rcp_f32 {vr(vL)}, {vr(vL)}")
    A(f"s_mul_i32 {sr(sT0)}, {sr(sB)}, 112")
    A(f"v_add_u32 {vr(R)}, {sr(sT0)}, {vr(R)}")
    A(f"v_lshrrev_b32 {vr(a)}, 5, {vr(R)}")
    A(f"v_lshlrev_b32 {vr(a)}, 18, {vr(a)}")
    A(f"v_and_b32 {vr(R)}, 31, {vr(R)}")
    A(f"v_lshl_add_u32 {vr(a)}, {vr(R)}, 4, {vr(a)}")
    A(f"v_lshl_add_u32 {vr(a)}, {vr(hh)}, 9, {vr(a)}")
    A(f"v_mov_b32 {vr(b2)}, 0x7ff00000")
    A(f"v_cndmask_b32 {vr(a)}, {vr(b2)}, {vr(a)}, vcc")
    A(f"s_mul_i32 {sr(sT0)}, {sr(sBR)}, {28*256*1024}")
    A(f"s_lshl_b32 {sr(sT1)}, {sr(sH)}, 13")
    A(f"s_add_u32 {sr(sT0)}, {sr(sT0)}, {sr(sT1)}")
    A(f"s_add_u32 {sr(sT1)}, {sr(sT0)}, 4096")
    for s in range(8):
        for i in range(8):
            A(f"v_mul_f32 {vr(vO+8*s+i)}, {vr(vO+8*s+i)}, {vr(vL)}")
        for i in range(4):
            A(f"v_cvt_pk_bf16_f32 {vr(vS+4*s+i)}, {vr(vO+8*s+2*i)}, {vr(vO+8*s+2*i+1)}")
        so = sT0 if s < 4 else sT1
        A(f"buffer_store_dwordx4 {vr(vS+4*s,4)}, {vr(a)}, {sr(S_O,4)}, {sr(so)} offen offset:{(s&3)*1024} sc1")
    A("s_waitcnt vmcnt(0)")
    A("s_barrier")
    if o.fused:
        l = A.newlab("L_pub")
        A(f"s_cmp_lg_u32 {sr(sWAVE)}, 0"); A(f"s_cbranch_scc1 {l}")
        A(f"s_lshl_b32 {sr(sT0)}, {sr(sBR)}, 3"); A(f"s_add_u32 {sr(sT0)}, {sr(sT0)}, {sr(sB)}"); A(f"s_lshl_b32 {sr(sT0)}, {sr(sT0)}, 2")
        A(f"s_lshl_b32 {sr(sT1)}, 1, {sr(sH)}")
        A(f"v_mov_b32 {vr(vT)}, {sr(sT0)}"); A(f"v_mov_b32 {vr(vT+1)}, {sr(sT1)}")
        A(f"s_mov_b64 {sr(sEX,2)}, exec"); A("s_mov_b64 exec, 1")
        A(f"global_atomic_or {vr(vT)}, {vr(vT+1)}, {sr(sDBG,2)} sc1")
        A(f"s_mov_b64 exec, {sr(sEX,2)}")
        A.lab(l)
    stamp(A, 3, st)
    return rares, rare


gV_OA = 2
gV_WD = 3
gV_TR = 8
gV_POLL = 10
gV_PA = 12
gV_T = 14
gV_OF = 24
gV_WF = 88
gV_ACC = 120
gV_RED = 184


def gemm_setup(A, o):
    A(f"s_lshr_b32 {sr(sMT)}, {sr(sXCD)}, 2"); A(f"s_mul_i32 {sr(sMT)}, {sr(sMT)}, 7")
    A(f"s_lshr_b32 {sr(sT0)}, {sr(sJ)}, 2"); A(f"s_add_u32 {sr(sMT)}, {sr(sMT)}, {sr(sT0)}")
    A(f"s_and_b32 {sr(sNT)}, {sr(sXCD)}, 3"); A(f"s_lshl_b32 {sr(sNT)}, {sr(sNT)}, 2")
    A(f"s_and_b32 {sr(sT0)}, {sr(sJ)}, 3"); A(f"s_add_u32 {sr(sNT)}, {sr(sNT)}, {sr(sT0)}")
    A(f"s_lshl_b32 {sr(sT0)}, {sr(sMT)}, 2")
    A(f"s_mul_i32 {sr(sB0)}, {sr(sT0)}, 37"); A(f"s_lshr_b32 {sr(sB0)}, {sr(sB0)}, 8")
    A(f"s_add_u32 {sr(sT0)}, {sr(sT0)}, 3")
    A(f"s_mul_i32 {sr(sTWO)}, {sr(sT0)}, 37"); A(f"s_lshr_b32 {sr(sTWO)}, {sr(sTWO)}, 8")
    A(f"s_sub_u32 {sr(sTWO)}, {sr(sTWO)}, {sr(sB0)}")
    A(f"s_mul_i32 {sr(sWOFF)}, {sr(sWAVE)}, 20480")
    A(f"v_lshlrev_b32 {vr(gV_OA)}, 4, {vr(vLANE)}")
    t0, t1, t2 = gV_T, gV_T + 1, gV_T + 2
    A(f"v_lshrrev_b32 {vr(t0)}, 3, {vr(vLANE)}")
    A(f"v_bfe_u32 {vr(t1)}, {vr(vLANE)}, 4, 1")
    A(f"v_lshlrev_b32 {vr(t1)}, 2, {vr(t1)}")
    A(f"v_and_b32 {vr(t2)}, 7, {vr(vLANE)}")
    A(f"v_xor_b32 {vr(t1)}, {vr(t1)}, {vr(t2)}")
    A(f"v_lshlrev_b32 {vr(t1)}, 4, {vr(t1)}")
    A(f"v_lshl_add_u32 {vr(t0)}, {vr(t0)}, 11, {vr(t1)}")
    for t in range(4):
        A(f"v_add_u32 {vr(gV_WD+t)}, {8*t*2048 - 1024*t}, {vr(t0)}")
    hh, r, c, x = gV_T, gV_T + 1, gV_T + 2, gV_T + 3
    A(f"v_lshrrev_b32 {vr(hh)}, 5, {vr(vLANE)}")
    A(f"v_bfe_u32 {vr(r)}, {vr(vLANE)}, 2, 2")
    A(f"v_and_b32 {vr(c)}, 1, {vr(vLANE)}"); A(f"v_lshlrev_b32 {vr(c)}, 4, {vr(c)}")
    A(f"v_bfe_u32 {vr(x)}, {vr(vLANE)}, 1, 1"); A(f"v_lshl_add_u32 {vr(c)}, {vr(x)}, 3, {vr(c)}")
    A(f"v_bfe_u32 {vr(x)}, {vr(vLANE)}, 4, 1"); A(f"v_lshl_add_u32 {vr(c)}, {vr(x)}, 5, {vr(c)}")
    A(f"v_lshl_add_u32 {vr(c)}, {vr(hh)}, 10, {vr(c)}")
    A(f"v_lshl_add_u32 {vr(c)}, {vr(r)}, 7, {vr(c)}")
    A(f"v_add_u32 {vr(c)}, {sr(sWOFF)}, {vr(c)}")
    A(f"v_lshrrev_b32 {vr(r)}, 1, {vr(r)}")
    for ct in range(2):
        A(f"v_xor_b32 {vr(x)}, {ct}, {vr(r)}")
        A(f"v_lshl_add_u32 {vr(gV_TR+ct)}, {vr(x)}, 6, {vr(c)}")


def gemm_loads(i, sc):
    out = []
    fl = " sc1" if sc else ""
    for rt in range(2):
        for ks in range(2):
            f = gV_OF + 16 * i + 8 * rt + 4 * ks
            so = sOOFF if rt == 0 else sT4
            if rt == 1 and ks == 0:
                out.append(f"s_add_u32 {sr(sT4)}, {sr(sOOFF)}, 0x40000")
            out.append(f"buffer_load_dwordx4 {vr(f,4)}, {vr(gV_OA)}, {sr(S_O,4)}, {sr(so)} offen offset:{(2*(i&1)+ks)*1024}{fl}")
    out.append(f"s_add_u32 m0, {sr(sWOFF)}, {4096*i}")
    out.append("s_nop 0")
    for t in range(4):
        out.append(f"buffer_load_dwordx4 {vr(gV_WD+t)}, {sr(S_WO,4)}, {sr(sWOOFF)} offen offset:{t*1024} lds")
    out.append(f"s_add_u32 {sr(sWOOFF)}, {sr(sWOOFF)}, 0x10000")
    if i == 1:
        out.append(f"s_add_u32 {sr(sOOFF)}, {sr(sOOFF)}, 4096")
    return out


def gemm_tile(A, o, tag):
    fused = o.fused
    A(f"s_mul_i32 {sr(sT0)}, {sr(sBR)}, 40")
    A(f"s_add_u32 {sr(sKA)}, s0, {sr(sT0)}"); A(f"s_addc_u32 {sr(sKA+1)}, s1, 0")
    A(f"s_load_dwordx2 s[62:63], {sr(sKA,2)}, 32")
    A(f"s_lshl_b32 {sr(sREM)}, 0x11111111, {sr(sWAVE)}")
    A(f"s_mul_i32 {sr(sOB)}, {sr(sBR)}, 28"); A(f"s_lshl_b32 {sr(sT0)}, {sr(sMT)}, 1"); A(f"s_add_u32 {sr(sOB)}, {sr(sOB)}, {sr(sT0)}")
    A(f"s_lshl_b32 {sr(sOB)}, {sr(sOB)}, 18")
    A(f"s_lshl_b32 {sr(sT0)}, {sr(sBR)}, 3"); A(f"s_add_u32 {sr(sT0)}, {sr(sT0)}, {sr(sB0)}"); A(f"s_lshl_b32 {sr(sT0)}, {sr(sT0)}, 2")
    A(f"v_mov_b32 {vr(gV_PA)}, {sr(sT0)}")
    for i in range(64):
        A(f"v_mov_b32 {vr(gV_ACC+i)}, 0")
    A("s_waitcnt lgkmcnt(0)")
    A(f"s_lshl_b32 {sr(sT0)}, {sr(sNT)}, 7")
    srd(A, S_WO, 62, 63, sT0, "0")
    A(f"s_sub_u32 {sr(S_WO+2)}, 0x800000, {sr(sT0)}")
    Lfill, Lloop, Lspin, Ldone, Lgo = [f"L_{n}_{tag}" for n in ("fill", "loop", "spin", "done", "go")]

    def ready_from_poll():
        A(f"v_readfirstlane_b32 {sr(sRDY)}, {vr(gV_POLL)}")
        A(f"v_readfirstlane_b32 {sr(sT1)}, {vr(gV_POLL+1)}")
        A(f"s_cmp_eq_u32 {sr(sTWO)}, 0")
        A(f"s_cselect_b32 {sr(sT1)}, -1, {sr(sT1)}")
        A(f"s_and_b32 {sr(sRDY)}, {sr(sRDY)}, {sr(sT1)}")

    def pick():
        A(f"s_ff1_i32_b32 {sr(sNXT)}, {sr(sT2)}")
        A(f"s_bitset0_b32 {sr(sREM)}, {sr(sNXT)}")
        A(f"s_lshl_b32 {sr(sOOFF)}, {sr(sNXT)}, 13"); A(f"s_add_u32 {sr(sOOFF)}, {sr(sOOFF)}, {sr(sOB)}")
        A(f"s_lshl_b32 {sr(sWOOFF)}, {sr(sNXT)}, 18")

    A.lab(Lfill)
    if fused:
        A(f"s_mov_b32 {sr(sSPIN)}, 0")
        A.lab(Lspin)
        A(f"global_load_dwordx2 {vr(gV_POLL,2)}, {vr(gV_PA)}, {sr(sDBG,2)} sc1")
        A("s_waitcnt vmcnt(0)")
        ready_from_poll()
        A(f"s_and_b32 {sr(sT2)}, {sr(sRDY)}, {sr(sREM)}")
        A(f"s_cbranch_scc1 {Lgo}")
        A("s_sleep 8")
        A(f"s_add_u32 {sr(sSPIN)}, {sr(sSPIN)}, 1")
        A(f"s_cmp_lt_u32 {sr(sSPIN)}, 0x4000")
        A(f"s_cbranch_scc1 {Lspin}")
        A(f"s_mov_b32 {sr(sT2)}, {sr(sREM)}")
        A.lab(Lgo)
    else:
        A(f"s_mov_b32 {sr(sRDY)}, -1")
        A(f"s_mov_b32 {sr(sT2)}, {sr(sREM)}")
    pick()
    if fused:
        A(f"global_load_dwordx2 {vr(gV_POLL,2)}, {vr(gV_PA)}, {sr(sDBG,2)} sc1")
    for i in range(4):
        for s in gemm_loads(i, fused): A(s)
    A.lab(Lloop)
    A("s_waitcnt vmcnt(24)")
    if fused:
        ready_from_poll()
    A(f"s_and_b32 {sr(sT2)}, {sr(sRDY)}, {sr(sREM)}")
    A(f"s_cselect_b32 {sr(sCURH)}, 1, 0")
    ln, lj = A.newlab("L_none"), A.newlab("L_join")
    A(f"s_cbranch_scc0 {ln}")
    pick()
    A(f"s_branch {lj}")
    A.lab(ln)
    A(f"s_mov_b32 {sr(sOOFF)}, 0x40000000"); A(f"s_mov_b32 {sr(sWOOFF)}, 0x40000000")
    A.lab(lj)
    for i in range(4):
        if i > 0:
            A(f"s_waitcnt vmcnt({25 if fused else 24})")
        ds, mf = [], []
        for ks in range(2):
            for ct in range(2):
                f = gV_WF + 16 * (i & 1) + 8 * ks + 4 * ct
                for e in range(2):
                    ds.append(f"ds_read_b64_tr_b16 {vr(f+2*e,2)}, {vr(gV_TR+ct)} offset:{4096*i + 2048*ks + 512*e}")
                for rt in range(2):
                    acc = gV_ACC + 32 * rt + 16 * ct
                    mf.append((f"v_mfma_f32_32x32x16_bf16 {vr(acc,16)}, {vr(f,4)}, {vr(gV_OF+16*i+8*rt+4*ks,4)}, {vr(acc,16)}", len(ds) - 1))
        sched(A, ds, mf)
        if i == 0 and fused:
            A(f"global_load_dwordx2 {vr(gV_POLL,2)}, {vr(gV_PA)}, {sr(sDBG,2)} sc1")
        for s in gemm_loads(i, fused): A(s)
    A(f"s_cmp_lg_u32 {sr(sCURH)}, 0"); A(f"s_cbranch_scc1 {Lloop}")
    A(f"s_cmp_lg_u32 {sr(sREM)}, 0"); A(f"s_cbranch_scc1 {Lfill}")
    A("s_waitcnt vmcnt(0)")
    A("s_barrier")
    t0, t1, t2 = gV_T, gV_T + 1, gV_T + 2
    for ow in range(4):
        ls = A.newlab("L_skip")
        A(f"s_cmp_eq_u32 {sr(sWAVE)}, {ow}"); A(f"s_cbranch_scc1 {ls}")
        A(f"s_sub_u32 {sr(sT0)}, {sr(sWAVE)}, {ow+1}"); A(f"s_and_b32 {sr(sT0)}, {sr(sT0)}, 3"); A(f"s_lshl_b32 {sr(sT0)}, {sr(sT0)}, 12")
        A(f"v_add_u32 {vr(t0)}, {sr(sT0)}, {vr(gV_OA)}")
        for qd in range(4):
            A(f"ds_write_b128 {vr(t0)}, {vr(gV_ACC+16*ow+4*qd,4)} offset:{ow*12288 + qd*1024}")
        A.lab(ls)
    A("s_waitcnt lgkmcnt(0)")
    A("s_barrier")
    A(f"s_mul_i32 {sr(sT0)}, {sr(sWAVE)}, 12288")
    A(f"v_add_u32 {vr(t0)}, {sr(sT0)}, {vr(gV_OA)}")
    for sidx in range(3):
        for qd in range(4):
            A(f"ds_read_b128 {vr(gV_RED+16*sidx+4*qd,4)}, {vr(t0)} offset:{sidx*4096 + qd*1024}")
    lj = A.newlab("L_own")
    for ow in range(4):
        ls = A.newlab("L_no")
        A(f"s_cmp_eq_u32 {sr(sWAVE)}, {ow}"); A(f"s_cbranch_scc0 {ls}")
        for i in range(16):
            A(f"v_mov_b32 {vr(gV_WF+i)}, {vr(gV_ACC+16*ow+i)}")
        A(f"s_branch {lj}")
        A.lab(ls)
    A.lab(lj)
    A(f"s_lshr_b32 {sr(sT0)}, {sr(sWAVE)}, 1"); A(f"s_lshl_b32 {sr(sT0)}, {sr(sT0)}, 5")
    A(f"s_lshl_b32 {sr(sT1)}, {sr(sMT)}, 6"); A(f"s_add_u32 {sr(sT0)}, {sr(sT0)}, {sr(sT1)}"); A(f"s_lshl_b32 {sr(sT0)}, {sr(sT0)}, 12")
    A(f"s_lshl_b32 {sr(sT1)}, {sr(sBR)}, 11"); A(f"s_add_u32 {sr(sT0)}, {sr(sT0)}, {sr(sT1)}")
    A(f"s_lshl_b32 {sr(sT1)}, {sr(sNT)}, 7"); A(f"s_add_u32 {sr(sT0)}, {sr(sT0)}, {sr(sT1)}")
    A(f"s_and_b32 {sr(sT1)}, {sr(sWAVE)}, 1"); A(f"s_lshl_b32 {sr(sT1)}, {sr(sT1)}, 6"); A(f"s_add_u32 {sr(sT0)}, {sr(sT0)}, {sr(sT1)}")
    A(f"v_and_b32 {vr(t1)}, 31, {vr(vLANE)}"); A(f"v_lshlrev_b32 {vr(t1)}, 12, {vr(t1)}")
    A(f"v_lshrrev_b32 {vr(t2)}, 5, {vr(vLANE)}"); A(f"v_lshl_add_u32 {vr(t1)}, {vr(t2)}, 4, {vr(t1)}")
    A("s_waitcnt lgkmcnt(0)")
    for sidx in range(3):
        for i in range(16):
            A(f"v_add_f32 {vr(gV_WF+i)}, {vr(gV_WF+i)}, {vr(gV_RED+16*sidx+i)}")
    for i in range(8):
        A(f"v_cvt_pk_bf16_f32 {vr(gV_WF+16+i)}, {vr(gV_WF+2*i)}, {vr(gV_WF+2*i+1)}")
    for t in range(2):
        A(f"buffer_store_dwordx4 {vr(gV_WF+16+4*t,4)}, {vr(t1)}, {sr(S_OUT,4)}, {sr(sT0)} offen offset:{32*t}")
    A("s_barrier")


def descriptor(A, name):
    A(".p2align 6")
    A(f".amdhsa_kernel {name}")
    A("  .amdhsa_next_free_vgpr 256"); A("  .amdhsa_next_free_sgpr 96"); A("  .amdhsa_accum_offset 256")
    A("  .amdhsa_group_segment_fixed_size 0"); A("  .amdhsa_kernarg_size 104"); A("  .amdhsa_user_sgpr_count 2")
    A("  .amdhsa_user_sgpr_kernarg_segment_ptr 1"); A("  .amdhsa_system_sgpr_workgroup_id_x 1")
    A(".end_amdhsa_kernel")


def entry(A, name):
    A(f".globl {name}"); A(".p2align 8"); A(f".type {name},@function"); A.lab(name)


def out_srd(A):
    A(f"s_load_dwordx2 s[62:63], s[0:1], 80")
    A("s_waitcnt lgkmcnt(0)")
    srd(A, S_OUT, 62, 63, None, str(896 * 4096))


def build(o):
    A = Asm()
    for l in HEADER.splitlines(): A(l)
    if o.fused:
        A(f"; @launch grid=(512,1,1) block=(256,1,1) lds={LDS}")
    else:
        A(f"; @launch kernel=attn_kernel grid=(512,1,1) block=(256,1,1) lds={LDS}")
        A(f"; @launch kernel=proj_kernel grid=(512,1,1) block=(256,1,1) lds={LDS}")
    A('.amdgcn_target "amdgcn-amd-amdhsa--gfx950"'); A(".text")
    entry(A, KN if o.fused else "attn_kernel")
    A(f"s_cmp_ge_u32 s2, {256 if o.onlyA else 512}"); A("s_cbranch_scc1 L_exit")
    rares, rare = attention(A, o)
    if o.fused:
        A(f"s_cmp_lg_u32 {sr(sBR)}, 0"); A("s_cbranch_scc1 L_fin")
        A(f"s_cmp_ge_u32 {sr(sJ)}, 28"); A("s_cbranch_scc1 L_fin")
        if o.prio: A("s_setprio 0")
        out_srd(A)
        gemm_setup(A, o)
        A.lab("L_tile")
        gemm_tile(A, o, "g")
        if o.stamps:
            l = A.newlab("L_s4")
            A(f"s_cmp_lg_u32 {sr(sBR)}, 0"); A(f"s_cbranch_scc1 {l}"); stamp(A, 4, True); A.lab(l)
            stamp(A, 5, True)
        A(f"s_add_u32 {sr(sBR)}, {sr(sBR)}, 1"); A(f"s_cmp_lt_u32 {sr(sBR)}, 2"); A("s_cbranch_scc1 L_tile")
    A.lab("L_fin")
    write_stamps(A, o.stamps, 6, 0)
    A.lab("L_exit")
    A("s_endpgm")
    for lr, lb in rares:
        rare(lr, lb)
    if not o.fused:
        entry(A, "proj_kernel")
        A("s_cmp_ge_u32 s2, 512"); A("s_cbranch_scc1 L_exit2")
        A(f"s_lshr_b32 {sr(sBR)}, s2, 8")
        common_ids(A)
        A(f"s_cmp_ge_u32 {sr(sJ)}, 28"); A("s_cbranch_scc1 L_exit2")
        out_srd(A)
        srd(A, S_O, sWS, sWS + 1, None, str(O_BYTES))
        gemm_setup(A, o)
        gemm_tile(A, o, "g")
        A.lab("L_exit2")
        A("s_endpgm")
    A('.section .rodata,"a"')
    if o.fused:
        descriptor(A, KN)
    else:
        descriptor(A, "attn_kernel"); descriptor(A, "proj_kernel")
    return A.text()


if __name__ == "__main__":
    ap = argparse.ArgumentParser()
    ap.add_argument("-o", default="concat_heads__mha_block_cached__gqa_block_cached__near_ridge.s")
    ap.add_argument("--split", action="store_true")
    ap.add_argument("--stamps", action="store_true")
    ap.add_argument("--noprio", action="store_true")
    ap.add_argument("--hbits", type=int, default=2)
    ap.add_argument("--rot", type=int, default=1)
    ap.add_argument("--bflip", action="store_true")
    ap.add_argument("--nt", default="KV")
    ap.add_argument("--qonly", action="store_true")
    ap.add_argument("--onlyA", action="store_true")
    a = ap.parse_args()
    NT_KINDS = a.nt
    a.fused = not a.split
    a.prio = not a.noprio
    open(a.o, "w").write(build(a))
```

```python
import sys, argparse, struct, math

KN = "concat_heads__mha_block_cached__gqa_block_cached__near_ridge_kernel"
WS_BYTES = 305659904
O_BYTES = 16 * 4 * 256 * 1024
X_OFF = O_BYTES
X_BYTES = 16 * 8 * 4 * 4 * 4 * 4096
SLOT = 16384
LDS = 5 * SLOT
f32 = lambda x: struct.unpack("<I", struct.pack("<f", x))[0]
C_SCALE = f32(math.log2(math.e) / math.sqrt(128.0))
THR = f32(8.0)
OOB = 0x40000000
DBG_RDY, DBG_XCH, DBG_TQ, DBG_TG = 0, 64, 128, 160

HEADER = """\
; The first 256 workgroups also run the output projection: 112x128 tiles over 8 heads, partial sums exchanged via ws.
"""


class Asm:
    def __init__(self):
        self.L = []
        self.uid = 0
        self.q = []

    def __call__(self, s):
        self.L.append(s)

    def lab(self, name):
        self.L.append(name + ":")

    def newlab(self, p="L"):
        self.uid += 1
        return f"{p}_{self.uid}"

    def ds(self, txt, tag):
        assert len(self.q) < 15, "too many LDS ops outstanding"
        self.L.append(txt); self.q.append(tag)

    def need(self, tags):
        pos = max([i for i, t in enumerate(self.q) if t in tags], default=-1)
        if pos >= 0:
            self.L.append(f"s_waitcnt lgkmcnt({len(self.q) - pos - 1})")
            self.q = self.q[pos + 1:]

    def emit(self, it):
        if isinstance(it, str):
            self(it)
        elif it[0] == "ds":
            self.ds(it[1], it[2])
        elif it[0] == "bar":
            self(f"s_waitcnt vmcnt({it[1]}) lgkmcnt(0)"); self.q = []
            self("s_barrier")
        elif it[0] == "lab":
            self.lab(it[1])
        elif it[0] == "need":
            self.need(it[1])

    def run(self, mf, after, before=()):
        for it in before: self.emit(it)
        for m, (txt, tags) in enumerate(mf):
            self.need(tags)
            self(txt)
            for it in after.get(m, []): self.emit(it)

    def text(self):
        return "\n".join(self.L) + "\n"


def vr(a, n=1):
    return f"v{a}" if n == 1 else f"v[{a}:{a+n-1}]"


def sr(a, n=1):
    return f"s{a}" if n == 1 else f"s[{a}:{a+n-1}]"


def mfma(d, a, b, c):
    return f"v_mfma_f32_32x32x16_bf16 {vr(d,16)}, {vr(a,4)}, {vr(b,4)}, {c if c == '0' else vr(c,16)}"


def put(after, m, items):
    after.setdefault(m, []).extend(items)


S_X, S_W, S_K, S_V, S_O, S_XC, S_OUT = 4, 8, 12, 16, 20, 24, 28
sWAVE, sBR, sB, sH, sHG, sHL = 32, 33, 34, 35, 38, 39
sKA = 36
sDBG = 40
sWS = 42
sT0, sT1, sT2, sT3 = 44, 45, 46, 47
sCUR, sCUR2, sFILL, sFILL2 = 48, 49, 50, 51
sWOFF = 52
sCNT = 53
sXO, sWO_ = 54, 55
sKO, sVO = 56, 57
sC, sTHR = 58, 59
sEX = 60
sLD = 62
sST = 64
sW2K = 80
sPEND = 81
sPH = 82
sSPIN = 83
sOO = 84
sOBASE = 85
sWBASE = 86
sI = 87
sPTR = 94

vLANE = 1
vKA = 2
vTA = 10
vTB = 14
vKB = 18
vDV = 19
vDK = 20
vM, vL, vFAC = 22, 23, 32
vDX = 24
vDW = 28
vT = 34
vQ = 40
vS = 72
vP = 104
vF = 120
vO = 184
vOF = 40
vOA = 33


def ring_adv(s, n):
    return [f"s_add_u32 {sr(s)}, {sr(s)}, {n*SLOT}", f"s_cmp_ge_u32 {sr(s)}, {LDS}",
            f"s_cselect_b32 {sr(sT0)}, {LDS}, 0", f"s_sub_u32 {sr(s)}, {sr(s)}, {sr(sT0)}"]


def dma_xw(o, kind, slot):
    srd, so, va = (S_X, sXO, vDX) if kind == "X" else (S_W, sWO_, vDW)
    fl = " nt" if kind in o.nt else ""
    m0 = f"s_add_u32 m0, {sr(sWOFF)}, {slot[1]}" if isinstance(slot, tuple) else f"s_add_u32 m0, {sr(slot)}, {sr(sWOFF)}"
    g = [[f"buffer_load_dwordx4 {vr(va+t)}, {sr(srd,4)}, {sr(so)} offen offset:{t*1024}{fl} lds"] for t in range(4)]
    g[0] = [m0, "s_nop 0"] + g[0]
    if kind == "X":
        g[3] += [f"s_add_u32 {sr(sXO)}, {sr(sXO)}, 128", f"s_and_b32 {sr(sXO)}, {sr(sXO)}, 2047"]
    elif kind == "W":
        g[3] += [f"s_add_u32 {sr(sWO_)}, {sr(sWO_)}, 0x80000", f"s_and_b32 {sr(sWO_)}, {sr(sWO_)}, 0x7fffff"]
    else:
        g[3] += [f"s_add_u32 {sr(sWO_)}, {sr(sWO_)}, 0x20000", f"s_and_b32 {sr(sWO_)}, {sr(sWO_)}, 0x1fffff"]
    return g


def dma_kv(o, slot_bytes, first=False):
    flk = " nt" if "K" in o.nt else ""
    flv = " nt" if "V" in o.nt else ""
    vo = sT1 if first else sVO
    g = [[f"s_add_u32 m0, {sr(sW2K)}, {slot_bytes}", "s_nop 0",
          f"buffer_load_dwordx4 {vr(vDK)}, {sr(S_K,4)}, {sr(sKO)} offen{flk} lds"],
         [f"buffer_load_dwordx4 {vr(vDK+1)}, {sr(S_K,4)}, {sr(sKO)} offen offset:1024{flk} lds",
          f"s_add_u32 {sr(sKO)}, {sr(sKO)}, 8192"],
         [f"s_add_u32 m0, {sr(sW2K)}, {slot_bytes+8192}", f"s_mov_b32 {sr(sT1)}, {OOB}" if first else "s_nop 0",
          f"buffer_load_dwordx4 {vr(vDV)}, {sr(S_V,4)}, {sr(vo)} offen{flv} lds"],
         [f"buffer_load_dwordx4 {vr(vDV)}, {sr(S_V,4)}, {sr(vo)} offen offset:1024{flv} lds"]]
    if not first:
        g[3].append(f"s_add_u32 {sr(sVO)}, {sr(sVO)}, 8192")
    return g


def stamp(A, i, on):
    if on:
        A(f"s_memrealtime {sr(sST + 2*i, 2)}")
        A("s_waitcnt lgkmcnt(0)")
        A.q = []


def write_stamps(A):
    l = A.newlab("L_st")
    A(f"s_mov_b32 {sr(sT0)}, {WS_BYTES - 512*64}")
    A(f"s_lshl_b32 {sr(sT1)}, s2, 6")
    A(f"s_add_u32 {sr(sT0)}, {sr(sT0)}, {sr(sT1)}")
    A(f"s_add_u32 {sr(sPTR)}, {sr(sWS)}, {sr(sT0)}")
    A(f"s_addc_u32 {sr(sPTR+1)}, {sr(sWS+1)}, 0")
    A(f"v_mov_b32 v2, 0")
    for i in range(16):
        A(f"v_mov_b32 v{4+i}, {sr(sST+i)}")
    A(f"v_cmp_eq_u32 vcc, 0, v0")
    A(f"s_and_saveexec_b64 {sr(sEX,2)}, vcc")
    A(f"s_cbranch_execz {l}")
    for i in range(4):
        A(f"global_store_dwordx4 v2, v[{4+4*i}:{7+4*i}], {sr(sPTR,2)} offset:{16*i}")
    A.lab(l)
    A(f"s_mov_b64 exec, {sr(sEX,2)}")


def srd(A, d, lo, add, nrec):
    if add is None:
        A(f"s_mov_b32 {sr(d)}, {sr(lo)}"); A(f"s_mov_b32 {sr(d+1)}, {sr(lo+1)}")
    else:
        A(f"s_add_u32 {sr(d)}, {sr(lo)}, {add}"); A(f"s_addc_u32 {sr(d+1)}, {sr(lo+1)}, 0")
    A(f"s_mov_b32 {sr(d+2)}, {nrec}")
    A(f"s_mov_b32 {sr(d+3)}, 0x20000")


def atomic_dbg(A, op, off_s, val_s):
    A(f"v_mov_b32 {vr(vT)}, {sr(off_s)}"); A(f"v_mov_b32 {vr(vT+1)}, {sr(val_s)}")
    A(f"s_mov_b64 {sr(sEX,2)}, exec"); A("s_mov_b64 exec, 1")
    A(f"global_atomic_{op} {vr(vT)}, {vr(vT+1)}, {sr(sDBG,2)} sc1")
    A(f"s_mov_b64 exec, {sr(sEX,2)}")


def poll(A, off_s, shift_s, mask, want, sleep):
    ls, lg = A.newlab("L_spin"), A.newlab("L_go")
    A(f"v_mov_b32 {vr(vT)}, {sr(off_s)}")
    A(f"s_mov_b32 {sr(sSPIN)}, 0")
    A(f"s_mov_b64 {sr(sEX,2)}, exec"); A("s_mov_b64 exec, 1")
    A.lab(ls)
    A(f"global_load_dword {vr(vT+1)}, {vr(vT)}, {sr(sDBG,2)} sc1")
    A("s_waitcnt vmcnt(0)")
    A(f"v_readfirstlane_b32 {sr(sT3)}, {vr(vT+1)}")
    A(f"s_add_u32 {sr(sSPIN)}, {sr(sSPIN)}, 1")
    A(f"s_lshr_b32 {sr(sT3)}, {sr(sT3)}, {sr(shift_s)}")
    A(f"s_and_b32 {sr(sT3)}, {sr(sT3)}, {mask}")
    A(f"s_cmp_eq_u32 {sr(sT3)}, {want}")
    A(f"s_cbranch_scc1 {lg}")
    A(f"s_sleep {sleep}")
    A(f"s_cmp_lt_u32 {sr(sSPIN)}, 0x2000")
    A(f"s_cbranch_scc1 {ls}")
    A.lab(lg)
    A(f"s_mov_b64 exec, {sr(sEX,2)}")


def tr_bases(A, dst, hshift, add=None):
    hh, r, c, x = vT, vT + 1, vT + 2, vT + 3
    A(f"v_lshrrev_b32 {vr(hh)}, 5, {vr(vLANE)}")
    A(f"v_bfe_u32 {vr(r)}, {vr(vLANE)}, 2, 2")
    A(f"v_and_b32 {vr(c)}, 1, {vr(vLANE)}"); A(f"v_lshlrev_b32 {vr(c)}, 4, {vr(c)}")
    A(f"v_bfe_u32 {vr(x)}, {vr(vLANE)}, 1, 1"); A(f"v_lshl_add_u32 {vr(c)}, {vr(x)}, 3, {vr(c)}")
    A(f"v_bfe_u32 {vr(x)}, {vr(vLANE)}, 4, 1"); A(f"v_lshl_add_u32 {vr(c)}, {vr(x)}, 5, {vr(c)}")
    A(f"v_lshl_add_u32 {vr(c)}, {vr(hh)}, {hshift}, {vr(c)}")
    A(f"v_lshl_add_u32 {vr(c)}, {vr(r)}, 8, {vr(c)}")
    for dt in range(4):
        A(f"v_xor_b32 {vr(x)}, {dt}, {vr(r)}")
        A(f"v_lshl_add_u32 {vr(dst+dt)}, {vr(x)}, 6, {vr(c)}")


def w_dma_offsets(A, rshift):
    l4, t0, t1 = vT, vT + 1, vT + 2
    A(f"v_lshrrev_b32 {vr(l4)}, 4, {vr(vLANE)}")
    A(f"v_lshlrev_b32 {vr(t0)}, 2, {vr(l4)}")
    A(f"v_and_b32 {vr(t1)}, 15, {vr(vLANE)}")
    A(f"v_xor_b32 {vr(t0)}, {vr(t0)}, {vr(t1)}")
    A(f"v_lshlrev_b32 {vr(t0)}, 4, {vr(t0)}")
    A(f"v_lshl_add_u32 {vr(t0)}, {vr(l4)}, {rshift}, {vr(t0)}")
    A(f"s_lshl_b32 {sr(sT3)}, {sr(sWAVE)}, {rshift+4}")
    A(f"v_add_u32 {vr(t0)}, {sr(sT3)}, {vr(t0)}")
    for t in range(4):
        A(f"v_add_u32 {vr(vDW+t)}, {(4*t << rshift) - 1024*t}, {vr(t0)}")


def prologue(A, o):
    A(f"s_lshr_b32 {sr(sPH)}, s2, 8")
    A(f"s_and_b32 {sr(sI)}, s2, 255")
    A(f"s_bfe_u32 {sr(sBR)}, s2, 0x10002")
    A(f"s_mul_i32 {sr(sT0)}, {sr(sBR)}, 40")
    A(f"s_add_u32 {sr(sKA)}, s0, {sr(sT0)}"); A(f"s_addc_u32 {sr(sKA+1)}, s1, 0")
    A(f"s_load_dwordx2 s[64:65], {sr(sKA,2)}, 0")
    A(f"s_load_dwordx2 s[66:67], {sr(sKA,2)}, 8")
    A(f"s_load_dwordx2 s[68:69], {sr(sKA,2)}, 16")
    A(f"s_load_dwordx2 s[70:71], {sr(sKA,2)}, 24")
    A(f"s_load_dwordx2 {sr(sDBG,2)}, s[0:1], 88")
    A(f"s_load_dwordx2 {sr(sWS,2)}, s[0:1], 96")
    A(f"v_lshrrev_b32 v2, 6, v0")
    A(f"v_and_b32 {vr(vLANE)}, 63, v0")
    A(f"v_readfirstlane_b32 {sr(sWAVE)}, v2")
    A(f"s_and_b32 {sr(sHG)}, s2, 3")
    A(f"s_bfe_u32 {sr(sHL)}, s2, 0x30003")
    A(f"s_bfe_u32 {sr(sB)}, s2, 0x30006")
    A(f"s_lshl_b32 {sr(sH)}, {sr(sHG)}, 3"); A(f"s_add_u32 {sr(sH)}, {sr(sH)}, {sr(sHL)}")
    A(f"s_add_u32 {sr(sT1)}, {sr(sB)}, {sr(sHL)}")
    if o.rot == 2:
        A(f"s_add_u32 {sr(sT1)}, {sr(sT1)}, {sr(sB)}"); A(f"s_add_u32 {sr(sT1)}, {sr(sT1)}, {sr(sPH)}")
    A(f"s_and_b32 {sr(sT1)}, {sr(sT1)}, 7")
    if o.rot == 0:
        A(f"s_mov_b32 {sr(sT1)}, 0")
    A(f"s_lshl_b32 {sr(sXO)}, {sr(sT1)}, 8")
    A(f"s_lshl_b32 {sr(sWO_)}, {sr(sT1)}, 20")
    A(f"s_mov_b32 {sr(sKO)}, 0"); A(f"s_mov_b32 {sr(sVO)}, 0"); A(f"s_mov_b32 {sr(sPEND)}, 0")
    A(f"s_lshl_b32 {sr(sWOFF)}, {sr(sWAVE)}, 12")
    A(f"s_lshl_b32 {sr(sW2K)}, {sr(sWAVE)}, 11")
    A(f"s_mov_b32 {sr(sC)}, {C_SCALE:#x}"); A(f"s_mov_b32 {sr(sTHR)}, {THR:#x}")
    l3, l4, t0, t1 = vT, vT + 1, vT + 2, vT + 3
    A(f"v_lshrrev_b32 {vr(l3)}, 3, {vr(vLANE)}")
    A(f"v_lshrrev_b32 {vr(l4)}, 4, {vr(vLANE)}")
    A(f"s_lshl_b32 {sr(sT2)}, {sr(sWAVE)}, 16")
    A(f"v_and_b32 {vr(t1)}, 7, {vr(vLANE)}")
    for t in range(4):
        A(f"v_add_u32 {vr(t0)}, {(4*t) & 7}, {vr(l4)}")
        A(f"v_xor_b32 {vr(t0)}, {vr(t0)}, {vr(t1)}")
        A(f"v_lshlrev_b32 {vr(t0)}, 4, {vr(t0)}")
        A(f"v_lshl_add_u32 {vr(t0)}, {vr(l3)}, 11, {vr(t0)}")
        A(f"v_add_u32 {vr(t0)}, {8*t*2048 - 1024*t}, {vr(t0)}")
        A(f"v_add_u32 {vr(vDX+t)}, {sr(sT2)}, {vr(t0)}")
    w_dma_offsets(A, 13)
    A("s_waitcnt lgkmcnt(0)")
    A(f"s_mul_i32 {sr(sT0)}, {sr(sB)}, 229376")
    srd(A, S_X, 64, sr(sT0), "229376")
    A(f"s_lshl_b32 {sr(sT0)}, {sr(sH)}, 8")
    srd(A, S_W, 70, sr(sT0), "0")
    A(f"s_sub_u32 {sr(S_W+2)}, 0x800000, {sr(sT0)}")
    A(f"s_lshl_b32 {sr(sT0)}, {sr(sB)}, 5"); A(f"s_add_u32 {sr(sT0)}, {sr(sT0)}, {sr(sH)}"); A(f"s_lshl_b32 {sr(sT0)}, {sr(sT0)}, 18")
    srd(A, S_K, 66, sr(sT0), "0x40000")
    srd(A, S_V, 68, sr(sT0), "0x40000")
    srd(A, S_O, sWS, None, str(O_BYTES))


def qproj(A, o):
    for it in range(5):
        for g in dma_xw(o, "XW"[it & 1], ("imm", it * SLOT)):
            for s in g: A(s)
    l4, t0, t1 = vT, vT + 1, vT + 2
    A(f"v_lshrrev_b32 {vr(l4)}, 4, {vr(vLANE)}")
    A(f"v_and_b32 {vr(t1)}, 15, {vr(vLANE)}")
    A(f"v_lshlrev_b32 {vr(t0)}, 2, {vr(l4)}")
    A(f"v_xor_b32 {vr(t0)}, {vr(t0)}, {vr(t1)}")
    A(f"v_lshlrev_b32 {vr(t0)}, 4, {vr(t0)}")
    A(f"v_lshl_add_u32 {vr(t0)}, {vr(l4)}, 8, {vr(t0)}")
    A(f"v_add_u32 {vr(vDV)}, {sr(sW2K)}, {vr(t0)}")
    A(f"s_and_b32 {sr(sT0)}, {sr(sWAVE)}, 1"); A(f"s_lshl_b32 {sr(sT0)}, {sr(sT0)}, 3")
    for t in range(2):
        A(f"v_add_u32 {vr(t0)}, {sr(sT0)}, {vr(l4)}")
        A(f"v_add_u32 {vr(t0)}, {4*t}, {vr(t0)}")
        A(f"v_xor_b32 {vr(t0)}, {vr(t0)}, {vr(t1)}")
        A(f"v_lshlrev_b32 {vr(t0)}, 4, {vr(t0)}")
        A(f"v_lshl_add_u32 {vr(t0)}, {vr(l4)}, 8, {vr(t0)}")
        A(f"v_add_u32 {vr(vDK+t)}, {sr(sW2K)}, {vr(t0)}")
    hh, q, r = vT, vT + 1, vT + 2
    A(f"v_lshrrev_b32 {vr(hh)}, 5, {vr(vLANE)}")
    A(f"v_and_b32 {vr(q)}, 31, {vr(vLANE)}")
    A(f"v_bfe_u32 {vr(r)}, {vr(vLANE)}, 1, 3")
    A(f"v_xor_b32 {vr(r)}, {vr(r)}, {vr(hh)}")
    A(f"v_lshlrev_b32 {vr(r)}, 4, {vr(r)}")
    A(f"v_lshl_add_u32 {vr(vKB)}, {vr(q)}, 7, {vr(r)}")
    A(f"v_add_u32 {vr(vKB)}, {sr(sWOFF)}, {vr(vKB)}")
    tr_bases(A, vTB, 11)

    def addrs():
        L = [f"v_add_u32 {vr(vKA)}, {sr(sCUR)}, {vr(vKB)}"]
        L += [f"v_add_u32 {vr(vTA+dt)}, {sr(sCUR2)}, {vr(vTB+dt)}" for dt in range(4)]
        L += [f"v_xor_b32 {vr(vKA+s)}, {32*s}, {vr(vKA)}" for s in range(1, 4)]
        return L

    def reads(s):
        L = [("ds", f"ds_read_b128 {vr(vS+4*s,4)}, {vr(vKA+s)}", f"x{s}")]
        for dt in range(4):
            f = vF + 16 * s + 4 * dt
            for e in range(2):
                L.append(("ds", f"ds_read_b64_tr_b16 {vr(f+2*e,2)}, {vr(vTA+dt)} offset:{4096*s+1024*e}", f"w{s}{dt}"))
        return L

    def step(first, late, early, nxt, vm):
        mf, after = [], {}
        for s in range(4):
            for dt in range(4):
                c = "0" if (first and s == 0) else vO + 16 * dt
                mf.append((mfma(vO + 16 * dt, vF + 16 * s + 4 * dt, vS + 4 * s, c), [f"x{s}", f"w{s}{dt}"]))
        r = reads(1) + reads(2) + reads(3)
        for m in range(9):
            put(after, m, r[3 * m:3 * m + 3])
        for i, g in enumerate(late):
            put(after, 1 + 2 * i, g)
        put(after, 9, [f"s_mov_b32 {sr(sFILL)}, {sr(sCUR)}", f"s_mov_b32 {sr(sFILL2)}, {sr(sCUR2)}"] + ring_adv(sCUR, 2))
        put(after, 10, ring_adv(sCUR2, 2))
        put(after, 11, [("bar", vm)])
        for m, its in nxt.items():
            put(after, m, its)
        for i, g in enumerate(early):
            put(after, 12 + i, g)
        if "m" in o.qx: mf = [("s_nop 0", t) for _, t in mf]
        if "d" in o.qx:
            for k in after: after[k] = [x for x in after[k] if not (isinstance(x, str) and x.startswith("buffer_load"))]
        if "r" in o.qx:
            for k in after: after[k] = [x for x in after[k] if not (isinstance(x, tuple) and x[0] == "ds")]
        A.run(mf, after)

    def nextq():
        r = reads(0)
        return {10: addrs(), 11: r[0:3], 12: r[3:5], 13: r[5:7], 14: r[7:9]}

    A(f"s_mov_b32 {sr(sCUR)}, 0"); A(f"s_mov_b32 {sr(sCUR2)}, {SLOT}")
    for s in addrs(): A(s)
    A.emit(("bar", 12))
    stamp(A, 6, o.qst)
    if o.qst:
        A(f"s_memtime {sr(sST+8,2)}"); A("s_waitcnt lgkmcnt(0)")
    for it in reads(0): A.emit(it)
    step(True, [], dma_xw(o, "W", sFILL), nextq(), 4)
    A(f"s_mov_b32 {sr(sCNT)}, 13")
    q0 = list(A.q)
    A.lab("L_qloop")
    step(False, dma_xw(o, "X", sFILL2), dma_xw(o, "W", sFILL), nextq(), 4)
    assert A.q == q0 or o.qx
    A(f"s_sub_u32 {sr(sCNT)}, {sr(sCNT)}, 1"); A(f"s_cmp_lg_u32 {sr(sCNT)}, 0"); A("s_cbranch_scc1 L_qloop")
    if o.qst:
        stamp(A, 7, True); A.q = list(q0)
        A(f"s_memtime {sr(sST+10,2)}"); A("s_waitcnt lgkmcnt(0)")
        A(f"s_sub_u32 {sr(sST+10)}, {sr(sST+10)}, {sr(sST+8)}"); A(f"s_mul_hi_u32 {sr(sST+10)}, {sr(sST+10)}, 429496730")
        A(f"s_add_u32 {sr(sST+8)}, {sr(sST)}, {sr(sST+10)}"); A(f"s_addc_u32 {sr(sST+9)}, {sr(sST+1)}, 0")
    step(False, dma_kv(o, 2 * SLOT, first=True), dma_kv(o, 3 * SLOT), nextq(), 4)
    hh, key = vT, vT + 1
    ka = [f"v_lshrrev_b32 {vr(hh)}, 5, {vr(vLANE)}", f"v_and_b32 {vr(key)}, 15, {vr(vLANE)}",
          f"v_xor_b32 {vr(key)}, {vr(key)}, {vr(hh)}", f"v_lshlrev_b32 {vr(key)}, 4, {vr(key)}",
          f"v_and_b32 {vr(vKA)}, 31, {vr(vLANE)}", f"v_lshl_add_u32 {vr(vKA)}, {vr(vKA)}, 8, {vr(key)}"]
    ka += [f"v_xor_b32 {vr(vKA+s)}, {32*s}, {vr(vKA)}" for s in range(1, 8)]
    ka += [f"v_lshlrev_b32 {vr(hh)}, 10, {vr(hh)}"] + [f"v_sub_u32 {vr(vTA+dt)}, {vr(vTB+dt)}, {vr(hh)}" for dt in range(4)]
    kr = kreads(2)
    step(False, [], dma_kv(o, 0), {10: ka, 11: kr[0:2], 12: kr[2:4], 13: kr[4:6], 14: kr[6:8]}, 4)
    for g in dma_kv(o, SLOT):
        for s in g: A(s)


def kreads(slot):
    return [("ds", f"ds_read_b128 {vr(vF+4*s,4)}, {vr(vKA+s)} offset:{slot*SLOT}", f"k{s}") for s in range(8)]


def attention(A, o, tail):
    A(f"v_mov_b32 {vr(vM)}, 0x7e000000")
    A(f"v_mov_b32 {vr(vL)}, 0")
    A("s_nop 3")
    for i in range(32):
        A(f"v_cvt_pk_bf16_f32 {vr(vQ+i)}, {vr(vO+2*i)}, {vr(vO+2*i+1)}")
    for i in range(64):
        A(f"v_mov_b32 {vr(vO+i)}, 0")

    def it(u, first=False):
        p = u & 1
        S, Sp, Pp = vS + 16 * p, vS + 16 * (1 - p), vP + 8 * (1 - p)
        slot, nslot = (u + 2) % 4, (u + 3) % 4
        mf, after = [], {}
        for s in range(8):
            mf.append((mfma(S, vF + 4 * s, vQ + 4 * s, "0" if s == 0 else S), [f"k{s}"] if first else [f"k{x}" for x in range(8)]))
        g = dma_kv(o, ((u + 1) % 4) * SLOT)
        if not first:
            vrd = []
            for ks in range(2):
                for dt in range(4):
                    f = vF + 32 + 16 * ks + 4 * dt
                    mf.append((mfma(vO + 16 * dt, f, Pp + 4 * ks, vO + 16 * dt), [f"v{ks}{dt}"]))
                    for e in range(2):
                        vrd.append(("ds", f"ds_read_b64_tr_b16 {vr(f+2*e,2)}, {vr(vTA+dt)} offset:{slot*SLOT+8192+4096*ks+2048*e}", f"v{ks}{dt}"))
            for m in range(8):
                if m == 7: put(after, m, [("need", ["v00"])])
                put(after, m, vrd[2 * m:2 * m + 2])
            E = lambda i: f"v_exp_f32 {vr(Sp+i)}, {vr(Sp+i)}"
            Ad = lambda i: f"v_add_f32 {vr(vL)}, {vr(vL)}, {vr(Sp+i)}"
            Cv = lambda i: f"v_cvt_pk_bf16_f32 {vr(Pp+i)}, {vr(Sp+2*i)}, {vr(Sp+2*i+1)}"
            for k in range(6):
                put(after, k, [E(4 + 2 * k), E(5 + 2 * k), Ad(2 * k), Ad(2 * k + 1), Cv(k)])
            put(after, 6, [Ad(12), Ad(13), Cv(6), Ad(14), Ad(15), Cv(7)])
            put(after, 1, g[2]); put(after, 4, g[3])
            l2, b2 = A.newlab("L_r2"), A.newlab("L_b2")
            put(after, 2, [f"s_cmp_lg_u32 {sr(sPEND)}, 0", f"s_cbranch_scc1 {l2}", ("lab", b2)])
            tail.append(("r2", l2, b2))
        base = 7 if first else 9
        mx = vT
        m1 = [f"v_max3_f32 {vr(mx)}, {vr(S)}, {vr(S+1)}, {vr(S+2)}"]
        m1 += [f"v_max3_f32 {vr(mx)}, {vr(mx)}, {vr(S+i)}, {vr(S+i+1)}" for i in range(3, 15, 2)]
        m1 += [f"v_max_f32 {vr(mx)}, {vr(mx)}, {vr(S+15)}"]
        l1, b1 = A.newlab("L_r1"), A.newlab("L_b1")
        chk = [f"v_fma_f32 {vr(vT+1)}, {vr(mx)}, {sr(sC)}, {vr(vM)}", f"v_cmp_lt_f32 vcc, {sr(sTHR)}, {vr(vT+1)}",
               f"s_cbranch_vccnz {l1}", ("lab", b1)]
        tail.append(("r1", l1, b1, u == 0 and not first))
        F = lambda i: f"v_fma_f32 {vr(S+i)}, {vr(S+i)}, {sr(sC)}, {vr(vM)}"
        E1 = lambda i: f"v_exp_f32 {vr(S+i)}, {vr(S+i)}"
        kr = kreads(nslot)
        ge = dma_kv(o, slot * SLOT)
        if first:
            put(after, 7, [("bar", 8)] + kr + ge[0] + ge[1] + ["s_nop 3"] + m1 + chk + [F(i) for i in range(16)] + [E1(i) for i in range(4)])
        else:
            put(after, 9, [("bar", 8)] + kr[0:3])
            put(after, 8, ["s_nop 1"])
            put(after, 10, kr[3:6] + m1[0:4])
            put(after, 11, kr[6:8] + m1[4:8] + chk)
            put(after, 12, [F(i) for i in range(0, 6)])
            put(after, 13, ge[0] + [F(i) for i in range(6, 10)])
            put(after, 14, [F(i) for i in range(10, 16)])
            put(after, 15, ge[1] + [E1(i) for i in range(4)])
        n0 = len(A.L)
        A.run(mf, after)
        idx = [i for i in range(n0, len(A.L)) if A.L[i] == mf[7][0]][0]
        rd = [i for i in range(idx, len(A.L)) if A.L[i] == m1[0]][0]
        states = sum(1 + (int(x.split()[1]) if x.startswith("s_nop") else 0) for x in A.L[idx + 1:rd] if not x.endswith(":"))
        assert states >= 12, states

    it(0, first=True)
    q0 = list(A.q)
    A(f"s_mov_b32 {sr(sCNT)}, 8")
    A.lab("L_aloop")
    for u in (1, 2, 3, 0):
        it(u)
    assert A.q == q0 or o.qx
    A(f"s_sub_u32 {sr(sCNT)}, {sr(sCNT)}, 1"); A(f"s_cmp_lg_u32 {sr(sCNT)}, 0"); A("s_cbranch_scc1 L_aloop")


def rare_blocks(A, tail):
    for t in tail:
        if t[0] == "r1":
            _, l1, b1, last = t
            mx, o2, nm = vT, vT + 1, vT + 2
            A.lab(l1)
            if last:
                A(f"s_cmp_eq_u32 {sr(sCNT)}, 1"); A(f"s_cbranch_scc1 {b1}")
            A(f"v_mov_b32 {vr(o2)}, {vr(mx)}")
            A("s_nop 1")
            A(f"v_permlane32_swap_b32 {vr(mx)}, {vr(o2)}")
            A("s_nop 1")
            A(f"v_max_f32 {vr(mx)}, {vr(mx)}, {vr(o2)}")
            A(f"v_mul_f32 {vr(mx)}, {sr(sC)}, {vr(mx)}")
            A(f"v_sub_f32 {vr(nm)}, 0, {vr(mx)}")
            A(f"v_min_f32 {vr(nm)}, {vr(nm)}, {vr(vM)}")
            A(f"v_sub_f32 {vr(o2)}, {vr(nm)}, {vr(vM)}")
            A(f"v_exp_f32 {vr(vFAC)}, {vr(o2)}")
            A(f"v_mov_b32 {vr(vM)}, {vr(nm)}")
            A(f"v_mul_f32 {vr(vL)}, {vr(vL)}, {vr(vFAC)}")
            A(f"s_mov_b32 {sr(sPEND)}, 1")
            A(f"s_branch {b1}")
        else:
            _, l2, b2 = t
            A.lab(l2)
            A("s_nop 7")
            for i in range(64):
                A(f"v_mul_f32 {vr(vO+i)}, {vr(vO+i)}, {vr(vFAC)}")
            A(f"s_mov_b32 {sr(sPEND)}, 0")
            A(f"s_branch {b2}")


def lane_off(A):
    A(f"v_and_b32 {vr(vT)}, 31, {vr(vLANE)}")
    A(f"s_lshl_b32 {sr(sT0)}, {sr(sWAVE)}, 5")
    A(f"v_add_u32 {vr(vT)}, {sr(sT0)}, {vr(vT)}")
    A(f"v_cmp_gt_u32 vcc, 112, {vr(vT)}")
    A(f"v_lshlrev_b32 {vr(vOA)}, 4, {vr(vLANE)}")
    A(f"v_mov_b32 {vr(vT+1)}, {OOB}")
    A(f"v_cndmask_b32 {vr(vOA)}, {vr(vT+1)}, {vr(vOA)}, vcc")


def epilogue(A, o):
    b2 = vT + 2
    A(f"v_mov_b32 {vr(b2)}, {vr(vL)}")
    lane_off(A)
    A(f"v_permlane32_swap_b32 {vr(vL)}, {vr(b2)}")
    A(f"s_lshl_b32 {sr(sT0)}, {sr(sBR)}, 3"); A(f"s_add_u32 {sr(sT0)}, {sr(sT0)}, {sr(sB)}")
    A(f"v_add_f32 {vr(vL)}, {vr(vL)}, {vr(b2)}")
    A(f"s_lshl_b32 {sr(sT2)}, {sr(sT0)}, 2")
    A(f"v_rcp_f32 {vr(vL)}, {vr(vL)}")
    A(f"s_add_u32 {sr(sT0)}, {sr(sT2)}, {sr(sWAVE)}"); A(f"s_lshl_b32 {sr(sT0)}, {sr(sT0)}, 18")
    A(f"s_lshl_b32 {sr(sT1)}, {sr(sH)}, 13")
    A(f"s_add_u32 {sr(sT0)}, {sr(sT0)}, {sr(sT1)}")
    A(f"s_add_u32 {sr(sT1)}, {sr(sT0)}, 4096")
    for s in range(8):
        for i in range(8):
            A(f"v_mul_f32 {vr(vO+8*s+i)}, {vr(vO+8*s+i)}, {vr(vL)}")
        for i in range(4):
            A(f"v_cvt_pk_bf16_f32 {vr(vS+4*s+i)}, {vr(vO+8*s+2*i)}, {vr(vO+8*s+2*i+1)}")
        so = sT0 if s < 4 else sT1
        A(f"buffer_store_dwordx4 {vr(vS+4*s,4)}, {vr(vOA)}, {sr(S_O,4)}, {sr(so)} offen offset:{(s&3)*1024} sc1")
    A.emit(("bar", 0))
    l = A.newlab("L_pub")
    A(f"s_cmp_lg_u32 {sr(sWAVE)}, 0"); A(f"s_cbranch_scc1 {l}")
    A(f"s_lshl_b32 {sr(sT1)}, 1, {sr(sH)}")
    atomic_dbg(A, "or", sT2, sT1)
    A.lab(l)


def gemm_setup(A, o):
    A(f"s_load_dwordx2 {sr(sLD,2)}, {sr(sKA,2)}, 32")
    A(f"s_load_dwordx2 {sr(sPTR,2)}, s[0:1], 80")
    w_dma_offsets(A, 11)
    tr_bases(A, vTA, 11)
    A("s_waitcnt lgkmcnt(0)")
    A(f"s_lshl_b32 {sr(sT0)}, {sr(sHG)}, 21"); A(f"s_lshl_b32 {sr(sT1)}, {sr(sHL)}, 8"); A(f"s_add_u32 {sr(sT0)}, {sr(sT0)}, {sr(sT1)}")
    srd(A, S_W, sLD, sr(sT0), "0")
    A(f"s_sub_u32 {sr(sWBASE)}, 0x800000, {sr(sT0)}")
    srd(A, S_OUT, sPTR, None, str(896 * 4096))
    srd(A, S_XC, sWS, str(X_OFF), str(X_BYTES))


def gemm(A, o):
    st = o.stamps
    A(f"s_and_b32 {sr(sT1)}, {sr(sB)}, 3"); A(f"s_lshl_b32 {sr(sT1)}, {sr(sT1)}, 1"); A(f"s_add_u32 {sr(sT1)}, {sr(sT1)}, {sr(sHL)}")
    A(f"s_and_b32 {sr(sT1)}, {sr(sT1)}, 7")
    A(f"s_lshl_b32 {sr(sWO_)}, {sr(sT1)}, 18")
    A(f"s_lshl_b32 {sr(sOO)}, {sr(sT1)}, 13")
    A(f"s_lshl_b32 {sr(sT0)}, {sr(sBR)}, 3"); A(f"s_add_u32 {sr(sT0)}, {sr(sT0)}, {sr(sB)}"); A(f"s_lshl_b32 {sr(sT2)}, {sr(sT0)}, 2")
    A(f"s_add_u32 {sr(sOBASE)}, {sr(sT2)}, {sr(sWAVE)}"); A(f"s_lshl_b32 {sr(sOBASE)}, {sr(sOBASE)}, 18")
    A(f"s_lshl_b32 {sr(sT0)}, {sr(sHG)}, 16"); A(f"s_add_u32 {sr(sOBASE)}, {sr(sOBASE)}, {sr(sT0)}")
    A(f"s_mov_b32 {sr(S_W+2)}, {sr(sWBASE)}"); A(f"s_mov_b32 {sr(S_O+2)}, {O_BYTES}")
    for j in range(4):
        for g in dma_xw(o, "G", ("imm", j * SLOT)):
            for s in g: A(s)

    def oloads(u):
        g = [[f"buffer_load_dwordx4 {vr(vOF+16*u+4*s,4)}, {vr(vOA)}, {sr(S_O,4)}, {sr(sT1)} offen offset:{s*1024} sc1"] for s in range(4)]
        g[0] = [f"s_add_u32 {sr(sT1)}, {sr(sOBASE)}, {sr(sOO)}"] + g[0]
        g[3] = [f"s_add_u32 {sr(sT1)}, {sr(sOBASE)}, {sr(sOO)}"] + g[3] + [f"s_add_u32 {sr(sOO)}, {sr(sOO)}, 4096", f"s_and_b32 {sr(sOO)}, {sr(sOO)}, 0xffff"]
        return g

    A(f"s_lshl_b32 {sr(sT1)}, {sr(sHG)}, 3")
    poll(A, sT2, sT1, 255, 255, 4)
    stamp(A, 6, st)
    for u in range(4):
        for g in oloads(u):
            for s in g: A(s)
    for i in range(64):
        A(f"v_mov_b32 {vr(vO+i)}, 0")

    def reads(u, s):
        L = []
        for ct in range(4):
            f = vF + 16 * s + 4 * ct
            for e in range(2):
                L.append(("ds", f"ds_read_b64_tr_b16 {vr(f+2*e,2)}, {vr(vTA+ct)} offset:{u*SLOT+4096*s+1024*e}", f"w{s}{ct}"))
        return L

    def step(u, vm):
        mf, after = [], {}
        for s in range(4):
            for ct in range(4):
                mf.append((mfma(vO + 16 * ct, vF + 16 * s + 4 * ct, vOF + 16 * u + 4 * s, vO + 16 * ct), [f"w{s}{ct}"]))
        r = reads(u, 1) + reads(u, 2) + reads(u, 3)
        pos = 0
        for m, n in enumerate((3, 3, 3, 3, 3, 3, 2, 2, 2)):
            put(after, m, r[pos:pos + n]); pos += n
        if u == 1:
            put(after, 0, [f"s_cmp_eq_u32 {sr(sCNT)}, 1", f"s_cselect_b32 {sr(S_O+2)}, 0, {sr(S_O+2)}"])
        if u == 0:
            put(after, 0, [f"s_cmp_eq_u32 {sr(sCNT)}, 1", f"s_cselect_b32 {sr(S_W+2)}, 0, {sr(S_W+2)}"])
        for i, g in enumerate(oloads((u + 3) % 4)):
            put(after, 1 + 2 * i, g)
        put(after, 11, [("bar", vm)])
        r = reads((u + 1) % 4, 0)
        for i in range(4):
            put(after, 11 + i, r[2 * i:2 * i + 2])
        for i, g in enumerate(dma_xw(o, "G", ("imm", u * SLOT))):
            put(after, 12 + i, g)
        A.run(mf, after)

    A.emit(("bar", 12))
    A(f"s_sub_u32 {sr(sOO)}, {sr(sOO)}, 4096"); A(f"s_and_b32 {sr(sOO)}, {sr(sOO)}, 0xffff")
    for it in reads(0, 0): A.emit(it)
    q0 = list(A.q)
    A(f"s_mov_b32 {sr(sCNT)}, 4")
    lg = A.newlab("L_gloop")
    A.lab(lg)
    for u in range(4):
        step(u, 12)
    assert A.q == q0
    A(f"s_sub_u32 {sr(sCNT)}, {sr(sCNT)}, 1"); A(f"s_cmp_lg_u32 {sr(sCNT)}, 0"); A(f"s_cbranch_scc1 {lg}")
    stamp(A, 7, st)
    A(f"s_lshl_b32 {sr(sT0)}, {sr(sBR)}, 3"); A(f"s_add_u32 {sr(sT0)}, {sr(sT0)}, {sr(sB)}")
    A(f"s_lshl_b32 {sr(sT2)}, {sr(sT0)}, 2"); A(f"s_add_u32 {sr(sT2)}, {sr(sT2)}, {DBG_XCH}")
    A(f"s_lshl_b32 {sr(sT0)}, {sr(sT0)}, 3"); A(f"s_add_u32 {sr(sT0)}, {sr(sT0)}, {sr(sHL)}")
    A(f"s_lshl_b32 {sr(sOBASE)}, {sr(sT0)}, 18"); A(f"s_add_u32 {sr(sOBASE)}, {sr(sOBASE)}, {sr(sWOFF)}")
    A(f"s_lshl_b32 {sr(sT0)}, {sr(sHG)}, 14"); A(f"s_add_u32 {sr(sT0)}, {sr(sT0)}, {sr(sOBASE)}")
    A("s_nop 4")
    for ow in range(4):
        ls = A.newlab("L_skip")
        A(f"s_cmp_eq_u32 {sr(sHG)}, {ow}"); A(f"s_cbranch_scc1 {ls}")
        A(f"s_add_u32 {sr(sT1)}, {sr(sT0)}, {ow << 16}")
        for qd in range(4):
            A(f"buffer_store_dwordx4 {vr(vO+16*ow+4*qd,4)}, {vr(vOA)}, {sr(S_XC,4)}, {sr(sT1)} offen offset:{qd*1024} sc1")
        A.lab(ls)
    A.emit(("bar", 0))
    l = A.newlab("L_pub")
    A(f"s_lshl_b32 {sr(sT0)}, {sr(sHL)}, 2")
    A(f"s_cmp_lg_u32 {sr(sWAVE)}, 0"); A(f"s_cbranch_scc1 {l}")
    A(f"s_lshl_b32 {sr(sT1)}, 1, {sr(sT0)}")
    atomic_dbg(A, "add", sT2, sT1)
    A.lab(l)
    lj = A.newlab("L_own")
    for ow in range(4):
        ls = A.newlab("L_no")
        A(f"s_cmp_eq_u32 {sr(sHG)}, {ow}"); A(f"s_cbranch_scc0 {ls}")
        for i in range(16):
            A(f"v_mov_b32 {vr(vF+i)}, {vr(vO+16*ow+i)}")
        A(f"s_branch {lj}")
        A.lab(ls)
    A.lab(lj)
    poll(A, sT2, sT0, 15, 4, 2)
    A(f"s_lshl_b32 {sr(sT0)}, {sr(sHG)}, 16"); A(f"s_add_u32 {sr(sOBASE)}, {sr(sOBASE)}, {sr(sT0)}")
    for k in range(1, 4):
        A(f"s_add_u32 {sr(sT1)}, {sr(sHG)}, {k}"); A(f"s_and_b32 {sr(sT1)}, {sr(sT1)}, 3"); A(f"s_lshl_b32 {sr(sT1)}, {sr(sT1)}, 14")
        A(f"s_add_u32 {sr(sT1)}, {sr(sT1)}, {sr(sOBASE)}")
        for qd in range(4):
            A(f"buffer_load_dwordx4 {vr(vF+16*k+4*qd,4)}, {vr(vOA)}, {sr(S_XC,4)}, {sr(sT1)} offen offset:{qd*1024} sc1")
    t1, t2 = vT + 2, vT + 3
    A(f"s_mul_i32 {sr(sT0)}, {sr(sB)}, 112"); A(f"s_lshl_b32 {sr(sT1)}, {sr(sWAVE)}, 5"); A(f"s_add_u32 {sr(sT0)}, {sr(sT0)}, {sr(sT1)}")
    A(f"s_lshl_b32 {sr(sT0)}, {sr(sT0)}, 12")
    A(f"s_lshl_b32 {sr(sT1)}, {sr(sBR)}, 11"); A(f"s_add_u32 {sr(sT0)}, {sr(sT0)}, {sr(sT1)}")
    A(f"s_lshl_b32 {sr(sT1)}, {sr(sHL)}, 8"); A(f"s_add_u32 {sr(sT0)}, {sr(sT0)}, {sr(sT1)}")
    A(f"s_lshl_b32 {sr(sT1)}, {sr(sHG)}, 6"); A(f"s_add_u32 {sr(sT0)}, {sr(sT0)}, {sr(sT1)}")
    A(f"v_and_b32 {vr(t1)}, 31, {vr(vLANE)}"); A(f"v_lshlrev_b32 {vr(t1)}, 12, {vr(t1)}")
    A(f"v_lshrrev_b32 {vr(t2)}, 5, {vr(vLANE)}"); A(f"v_lshl_add_u32 {vr(t1)}, {vr(t2)}, 4, {vr(t1)}")
    A(f"v_and_b32 {vr(t2)}, {OOB}, {vr(vOA)}"); A(f"v_or_b32 {vr(t1)}, {vr(t1)}, {vr(t2)}")
    for k in range(1, 4):
        A(f"s_waitcnt vmcnt({12 - 4*k})")
        for i in range(16):
            A(f"v_add_f32 {vr(vF+i)}, {vr(vF+i)}, {vr(vF+16*k+i)}")
    for i in range(8):
        A(f"v_cvt_pk_bf16_f32 {vr(vF+16+i)}, {vr(vF+2*i)}, {vr(vF+2*i+1)}")
    for t in range(2):
        A(f"buffer_store_dwordx4 {vr(vF+16+4*t,4)}, {vr(t1)}, {sr(S_OUT,4)}, {sr(sT0)} offen offset:{32*t}")


def build(o):
    A = Asm()
    for l in HEADER.splitlines(): A(l)
    A(f"; @launch grid=(512,1,1) block=(256,1,1) lds={LDS}")
    A('.amdgcn_target "amdgcn-amd-amdhsa--gfx950"'); A(".text")
    A(f".globl {KN}"); A(".p2align 8"); A(f".type {KN},@function"); A.lab(KN)
    A(f"s_cmp_ge_u32 s2, {256 if o.only1 else 512}"); A("s_cbranch_scc1 L_exit")
    tail = []
    prologue(A, o)
    stamp(A, 0, o.stamps)
    pq1, pq2, pa1, pa2, pg = [int(c) for c in o.prio]

    def setprio(p1, p2):
        if p1 == p2:
            A(f"s_setprio {p1}")
        else:
            l = A.newlab("L_pr")
            A(f"s_setprio {p2}"); A(f"s_cmp_lg_u32 {sr(sPH)}, 0"); A(f"s_cbranch_scc1 {l}"); A(f"s_setprio {p1}"); A.lab(l)
    setprio(pq1, pq2)
    qproj(A, o)
    if o.stamps:
        A(f"s_memrealtime {sr(sST + 2, 2)}")
        A("s_waitcnt lgkmcnt(0)"); A.q = []
    setprio(pa1, pa2)
    if o.stamps:
        A.q = [f"k{s}" for s in range(8)]
    attention(A, o, tail)
    stamp(A, 2, o.stamps)
    epilogue(A, o)
    stamp(A, 3, o.stamps)
    if not o.nog:
        A(f"s_cmp_lg_u32 {sr(sPH)}, 0"); A("s_cbranch_scc1 L_fin")
        A(f"s_setprio {pg}")
        gemm_setup(A, o)
        A.lab("L_tile")
        gemm(A, o)
        if o.stamps:
            l = A.newlab("L_s4")
            A(f"s_cmp_ge_u32 {sr(sB)}, 4"); A(f"s_cbranch_scc1 {l}"); stamp(A, 4, True); A.lab(l)
            stamp(A, 5, True)
        A(f"s_add_u32 {sr(sB)}, {sr(sB)}, 4"); A(f"s_cmp_lt_u32 {sr(sB)}, {4 if o.only1 else 8}"); A("s_cbranch_scc1 L_tile")
    A.lab("L_fin")
    if o.stamps:
        write_stamps(A)
    A.lab("L_exit")
    A("s_endpgm")
    rare_blocks(A, tail)
    A('.section .rodata,"a"')
    A(".p2align 6")
    A(f".amdhsa_kernel {KN}")
    A("  .amdhsa_next_free_vgpr 256"); A("  .amdhsa_next_free_sgpr 96"); A("  .amdhsa_accum_offset 256")
    A("  .amdhsa_group_segment_fixed_size 0"); A("  .amdhsa_kernarg_size 104"); A("  .amdhsa_user_sgpr_count 2")
    A("  .amdhsa_user_sgpr_kernarg_segment_ptr 1"); A("  .amdhsa_system_sgpr_workgroup_id_x 1")
    A(".end_amdhsa_kernel")
    return A.text()


if __name__ == "__main__":
    ap = argparse.ArgumentParser()
    ap.add_argument("-o", default="concat_heads__mha_block_cached__gqa_block_cached__near_ridge.s")
    ap.add_argument("--stamps", action="store_true")
    ap.add_argument("--rot", type=int, default=2)
    ap.add_argument("--nt", default="KV")
    ap.add_argument("--prio", default="00000", help="Q1 Q2 A1 A2 G")
    ap.add_argument("--only1", action="store_true")
    ap.add_argument("--nog", action="store_true")
    ap.add_argument("--qst", action="store_true")
    ap.add_argument("--qx", default="")
    a = ap.parse_args()
    open(a.o, "w").write(build(a))
```

```python
import sys, argparse, struct, math

KN = "concat_heads__mha_block_cached__gqa_block_cached__near_ridge_kernel"
WS_BYTES = 305659904
O_BYTES = 16 * 7 * 128 * 1024
X_OFF = O_BYTES
X_BYTES = 8 * 8 * 4 * 4 * 4 * 8192
F_RDY = X_OFF + X_BYTES
F_XCH = F_RDY + 32 * 128
WSL, XSL, XB = 16384, 28672, 49152
ASL = 32768
LDS = 163840
f32 = lambda x: struct.unpack("<I", struct.pack("<f", x))[0]
C_SCALE = f32(math.log2(math.e) / math.sqrt(128.0))
THR = f32(8.0)
OOB = 0x40000000

HEADER = """\
; -> output projection tile (224x128 over 8 heads) -> partial sums exchanged through ws between 4 workgroups -> out.
"""


class Asm:
    def __init__(self):
        self.L = []
        self.uid = 0
        self.q = []

    def __call__(self, s):
        self.L.append(s)

    def lab(self, name):
        self.L.append(name + ":")

    def newlab(self, p="L"):
        self.uid += 1
        return f"{p}_{self.uid}"

    def ds(self, txt, tag):
        assert len(self.q) < 15, "too many LDS ops outstanding"
        self.L.append(txt); self.q.append(tag)

    def need(self, tags):
        pos = max([i for i, t in enumerate(self.q) if t in tags], default=-1)
        if pos >= 0:
            self.L.append(f"s_waitcnt lgkmcnt({len(self.q) - pos - 1})")
            self.q = self.q[pos + 1:]

    def emit(self, it):
        if isinstance(it, str):
            self(it)
        elif it[0] == "ds":
            if len(self.q) >= 15:
                self.need([self.q[3]])
            self.ds(it[1], it[2])
        elif it[0] == "bar":
            self(f"s_waitcnt vmcnt({it[1]}) lgkmcnt(0)"); self.q = []
            self("s_barrier")
        elif it[0] == "lab":
            self.lab(it[1])

    def groups(self, gs):
        for g in gs:
            for s in g: self(s)

    def run(self, mf, after):
        for m, (txt, tags) in enumerate(mf):
            self.need(tags)
            self(txt)
            for it in after.get(m, []): self.emit(it)

    def text(self):
        return "\n".join(self.L) + "\n"


def vr(a, n=1):
    p, a = ("a", a - 256) if a >= 256 else ("v", a)
    return f"{p}{a}" if n == 1 else f"{p}[{a}:{a+n-1}]"


def sr(a, n=1):
    return f"s{a}" if n == 1 else f"s[{a}:{a+n-1}]"


def mfma(d, a, b, c):
    return f"v_mfma_f32_16x16x32_bf16 {vr(d,4)}, {vr(a,4)}, {vr(b,4)}, {c if c == '0' else vr(c,4)}"


def put(after, m, items):
    after.setdefault(m, []).extend(items)


def spread(after, items, lo, hi):
    tot = sum(c for _, c in items)
    acc, pos = 0.0, []
    for its, c in items:
        g = lo + int((acc + c / 2) / tot * (hi - lo))
        put(after, g, its if isinstance(its, list) else [its])
        pos.append(g); acc += c
    return pos


S_X, S_W, S_K, S_V, S_O, S_XC, S_OUT = 4, 8, 12, 16, 20, 24, 28
sWAVE, sBR, sB, sH, sHG, sHL = 32, 33, 34, 35, 38, 39
sKA = 36
sDBG = 40
sWS = 42
sT0, sT1, sT2, sT3 = 44, 45, 46, 47
sCW, sCX, sFW, sFX = 48, 49, 50, 51
sWM, sXM, sAM = 52, 80, 81
sCNT = 53
sXO, sWO_ = 54, 55
sKO, sVO = 56, 57
sC, sTHR = 58, 59
sEX = 60
sLD = 62
sST = 64
sPEND = 82
sSPIN = 83
sU, sC2 = 84, 85
sXB = 86
sROT = 87
sTAU = 88
sWREC = 89
sNON = 90
sPTR = 94

vLANE = 1
vT = 2
vDX = 10
vDW = 14
vDK = 18
vDV = 22
vXB = 24
vTB = 26
vXA = 30
vTA = 32
vL16 = 36
vFAC = 40
vP = 44
vS = 60
vKF = 124
vVF = 156
vKA = 208
vVA = 216
vNM = 232
vLS = 248
aO = 256
aQ = 384
gACC = 40
gX = 152
gW = 448
gT = 208


def stamp(A, i, on):
    if on:
        q = list(A.q)
        A(f"s_memrealtime {sr(sST + 2*i, 2)}")
        A(f"s_memtime {sr(sPTR, 2)}")
        A("s_waitcnt lgkmcnt(0)")
        A(f"s_mov_b32 {sr(sST + 2*i + 1)}, {sr(sPTR)}")
        A.q = q


def write_stamps(A):
    l = A.newlab("L_st")
    A(f"s_mov_b32 {sr(sT0)}, {WS_BYTES - 512*64}")
    A(f"s_lshl_b32 {sr(sT1)}, s2, 6")
    A(f"s_add_u32 {sr(sT0)}, {sr(sT0)}, {sr(sT1)}")
    A(f"s_add_u32 {sr(sPTR)}, {sr(sWS)}, {sr(sT0)}")
    A(f"s_addc_u32 {sr(sPTR+1)}, {sr(sWS+1)}, 0")
    A(f"v_mov_b32 v2, 0")
    for i in range(16):
        A(f"v_mov_b32 v{4+i}, {sr(sST+i)}")
    A(f"v_cmp_eq_u32 vcc, 0, v0")
    A(f"s_and_saveexec_b64 {sr(sEX,2)}, vcc")
    A(f"s_cbranch_execz {l}")
    for i in range(4):
        A(f"global_store_dwordx4 v2, v[{4+4*i}:{7+4*i}], {sr(sPTR,2)} offset:{16*i}")
    A.lab(l)
    A(f"s_mov_b64 exec, {sr(sEX,2)}")


def srd(A, d, lo, add, nrec):
    if add is None:
        A(f"s_mov_b32 {sr(d)}, {sr(lo)}"); A(f"s_mov_b32 {sr(d+1)}, {sr(lo+1)}")
    else:
        A(f"s_add_u32 {sr(d)}, {sr(lo)}, {add}"); A(f"s_addc_u32 {sr(d+1)}, {sr(lo+1)}, 0")
    A(f"s_mov_b32 {sr(d+2)}, {nrec}")
    A(f"s_mov_b32 {sr(d+3)}, 0x20000")


def get_tag(A):
    ls, lg = A.newlab("L_tag"), A.newlab("L_tagok")
    A(f"s_cmp_lg_u32 {sr(sNON+1)}, 0"); A(f"s_cbranch_scc1 {lg}")
    A(f"v_mov_b32 {vr(vT+4)}, 0")
    A(f"s_mov_b32 {sr(sSPIN)}, 0")
    A.lab(ls)
    A(f"global_load_dwordx2 {vr(vT+2,2)}, {vr(vT+4)}, {sr(sDBG,2)} sc1")
    A("s_waitcnt vmcnt(0)")
    A(f"v_readfirstlane_b32 {sr(sNON)}, {vr(vT+2)}")
    A(f"v_readfirstlane_b32 {sr(sNON+1)}, {vr(vT+3)}")
    A(f"s_add_u32 {sr(sSPIN)}, {sr(sSPIN)}, 1")
    A(f"s_cmp_lg_u32 {sr(sNON+1)}, 0"); A(f"s_cbranch_scc1 {lg}")
    A("s_sleep 4")
    A(f"s_cmp_lt_u32 {sr(sSPIN)}, 0x4000"); A(f"s_cbranch_scc1 {ls}")
    A.lab(lg)


def raise_flag(A, sig_s):
    A("s_mov_b64 exec, 1")
    get_tag(A)
    A(f"v_mov_b32 {vr(vT+4)}, {sr(sig_s)}"); A(f"v_mov_b32 {vr(vT+2)}, {sr(sNON)}"); A(f"v_mov_b32 {vr(vT+3)}, {sr(sNON+1)}")
    A(f"global_store_dwordx2 {vr(vT+4)}, {vr(vT+2,2)}, {sr(sWS,2)} sc1")
    A("s_mov_b64 exec, -1")


def signal_wait(A, sig_s, off_s, n, sleep):
    le, ls, lg = A.newlab("L_wend"), A.newlab("L_spin"), A.newlab("L_go")
    A(f"s_cmp_lg_u32 {sr(sWAVE)}, 0"); A(f"s_cbranch_scc1 {le}")
    if sig_s is not None:
        raise_flag(A, sig_s)
    A(f"s_mov_b64 exec, {(1 << n) - 1}")
    A(f"v_lshlrev_b32 {vr(vT+5)}, 3, {vr(vLANE)}")
    A(f"v_add_u32 {vr(vT+5)}, {sr(off_s)}, {vr(vT+5)}")
    A(f"s_mov_b32 {sr(sSPIN)}, 0")
    A.lab(ls)
    A(f"global_load_dwordx2 {vr(vT+6,2)}, {vr(vT+5)}, {sr(sWS,2)} sc1")
    A("s_waitcnt vmcnt(0)")
    A(f"v_cmp_eq_u64 vcc, {sr(sNON,2)}, {vr(vT+6,2)}")
    A(f"s_add_u32 {sr(sSPIN)}, {sr(sSPIN)}, 1")
    A(f"s_cmp_eq_u32 vcc_lo, {(1 << n) - 1}")
    A(f"s_cbranch_scc1 {lg}")
    A(f"s_sleep {sleep}")
    A(f"s_cmp_lt_u32 {sr(sSPIN)}, 0x4000"); A(f"s_cbranch_scc1 {ls}")
    A.lab(lg)
    A("s_mov_b64 exec, -1")
    A.lab(le)
    A("s_barrier")


def m0set(base_s, slot):
    return f"s_add_u32 m0, {sr(base_s)}, {slot[1]}" if isinstance(slot, tuple) else f"s_add_u32 m0, {sr(base_s)}, {sr(slot)}"


def dma_w(o, kind, slot):
    fl = " nt" if kind in o.nt else ""
    g = [[f"buffer_load_dwordx4 {vr(vDW+t)}, {sr(S_W,4)}, {sr(sWO_)} offen offset:{t*1024}{fl} lds"] for t in range(4)]
    g[0] = [m0set(sWM, slot), "s_nop 0"] + g[0]
    st, mask = (0x80000, 0x7fffff) if kind == "W" else (0x20000, 0x1fffff)
    g[3] += [f"s_add_u32 {sr(sWO_)}, {sr(sWO_)}, {st:#x}", f"s_and_b32 {sr(sWO_)}, {sr(sWO_)}, {mask:#x}"]
    return g


def dma_x(o, kind, slot):
    srd_, fl = (S_X, " nt" if "X" in o.nt else "") if kind == "X" else (S_O, " sc1")
    g = []
    for t in range(7):
        so = sXO if t < 4 else sXB
        g.append([f"buffer_load_dwordx4 {vr(vDX+(t&3))}, {sr(srd_,4)}, {sr(so)} offen offset:{(t&3)*1024}{fl} lds"])
    g[0] = [m0set(sXM, slot), f"s_add_u32 {sr(sXB)}, {sr(sXO)}, {65536 if kind == 'X' else 262144}"] + g[0]
    g[4] = ["s_add_u32 m0, m0, 4096", "s_nop 0"] + g[4]
    if kind == "X":
        g[6] += [f"s_add_u32 {sr(sXO)}, {sr(sXO)}, 128", f"s_and_b32 {sr(sXO)}, {sr(sXO)}, 2047"]
    else:
        g[6] += [f"s_add_u32 {sr(sXO)}, {sr(sXO)}, 2048", f"s_and_b32 {sr(sXO)}, {sr(sXO)}, 32767"]
    return g


def dma_k(o, slot):
    fl = " nt" if "K" in o.nt else ""
    g = [[f"buffer_load_dwordx4 {vr(vDK+t)}, {sr(S_K,4)}, {sr(sKO)} offen offset:{t*1024}{fl} lds"] for t in range(4)]
    g[0] = [f"s_add_u32 m0, {sr(sAM)}, {ASL*(1+slot) + 16384}", "s_nop 0"] + g[0]
    g[3] += [f"s_add_u32 {sr(sKO)}, {sr(sKO)}, 8192", f"s_bitset0_b32 {sr(sKO)}, 18"]
    return g


def dma_v(o, slot):
    fl = " nt" if "V" in o.nt else ""
    g = [[f"buffer_load_dwordx4 {vr(vDV+(t&1))}, {sr(S_V,4)}, {sr(sVO)} offen offset:{t*1024}{fl} lds"] for t in range(4)]
    g[0] = [f"s_add_u32 m0, {sr(sAM)}, {ASL*(1+slot)}", "s_nop 0"] + g[0]
    g[3] += [f"s_add_u32 {sr(sVO)}, {sr(sVO)}, 8192", f"s_bitset0_b32 {sr(sVO)}, 18"]
    return g


def w_offsets(A, rshift, wflav):
    l4, t0, t1, t2 = vT, vT + 1, vT + 2, vT + 3
    A(f"v_lshrrev_b32 {vr(l4)}, 4, {vr(vLANE)}")
    A(f"v_and_b32 {vr(t1)}, 15, {vr(vLANE)}")
    A(f"v_lshlrev_b32 {vr(t0)}, 1, {vr(l4)}")
    A(f"v_xor_b32 {vr(t0)}, {vr(t0)}, {vr(t1)}")
    A(f"v_lshlrev_b32 {vr(t0)}, 4, {vr(t0)}")
    A(f"s_lshl_b32 {sr(sT3)}, {sr(sWAVE)}, {rshift+4}")
    A(f"v_lshlrev_b32 {vr(t2)}, {rshift}, {vr(l4)}")
    A(f"v_add_u32 {vr(t2)}, {sr(sT3)}, {vr(t2)}")
    for t in range(4):
        bit = (t >> 1) & 1 if wflav else t & 1
        A(f"v_xor_b32 {vr(t1)}, {128*bit}, {vr(t0)}")
        A(f"v_add3_u32 {vr(vDW+t)}, {vr(t1)}, {vr(t2)}, 0")
        A(f"v_add_u32 {vr(vDW+t)}, {(4*t << rshift) - 1024*t}, {vr(vDW+t)}")


def tr_base(A, dst, gshift):
    g, r, c = vT, vT + 1, vT + 2
    A(f"v_lshrrev_b32 {vr(g)}, 4, {vr(vLANE)}")
    A(f"v_bfe_u32 {vr(r)}, {vr(vLANE)}, 2, 2")
    A(f"v_and_b32 {vr(c)}, 3, {vr(vLANE)}"); A(f"v_lshlrev_b32 {vr(c)}, 3, {vr(c)}")
    A(f"v_lshl_add_u32 {vr(c)}, {vr(g)}, {gshift}, {vr(c)}")
    A(f"v_lshl_add_u32 {vr(c)}, {vr(r)}, 8, {vr(c)}")
    A(f"v_lshl_add_u32 {vr(c)}, {vr(r)}, 5, {vr(c)}")
    A(f"v_and_b32 {vr(g)}, 1, {vr(g)}")
    A(f"v_lshl_add_u32 {vr(dst)}, {vr(g)}, 7, {vr(c)}")


def gemm_tr_bases(A, gshift):
    tr_base(A, vT + 3, gshift)
    A(f"s_lshl_b32 {sr(sT0)}, {sr(sC2)}, 7")
    A(f"v_xor_b32 {vr(vT+3)}, {sr(sT0)}, {vr(vT+3)}")
    for ct in range(4):
        A(f"v_xor_b32 {vr(vTB+ct)}, {32*ct}, {vr(vT+3)}")


def prologue(A, o):
    A(f"s_bfe_u32 {sr(sBR)}, s2, 0x10002")
    A(f"s_mul_i32 {sr(sT0)}, {sr(sBR)}, 40")
    A(f"s_add_u32 {sr(sKA)}, s0, {sr(sT0)}"); A(f"s_addc_u32 {sr(sKA+1)}, s1, 0")
    A(f"s_load_dwordx2 s[74:75], {sr(sKA,2)}, 0")
    A(f"s_load_dwordx2 s[66:67], {sr(sKA,2)}, 8")
    A(f"s_load_dwordx2 s[68:69], {sr(sKA,2)}, 16")
    A(f"s_load_dwordx2 s[70:71], {sr(sKA,2)}, 24")
    A(f"s_load_dwordx2 s[72:73], s[0:1], 80")
    A(f"s_load_dwordx2 {sr(sDBG,2)}, s[0:1], 88")
    A(f"s_load_dwordx2 {sr(sWS,2)}, s[0:1], 96")
    A(f"v_lshrrev_b32 v2, 6, v0")
    A(f"v_and_b32 {vr(vLANE)}, 63, v0")
    A(f"v_readfirstlane_b32 {sr(sWAVE)}, v2")
    A(f"s_and_b32 {sr(sHG)}, s2, 3")
    A(f"s_bfe_u32 {sr(sHL)}, s2, 0x30003")
    A(f"s_bfe_u32 {sr(sTAU)}, s2, 0x20006")
    A(f"s_lshl_b32 {sr(sH)}, {sr(sHG)}, 3"); A(f"s_add_u32 {sr(sH)}, {sr(sH)}, {sr(sHL)}")
    A(f"s_lshl_b32 {sr(sB)}, {sr(sTAU)}, 1")
    A(f"s_add_u32 {sr(sROT)}, {sr(sB)}, {sr(sHL)}"); A(f"s_and_b32 {sr(sROT)}, {sr(sROT)}, 7")
    A(f"s_lshr_b32 {sr(sU)}, {sr(sWAVE)}, 1"); A(f"s_and_b32 {sr(sC2)}, {sr(sWAVE)}, 1")
    A(f"s_lshl_b32 {sr(sWM)}, {sr(sWAVE)}, 12")
    A(f"s_mul_i32 {sr(sXM)}, {sr(sWAVE)}, 7168")
    A(f"s_mov_b32 {sr(sAM)}, {sr(sWM)}")
    A(f"s_lshl_b32 {sr(sXO)}, {sr(sROT)}, 8")
    A(f"s_lshl_b32 {sr(sWO_)}, {sr(sROT)}, 20")
    l3, l4, t0, t1 = vT, vT + 1, vT + 2, vT + 3
    A(f"v_lshrrev_b32 {vr(l3)}, 3, {vr(vLANE)}")
    A(f"v_lshrrev_b32 {vr(l4)}, 4, {vr(vLANE)}")
    A(f"s_mul_i32 {sr(sT2)}, {sr(sWAVE)}, {56*2048}")
    A(f"s_lshl_b32 {sr(sT1)}, {sr(sC2)}, 2")
    A(f"v_and_b32 {vr(t1)}, 7, {vr(vLANE)}")
    A(f"v_xor_b32 {vr(t1)}, {sr(sT1)}, {vr(t1)}")
    A(f"v_xor_b32 {vr(t1)}, {vr(t1)}, {vr(l4)}")
    A(f"v_lshlrev_b32 {vr(t1)}, 4, {vr(t1)}")
    A(f"v_lshl_add_u32 {vr(l3)}, {vr(l3)}, 11, {sr(sT2)}")
    for t in range(4):
        A(f"v_xor_b32 {vr(t0)}, {64*(t&1)}, {vr(t1)}")
        A(f"v_add_u32 {vr(t0)}, {vr(t0)}, {vr(l3)}")
        A(f"v_add_u32 {vr(vDX+t)}, {8*t*2048 - 1024*t}, {vr(t0)}")
    w_offsets(A, 13, True)
    A("s_waitcnt lgkmcnt(0)")
    A(f"s_lshl_b32 {sr(sT0)}, {sr(sH)}, 8")
    srd(A, S_W, 70, sr(sT0), "0")
    A(f"s_sub_u32 {sr(S_W+2)}, 0x800000, {sr(sT0)}")
    A(f"s_mul_i32 {sr(sT0)}, {sr(sB)}, 229376")
    srd(A, S_X, 74, sr(sT0), str(2 * 229376))
    A.groups(dma_w(o, "W", ("imm", 0)))
    A.groups(dma_x(o, "X", ("imm", XB)))
    A(f"s_add_u32 {sr(sT0)}, {sr(sB)}, {sr(sU)}"); A(f"s_lshl_b32 {sr(sT0)}, {sr(sT0)}, 5")
    A(f"s_add_u32 {sr(sT0)}, {sr(sT0)}, {sr(sH)}"); A(f"s_lshl_b32 {sr(sT0)}, {sr(sT0)}, 18")
    srd(A, S_K, 66, sr(sT0), "0" if o.nokv else "0x40000")
    srd(A, S_V, 68, sr(sT0), "0" if o.nokv else "0x40000")
    l4, t0, t1, t2 = vT, vT + 1, vT + 2, vT + 3
    A(f"v_lshrrev_b32 {vr(l4)}, 4, {vr(vLANE)}")
    A(f"v_and_b32 {vr(t1)}, 15, {vr(vLANE)}")
    A(f"s_lshl_b32 {sr(sT0)}, {sr(sC2)}, 12")
    A(f"v_lshl_add_u32 {vr(t2)}, {vr(l4)}, 8, {sr(sT0)}")
    A(f"v_xor_b32 {vr(t0)}, {vr(l4)}, {vr(t1)}")
    A(f"v_lshl_add_u32 {vr(vDK)}, {vr(t0)}, 4, {vr(t2)}")
    for t in range(1, 4):
        A(f"v_xor_b32 {vr(vDK+t)}, {64*t}, {vr(vDK)}")
    A(f"v_lshlrev_b32 {vr(t0)}, 1, {vr(l4)}")
    A(f"v_xor_b32 {vr(t0)}, {vr(t0)}, {vr(t1)}")
    A(f"v_lshl_add_u32 {vr(vDV)}, {vr(t0)}, 4, {vr(t2)}")
    A(f"v_xor_b32 {vr(vDV+1)}, 128, {vr(vDV)}")
    if o.krot:
        A(f"s_lshr_b32 {sr(sT0)}, s2, 3"); A(f"s_and_b32 {sr(sT1)}, s2, 7"); A(f"s_lshl_b32 {sr(sT1)}, {sr(sT1)}, 2")
        A(f"s_add_u32 {sr(sT0)}, {sr(sT0)}, {sr(sT1)}"); A(f"s_and_b32 {sr(sT0)}, {sr(sT0)}, 31"); A(f"s_lshl_b32 {sr(sKO)}, {sr(sT0)}, 13")
    else:
        A(f"s_mov_b32 {sr(sKO)}, 0")
    A(f"s_mov_b32 {sr(sVO)}, {sr(sKO)}")
    srd(A, S_OUT, 72, None, str(896 * 4096))
    srd(A, S_XC, sWS, str(X_OFF), str(X_BYTES))
    A(f"s_mov_b32 {sr(sC)}, {C_SCALE:#x}"); A(f"s_mov_b32 {sr(sTHR)}, {THR:#x}")
    A(f"s_mov_b32 {sr(sNON)}, 0"); A(f"s_mov_b32 {sr(sNON+1)}, 0"); A(f"s_mov_b32 {sr(sPEND)}, 0")
    l = A.newlab("L_notag")
    A(f"s_or_b32 {sr(sT0)}, s2, {sr(sWAVE)}"); A(f"s_cmp_lg_u32 {sr(sT0)}, 0"); A(f"s_cbranch_scc1 {l}")
    A(f"s_memrealtime {sr(sLD,2)}"); A("s_waitcnt lgkmcnt(0)")
    A(f"v_mov_b32 {vr(vT+2)}, {sr(sLD)}"); A(f"v_mov_b32 {vr(vT+3)}, {sr(sLD+1)}"); A(f"v_mov_b32 {vr(vT+4)}, 0")
    A(f"v_or_b32 {vr(vT+3)}, 0x80000000, {vr(vT+3)}")
    A("s_mov_b64 exec, 1")
    A(f"global_store_dwordx2 {vr(vT+4)}, {vr(vT+2,2)}, {sr(sDBG,2)} sc1")
    A("s_mov_b64 exec, -1")
    A.lab(l)
    q, g, r = vT, vT + 1, vT + 2
    A(f"v_lshlrev_b32 {vr(vL16)}, 4, {vr(vLANE)}")
    A(f"v_and_b32 {vr(q)}, 15, {vr(vLANE)}")
    A(f"v_lshrrev_b32 {vr(g)}, 4, {vr(vLANE)}")
    A(f"v_bfe_u32 {vr(r)}, {vr(vLANE)}, 1, 3")
    A(f"v_xor_b32 {vr(r)}, {vr(r)}, {vr(g)}")
    A(f"v_lshlrev_b32 {vr(r)}, 4, {vr(r)}")
    A(f"v_lshl_add_u32 {vr(r)}, {vr(q)}, 7, {vr(r)}")
    A(f"s_mul_i32 {sr(sT0)}, {sr(sU)}, {112*128}")
    A(f"v_add_u32 {vr(vXB)}, {sr(sT0)}, {vr(r)}")
    A(f"v_xor_b32 {vr(vXB+1)}, 64, {vr(vXB)}")
    gemm_tr_bases(A, 11)
    q, g, t0 = vT + 3, vT + 4, vT + 5
    A(f"v_and_b32 {vr(q)}, 15, {vr(vLANE)}"); A(f"v_lshrrev_b32 {vr(g)}, 4, {vr(vLANE)}")
    A(f"v_xor_b32 {vr(t0)}, {vr(g)}, {vr(q)}"); A(f"v_lshlrev_b32 {vr(t0)}, 4, {vr(t0)}")
    A(f"v_lshl_add_u32 {vr(t0)}, {vr(q)}, 8, {vr(t0)}")
    A(f"s_lshl_b32 {sr(sT0)}, {sr(sU)}, 13"); A(f"s_add_u32 {sr(sT1)}, {sr(sT0)}, {ASL}"); A(f"s_add_u32 {sr(sT0)}, {sr(sT0)}, {ASL + 16384}")
    A(f"v_add_u32 {vr(vKA)}, {sr(sT0)}, {vr(t0)}")
    for s in range(1, 4):
        A(f"v_xor_b32 {vr(vKA+s)}, {64*s}, {vr(vKA)}")
    for s in range(4):
        A(f"v_add_u32 {vr(vKA+4+s)}, 0x10000, {vr(vKA+s)}")
    tr_base(A, vVA, 10)
    A(f"v_add_u32 {vr(vVA)}, {sr(sT1)}, {vr(vVA)}")
    for dt in range(1, 8):
        A(f"v_xor_b32 {vr(vVA+dt)}, {32*dt}, {vr(vVA)}")
    for dt in range(8):
        A(f"v_add_u32 {vr(vVA+8+dt)}, 0x10000, {vr(vVA+dt)}")
    for i in range(24):
        A(f"v_mov_b32 {vr(vNM+i)}, 0")
    for i in range(128):
        A(f"v_accvgpr_write_b32 {vr(aO+i)}, 0")


def gemm(A, o, kind, vm0, tailfill):
    Q = kind == "Q"
    xk, wk = ("X", "W") if Q else ("O", "G")

    def addrs():
        L = [f"v_add_u32 {vr(vXA+s)}, {sr(sCX)}, {vr(vXB+s)}" for s in range(2)]
        return L + [f"v_add_u32 {vr(vTA+ct)}, {sr(sCW)}, {vr(vTB+ct)}" for ct in range(4)]

    def wr(s):
        L = []
        for ct in range(4):
            f = gW + 16 * s + 4 * ct
            for e in range(2):
                off = 8192 * s + (1024 if Q else 4096) * e
                L.append(("ds", f"ds_read_b64_tr_b16 {vr(f+2*e,2)}, {vr(vTA+ct)} offset:{off}", f"w{s}{ct}"))
        return L

    def xr(s, rt):
        return ("ds", f"ds_read_b128 {vr(gX+28*s+4*rt,4)}, {vr(vXA+s)} offset:{2048*rt}", f"x{s}{rt}")

    def adv(s, size, lo, n):
        return [f"s_add_u32 {sr(s)}, {sr(s)}, {size}", f"s_cmp_ge_u32 {sr(s)}, {lo + n*size}",
                f"s_cselect_b32 {sr(s)}, {lo}, {sr(s)}"]

    def carry():
        return wr(0) + [xr(0, rt) for rt in range(3)]

    def step(first, late, early, last, vm):
        mf, after = [], {}
        for s in range(2):
            for rt in range(7):
                for ct in range(4):
                    a = gACC + 28 * ct + 4 * rt
                    mf.append((mfma(a, gW + 16 * s + 4 * ct, gX + 28 * s + 4 * rt, "0" if (first and s == 0) else a),
                               [f"w{s}{ct}", f"x{s}{rt}"]))
        r = [xr(0, rt) for rt in range(3, 7)] + wr(1) + [xr(1, rt) for rt in range(7)]
        spread(after, [(x, 1) for x in r], 3, 30)
        if late:
            spread(after, [(g, 1) for g in late], 1, 34)
        if not last:
            put(after, 33, [f"s_mov_b32 {sr(sFW)}, {sr(sCW)}", f"s_mov_b32 {sr(sFX)}, {sr(sCX)}"])
            put(after, 34, adv(sCW, WSL, 0, 3)); put(after, 35, adv(sCX, XSL, XB, 3))
            ad = addrs()
            put(after, 36, ad[:2]); put(after, 37, ad[2:4]); put(after, 38, ad[4:])
            put(after, 40, [("bar", vm)])
            spread(after, [(x, 1) for x in carry()], 40, 54)
            if early:
                spread(after, [(g, 1) for g in early], 41, 56)
        A.run(mf, after)

    A(f"s_mov_b32 {sr(sCW)}, 0"); A(f"s_mov_b32 {sr(sCX)}, {XB}")
    for s in addrs(): A(s)
    A.emit(("bar", vm0))
    stamp(A, 6, o.stamps and (o.qst == Q))
    for it in carry(): A.emit(it)
    W = lambda sl: dma_w(o, wk, sl)
    X = lambda sl: dma_x(o, xk, sl)
    if Q:
        step(True, W(("imm", WSL)) + X(("imm", XB + XSL)), W(("imm", 2 * WSL)) + X(("imm", XB + 2 * XSL))[:3], False, 0)
        step(False, X(("imm", XB + 2 * XSL))[3:] + W(sFW) + X(sFX), W(sFW), False, 11)
    else:
        step(True, [], W(sFW), False, 7)
        step(False, X(sFX), W(sFW), False, 11)
    A(f"s_mov_b32 {sr(sCNT)}, 11")
    q0 = list(A.q)
    l = A.newlab("L_gl")
    A.lab(l)
    step(False, X(sFX), W(sFW), False, 11)
    assert A.q == q0
    A(f"s_sub_u32 {sr(sCNT)}, {sr(sCNT)}, 1"); A(f"s_cmp_lg_u32 {sr(sCNT)}, 0"); A(f"s_cbranch_scc1 {l}")
    step(False, X(sFX), tailfill.get(13, []), False, 11)
    step(False, [], tailfill.get(14, []), False, len(tailfill.get(13, [])))
    step(False, tailfill.get(15, []), [], True, 0)
    stamp(A, 7, o.stamps and (o.qst == Q))


def q_finish(A, o):
    A.emit(("bar", 63))
    A.groups(dma_k(o, 1)); A.groups(dma_v(o, 1))
    q, g, t0, t1 = vT, vT + 1, vT + 2, vT + 3
    A(f"v_and_b32 {vr(q)}, 15, {vr(vLANE)}")
    A(f"v_lshrrev_b32 {vr(g)}, 4, {vr(vLANE)}")
    A(f"v_lshrrev_b32 {vr(t0)}, 1, {vr(g)}")
    A(f"s_lshl_b32 {sr(sT0)}, {sr(sC2)}, 3")
    A(f"v_xor_b32 {vr(t0)}, {sr(sT0)}, {vr(t0)}")
    A(f"v_xor_b32 {vr(t0)}, {vr(t0)}, {vr(q)}")
    A(f"v_lshlrev_b32 {vr(t0)}, 4, {vr(t0)}")
    A(f"v_and_b32 {vr(t1)}, 1, {vr(g)}")
    A(f"v_lshl_add_u32 {vr(t0)}, {vr(t1)}, 3, {vr(t0)}")
    A(f"s_mul_i32 {sr(sT0)}, {sr(sU)}, {112*256}")
    A(f"v_lshl_add_u32 {vr(t1)}, {vr(q)}, 8, {sr(sT0)}")
    A(f"v_add_u32 {vr(vTA)}, {vr(t0)}, {vr(t1)}")
    for ct in range(1, 4):
        A(f"v_xor_b32 {vr(vTA+ct)}, {32*ct}, {vr(vTA)}")
    A(f"v_mov_b32 {vr(vXA)}, {sr(sC)}"); A(f"v_mov_b32 {vr(vXA+1)}, {sr(sC)}")
    for ct in range(4):
        for rt in range(7):
            a = gACC + 28 * ct + 4 * rt
            d = gX + 2 * ((ct * 7 + rt) % 8)
            A(f"v_pk_mul_f32 {vr(a,2)}, {vr(a,2)}, {vr(vXA,2)}")
            A(f"v_pk_mul_f32 {vr(a+2,2)}, {vr(a+2,2)}, {vr(vXA,2)}")
            A(f"v_cvt_pk_bf16_f32 {vr(d)}, {vr(a)}, {vr(a+1)}")
            A(f"v_cvt_pk_bf16_f32 {vr(d+1)}, {vr(a+2)}, {vr(a+3)}")
            A(f"ds_write_b64 {vr(vTA+ct)}, {vr(d,2)} offset:{4096*rt}")
            if (ct * 7 + rt) % 8 == 7:
                A("s_waitcnt lgkmcnt(4)")
    A(f"v_xor_b32 {vr(t0)}, {vr(g)}, {vr(q)}")
    A(f"v_lshlrev_b32 {vr(t0)}, 4, {vr(t0)}")
    A(f"s_lshl_b32 {sr(sT0)}, {sr(sC2)}, 14")
    A(f"v_add3_u32 {vr(t1)}, {vr(t1)}, {vr(t0)}, {sr(sT0)}")
    A.emit(("bar", 63))
    for s in range(4):
        A(f"v_xor_b32 {vr(vTA+s)}, {64*s}, {vr(t1)}")
    for qt in range(4):
        for s in range(4):
            A(f"ds_read_b128 {vr(aQ+16*qt+4*s,4)}, {vr(vTA+s)} offset:{4096*qt}")
            if qt == 2 and s == 3:
                A("s_waitcnt lgkmcnt(4)")
    A.emit(("bar", 16))
    A.groups(dma_k(o, 0)); A.groups(dma_v(o, 0))


def kreads(slot):
    L = []
    for s in range(4):
        for kt in range(2):
            L.append(("ds", f"ds_read_b128 {vr(vKF+16*kt+4*s,4)}, {vr(vKA+4*(slot>>1)+s)} offset:{(slot&1)*ASL+4096*kt}", f"k{kt}{s}"))
    return L


def new_max(S, NT, clamp):
    L = []
    for qt in range(NT):
        mx, o2 = vT, vT + 1
        a, b = S + 4 * qt, S + 16 + 4 * qt
        L += [f"v_max3_f32 {vr(mx)}, {vr(a)}, {vr(a+1)}, {vr(a+2)}", f"v_max3_f32 {vr(mx)}, {vr(mx)}, {vr(a+3)}, {vr(b)}",
              f"v_max3_f32 {vr(mx)}, {vr(mx)}, {vr(b+1)}, {vr(b+2)}", f"v_max_f32 {vr(mx)}, {vr(mx)}, {vr(b+3)}"]
        for sw in ("16", "32"):
            L += [f"v_mov_b32 {vr(o2)}, {vr(mx)}", "s_nop 1", f"v_permlane{sw}_swap_b32 {vr(mx)}, {vr(o2)}", "s_nop 1",
                  f"v_max_f32 {vr(mx)}, {vr(mx)}, {vr(o2)}"]
        if clamp:
            L += [f"v_max_f32 {vr(mx)}, 0, {vr(mx)}", f"v_exp_f32 {vr(vFAC+qt)}, -{vr(mx)}"]
        L += [f"v_sub_f32 {vr(x+i)}, {vr(x+i)}, {vr(mx)}" for x in (a, b, vNM + 4 * qt) for i in range(4)]
        if clamp:
            L += [f"v_mul_f32 {vr(vLS+2*qt+i)}, {vr(vLS+2*qt+i)}, {vr(vFAC+qt)}" for i in range(2)]
    return L


def attention(A, o, NT, tail):
    tag = f"_{NT}"
    NQ = 8 * NT
    NE = 2 * NT
    sreg = lambda S, i: S + 16 * ((i >> 2) & 1) + 4 * (i >> 3) + (i & 3)

    def it(u, first=False):
        p = u & 1
        S, Sp = vS + 32 * p, vS + 32 * (1 - p)
        slot, nslot, pslot = (3 - u) & 3, (2 - u) & 3, (4 - u) & 3
        mf, after = [], {}
        allk = [f"k{kt}{s}" for kt in range(2) for s in range(4)]
        for s in range(4):
            for kt in range(2):
                for qt in range(NT):
                    d = S + 16 * kt + 4 * qt
                    mf.append((mfma(d, vKF + 16 * kt + 4 * s, aQ + 16 * qt + 4 * s, vNM + 4 * qt if s == 0 else d),
                               [f"k{kt}{s}"] if first else allk))
        mx = vT
        order = [sreg(S, i) for i in range(NQ)]
        order.sort(key=lambda r: ((r - S) >> 4, (r - S) & 15))
        m1 = [f"v_max3_f32 {vr(mx)}, {vr(order[0])}, {vr(order[1])}, {vr(order[2])}"]
        m1 += [f"v_max3_f32 {vr(mx)}, {vr(mx)}, {vr(order[i])}, {vr(order[i+1])}" for i in range(3, NQ - 1, 2)]
        m1 += [f"v_max_f32 {vr(mx)}, {vr(mx)}, {vr(order[NQ-1])}"]
        E1 = [f"v_exp_f32 {vr(sreg(S,i))}, {vr(sreg(S,i))}" for i in range(NE)]
        kr = kreads(nslot)
        if first:
            put(after, NQ - 1, [("bar", 16)] + kr + sum(dma_k(o, slot), []) + ["s_nop 3"] + new_max(S, NT, False) + E1)
            A.run(mf, after)
            return
        vrd = []
        for qt in range(NT):
            for dt in range(8):
                mf.append((mfma(aO + 16 * dt + 4 * qt, vVF + 4 * dt, vP + 4 * qt, aO + 16 * dt + 4 * qt), [f"v{dt}"]))
        for dt in range(8):
            for e in range(2):
                vrd.append(("ds", f"ds_read_b64_tr_b16 {vr(vVF+4*dt+2*e,2)}, {vr(vVA+8*(slot>>1)+dt)} offset:{(slot&1)*ASL+4096*e}", f"v{dt}"))
        spread(after, [(x, 1) for x in vrd], 0, NQ - 2)
        spread(after, [(g, 1) for g in dma_v(o, pslot)], 2, NQ - 2)
        l2, b2 = A.newlab("L_r2"), A.newlab("L_b2")
        put(after, 4, [f"s_cmp_lg_u32 {sr(sPEND)}, 0", f"s_cbranch_scc1 {l2}", ("lab", b2)])
        tail.append(("r2", l2, b2, NT))
        st = []
        due = {}
        for qt in range(NT):
            for i in range(8 * qt, 8 * qt + 8):
                if i + NE < NQ:
                    r = sreg(Sp, i + NE)
                    st.append((f"v_exp_f32 {vr(r)}, {vr(r)}", 8))
                if i & 1:
                    r = sreg(Sp, i - 1)
                    st.append((f"v_pk_add_f32 {vr(vLS+2*qt,2)}, {vr(vLS+2*qt,2)}, {vr(r,2)}", 4.5))
                    st.append((f"v_cvt_pk_bf16_f32 {vr(vP+4*qt+((i&7)>>1))}, {vr(r)}, {vr(r+1)}", 4.5))
            due[qt] = len(st) - 1
        i_m1 = len(st)
        l1, b1 = A.newlab("L_r1"), A.newlab("L_b1")
        tail.append(("r1", l1, b1, u == 0, S, NT))
        st += [(x, 4.5) for x in m1]
        st.append(([f"v_cmp_lt_f32 vcc, {sr(sTHR)}, {vr(mx)}", f"s_cbranch_vccnz {l1}", ("lab", b1)], 9))
        st += [(x, 8) for x in E1]
        pos = spread(after, st, 0, 2 * NQ)
        for qt in range(NT):
            assert pos[due[qt]] < NQ + 8 * qt - 2, (qt, pos[due[qt]])
        assert pos[i_m1] >= NQ + 4, pos[i_m1]
        put(after, NQ + 2, [("bar", 16)])
        spread(after, [(x, 1) for x in kr], NQ + 3, 2 * NQ - 6)
        if u == 0:
            put(after, NQ + 3, [f"s_cmp_eq_u32 {sr(sCNT)}, 2", f"s_cselect_b32 {sr(S_K+2)}, 0, {sr(S_K+2)}"])
        if u == 2:
            put(after, 0, [f"s_cmp_eq_u32 {sr(sCNT)}, 1", f"s_cselect_b32 {sr(S_V+2)}, 0, {sr(S_V+2)}"])
        spread(after, [(g, 1) for g in dma_k(o, slot)], NQ + 5, 2 * NQ)
        A.run(mf, after)

    A.q = []
    for x in kreads(3): A.emit(x)
    it(0, first=True)
    q0 = list(A.q)
    A(f"s_mov_b32 {sr(sCNT)}, 8")
    A.lab("L_aloop" + tag)
    l = A.newlab("L_gw")
    A(f"s_cmp_eq_u32 {sr(sCNT)}, 1"); A(f"s_cbranch_scc1 {l}"); A.lab(l + "b")
    tail.append(("gw", l))
    for u in (1, 2, 3, 0):
        it(u)
    assert A.q == q0
    A(f"s_sub_u32 {sr(sCNT)}, {sr(sCNT)}, 1"); A(f"s_cmp_lg_u32 {sr(sCNT)}, 0"); A(f"s_cbranch_scc1 L_aloop{tag}")
    if o.stamps:
        stamp(A, 2, True)
    A(f"s_lshl_b32 {sr(sT0)}, {sr(sBR)}, 3"); A(f"s_add_u32 {sr(sT0)}, {sr(sT0)}, {sr(sB)}"); A(f"s_add_u32 {sr(sT0)}, {sr(sT0)}, {sr(sU)}")
    A(f"s_mul_i32 {sr(sT0)}, {sr(sT0)}, 7"); A(f"s_lshl_b32 {sr(sT1)}, {sr(sC2)}, 2"); A(f"s_add_u32 {sr(sT0)}, {sr(sT0)}, {sr(sT1)}")
    A(f"s_lshl_b32 {sr(sT0)}, {sr(sT0)}, 17"); A(f"s_lshl_b32 {sr(sT1)}, {sr(sH)}, 12"); A(f"s_add_u32 {sr(sT0)}, {sr(sT0)}, {sr(sT1)}")
    srd(A, S_O, sWS, None, str(O_BYTES))
    A("s_waitcnt lgkmcnt(0)")
    for qt in range(NT):
        a, b = vLS + 2 * qt, vLS + 2 * qt + 1
        A(f"v_add_f32 {vr(a)}, {vr(a)}, {vr(b)}")
    for sw in ("16", "32"):
        for qt in range(NT):
            A(f"v_mov_b32 {vr(vLS+2*qt+1)}, {vr(vLS+2*qt)}")
        A("s_nop 1")
        for qt in range(NT):
            A(f"v_permlane{sw}_swap_b32 {vr(vLS+2*qt)}, {vr(vLS+2*qt+1)}")
        A("s_nop 1")
        for qt in range(NT):
            A(f"v_add_f32 {vr(vLS+2*qt)}, {vr(vLS+2*qt)}, {vr(vLS+2*qt+1)}")
    for qt in range(NT):
        A(f"v_rcp_f32 {vr(vLS+2*qt)}, {vr(vLS+2*qt)}")
    A("s_nop 0")
    for qt in range(NT):
        A(f"v_mov_b32 {vr(vLS+2*qt+1)}, {vr(vLS+2*qt)}")
    for qt in range(NT):
        for m in range(4):
            t = vS + 8 * ((4 * qt + m) % 8)
            d = vKF + 4 * (4 * qt + m)
            for i in range(8):
                A(f"v_accvgpr_read_b32 {vr(t+i)}, {vr(aO + 16*(2*m + (i>>2)) + 4*qt + (i&3))}")
            for i in range(4):
                A(f"v_pk_mul_f32 {vr(t+2*i,2)}, {vr(t+2*i,2)}, {vr(vLS+2*qt,2)}")
            for i in range(4):
                A(f"v_cvt_pk_bf16_f32 {vr(d+i)}, {vr(t+2*i)}, {vr(t+2*i+1)}")
            A(f"buffer_store_dwordx4 {vr(d,4)}, {vr(vL16)}, {sr(S_O,4)}, {sr(sT0)} offen offset:{m*1024} sc1")
        A(f"s_add_u32 {sr(sT0)}, {sr(sT0)}, 0x20000")


def rare_blocks(A, o, tail):
    r2 = {}
    for t in tail:
        if t[0] == "r1":
            _, l1, b1, last, S, NT = t
            A.lab(l1)
            if last:
                A(f"s_cmp_eq_u32 {sr(sCNT)}, 1"); A(f"s_cbranch_scc1 {b1}")
            for x in new_max(S, NT, True): A(x)
            A(f"s_mov_b32 {sr(sPEND)}, 1")
            A(f"s_branch {b1}")
        elif t[0] == "r2":
            _, l2, b2, NT = t
            k = len(r2.setdefault(NT, []))
            r2[NT].append(b2)
            A.lab(l2)
            A(f"s_mov_b32 {sr(sPEND)}, {k}"); A(f"s_branch L_r2c_{NT}")
        else:
            l = t[1]
            A.lab(l)
            A(f"s_load_dwordx2 {sr(sLD,2)}, {sr(sKA,2)}, 32")
            w_offsets(A, 11, False)
            A("s_waitcnt lgkmcnt(0)")
            A(f"s_lshl_b32 {sr(sT0)}, {sr(sHG)}, 21"); A(f"s_lshl_b32 {sr(sT1)}, {sr(sHL)}, 8"); A(f"s_add_u32 {sr(sT0)}, {sr(sT0)}, {sr(sT1)}")
            srd(A, S_W, sLD, sr(sT0), "0")
            A(f"s_sub_u32 {sr(S_W+2)}, 0x800000, {sr(sT0)}")
            A(f"s_lshl_b32 {sr(sWO_)}, {sr(sHL)}, 18")
            A(f"s_cmp_lg_u32 {sr(sWAVE)}, 0"); A(f"s_cbranch_scc1 {l}c")
            A("s_mov_b64 exec, 1")
            get_tag(A)
            A("s_mov_b64 exec, -1")
            A.lab(l + "c")
            for j in range(2):
                A.groups(dma_w(o, "G", ("imm", j * WSL)))
            A(f"s_branch {l}b")
    for NT, backs in r2.items():
        A.lab(f"L_r2c_{NT}")
        A("s_nop 7")
        for dt in range(8):
            for qt in range(NT):
                for i in range(4):
                    A(f"v_accvgpr_read_b32 {vr(vT+i)}, {vr(aO+16*dt+4*qt+i)}")
                for i in range(4):
                    A(f"v_mul_f32 {vr(vT+i)}, {vr(vT+i)}, {vr(vFAC+qt)}")
                for i in range(4):
                    A(f"v_accvgpr_write_b32 {vr(aO+16*dt+4*qt+i)}, {vr(vT+i)}")
        A(f"s_mov_b32 {sr(sT0)}, {sr(sPEND)}"); A(f"s_mov_b32 {sr(sPEND)}, 0")
        for k, b in enumerate(backs[:-1]):
            A(f"s_cmp_eq_u32 {sr(sT0)}, {k}"); A(f"s_cbranch_scc1 {b}")
        A(f"s_branch {backs[-1]}")


def g_begin(A, o):
    A(f"s_mul_i32 {sr(sT0)}, {sr(sWAVE)}, 7")
    for t in range(4):
        A(f"s_add_u32 {sr(sT1)}, {sr(sT0)}, {t}")
        A(f"s_lshr_b32 {sr(sT2)}, {sr(sT1)}, 1"); A(f"s_lshl_b32 {sr(sT2)}, {sr(sT2)}, 17")
        A(f"s_and_b32 {sr(sT1)}, {sr(sT1)}, 1"); A(f"s_lshl_b32 {sr(sT1)}, {sr(sT1)}, 10"); A(f"s_add_u32 {sr(sT1)}, {sr(sT1)}, {sr(sT2)}")
        A(f"s_sub_u32 {sr(sT1)}, {sr(sT1)}, {1024*t}")
        A(f"v_add_u32 {vr(vDX+t)}, {sr(sT1)}, {vr(vL16)}")
    A(f"s_mul_i32 {sr(sT0)}, {sr(sU)}, {14*1024}")
    A(f"v_add_u32 {vr(vXB)}, {sr(sT0)}, {vr(vL16)}")
    A(f"v_add_u32 {vr(vXB+1)}, 1024, {vr(vXB)}")
    gemm_tr_bases(A, 10)
    A(f"s_lshl_b32 {sr(sXO)}, {sr(sHL)}, 12")
    A(f"s_lshl_b32 {sr(sT2)}, {sr(sBR)}, 2"); A(f"s_add_u32 {sr(sT2)}, {sr(sT2)}, {sr(sTAU)}"); A(f"s_lshl_b32 {sr(sT2)}, {sr(sT2)}, 2")
    A(f"s_add_u32 {sr(sT2)}, {sr(sT2)}, {sr(sHG)}"); A(f"s_lshl_b32 {sr(sT2)}, {sr(sT2)}, 7"); A(f"s_add_u32 {sr(sT2)}, {sr(sT2)}, {F_RDY}")
    A(f"s_lshl_b32 {sr(sT1)}, {sr(sHL)}, 3"); A(f"s_add_u32 {sr(sT1)}, {sr(sT1)}, {sr(sT2)}")
    A(f"s_lshl_b32 {sr(sT0)}, {sr(sBR)}, 3"); A(f"s_add_u32 {sr(sT0)}, {sr(sT0)}, {sr(sB)}"); A(f"s_mul_i32 {sr(sT0)}, {sr(sT0)}, {7 << 17}")
    A(f"s_lshl_b32 {sr(sT3)}, {sr(sHG)}, 15"); A(f"s_add_u32 {sr(sT0)}, {sr(sT0)}, {sr(sT3)}")
    srd(A, S_O, sWS, sr(sT0), str(14 << 17))
    A.emit(("bar", 0))
    stamp(A, 3, o.stamps)
    l = A.newlab("L_sig")
    A(f"s_cmp_lg_u32 {sr(sWAVE)}, 0"); A(f"s_cbranch_scc1 {l}")
    raise_flag(A, sT1)
    A.lab(l)
    A.groups(dma_w(o, "G", ("imm", 2 * WSL)))
    for j in range(2):
        A.groups(dma_x(o, "O", ("imm", XB + j * XSL)))
    signal_wait(A, None, sT2, 8, 1)
    stamp(A, 4, o.stamps)
    A.groups(dma_x(o, "O", ("imm", XB + 2 * XSL)))


def exchange(A, o):
    A(f"s_lshl_b32 {sr(sT0)}, {sr(sBR)}, 2"); A(f"s_add_u32 {sr(sT0)}, {sr(sT0)}, {sr(sTAU)}")
    A(f"s_lshl_b32 {sr(sT0)}, {sr(sT0)}, 3"); A(f"s_add_u32 {sr(sT0)}, {sr(sT0)}, {sr(sHL)}")
    A(f"s_lshl_b32 {sr(sT2)}, {sr(sT0)}, 7"); A(f"s_add_u32 {sr(sT2)}, {sr(sT2)}, {F_XCH}")
    A(f"s_lshl_b32 {sr(sXB)}, {sr(sT0)}, 19"); A(f"s_lshl_b32 {sr(sT1)}, {sr(sWAVE)}, 13"); A(f"s_add_u32 {sr(sXB)}, {sr(sXB)}, {sr(sT1)}")
    A(f"s_lshl_b32 {sr(sT0)}, {sr(sHG)}, 15"); A(f"s_add_u32 {sr(sT0)}, {sr(sT0)}, {sr(sXB)}")
    for ow in range(4):
        ls = A.newlab("L_skip")
        A(f"s_cmp_eq_u32 {sr(sHG)}, {ow}"); A(f"s_cbranch_scc1 {ls}")
        A(f"s_add_u32 {sr(sT1)}, {sr(sT0)}, {ow << 17}")
        if o.xbf:
            t = gT + 16 * (ow % 3)
            for i in range(14):
                A(f"v_cvt_pk_bf16_f32 {vr(t+i)}, {vr(gACC+28*ow+2*i)}, {vr(gACC+28*ow+2*i+1)}")
            for j in range(3):
                A(f"buffer_store_dwordx4 {vr(t+4*j,4)}, {vr(vL16)}, {sr(S_XC,4)}, {sr(sT1)} offen offset:{j*1024} sc1")
            A(f"buffer_store_dwordx2 {vr(t+12,2)}, {vr(vL16)}, {sr(S_XC,4)}, {sr(sT1)} offen offset:3072 sc1")
        else:
            A(f"s_add_u32 {sr(sT3)}, {sr(sT1)}, 4096")
            for rt in range(7):
                A(f"buffer_store_dwordx4 {vr(gACC+28*ow+4*rt,4)}, {vr(vL16)}, {sr(S_XC,4)}, {sr(sT1 if rt < 4 else sT3)} offen offset:{(rt&3)*1024} sc1")
        A.lab(ls)
    R = gX
    lj = A.newlab("L_own")
    for ow in range(4):
        ls = A.newlab("L_no")
        A(f"s_cmp_eq_u32 {sr(sHG)}, {ow}"); A(f"s_cbranch_scc0 {ls}")
        for i in range(28):
            A(f"v_mov_b32 {vr(R+i)}, {vr(gACC+28*ow+i)}")
        A(f"s_branch {lj}")
        A.lab(ls)
    A.lab(lj)
    A(f"s_lshl_b32 {sr(sT1)}, {sr(sHG)}, 3"); A(f"s_add_u32 {sr(sT1)}, {sr(sT1)}, {sr(sT2)}")
    A.emit(("bar", 0))
    signal_wait(A, sT1, sT2, 4, 1)
    A(f"s_lshl_b32 {sr(sT0)}, {sr(sHG)}, 17"); A(f"s_add_u32 {sr(sXB)}, {sr(sXB)}, {sr(sT0)}")
    for k in range(1, 4):
        A(f"s_add_u32 {sr(sT1)}, {sr(sHG)}, {k}"); A(f"s_and_b32 {sr(sT1)}, {sr(sT1)}, 3"); A(f"s_lshl_b32 {sr(sT1)}, {sr(sT1)}, 15")
        A(f"s_add_u32 {sr(sT1)}, {sr(sT1)}, {sr(sXB)}"); A(f"s_add_u32 {sr(sT3)}, {sr(sT1)}, 4096")
        if o.xbf:
            for j in range(4):
                A(f"buffer_load_dwordx4 {vr(gACC+16*(k-1)+4*j,4)}, {vr(vL16)}, {sr(S_XC,4)}, {sr(sT1)} offen offset:{j*1024} sc1")
        else:
            for rt in range(7):
                A(f"buffer_load_dwordx4 {vr(gACC+28*(k-1)+4*rt,4)}, {vr(vL16)}, {sr(S_XC,4)}, {sr(sT1 if rt < 4 else sT3)} offen offset:{(rt&3)*1024} sc1")
    t1, t2 = vT, vT + 1
    A(f"s_add_u32 {sr(sT0)}, {sr(sB)}, {sr(sU)}"); A(f"s_mul_i32 {sr(sT0)}, {sr(sT0)}, {112*4096}")
    A(f"s_lshl_b32 {sr(sT1)}, {sr(sBR)}, 11"); A(f"s_add_u32 {sr(sT0)}, {sr(sT0)}, {sr(sT1)}")
    A(f"s_lshl_b32 {sr(sT1)}, {sr(sHL)}, 8"); A(f"s_add_u32 {sr(sT0)}, {sr(sT0)}, {sr(sT1)}")
    A(f"s_lshl_b32 {sr(sT1)}, {sr(sC2)}, 7"); A(f"s_add_u32 {sr(sT0)}, {sr(sT0)}, {sr(sT1)}")
    A(f"s_lshl_b32 {sr(sT1)}, {sr(sHG)}, 5"); A(f"s_add_u32 {sr(sT0)}, {sr(sT0)}, {sr(sT1)}")
    A(f"v_and_b32 {vr(t1)}, 15, {vr(vLANE)}"); A(f"v_lshlrev_b32 {vr(t1)}, 12, {vr(t1)}")
    A(f"v_lshrrev_b32 {vr(t2)}, 4, {vr(vLANE)}"); A(f"v_lshl_add_u32 {vr(t1)}, {vr(t2)}, 3, {vr(t1)}")
    for k in range(1, 4):
        if o.xbf:
            A(f"s_waitcnt vmcnt({12 - 4*k})")
            for i in range(14):
                p = gACC + 16 * (k - 1) + i
                A(f"v_lshlrev_b32 {vr(vT+2)}, 16, {vr(p)}"); A(f"v_and_b32 {vr(vT+3)}, 0xffff0000, {vr(p)}")
                A(f"v_pk_add_f32 {vr(R+2*i,2)}, {vr(R+2*i,2)}, {vr(vT+2,2)}")
        else:
            A(f"s_waitcnt vmcnt({21 - 7*k})")
            for i in range(0, 28, 2):
                A(f"v_pk_add_f32 {vr(R+i,2)}, {vr(R+i,2)}, {vr(gACC+28*(k-1)+i,2)}")
    for rt in range(7):
        A(f"v_cvt_pk_bf16_f32 {vr(gT+2*rt)}, {vr(R+4*rt)}, {vr(R+4*rt+1)}")
        A(f"v_cvt_pk_bf16_f32 {vr(gT+2*rt+1)}, {vr(R+4*rt+2)}, {vr(R+4*rt+3)}")
        A(f"buffer_store_dwordx2 {vr(gT+2*rt,2)}, {vr(t1)}, {sr(S_OUT,4)}, {sr(sT0)} offen{o.outfl}")
        A(f"s_add_u32 {sr(sT0)}, {sr(sT0)}, {16*4096}")


def build(o):
    A = Asm()
    st = o.stamps
    for l in HEADER.splitlines(): A(l)
    A(f"; @launch grid=(256,1,1) block=(256,1,1) lds={LDS}")
    A('.amdgcn_target "amdgcn-amd-amdhsa--gfx950"'); A(".text")
    A(f".globl {KN}"); A(".p2align 8"); A(f".type {KN},@function"); A.lab(KN)
    A(f"s_cmp_ge_u32 s2, 256"); A("s_cbranch_scc1 L_exit")
    tail = []
    stamp(A, 0, st)
    prologue(A, o)
    gemm(A, o, "Q", 0, {13: dma_k(o, 3), 14: dma_k(o, 2), 15: dma_v(o, 2)})
    q_finish(A, o)
    stamp(A, 1, st)
    A(f"s_cmp_lg_u32 {sr(sC2)}, 0"); A("s_cbranch_scc1 L_att3")
    attention(A, o, 4, tail)
    A("s_branch L_attdone")
    A.lab("L_att3")
    attention(A, o, 3, tail)
    A.lab("L_attdone")
    g_begin(A, o)
    A.q = []
    gemm(A, o, "G", 14, {})
    exchange(A, o)
    A.lab("L_fin")
    stamp(A, 5, st)
    if st:
        write_stamps(A)
    A.lab("L_exit")
    A("s_endpgm")
    rare_blocks(A, o, tail)
    A('.section .rodata,"a"')
    A(".p2align 6")
    A(f".amdhsa_kernel {KN}")
    A("  .amdhsa_next_free_vgpr 480"); A("  .amdhsa_next_free_sgpr 96"); A("  .amdhsa_accum_offset 256")
    A("  .amdhsa_group_segment_fixed_size 0"); A("  .amdhsa_kernarg_size 104"); A("  .amdhsa_user_sgpr_count 2")
    A("  .amdhsa_user_sgpr_kernarg_segment_ptr 1"); A("  .amdhsa_system_sgpr_workgroup_id_x 1")
    A(".end_amdhsa_kernel")
    return A.text()


if __name__ == "__main__":
    ap = argparse.ArgumentParser()
    ap.add_argument("-o", default="concat_heads__mha_block_cached__gqa_block_cached__near_ridge.s")
    ap.add_argument("--stamps", action="store_true")
    ap.add_argument("--qst", action="store_true")
    ap.add_argument("--pst", action="store_true")
    ap.add_argument("--nt", default="KV")
    ap.add_argument("--krot", type=int, default=0)
    ap.add_argument("--xbf", type=int, default=1)
    ap.add_argument("--outfl", default="")
    ap.add_argument("--nokv", action="store_true")
    a = ap.parse_args()
    open(a.o, "w").write(build(a))
```

```python
import sys, argparse, struct, math

KN = "concat_heads__mha_block_cached__gqa_block_cached__near_ridge_kernel"
WS_BYTES = 305659904
O_BYTES = 16 * 7 * 128 * 1024
X_OFF = O_BYTES
X_BYTES = 8 * 8 * 4 * 4 * 4 * 8192
F_RDY = X_OFF + X_BYTES
F_XCH = F_RDY + 32 * 128
WSL, XSL, XB = 16384, 28672, 49152
ASL = 32768
LDS = 163840
f32 = lambda x: struct.unpack("<I", struct.pack("<f", x))[0]
C_SCALE = f32(math.log2(math.e) / math.sqrt(128.0))
THR = f32(8.0)
OOB = 0x40000000

HEADER = """\
; -> output projection tile (224x128 over 8 heads) -> partial sums exchanged through ws between 4 workgroups -> out.
"""


class Asm:
    def __init__(self):
        self.L = []
        self.uid = 0
        self.q = []

    def __call__(self, s):
        self.L.append(s)

    def lab(self, name):
        self.L.append(name + ":")

    def newlab(self, p="L"):
        self.uid += 1
        return f"{p}_{self.uid}"

    def ds(self, txt, tag):
        assert len(self.q) < 15, "too many LDS ops outstanding"
        self.L.append(txt); self.q.append(tag)

    def need(self, tags):
        pos = max([i for i, t in enumerate(self.q) if t in tags], default=-1)
        if pos >= 0:
            self.L.append(f"s_waitcnt lgkmcnt({len(self.q) - pos - 1})")
            self.q = self.q[pos + 1:]

    def emit(self, it):
        if isinstance(it, str):
            self(it)
        elif it[0] == "ds":
            if len(self.q) >= 15:
                self.need([self.q[3]])
            self.ds(it[1], it[2])
        elif it[0] == "bar":
            self(f"s_waitcnt vmcnt({it[1]}) lgkmcnt(0)"); self.q = []
            self("s_barrier")
        elif it[0] == "lab":
            self.lab(it[1])

    def groups(self, gs):
        for g in gs:
            for s in g: self(s)

    def run(self, mf, after):
        for m, (txt, tags) in enumerate(mf):
            self.need(tags)
            self(txt)
            for it in after.get(m, []): self.emit(it)

    def text(self):
        return "\n".join(self.L) + "\n"


def vr(a, n=1):
    p, a = ("a", a - 256) if a >= 256 else ("v", a)
    return f"{p}{a}" if n == 1 else f"{p}[{a}:{a+n-1}]"


def sr(a, n=1):
    return f"s{a}" if n == 1 else f"s[{a}:{a+n-1}]"


def mfma(d, a, b, c):
    return f"v_mfma_f32_16x16x32_bf16 {vr(d,4)}, {vr(a,4)}, {vr(b,4)}, {c if c == '0' else vr(c,4)}"


def put(after, m, items):
    after.setdefault(m, []).extend(items)


def spread(after, items, lo, hi):
    tot = sum(c for _, c in items)
    acc, pos = 0.0, []
    for its, c in items:
        g = lo + int((acc + c / 2) / tot * (hi - lo))
        put(after, g, its if isinstance(its, list) else [its])
        pos.append(g); acc += c
    return pos


S_X, S_W, S_K, S_V, S_O, S_XC, S_OUT = 4, 8, 12, 16, 20, 24, 28
sWAVE, sBR, sB, sH, sHG, sHL = 32, 33, 34, 35, 38, 39
sKA = 36
sDBG = 40
sWS = 42
sT0, sT1, sT2, sT3 = 44, 45, 46, 47
sCW, sCX, sFW, sFX = 48, 49, 50, 51
sWM, sXM, sAM = 52, 80, 81
sCNT = 53
sXO, sWO_ = 54, 55
sKO, sVO = 56, 57
sC, sTHR = 58, 59
sEX = 60
sLD = 62
sST = 64
sPEND = 82
sSPIN = 83
sU, sC2 = 84, 85
sXB = 86
sROT = 87
sTAU = 88
sWREC = 89
sNON = 90
sPTR = 94

vLANE = 1
vT = 2
vDX = 10
vDW = 14
vDK = 18
vDV = 22
vXB = 24
vTB = 26
vXA = 30
vTA = 32
vL16 = 36
vFAC = 40
vP = 44
vS = 60
vKF = 124
vVF = 156
vKA = 208
vVA = 216
vNM = 232
vLS = 248
aO = 256
aQ = 384
gACC = 40
gX = 152
gW = 448
gT = 208


def stamp(A, i, on):
    if on:
        q = list(A.q)
        A(f"s_memrealtime {sr(sST + 2*i, 2)}")
        A(f"s_memtime {sr(sPTR, 2)}")
        A("s_waitcnt lgkmcnt(0)")
        A(f"s_mov_b32 {sr(sST + 2*i + 1)}, {sr(sPTR)}")
        A.q = q


def write_stamps(A):
    l = A.newlab("L_st")
    A(f"s_mov_b32 {sr(sT0)}, {WS_BYTES - 512*64}")
    A(f"s_lshl_b32 {sr(sT1)}, s2, 6")
    A(f"s_add_u32 {sr(sT0)}, {sr(sT0)}, {sr(sT1)}")
    A(f"s_add_u32 {sr(sPTR)}, {sr(sWS)}, {sr(sT0)}")
    A(f"s_addc_u32 {sr(sPTR+1)}, {sr(sWS+1)}, 0")
    A(f"v_mov_b32 v2, 0")
    for i in range(16):
        A(f"v_mov_b32 v{4+i}, {sr(sST+i)}")
    A(f"v_cmp_eq_u32 vcc, 0, v0")
    A(f"s_and_saveexec_b64 {sr(sEX,2)}, vcc")
    A(f"s_cbranch_execz {l}")
    for i in range(4):
        A(f"global_store_dwordx4 v2, v[{4+4*i}:{7+4*i}], {sr(sPTR,2)} offset:{16*i}")
    A.lab(l)
    A(f"s_mov_b64 exec, {sr(sEX,2)}")


def srd(A, d, lo, add, nrec):
    if add is None:
        A(f"s_mov_b32 {sr(d)}, {sr(lo)}"); A(f"s_mov_b32 {sr(d+1)}, {sr(lo+1)}")
    else:
        A(f"s_add_u32 {sr(d)}, {sr(lo)}, {add}"); A(f"s_addc_u32 {sr(d+1)}, {sr(lo+1)}, 0")
    A(f"s_mov_b32 {sr(d+2)}, {nrec}")
    A(f"s_mov_b32 {sr(d+3)}, 0x20000")


def get_tag(A):
    ls, lg = A.newlab("L_tag"), A.newlab("L_tagok")
    A(f"s_cmp_lg_u32 {sr(sNON+1)}, 0"); A(f"s_cbranch_scc1 {lg}")
    A(f"v_mov_b32 {vr(vT+4)}, 0")
    A(f"s_mov_b32 {sr(sSPIN)}, 0")
    A.lab(ls)
    A(f"global_load_dwordx2 {vr(vT+2,2)}, {vr(vT+4)}, {sr(sDBG,2)} sc1")
    A("s_waitcnt vmcnt(0)")
    A(f"v_readfirstlane_b32 {sr(sNON)}, {vr(vT+2)}")
    A(f"v_readfirstlane_b32 {sr(sNON+1)}, {vr(vT+3)}")
    A(f"s_add_u32 {sr(sSPIN)}, {sr(sSPIN)}, 1")
    A(f"s_cmp_lg_u32 {sr(sNON+1)}, 0"); A(f"s_cbranch_scc1 {lg}")
    A("s_sleep 4")
    A(f"s_cmp_lt_u32 {sr(sSPIN)}, 0x4000"); A(f"s_cbranch_scc1 {ls}")
    A.lab(lg)


def raise_flag(A, sig_s):
    A("s_mov_b64 exec, 1")
    get_tag(A)
    A(f"v_mov_b32 {vr(vT+4)}, {sr(sig_s)}"); A(f"v_mov_b32 {vr(vT+2)}, {sr(sNON)}"); A(f"v_mov_b32 {vr(vT+3)}, {sr(sNON+1)}")
    A(f"global_store_dwordx2 {vr(vT+4)}, {vr(vT+2,2)}, {sr(sWS,2)} sc1")
    A("s_mov_b64 exec, -1")


def signal_wait(A, sig_s, off_s, n, sleep):
    le, ls, lg = A.newlab("L_wend"), A.newlab("L_spin"), A.newlab("L_go")
    A(f"s_cmp_lg_u32 {sr(sWAVE)}, 0"); A(f"s_cbranch_scc1 {le}")
    if sig_s is not None:
        raise_flag(A, sig_s)
    A(f"s_mov_b64 exec, {(1 << n) - 1}")
    A(f"v_lshlrev_b32 {vr(vT+5)}, 3, {vr(vLANE)}")
    A(f"v_add_u32 {vr(vT+5)}, {sr(off_s)}, {vr(vT+5)}")
    A(f"s_mov_b32 {sr(sSPIN)}, 0")
    A.lab(ls)
    A(f"global_load_dwordx2 {vr(vT+6,2)}, {vr(vT+5)}, {sr(sWS,2)} sc1")
    A("s_waitcnt vmcnt(0)")
    A(f"v_cmp_eq_u64 vcc, {sr(sNON,2)}, {vr(vT+6,2)}")
    A(f"s_add_u32 {sr(sSPIN)}, {sr(sSPIN)}, 1")
    A(f"s_cmp_eq_u32 vcc_lo, {(1 << n) - 1}")
    A(f"s_cbranch_scc1 {lg}")
    A(f"s_sleep {sleep}")
    A(f"s_cmp_lt_u32 {sr(sSPIN)}, 0x4000"); A(f"s_cbranch_scc1 {ls}")
    A.lab(lg)
    A("s_mov_b64 exec, -1")
    A.lab(le)
    A("s_barrier")


def m0set(base_s, slot):
    return f"s_add_u32 m0, {sr(base_s)}, {slot[1]}" if isinstance(slot, tuple) else f"s_add_u32 m0, {sr(base_s)}, {sr(slot)}"


def dma_w(o, kind, slot):
    fl = " nt" if kind in o.nt else ""
    g = [[f"buffer_load_dwordx4 {vr(vDW+t)}, {sr(S_W,4)}, {sr(sWO_)} offen offset:{t*1024}{fl} lds"] for t in range(4)]
    g[0] = [m0set(sWM, slot), "s_nop 0"] + g[0]
    st, mask = (0x80000, 0x7fffff) if kind == "W" else (0x20000, 0x1fffff)
    g[3] += [f"s_add_u32 {sr(sWO_)}, {sr(sWO_)}, {st:#x}", f"s_and_b32 {sr(sWO_)}, {sr(sWO_)}, {mask:#x}"]
    return g


def dma_x(o, kind, slot):
    srd_, fl = (S_X, " nt" if "X" in o.nt else "") if kind == "X" else (S_O, " sc1")
    g = []
    for t in range(7):
        so = sXO if t < 4 else sXB
        g.append([f"buffer_load_dwordx4 {vr(vDX+(t&3))}, {sr(srd_,4)}, {sr(so)} offen offset:{(t&3)*1024}{fl} lds"])
    g[0] = [m0set(sXM, slot), f"s_add_u32 {sr(sXB)}, {sr(sXO)}, {65536 if kind == 'X' else 262144}"] + g[0]
    g[4] = ["s_add_u32 m0, m0, 4096", "s_nop 0"] + g[4]
    if kind == "X":
        g[6] += [f"s_add_u32 {sr(sXO)}, {sr(sXO)}, 128", f"s_and_b32 {sr(sXO)}, {sr(sXO)}, 2047"]
    else:
        g[6] += [f"s_add_u32 {sr(sXO)}, {sr(sXO)}, 2048", f"s_and_b32 {sr(sXO)}, {sr(sXO)}, 32767"]
    return g


def dma_k(o, slot):
    fl = " nt" if "K" in o.nt else ""
    g = [[f"buffer_load_dwordx4 {vr(vDK+t)}, {sr(S_K,4)}, {sr(sKO)} offen offset:{t*1024}{fl} lds"] for t in range(4)]
    g[0] = [f"s_add_u32 m0, {sr(sAM)}, {ASL*(1+slot) + 16384}", "s_nop 0"] + g[0]
    g[3] += [f"s_add_u32 {sr(sKO)}, {sr(sKO)}, 8192", f"s_bitset0_b32 {sr(sKO)}, 18"]
    return g


def dma_v(o, slot):
    fl = " nt" if "V" in o.nt else ""
    g = [[f"buffer_load_dwordx4 {vr(vDV+(t&1))}, {sr(S_V,4)}, {sr(sVO)} offen offset:{t*1024}{fl} lds"] for t in range(4)]
    g[0] = [f"s_add_u32 m0, {sr(sAM)}, {ASL*(1+slot)}", "s_nop 0"] + g[0]
    g[3] += [f"s_add_u32 {sr(sVO)}, {sr(sVO)}, 8192", f"s_bitset0_b32 {sr(sVO)}, 18"]
    return g


def w_offsets(A, rshift, wflav):
    l4, t0, t1, t2 = vT, vT + 1, vT + 2, vT + 3
    A(f"v_lshrrev_b32 {vr(l4)}, 4, {vr(vLANE)}")
    A(f"v_and_b32 {vr(t1)}, 15, {vr(vLANE)}")
    A(f"v_lshlrev_b32 {vr(t0)}, 1, {vr(l4)}")
    A(f"v_xor_b32 {vr(t0)}, {vr(t0)}, {vr(t1)}")
    A(f"v_lshlrev_b32 {vr(t0)}, 4, {vr(t0)}")
    A(f"s_lshl_b32 {sr(sT3)}, {sr(sWAVE)}, {rshift+4}")
    A(f"v_lshlrev_b32 {vr(t2)}, {rshift}, {vr(l4)}")
    A(f"v_add_u32 {vr(t2)}, {sr(sT3)}, {vr(t2)}")
    for t in range(4):
        bit = (t >> 1) & 1 if wflav else t & 1
        A(f"v_xor_b32 {vr(t1)}, {128*bit}, {vr(t0)}")
        A(f"v_add3_u32 {vr(vDW+t)}, {vr(t1)}, {vr(t2)}, 0")
        A(f"v_add_u32 {vr(vDW+t)}, {(4*t << rshift) - 1024*t}, {vr(vDW+t)}")


def tr_base(A, dst, gshift):
    g, r, c = vT, vT + 1, vT + 2
    A(f"v_lshrrev_b32 {vr(g)}, 4, {vr(vLANE)}")
    A(f"v_bfe_u32 {vr(r)}, {vr(vLANE)}, 2, 2")
    A(f"v_and_b32 {vr(c)}, 3, {vr(vLANE)}"); A(f"v_lshlrev_b32 {vr(c)}, 3, {vr(c)}")
    A(f"v_lshl_add_u32 {vr(c)}, {vr(g)}, {gshift}, {vr(c)}")
    A(f"v_lshl_add_u32 {vr(c)}, {vr(r)}, 8, {vr(c)}")
    A(f"v_lshl_add_u32 {vr(c)}, {vr(r)}, 5, {vr(c)}")
    A(f"v_and_b32 {vr(g)}, 1, {vr(g)}")
    A(f"v_lshl_add_u32 {vr(dst)}, {vr(g)}, 7, {vr(c)}")


def gemm_tr_bases(A, gshift):
    tr_base(A, vT + 3, gshift)
    A(f"s_lshl_b32 {sr(sT0)}, {sr(sC2)}, 7")
    A(f"v_xor_b32 {vr(vT+3)}, {sr(sT0)}, {vr(vT+3)}")
    for ct in range(4):
        A(f"v_xor_b32 {vr(vTB+ct)}, {32*ct}, {vr(vT+3)}")


def prologue(A, o):
    A(f"s_bfe_u32 {sr(sBR)}, s2, 0x10002")
    A(f"s_mul_i32 {sr(sT0)}, {sr(sBR)}, 40")
    A(f"s_add_u32 {sr(sKA)}, s0, {sr(sT0)}"); A(f"s_addc_u32 {sr(sKA+1)}, s1, 0")
    A(f"s_load_dwordx2 s[74:75], {sr(sKA,2)}, 0")
    A(f"s_load_dwordx2 s[66:67], {sr(sKA,2)}, 8")
    A(f"s_load_dwordx2 s[68:69], {sr(sKA,2)}, 16")
    A(f"s_load_dwordx2 s[70:71], {sr(sKA,2)}, 24")
    A(f"s_load_dwordx2 s[72:73], s[0:1], 80")
    A(f"s_load_dwordx2 {sr(sDBG,2)}, s[0:1], 88")
    A(f"s_load_dwordx2 {sr(sWS,2)}, s[0:1], 96")
    A(f"v_lshrrev_b32 v2, 6, v0")
    A(f"v_and_b32 {vr(vLANE)}, 63, v0")
    A(f"v_readfirstlane_b32 {sr(sWAVE)}, v2")
    A(f"s_and_b32 {sr(sHG)}, s2, 3")
    A(f"s_bfe_u32 {sr(sHL)}, s2, 0x30003")
    A(f"s_bfe_u32 {sr(sTAU)}, s2, 0x20006")
    A(f"s_lshl_b32 {sr(sH)}, {sr(sHG)}, 3"); A(f"s_add_u32 {sr(sH)}, {sr(sH)}, {sr(sHL)}")
    A(f"s_lshl_b32 {sr(sB)}, {sr(sTAU)}, 1")
    A(f"s_add_u32 {sr(sROT)}, {sr(sB)}, {sr(sHL)}"); A(f"s_and_b32 {sr(sROT)}, {sr(sROT)}, 7")
    A(f"s_lshr_b32 {sr(sU)}, {sr(sWAVE)}, 1"); A(f"s_and_b32 {sr(sC2)}, {sr(sWAVE)}, 1")
    A(f"s_lshl_b32 {sr(sWM)}, {sr(sWAVE)}, 12")
    A(f"s_mul_i32 {sr(sXM)}, {sr(sWAVE)}, 7168")
    A(f"s_mov_b32 {sr(sAM)}, {sr(sWM)}")
    A(f"s_lshl_b32 {sr(sXO)}, {sr(sROT)}, 8")
    A(f"s_lshl_b32 {sr(sWO_)}, {sr(sROT)}, 20")
    l3, l4, t0, t1 = vT, vT + 1, vT + 2, vT + 3
    A(f"v_lshrrev_b32 {vr(l3)}, 3, {vr(vLANE)}")
    A(f"v_lshrrev_b32 {vr(l4)}, 4, {vr(vLANE)}")
    A(f"s_mul_i32 {sr(sT2)}, {sr(sWAVE)}, {56*2048}")
    A(f"s_lshl_b32 {sr(sT1)}, {sr(sC2)}, 2")
    A(f"v_and_b32 {vr(t1)}, 7, {vr(vLANE)}")
    A(f"v_xor_b32 {vr(t1)}, {sr(sT1)}, {vr(t1)}")
    A(f"v_xor_b32 {vr(t1)}, {vr(t1)}, {vr(l4)}")
    A(f"v_lshlrev_b32 {vr(t1)}, 4, {vr(t1)}")
    A(f"v_lshl_add_u32 {vr(l3)}, {vr(l3)}, 11, {sr(sT2)}")
    for t in range(4):
        A(f"v_xor_b32 {vr(t0)}, {64*(t&1)}, {vr(t1)}")
        A(f"v_add_u32 {vr(t0)}, {vr(t0)}, {vr(l3)}")
        A(f"v_add_u32 {vr(vDX+t)}, {8*t*2048 - 1024*t}, {vr(t0)}")
    w_offsets(A, 13, True)
    A("s_waitcnt lgkmcnt(0)")
    A(f"s_lshl_b32 {sr(sT0)}, {sr(sH)}, 8")
    srd(A, S_W, 70, sr(sT0), "0")
    A(f"s_sub_u32 {sr(S_W+2)}, 0x800000, {sr(sT0)}")
    A(f"s_mul_i32 {sr(sT0)}, {sr(sB)}, 229376")
    srd(A, S_X, 74, sr(sT0), str(2 * 229376))
    A.groups(dma_w(o, "W", ("imm", 0)))
    A.groups(dma_x(o, "X", ("imm", XB)))
    A(f"s_add_u32 {sr(sT0)}, {sr(sB)}, {sr(sU)}"); A(f"s_lshl_b32 {sr(sT0)}, {sr(sT0)}, 5")
    A(f"s_add_u32 {sr(sT0)}, {sr(sT0)}, {sr(sH)}"); A(f"s_lshl_b32 {sr(sT0)}, {sr(sT0)}, 18")
    srd(A, S_K, 66, sr(sT0), "0" if o.nokv else "0x40000")
    srd(A, S_V, 68, sr(sT0), "0" if o.nokv else "0x40000")
    l4, t0, t1, t2 = vT, vT + 1, vT + 2, vT + 3
    A(f"v_lshrrev_b32 {vr(l4)}, 4, {vr(vLANE)}")
    A(f"v_and_b32 {vr(t1)}, 15, {vr(vLANE)}")
    A(f"s_lshl_b32 {sr(sT0)}, {sr(sC2)}, 12")
    A(f"v_lshl_add_u32 {vr(t2)}, {vr(l4)}, 8, {sr(sT0)}")
    A(f"v_xor_b32 {vr(t0)}, {vr(l4)}, {vr(t1)}")
    A(f"v_lshl_add_u32 {vr(vDK)}, {vr(t0)}, 4, {vr(t2)}")
    for t in range(1, 4):
        A(f"v_xor_b32 {vr(vDK+t)}, {64*t}, {vr(vDK)}")
    A(f"v_lshlrev_b32 {vr(t0)}, 1, {vr(l4)}")
    A(f"v_xor_b32 {vr(t0)}, {vr(t0)}, {vr(t1)}")
    A(f"v_lshl_add_u32 {vr(vDV)}, {vr(t0)}, 4, {vr(t2)}")
    A(f"v_xor_b32 {vr(vDV+1)}, 128, {vr(vDV)}")
    if o.krot:
        A(f"s_lshr_b32 {sr(sT0)}, s2, 3"); A(f"s_and_b32 {sr(sT1)}, s2, 7"); A(f"s_lshl_b32 {sr(sT1)}, {sr(sT1)}, 2")
        A(f"s_add_u32 {sr(sT0)}, {sr(sT0)}, {sr(sT1)}"); A(f"s_and_b32 {sr(sT0)}, {sr(sT0)}, 31"); A(f"s_lshl_b32 {sr(sKO)}, {sr(sT0)}, 13")
    else:
        A(f"s_mov_b32 {sr(sKO)}, 0")
    A(f"s_mov_b32 {sr(sVO)}, {sr(sKO)}")
    srd(A, S_OUT, 72, None, str(896 * 4096))
    srd(A, S_XC, sWS, str(X_OFF), str(X_BYTES))
    A(f"s_mov_b32 {sr(sC)}, {C_SCALE:#x}"); A(f"s_mov_b32 {sr(sTHR)}, {THR:#x}")
    A(f"s_mov_b32 {sr(sNON)}, 0"); A(f"s_mov_b32 {sr(sNON+1)}, 0"); A(f"s_mov_b32 {sr(sPEND)}, 0")
    l = A.newlab("L_notag")
    A(f"s_or_b32 {sr(sT0)}, s2, {sr(sWAVE)}"); A(f"s_cmp_lg_u32 {sr(sT0)}, 0"); A(f"s_cbranch_scc1 {l}")
    A(f"s_memrealtime {sr(sLD,2)}"); A("s_waitcnt lgkmcnt(0)")
    A(f"v_mov_b32 {vr(vT+2)}, {sr(sLD)}"); A(f"v_mov_b32 {vr(vT+3)}, {sr(sLD+1)}"); A(f"v_mov_b32 {vr(vT+4)}, 0")
    A(f"v_or_b32 {vr(vT+3)}, 0x80000000, {vr(vT+3)}")
    A("s_mov_b64 exec, 1")
    A(f"global_store_dwordx2 {vr(vT+4)}, {vr(vT+2,2)}, {sr(sDBG,2)} sc1")
    A("s_mov_b64 exec, -1")
    A.lab(l)
    q, g, r = vT, vT + 1, vT + 2
    A(f"v_lshlrev_b32 {vr(vL16)}, 4, {vr(vLANE)}")
    A(f"v_and_b32 {vr(q)}, 15, {vr(vLANE)}")
    A(f"v_lshrrev_b32 {vr(g)}, 4, {vr(vLANE)}")
    A(f"v_bfe_u32 {vr(r)}, {vr(vLANE)}, 1, 3")
    A(f"v_xor_b32 {vr(r)}, {vr(r)}, {vr(g)}")
    A(f"v_lshlrev_b32 {vr(r)}, 4, {vr(r)}")
    A(f"v_lshl_add_u32 {vr(r)}, {vr(q)}, 7, {vr(r)}")
    A(f"s_mul_i32 {sr(sT0)}, {sr(sU)}, {112*128}")
    A(f"v_add_u32 {vr(vXB)}, {sr(sT0)}, {vr(r)}")
    A(f"v_xor_b32 {vr(vXB+1)}, 64, {vr(vXB)}")
    gemm_tr_bases(A, 11)
    q, g, t0 = vT + 3, vT + 4, vT + 5
    A(f"v_and_b32 {vr(q)}, 15, {vr(vLANE)}"); A(f"v_lshrrev_b32 {vr(g)}, 4, {vr(vLANE)}")
    A(f"v_xor_b32 {vr(t0)}, {vr(g)}, {vr(q)}"); A(f"v_lshlrev_b32 {vr(t0)}, 4, {vr(t0)}")
    A(f"v_lshl_add_u32 {vr(t0)}, {vr(q)}, 8, {vr(t0)}")
    A(f"s_lshl_b32 {sr(sT0)}, {sr(sU)}, 13"); A(f"s_add_u32 {sr(sT1)}, {sr(sT0)}, {ASL}"); A(f"s_add_u32 {sr(sT0)}, {sr(sT0)}, {ASL + 16384}")
    A(f"v_add_u32 {vr(vKA)}, {sr(sT0)}, {vr(t0)}")
    for s in range(1, 4):
        A(f"v_xor_b32 {vr(vKA+s)}, {64*s}, {vr(vKA)}")
    for s in range(4):
        A(f"v_add_u32 {vr(vKA+4+s)}, 0x10000, {vr(vKA+s)}")
    tr_base(A, vVA, 10)
    A(f"v_add_u32 {vr(vVA)}, {sr(sT1)}, {vr(vVA)}")
    for dt in range(1, 8):
        A(f"v_xor_b32 {vr(vVA+dt)}, {32*dt}, {vr(vVA)}")
    for dt in range(8):
        A(f"v_add_u32 {vr(vVA+8+dt)}, 0x10000, {vr(vVA+dt)}")
    for i in range(24):
        A(f"v_mov_b32 {vr(vNM+i)}, 0")
    for i in range(128):
        A(f"v_accvgpr_write_b32 {vr(aO+i)}, 0")


def gemm(A, o, kind, vm0, tailfill):
    Q = kind == "Q"
    xk, wk = ("X", "W") if Q else ("O", "G")

    def addrs():
        L = [f"v_add_u32 {vr(vXA+s)}, {sr(sCX)}, {vr(vXB+s)}" for s in range(2)]
        return L + [f"v_add_u32 {vr(vTA+ct)}, {sr(sCW)}, {vr(vTB+ct)}" for ct in range(4)]

    def wr(s):
        L = []
        for ct in range(4):
            f = gW + 16 * s + 4 * ct
            for e in range(2):
                off = 8192 * s + (1024 if Q else 4096) * e
                L.append(("ds", f"ds_read_b64_tr_b16 {vr(f+2*e,2)}, {vr(vTA+ct)} offset:{off}", f"w{s}{ct}"))
        return L

    def xr(s, rt):
        return ("ds", f"ds_read_b128 {vr(gX+28*s+4*rt,4)}, {vr(vXA+s)} offset:{2048*rt}", f"x{s}{rt}")

    def adv(s, size, lo, n):
        return [f"s_add_u32 {sr(s)}, {sr(s)}, {size}", f"s_cmp_ge_u32 {sr(s)}, {lo + n*size}",
                f"s_cselect_b32 {sr(s)}, {lo}, {sr(s)}"]

    def carry():
        return wr(0) + [xr(0, rt) for rt in range(3)]

    def step(first, late, early, last, vm):
        mf, after = [], {}
        for s in range(2):
            for rt in range(7):
                for ct in range(4):
                    a = gACC + 28 * ct + 4 * rt
                    mf.append((mfma(a, gW + 16 * s + 4 * ct, gX + 28 * s + 4 * rt, "0" if (first and s == 0) else a),
                               [f"w{s}{ct}", f"x{s}{rt}"]))
        r = [xr(0, rt) for rt in range(3, 7)] + wr(1) + [xr(1, rt) for rt in range(7)]
        spread(after, [(x, 1) for x in r], 3, 30)
        if late:
            spread(after, [(g, 1) for g in late], 1, 34)
        if not last:
            put(after, 33, [f"s_mov_b32 {sr(sFW)}, {sr(sCW)}", f"s_mov_b32 {sr(sFX)}, {sr(sCX)}"])
            put(after, 34, adv(sCW, WSL, 0, 3)); put(after, 35, adv(sCX, XSL, XB, 3))
            ad = addrs()
            put(after, 36, ad[:2]); put(after, 37, ad[2:4]); put(after, 38, ad[4:])
            put(after, 40, [("bar", vm)])
            spread(after, [(x, 1) for x in carry()], 40, 54)
            if early:
                spread(after, [(g, 1) for g in early], 41, 56)
        A.run(mf, after)

    A(f"s_mov_b32 {sr(sCW)}, 0"); A(f"s_mov_b32 {sr(sCX)}, {XB}")
    for s in addrs(): A(s)
    A.emit(("bar", vm0))
    stamp(A, 6, o.stamps and (o.qst == Q))
    for it in carry(): A.emit(it)
    W = lambda sl: dma_w(o, wk, sl)
    X = lambda sl: dma_x(o, xk, sl)
    if Q:
        step(True, W(("imm", WSL)) + X(("imm", XB + XSL)), W(("imm", 2 * WSL)) + X(("imm", XB + 2 * XSL))[:3], False, 0)
        step(False, X(("imm", XB + 2 * XSL))[3:] + W(sFW) + X(sFX), W(sFW), False, 11)
    else:
        step(True, [], W(sFW), False, 7)
        step(False, X(sFX), W(sFW), False, 11)
    A(f"s_mov_b32 {sr(sCNT)}, 11")
    q0 = list(A.q)
    l = A.newlab("L_gl")
    A.lab(l)
    step(False, X(sFX), W(sFW), False, 11)
    assert A.q == q0
    A(f"s_sub_u32 {sr(sCNT)}, {sr(sCNT)}, 1"); A(f"s_cmp_lg_u32 {sr(sCNT)}, 0"); A(f"s_cbranch_scc1 {l}")
    step(False, X(sFX), tailfill.get(13, []), False, 11)
    step(False, [], tailfill.get(14, []), False, len(tailfill.get(13, [])))
    step(False, tailfill.get(15, []), [], True, 0)
    stamp(A, 7, o.stamps and (o.qst == Q))


def q_finish(A, o):
    A.emit(("bar", 63))
    A.groups(dma_k(o, 1)); A.groups(dma_v(o, 1))
    q, g, t0, t1 = vT, vT + 1, vT + 2, vT + 3
    A(f"v_and_b32 {vr(q)}, 15, {vr(vLANE)}")
    A(f"v_lshrrev_b32 {vr(g)}, 4, {vr(vLANE)}")
    A(f"v_lshrrev_b32 {vr(t0)}, 1, {vr(g)}")
    A(f"s_lshl_b32 {sr(sT0)}, {sr(sC2)}, 3")
    A(f"v_xor_b32 {vr(t0)}, {sr(sT0)}, {vr(t0)}")
    A(f"v_xor_b32 {vr(t0)}, {vr(t0)}, {vr(q)}")
    A(f"v_lshlrev_b32 {vr(t0)}, 4, {vr(t0)}")
    A(f"v_and_b32 {vr(t1)}, 1, {vr(g)}")
    A(f"v_lshl_add_u32 {vr(t0)}, {vr(t1)}, 3, {vr(t0)}")
    A(f"s_mul_i32 {sr(sT0)}, {sr(sU)}, {112*256}")
    A(f"v_lshl_add_u32 {vr(t1)}, {vr(q)}, 8, {sr(sT0)}")
    A(f"v_add_u32 {vr(vTA)}, {vr(t0)}, {vr(t1)}")
    for ct in range(1, 4):
        A(f"v_xor_b32 {vr(vTA+ct)}, {32*ct}, {vr(vTA)}")
    A(f"v_mov_b32 {vr(vXA)}, {sr(sC)}"); A(f"v_mov_b32 {vr(vXA+1)}, {sr(sC)}")
    for ct in range(4):
        for rt in range(7):
            a = gACC + 28 * ct + 4 * rt
            d = gX + 2 * ((ct * 7 + rt) % 8)
            A(f"v_pk_mul_f32 {vr(a,2)}, {vr(a,2)}, {vr(vXA,2)}")
            A(f"v_pk_mul_f32 {vr(a+2,2)}, {vr(a+2,2)}, {vr(vXA,2)}")
            A(f"v_cvt_pk_bf16_f32 {vr(d)}, {vr(a)}, {vr(a+1)}")
            A(f"v_cvt_pk_bf16_f32 {vr(d+1)}, {vr(a+2)}, {vr(a+3)}")
            A(f"ds_write_b64 {vr(vTA+ct)}, {vr(d,2)} offset:{4096*rt}")
            if (ct * 7 + rt) % 8 == 7:
                A("s_waitcnt lgkmcnt(4)")
    A(f"v_xor_b32 {vr(t0)}, {vr(g)}, {vr(q)}")
    A(f"v_lshlrev_b32 {vr(t0)}, 4, {vr(t0)}")
    A(f"s_lshl_b32 {sr(sT0)}, {sr(sC2)}, 14")
    A(f"v_add3_u32 {vr(t1)}, {vr(t1)}, {vr(t0)}, {sr(sT0)}")
    A.emit(("bar", 63))
    for s in range(4):
        A(f"v_xor_b32 {vr(vTA+s)}, {64*s}, {vr(t1)}")
    for qt in range(4):
        for s in range(4):
            A(f"ds_read_b128 {vr(aQ+16*qt+4*s,4)}, {vr(vTA+s)} offset:{4096*qt}")
            if qt == 2 and s == 3:
                A("s_waitcnt lgkmcnt(4)")
    A.emit(("bar", 16))
    A.groups(dma_k(o, 0)); A.groups(dma_v(o, 0))


def kreads(slot):
    L = []
    for s in range(4):
        for kt in range(2):
            L.append(("ds", f"ds_read_b128 {vr(vKF+16*kt+4*s,4)}, {vr(vKA+4*(slot>>1)+s)} offset:{(slot&1)*ASL+4096*kt}", f"k{kt}{s}"))
    return L


def new_max(S, NT, clamp):
    L = []
    for qt in range(NT):
        mx, o2 = vT, vT + 1
        a, b = S + 4 * qt, S + 16 + 4 * qt
        L += [f"v_max3_f32 {vr(mx)}, {vr(a)}, {vr(a+1)}, {vr(a+2)}", f"v_max3_f32 {vr(mx)}, {vr(mx)}, {vr(a+3)}, {vr(b)}",
              f"v_max3_f32 {vr(mx)}, {vr(mx)}, {vr(b+1)}, {vr(b+2)}", f"v_max_f32 {vr(mx)}, {vr(mx)}, {vr(b+3)}"]
        for sw in ("16", "32"):
            L += [f"v_mov_b32 {vr(o2)}, {vr(mx)}", "s_nop 1", f"v_permlane{sw}_swap_b32 {vr(mx)}, {vr(o2)}", "s_nop 1",
                  f"v_max_f32 {vr(mx)}, {vr(mx)}, {vr(o2)}"]
        if clamp:
            L += [f"v_max_f32 {vr(mx)}, 0, {vr(mx)}", f"v_exp_f32 {vr(vFAC+qt)}, -{vr(mx)}"]
        L += [f"v_sub_f32 {vr(x+i)}, {vr(x+i)}, {vr(mx)}" for x in (a, b, vNM + 4 * qt) for i in range(4)]
        if clamp:
            L += [f"v_mul_f32 {vr(vLS+2*qt+i)}, {vr(vLS+2*qt+i)}, {vr(vFAC+qt)}" for i in range(2)]
    return L


def attention(A, o0, NT, tail, br):
    import copy
    o = copy.copy(o0)
    o.nt = o0.ntA if br == 0 else o0.ntB
    tag = f"_{NT}_{br}"
    NQ = 8 * NT
    NE = 2 * NT
    sreg = lambda S, i: S + 16 * ((i >> 2) & 1) + 4 * (i >> 3) + (i & 3)

    def it(u, first=False):
        p = u & 1
        S, Sp = vS + 32 * p, vS + 32 * (1 - p)
        slot, nslot, pslot = (3 - u) & 3, (2 - u) & 3, (4 - u) & 3
        mf, after = [], {}
        allk = [f"k{kt}{s}" for kt in range(2) for s in range(4)]
        for s in range(4):
            for kt in range(2):
                for qt in range(NT):
                    d = S + 16 * kt + 4 * qt
                    mf.append((mfma(d, vKF + 16 * kt + 4 * s, aQ + 16 * qt + 4 * s, vNM + 4 * qt if s == 0 else d),
                               [f"k{kt}{s}"] if first else allk))
        mx = vT
        order = [sreg(S, i) for i in range(NQ)]
        order.sort(key=lambda r: ((r - S) >> 4, (r - S) & 15))
        m1 = [f"v_max3_f32 {vr(mx)}, {vr(order[0])}, {vr(order[1])}, {vr(order[2])}"]
        m1 += [f"v_max3_f32 {vr(mx)}, {vr(mx)}, {vr(order[i])}, {vr(order[i+1])}" for i in range(3, NQ - 1, 2)]
        m1 += [f"v_max_f32 {vr(mx)}, {vr(mx)}, {vr(order[NQ-1])}"]
        E1 = [f"v_exp_f32 {vr(sreg(S,i))}, {vr(sreg(S,i))}" for i in range(NE)]
        kr = kreads(nslot)
        if first:
            put(after, NQ - 1, [("bar", 16)] + kr + sum(dma_k(o, slot), []) + ["s_nop 3"] + new_max(S, NT, False) + E1)
            A.run(mf, after)
            return
        vrd = []
        for qt in range(NT):
            for dt in range(8):
                mf.append((mfma(aO + 16 * dt + 4 * qt, vVF + 4 * dt, vP + 4 * qt, aO + 16 * dt + 4 * qt), [f"v{dt}"]))
        for dt in range(8):
            for e in range(2):
                vrd.append(("ds", f"ds_read_b64_tr_b16 {vr(vVF+4*dt+2*e,2)}, {vr(vVA+8*(slot>>1)+dt)} offset:{(slot&1)*ASL+4096*e}", f"v{dt}"))
        spread(after, [(x, 1) for x in vrd], 0, NQ - 2)
        spread(after, [(g, 1) for g in dma_v(o, pslot)], 2, NQ - 2)
        l2, b2 = A.newlab("L_r2"), A.newlab("L_b2")
        put(after, 4, [f"s_cmp_lg_u32 {sr(sPEND)}, 0", f"s_cbranch_scc1 {l2}", ("lab", b2)])
        tail.append(("r2", l2, b2, NT))
        st = []
        due = {}
        for qt in range(NT):
            for i in range(8 * qt, 8 * qt + 8):
                if i + NE < NQ:
                    r = sreg(Sp, i + NE)
                    st.append((f"v_exp_f32 {vr(r)}, {vr(r)}", 8))
                if i & 1:
                    r = sreg(Sp, i - 1)
                    st.append((f"v_pk_add_f32 {vr(vLS+2*qt,2)}, {vr(vLS+2*qt,2)}, {vr(r,2)}", 4.5))
                    st.append((f"v_cvt_pk_bf16_f32 {vr(vP+4*qt+((i&7)>>1))}, {vr(r)}, {vr(r+1)}", 4.5))
            due[qt] = len(st) - 1
        i_m1 = len(st)
        l1, b1 = A.newlab("L_r1"), A.newlab("L_b1")
        tail.append(("r1", l1, b1, u == 0, S, NT))
        st += [(x, 4.5) for x in m1]
        st.append(([f"v_cmp_lt_f32 vcc, {sr(sTHR)}, {vr(mx)}", f"s_cbranch_vccnz {l1}", ("lab", b1)], 9))
        st += [(x, 8) for x in E1]
        pos = spread(after, st, 0, 2 * NQ)
        for qt in range(NT):
            assert pos[due[qt]] < NQ + 8 * qt - 2, (qt, pos[due[qt]])
        assert pos[i_m1] >= NQ + 4, pos[i_m1]
        put(after, NQ + 2, [("bar", 16)])
        spread(after, [(x, 1) for x in kr], NQ + 3, 2 * NQ - 6)
        if u == 0:
            put(after, NQ + 3, [f"s_cmp_eq_u32 {sr(sCNT)}, 2", f"s_cselect_b32 {sr(S_K+2)}, 0, {sr(S_K+2)}"])
        if u == 2:
            put(after, 0, [f"s_cmp_eq_u32 {sr(sCNT)}, 1", f"s_cselect_b32 {sr(S_V+2)}, 0, {sr(S_V+2)}"])
        spread(after, [(g, 1) for g in dma_k(o, slot)], NQ + 5, 2 * NQ)
        A.run(mf, after)

    A.q = []
    for x in kreads(3): A.emit(x)
    it(0, first=True)
    q0 = list(A.q)
    A(f"s_mov_b32 {sr(sCNT)}, 8")
    A.lab("L_aloop" + tag)
    l = A.newlab("L_gw")
    A(f"s_cmp_eq_u32 {sr(sCNT)}, 1"); A(f"s_cbranch_scc1 {l}"); A.lab(l + "b")
    tail.append(("gw", l))
    for u in (1, 2, 3, 0):
        it(u)
    assert A.q == q0
    A(f"s_sub_u32 {sr(sCNT)}, {sr(sCNT)}, 1"); A(f"s_cmp_lg_u32 {sr(sCNT)}, 0"); A(f"s_cbranch_scc1 L_aloop{tag}")
    if o.stamps:
        stamp(A, 2, True)
    A(f"s_lshl_b32 {sr(sT0)}, {sr(sBR)}, 3"); A(f"s_add_u32 {sr(sT0)}, {sr(sT0)}, {sr(sB)}"); A(f"s_add_u32 {sr(sT0)}, {sr(sT0)}, {sr(sU)}")
    A(f"s_mul_i32 {sr(sT0)}, {sr(sT0)}, 7"); A(f"s_lshl_b32 {sr(sT1)}, {sr(sC2)}, 2"); A(f"s_add_u32 {sr(sT0)}, {sr(sT0)}, {sr(sT1)}")
    A(f"s_lshl_b32 {sr(sT0)}, {sr(sT0)}, 17"); A(f"s_lshl_b32 {sr(sT1)}, {sr(sH)}, 12"); A(f"s_add_u32 {sr(sT0)}, {sr(sT0)}, {sr(sT1)}")
    srd(A, S_O, sWS, None, str(O_BYTES))
    A("s_waitcnt lgkmcnt(0)")
    for qt in range(NT):
        a, b = vLS + 2 * qt, vLS + 2 * qt + 1
        A(f"v_add_f32 {vr(a)}, {vr(a)}, {vr(b)}")
    for sw in ("16", "32"):
        for qt in range(NT):
            A(f"v_mov_b32 {vr(vLS+2*qt+1)}, {vr(vLS+2*qt)}")
        A("s_nop 1")
        for qt in range(NT):
            A(f"v_permlane{sw}_swap_b32 {vr(vLS+2*qt)}, {vr(vLS+2*qt+1)}")
        A("s_nop 1")
        for qt in range(NT):
            A(f"v_add_f32 {vr(vLS+2*qt)}, {vr(vLS+2*qt)}, {vr(vLS+2*qt+1)}")
    for qt in range(NT):
        A(f"v_rcp_f32 {vr(vLS+2*qt)}, {vr(vLS+2*qt)}")
    A("s_nop 0")
    for qt in range(NT):
        A(f"v_mov_b32 {vr(vLS+2*qt+1)}, {vr(vLS+2*qt)}")
    for qt in range(NT):
        for m in range(4):
            t = vS + 8 * ((4 * qt + m) % 8)
            d = vKF + 4 * (4 * qt + m)
            for i in range(8):
                A(f"v_accvgpr_read_b32 {vr(t+i)}, {vr(aO + 16*(2*m + (i>>2)) + 4*qt + (i&3))}")
            for i in range(4):
                A(f"v_pk_mul_f32 {vr(t+2*i,2)}, {vr(t+2*i,2)}, {vr(vLS+2*qt,2)}")
            for i in range(4):
                A(f"v_cvt_pk_bf16_f32 {vr(d+i)}, {vr(t+2*i)}, {vr(t+2*i+1)}")
            A(f"buffer_store_dwordx4 {vr(d,4)}, {vr(vL16)}, {sr(S_O,4)}, {sr(sT0)} offen offset:{m*1024} sc1")
        A(f"s_add_u32 {sr(sT0)}, {sr(sT0)}, 0x20000")


def rare_blocks(A, o, tail):
    r2 = {}
    for t in tail:
        if t[0] == "r1":
            _, l1, b1, last, S, NT = t
            A.lab(l1)
            if last:
                A(f"s_cmp_eq_u32 {sr(sCNT)}, 1"); A(f"s_cbranch_scc1 {b1}")
            for x in new_max(S, NT, True): A(x)
            A(f"s_mov_b32 {sr(sPEND)}, 1")
            A(f"s_branch {b1}")
        elif t[0] == "r2":
            _, l2, b2, NT = t
            k = len(r2.setdefault(NT, []))
            r2[NT].append(b2)
            A.lab(l2)
            A(f"s_mov_b32 {sr(sPEND)}, {k}"); A(f"s_branch L_r2c_{NT}")
        else:
            l = t[1]
            A.lab(l)
            A(f"s_load_dwordx2 {sr(sLD,2)}, {sr(sKA,2)}, 32")
            w_offsets(A, 11, False)
            A("s_waitcnt lgkmcnt(0)")
            A(f"s_lshl_b32 {sr(sT0)}, {sr(sHG)}, 21"); A(f"s_lshl_b32 {sr(sT1)}, {sr(sHL)}, 8"); A(f"s_add_u32 {sr(sT0)}, {sr(sT0)}, {sr(sT1)}")
            srd(A, S_W, sLD, sr(sT0), "0")
            A(f"s_sub_u32 {sr(S_W+2)}, 0x800000, {sr(sT0)}")
            A(f"s_lshl_b32 {sr(sWO_)}, {sr(sHL)}, 18")
            A(f"s_cmp_lg_u32 {sr(sWAVE)}, 0"); A(f"s_cbranch_scc1 {l}c")
            A("s_mov_b64 exec, 1")
            get_tag(A)
            A("s_mov_b64 exec, -1")
            A.lab(l + "c")
            for j in range(2):
                A.groups(dma_w(o, "G", ("imm", j * WSL)))
            A(f"s_branch {l}b")
    for NT, backs in r2.items():
        A.lab(f"L_r2c_{NT}")
        A("s_nop 7")
        for dt in range(8):
            for qt in range(NT):
                for i in range(4):
                    A(f"v_accvgpr_read_b32 {vr(vT+i)}, {vr(aO+16*dt+4*qt+i)}")
                for i in range(4):
                    A(f"v_mul_f32 {vr(vT+i)}, {vr(vT+i)}, {vr(vFAC+qt)}")
                for i in range(4):
                    A(f"v_accvgpr_write_b32 {vr(aO+16*dt+4*qt+i)}, {vr(vT+i)}")
        A(f"s_mov_b32 {sr(sT0)}, {sr(sPEND)}"); A(f"s_mov_b32 {sr(sPEND)}, 0")
        for k, b in enumerate(backs[:-1]):
            A(f"s_cmp_eq_u32 {sr(sT0)}, {k}"); A(f"s_cbranch_scc1 {b}")
        A(f"s_branch {backs[-1]}")


def g_begin(A, o):
    A(f"s_mul_i32 {sr(sT0)}, {sr(sWAVE)}, 7")
    for t in range(4):
        A(f"s_add_u32 {sr(sT1)}, {sr(sT0)}, {t}")
        A(f"s_lshr_b32 {sr(sT2)}, {sr(sT1)}, 1"); A(f"s_lshl_b32 {sr(sT2)}, {sr(sT2)}, 17")
        A(f"s_and_b32 {sr(sT1)}, {sr(sT1)}, 1"); A(f"s_lshl_b32 {sr(sT1)}, {sr(sT1)}, 10"); A(f"s_add_u32 {sr(sT1)}, {sr(sT1)}, {sr(sT2)}")
        A(f"s_sub_u32 {sr(sT1)}, {sr(sT1)}, {1024*t}")
        A(f"v_add_u32 {vr(vDX+t)}, {sr(sT1)}, {vr(vL16)}")
    A(f"s_mul_i32 {sr(sT0)}, {sr(sU)}, {14*1024}")
    A(f"v_add_u32 {vr(vXB)}, {sr(sT0)}, {vr(vL16)}")
    A(f"v_add_u32 {vr(vXB+1)}, 1024, {vr(vXB)}")
    gemm_tr_bases(A, 10)
    A(f"s_lshl_b32 {sr(sXO)}, {sr(sHL)}, 12")
    A(f"s_lshl_b32 {sr(sT2)}, {sr(sBR)}, 2"); A(f"s_add_u32 {sr(sT2)}, {sr(sT2)}, {sr(sTAU)}"); A(f"s_lshl_b32 {sr(sT2)}, {sr(sT2)}, 2")
    A(f"s_add_u32 {sr(sT2)}, {sr(sT2)}, {sr(sHG)}"); A(f"s_lshl_b32 {sr(sT2)}, {sr(sT2)}, 7"); A(f"s_add_u32 {sr(sT2)}, {sr(sT2)}, {F_RDY}")
    A(f"s_lshl_b32 {sr(sT1)}, {sr(sHL)}, 3"); A(f"s_add_u32 {sr(sT1)}, {sr(sT1)}, {sr(sT2)}")
    A(f"s_lshl_b32 {sr(sT0)}, {sr(sBR)}, 3"); A(f"s_add_u32 {sr(sT0)}, {sr(sT0)}, {sr(sB)}"); A(f"s_mul_i32 {sr(sT0)}, {sr(sT0)}, {7 << 17}")
    A(f"s_lshl_b32 {sr(sT3)}, {sr(sHG)}, 15"); A(f"s_add_u32 {sr(sT0)}, {sr(sT0)}, {sr(sT3)}")
    srd(A, S_O, sWS, sr(sT0), str(14 << 17))
    A.emit(("bar", 0))
    stamp(A, 3, o.stamps)
    l = A.newlab("L_sig")
    A(f"s_cmp_lg_u32 {sr(sWAVE)}, 0"); A(f"s_cbranch_scc1 {l}")
    raise_flag(A, sT1)
    A.lab(l)
    A.groups(dma_w(o, "G", ("imm", 2 * WSL)))
    for j in range(2):
        A.groups(dma_x(o, "O", ("imm", XB + j * XSL)))
    signal_wait(A, None, sT2, 8, 1)
    stamp(A, 4, o.stamps)
    A.groups(dma_x(o, "O", ("imm", XB + 2 * XSL)))


def exchange(A, o):
    A(f"s_lshl_b32 {sr(sT0)}, {sr(sBR)}, 2"); A(f"s_add_u32 {sr(sT0)}, {sr(sT0)}, {sr(sTAU)}")
    A(f"s_lshl_b32 {sr(sT0)}, {sr(sT0)}, 3"); A(f"s_add_u32 {sr(sT0)}, {sr(sT0)}, {sr(sHL)}")
    A(f"s_lshl_b32 {sr(sT2)}, {sr(sT0)}, 7"); A(f"s_add_u32 {sr(sT2)}, {sr(sT2)}, {F_XCH}")
    A(f"s_lshl_b32 {sr(sXB)}, {sr(sT0)}, 19"); A(f"s_lshl_b32 {sr(sT1)}, {sr(sWAVE)}, 13"); A(f"s_add_u32 {sr(sXB)}, {sr(sXB)}, {sr(sT1)}")
    A(f"s_lshl_b32 {sr(sT0)}, {sr(sHG)}, 15"); A(f"s_add_u32 {sr(sT0)}, {sr(sT0)}, {sr(sXB)}")
    for ow in range(4):
        ls = A.newlab("L_skip")
        A(f"s_cmp_eq_u32 {sr(sHG)}, {ow}"); A(f"s_cbranch_scc1 {ls}")
        A(f"s_add_u32 {sr(sT1)}, {sr(sT0)}, {ow << 17}")
        if o.xbf:
            t = gT + 16 * (ow % 3)
            for i in range(14):
                A(f"v_cvt_pk_bf16_f32 {vr(t+i)}, {vr(gACC+28*ow+2*i)}, {vr(gACC+28*ow+2*i+1)}")
            for j in range(3):
                A(f"buffer_store_dwordx4 {vr(t+4*j,4)}, {vr(vL16)}, {sr(S_XC,4)}, {sr(sT1)} offen offset:{j*1024} sc1")
            A(f"buffer_store_dwordx2 {vr(t+12,2)}, {vr(vL16)}, {sr(S_XC,4)}, {sr(sT1)} offen offset:3072 sc1")
        else:
            A(f"s_add_u32 {sr(sT3)}, {sr(sT1)}, 4096")
            for rt in range(7):
                A(f"buffer_store_dwordx4 {vr(gACC+28*ow+4*rt,4)}, {vr(vL16)}, {sr(S_XC,4)}, {sr(sT1 if rt < 4 else sT3)} offen offset:{(rt&3)*1024} sc1")
        A.lab(ls)
    R = gX
    lj = A.newlab("L_own")
    for ow in range(4):
        ls = A.newlab("L_no")
        A(f"s_cmp_eq_u32 {sr(sHG)}, {ow}"); A(f"s_cbranch_scc0 {ls}")
        for i in range(28):
            A(f"v_mov_b32 {vr(R+i)}, {vr(gACC+28*ow+i)}")
        A(f"s_branch {lj}")
        A.lab(ls)
    A.lab(lj)
    A(f"s_lshl_b32 {sr(sT1)}, {sr(sHG)}, 3"); A(f"s_add_u32 {sr(sT1)}, {sr(sT1)}, {sr(sT2)}")
    A.emit(("bar", 0))
    signal_wait(A, sT1, sT2, 4, 1)
    A(f"s_lshl_b32 {sr(sT0)}, {sr(sHG)}, 17"); A(f"s_add_u32 {sr(sXB)}, {sr(sXB)}, {sr(sT0)}")
    for k in range(1, 4):
        A(f"s_add_u32 {sr(sT1)}, {sr(sHG)}, {k}"); A(f"s_and_b32 {sr(sT1)}, {sr(sT1)}, 3"); A(f"s_lshl_b32 {sr(sT1)}, {sr(sT1)}, 15")
        A(f"s_add_u32 {sr(sT1)}, {sr(sT1)}, {sr(sXB)}"); A(f"s_add_u32 {sr(sT3)}, {sr(sT1)}, 4096")
        if o.xbf:
            for j in range(4):
                A(f"buffer_load_dwordx4 {vr(gACC+16*(k-1)+4*j,4)}, {vr(vL16)}, {sr(S_XC,4)}, {sr(sT1)} offen offset:{j*1024} sc1")
        else:
            for rt in range(7):
                A(f"buffer_load_dwordx4 {vr(gACC+28*(k-1)+4*rt,4)}, {vr(vL16)}, {sr(S_XC,4)}, {sr(sT1 if rt < 4 else sT3)} offen offset:{(rt&3)*1024} sc1")
    t1, t2 = vT, vT + 1
    A(f"s_add_u32 {sr(sT0)}, {sr(sB)}, {sr(sU)}"); A(f"s_mul_i32 {sr(sT0)}, {sr(sT0)}, {112*4096}")
    A(f"s_lshl_b32 {sr(sT1)}, {sr(sBR)}, 11"); A(f"s_add_u32 {sr(sT0)}, {sr(sT0)}, {sr(sT1)}")
    A(f"s_lshl_b32 {sr(sT1)}, {sr(sHL)}, 8"); A(f"s_add_u32 {sr(sT0)}, {sr(sT0)}, {sr(sT1)}")
    A(f"s_lshl_b32 {sr(sT1)}, {sr(sC2)}, 7"); A(f"s_add_u32 {sr(sT0)}, {sr(sT0)}, {sr(sT1)}")
    A(f"s_lshl_b32 {sr(sT1)}, {sr(sHG)}, 5"); A(f"s_add_u32 {sr(sT0)}, {sr(sT0)}, {sr(sT1)}")
    A(f"v_and_b32 {vr(t1)}, 15, {vr(vLANE)}"); A(f"v_lshlrev_b32 {vr(t1)}, 12, {vr(t1)}")
    A(f"v_lshrrev_b32 {vr(t2)}, 4, {vr(vLANE)}"); A(f"v_lshl_add_u32 {vr(t1)}, {vr(t2)}, 3, {vr(t1)}")
    for k in range(1, 4):
        if o.xbf:
            A(f"s_waitcnt vmcnt({12 - 4*k})")
            for i in range(14):
                p = gACC + 16 * (k - 1) + i
                A(f"v_lshlrev_b32 {vr(vT+2)}, 16, {vr(p)}"); A(f"v_and_b32 {vr(vT+3)}, 0xffff0000, {vr(p)}")
                A(f"v_pk_add_f32 {vr(R+2*i,2)}, {vr(R+2*i,2)}, {vr(vT+2,2)}")
        else:
            A(f"s_waitcnt vmcnt({21 - 7*k})")
            for i in range(0, 28, 2):
                A(f"v_pk_add_f32 {vr(R+i,2)}, {vr(R+i,2)}, {vr(gACC+28*(k-1)+i,2)}")
    for rt in range(7):
        A(f"v_cvt_pk_bf16_f32 {vr(gT+2*rt)}, {vr(R+4*rt)}, {vr(R+4*rt+1)}")
        A(f"v_cvt_pk_bf16_f32 {vr(gT+2*rt+1)}, {vr(R+4*rt+2)}, {vr(R+4*rt+3)}")
        A(f"buffer_store_dwordx2 {vr(gT+2*rt,2)}, {vr(t1)}, {sr(S_OUT,4)}, {sr(sT0)} offen{o.outfl}")
        A(f"s_add_u32 {sr(sT0)}, {sr(sT0)}, {16*4096}")


def build(o):
    A = Asm()
    st = o.stamps
    for l in HEADER.splitlines(): A(l)
    A(f"; @launch grid=(256,1,1) block=(256,1,1) lds={LDS}")
    A('.amdgcn_target "amdgcn-amd-amdhsa--gfx950"'); A(".text")
    A(f".globl {KN}"); A(".p2align 8"); A(f".type {KN},@function"); A.lab(KN)
    A(f"s_cmp_ge_u32 s2, 256"); A("s_cbranch_scc1 L_exit")
    tail = []
    stamp(A, 0, st)
    prologue(A, o)
    gemm(A, o, "Q", 0, {13: dma_k(o, 3), 14: dma_k(o, 2), 15: dma_v(o, 2)})
    q_finish(A, o)
    stamp(A, 1, st)
    if o.ntA != o.ntB:
        A(f"s_cmp_lg_u32 {sr(sBR)}, 0"); A("s_cbranch_scc1 L_attB")
    for br in range(2 if o.ntA != o.ntB else 1):
        if br: A.lab("L_attB")
        A(f"s_cmp_lg_u32 {sr(sC2)}, 0"); A(f"s_cbranch_scc1 L_att3_{br}")
        attention(A, o, 4, tail, br)
        A("s_branch L_attdone")
        A.lab(f"L_att3_{br}")
        attention(A, o, 3, tail, br)
        A("s_branch L_attdone")
    A.lab("L_attdone")
    g_begin(A, o)
    A.q = []
    gemm(A, o, "G", 14, {})
    exchange(A, o)
    A.lab("L_fin")
    stamp(A, 5, st)
    if st:
        write_stamps(A)
    A.lab("L_exit")
    A("s_endpgm")
    rare_blocks(A, o, tail)
    A('.section .rodata,"a"')
    A(".p2align 6")
    A(f".amdhsa_kernel {KN}")
    A("  .amdhsa_next_free_vgpr 480"); A("  .amdhsa_next_free_sgpr 96"); A("  .amdhsa_accum_offset 256")
    A("  .amdhsa_group_segment_fixed_size 0"); A("  .amdhsa_kernarg_size 104"); A("  .amdhsa_user_sgpr_count 2")
    A("  .amdhsa_user_sgpr_kernarg_segment_ptr 1"); A("  .amdhsa_system_sgpr_workgroup_id_x 1")
    A(".end_amdhsa_kernel")
    return A.text()


if __name__ == "__main__":
    ap = argparse.ArgumentParser()
    ap.add_argument("-o", default="concat_heads__mha_block_cached__gqa_block_cached__near_ridge.s")
    ap.add_argument("--stamps", action="store_true")
    ap.add_argument("--qst", action="store_true")
    ap.add_argument("--pst", action="store_true")
    ap.add_argument("--nt", default="KV")
    ap.add_argument("--krot", type=int, default=0)
    ap.add_argument("--ntA", default="KV")
    ap.add_argument("--ntB", default="KV")
    ap.add_argument("--xbf", type=int, default=1)
    ap.add_argument("--outfl", default=" sc1")
    ap.add_argument("--nokv", action="store_true")
    a = ap.parse_args()
    open(a.o, "w").write(build(a))
```

```python
import sys, argparse, struct, math

KN = "concat_heads__mha_block_cached__gqa_block_cached__near_ridge_kernel"
WS_BYTES = 305659904
O_BYTES = 16 * 7 * 128 * 1024
X_OFF = O_BYTES
X_BYTES = 8 * 8 * 4 * 4 * 4 * 8192
F_RDY = X_OFF + X_BYTES
F_XCH = F_RDY + 32 * 128
WSL, XSL, XB = 16384, 28672, 49152
ASL = 32768
LDS = 163840
f32 = lambda x: struct.unpack("<I", struct.pack("<f", x))[0]
C_SCALE = f32(math.log2(math.e) / math.sqrt(128.0))
THR = f32(8.0)
OOB = 0x40000000

HEADER = """\
; -> output projection tile (224x128 over 8 heads) -> partial sums exchanged through ws between 4 workgroups -> out.
"""


class Asm:
    def __init__(self):
        self.L = []
        self.uid = 0
        self.q = []

    def __call__(self, s):
        self.L.append(s)

    def lab(self, name):
        self.L.append(name + ":")

    def newlab(self, p="L"):
        self.uid += 1
        return f"{p}_{self.uid}"

    def ds(self, txt, tag):
        assert len(self.q) < 15, "too many LDS ops outstanding"
        self.L.append(txt); self.q.append(tag)

    def need(self, tags):
        pos = max([i for i, t in enumerate(self.q) if t in tags], default=-1)
        if pos >= 0:
            self.L.append(f"s_waitcnt lgkmcnt({len(self.q) - pos - 1})")
            self.q = self.q[pos + 1:]

    def emit(self, it):
        if isinstance(it, str):
            self(it)
        elif it[0] == "ds":
            if len(self.q) >= 15:
                self.need([self.q[3]])
            self.ds(it[1], it[2])
        elif it[0] == "bar":
            self(f"s_waitcnt vmcnt({it[1]}) lgkmcnt(0)"); self.q = []
            self("s_barrier")
        elif it[0] == "lab":
            self.lab(it[1])

    def groups(self, gs):
        for g in gs:
            for s in g: self(s)

    def run(self, mf, after):
        for m, (txt, tags) in enumerate(mf):
            self.need(tags)
            self(txt)
            for it in after.get(m, []): self.emit(it)

    def text(self):
        return "\n".join(self.L) + "\n"


def vr(a, n=1):
    p, a = ("a", a - 256) if a >= 256 else ("v", a)
    return f"{p}{a}" if n == 1 else f"{p}[{a}:{a+n-1}]"


def sr(a, n=1):
    return f"s{a}" if n == 1 else f"s[{a}:{a+n-1}]"


def mfma(d, a, b, c):
    return f"v_mfma_f32_16x16x32_bf16 {vr(d,4)}, {vr(a,4)}, {vr(b,4)}, {c if c == '0' else vr(c,4)}"


def put(after, m, items):
    after.setdefault(m, []).extend(items)


def spread(after, items, lo, hi):
    tot = sum(c for _, c in items)
    acc, pos = 0.0, []
    for its, c in items:
        g = lo + int((acc + c / 2) / tot * (hi - lo))
        put(after, g, its if isinstance(its, list) else [its])
        pos.append(g); acc += c
    return pos


S_X, S_W, S_K, S_V, S_O, S_XC, S_OUT = 4, 8, 12, 16, 20, 24, 28
sWAVE, sBR, sB, sH, sHG, sHL = 32, 33, 34, 35, 38, 39
sKA = 36
sDBG = 40
sWS = 42
sT0, sT1, sT2, sT3 = 44, 45, 46, 47
sCW, sCX, sFW, sFX = 48, 49, 50, 51
sWM, sXM, sAM = 52, 80, 81
sCNT = 53
sXO, sWO_ = 54, 55
sKO, sVO = 56, 57
sC, sTHR = 58, 59
sEX = 60
sLD = 62
sST = 64
sPEND = 82
sSPIN = 83
sU, sC2 = 84, 85
sXB = 86
sROT = 87
sTAU = 88
sWREC = 89
sNON = 90
sPTR = 94

vLANE = 1
vT = 2
vDX = 10
vDW = 14
vDK = 18
vDV = 22
vXB = 24
vTB = 26
vXA = 30
vTA = 32
vL16 = 36
vFAC = 40
vP = 44
vS = 60
vKF = 124
vVF = 156
vKA = 208
vVA = 216
vNM = 232
vLS = 248
aO = 256
aQ = 384
gACC = 40
gX = 152
gW = 448
gT = 208


def stamp(A, i, on):
    if on:
        q = list(A.q)
        A(f"s_memrealtime {sr(sST + 2*i, 2)}")
        A(f"s_memtime {sr(sPTR, 2)}")
        A("s_waitcnt lgkmcnt(0)")
        A(f"s_mov_b32 {sr(sST + 2*i + 1)}, {sr(sPTR)}")
        A.q = q


def write_stamps(A):
    l = A.newlab("L_st")
    A(f"s_mov_b32 {sr(sT0)}, {WS_BYTES - 512*64}")
    A(f"s_lshl_b32 {sr(sT1)}, s2, 6")
    A(f"s_add_u32 {sr(sT0)}, {sr(sT0)}, {sr(sT1)}")
    A(f"s_add_u32 {sr(sPTR)}, {sr(sWS)}, {sr(sT0)}")
    A(f"s_addc_u32 {sr(sPTR+1)}, {sr(sWS+1)}, 0")
    A(f"v_mov_b32 v2, 0")
    for i in range(16):
        A(f"v_mov_b32 v{4+i}, {sr(sST+i)}")
    A(f"v_cmp_eq_u32 vcc, 0, v0")
    A(f"s_and_saveexec_b64 {sr(sEX,2)}, vcc")
    A(f"s_cbranch_execz {l}")
    for i in range(4):
        A(f"global_store_dwordx4 v2, v[{4+4*i}:{7+4*i}], {sr(sPTR,2)} offset:{16*i}")
    A.lab(l)
    A(f"s_mov_b64 exec, {sr(sEX,2)}")


def srd(A, d, lo, add, nrec):
    if add is None:
        A(f"s_mov_b32 {sr(d)}, {sr(lo)}"); A(f"s_mov_b32 {sr(d+1)}, {sr(lo+1)}")
    else:
        A(f"s_add_u32 {sr(d)}, {sr(lo)}, {add}"); A(f"s_addc_u32 {sr(d+1)}, {sr(lo+1)}, 0")
    A(f"s_mov_b32 {sr(d+2)}, {nrec}")
    A(f"s_mov_b32 {sr(d+3)}, 0x20000")


def get_tag(A):
    ls, lg = A.newlab("L_tag"), A.newlab("L_tagok")
    A(f"s_cmp_lg_u32 {sr(sNON+1)}, 0"); A(f"s_cbranch_scc1 {lg}")
    A(f"v_mov_b32 {vr(vT+4)}, 0")
    A(f"s_mov_b32 {sr(sSPIN)}, 0")
    A.lab(ls)
    A(f"global_load_dwordx2 {vr(vT+2,2)}, {vr(vT+4)}, {sr(sDBG,2)} sc1")
    A("s_waitcnt vmcnt(0)")
    A(f"v_readfirstlane_b32 {sr(sNON)}, {vr(vT+2)}")
    A(f"v_readfirstlane_b32 {sr(sNON+1)}, {vr(vT+3)}")
    A(f"s_add_u32 {sr(sSPIN)}, {sr(sSPIN)}, 1")
    A(f"s_cmp_lg_u32 {sr(sNON+1)}, 0"); A(f"s_cbranch_scc1 {lg}")
    A("s_sleep 4")
    A(f"s_cmp_lt_u32 {sr(sSPIN)}, 0x4000"); A(f"s_cbranch_scc1 {ls}")
    A.lab(lg)


def raise_flag(A, sig_s):
    A("s_mov_b64 exec, 1")
    get_tag(A)
    A(f"v_mov_b32 {vr(vT+4)}, {sr(sig_s)}"); A(f"v_mov_b32 {vr(vT+2)}, {sr(sNON)}"); A(f"v_mov_b32 {vr(vT+3)}, {sr(sNON+1)}")
    A(f"global_store_dwordx2 {vr(vT+4)}, {vr(vT+2,2)}, {sr(sWS,2)} sc1")
    A("s_mov_b64 exec, -1")


def signal_wait(A, sig_s, off_s, n, sleep):
    le, ls, lg = A.newlab("L_wend"), A.newlab("L_spin"), A.newlab("L_go")
    A(f"s_cmp_lg_u32 {sr(sWAVE)}, 0"); A(f"s_cbranch_scc1 {le}")
    if sig_s is not None:
        raise_flag(A, sig_s)
    A(f"s_mov_b64 exec, {(1 << n) - 1}")
    A(f"v_lshlrev_b32 {vr(vT+5)}, 3, {vr(vLANE)}")
    A(f"v_add_u32 {vr(vT+5)}, {sr(off_s)}, {vr(vT+5)}")
    A(f"s_mov_b32 {sr(sSPIN)}, 0")
    A.lab(ls)
    A(f"global_load_dwordx2 {vr(vT+6,2)}, {vr(vT+5)}, {sr(sWS,2)} sc1")
    A("s_waitcnt vmcnt(0)")
    A(f"v_cmp_eq_u64 vcc, {sr(sNON,2)}, {vr(vT+6,2)}")
    A(f"s_add_u32 {sr(sSPIN)}, {sr(sSPIN)}, 1")
    A(f"s_cmp_eq_u32 vcc_lo, {(1 << n) - 1}")
    A(f"s_cbranch_scc1 {lg}")
    A(f"s_sleep {sleep}")
    A(f"s_cmp_lt_u32 {sr(sSPIN)}, 0x4000"); A(f"s_cbranch_scc1 {ls}")
    A.lab(lg)
    A("s_mov_b64 exec, -1")
    A.lab(le)
    A("s_barrier")


def m0set(base_s, slot):
    return f"s_add_u32 m0, {sr(base_s)}, {slot[1]}" if isinstance(slot, tuple) else f"s_add_u32 m0, {sr(base_s)}, {sr(slot)}"


def dma_w(o, kind, slot):
    fl = " nt" if kind in o.nt else ""
    g = [[f"buffer_load_dwordx4 {vr(vDW+t)}, {sr(S_W,4)}, {sr(sWO_)} offen offset:{t*1024}{fl} lds"] for t in range(4)]
    g[0] = [m0set(sWM, slot), "s_nop 0"] + g[0]
    st, mask = (0x80000, 0x7fffff) if kind == "W" else (0x20000, 0x1fffff)
    g[3] += [f"s_add_u32 {sr(sWO_)}, {sr(sWO_)}, {st:#x}", f"s_and_b32 {sr(sWO_)}, {sr(sWO_)}, {mask:#x}"]
    return g


def dma_x(o, kind, slot):
    srd_, fl = (S_X, " nt" if "X" in o.nt else "") if kind == "X" else (S_O, " sc1")
    g = []
    for t in range(7):
        so = sXO if t < 4 else sXB
        g.append([f"buffer_load_dwordx4 {vr(vDX+(t&3))}, {sr(srd_,4)}, {sr(so)} offen offset:{(t&3)*1024}{fl} lds"])
    g[0] = [m0set(sXM, slot), f"s_add_u32 {sr(sXB)}, {sr(sXO)}, {65536 if kind == 'X' else 262144}"] + g[0]
    g[4] = ["s_add_u32 m0, m0, 4096", "s_nop 0"] + g[4]
    if kind == "X":
        g[6] += [f"s_add_u32 {sr(sXO)}, {sr(sXO)}, 128", f"s_and_b32 {sr(sXO)}, {sr(sXO)}, 2047"]
    else:
        g[6] += [f"s_add_u32 {sr(sXO)}, {sr(sXO)}, 2048", f"s_and_b32 {sr(sXO)}, {sr(sXO)}, 32767"]
    return g


def dma_k(o, slot):
    fl = " nt" if "K" in o.nt else ""
    g = [[f"buffer_load_dwordx4 {vr(vDK+t)}, {sr(S_K,4)}, {sr(sKO)} offen offset:{t*1024}{fl} lds"] for t in range(4)]
    g[0] = [f"s_add_u32 m0, {sr(sAM)}, {ASL*(1+slot) + 16384}", "s_nop 0"] + g[0]
    g[3] += [f"s_add_u32 {sr(sKO)}, {sr(sKO)}, 8192", f"s_bitset0_b32 {sr(sKO)}, 18"]
    return g


def dma_v(o, slot):
    fl = " nt" if "V" in o.nt else ""
    g = [[f"buffer_load_dwordx4 {vr(vDV+(t&1))}, {sr(S_V,4)}, {sr(sVO)} offen offset:{t*1024}{fl} lds"] for t in range(4)]
    g[0] = [f"s_add_u32 m0, {sr(sAM)}, {ASL*(1+slot)}", "s_nop 0"] + g[0]
    g[3] += [f"s_add_u32 {sr(sVO)}, {sr(sVO)}, 8192", f"s_bitset0_b32 {sr(sVO)}, 18"]
    return g


def w_offsets(A, rshift, wflav):
    l4, t0, t1, t2 = vT, vT + 1, vT + 2, vT + 3
    A(f"v_lshrrev_b32 {vr(l4)}, 4, {vr(vLANE)}")
    A(f"v_and_b32 {vr(t1)}, 15, {vr(vLANE)}")
    A(f"v_lshlrev_b32 {vr(t0)}, 1, {vr(l4)}")
    A(f"v_xor_b32 {vr(t0)}, {vr(t0)}, {vr(t1)}")
    A(f"v_lshlrev_b32 {vr(t0)}, 4, {vr(t0)}")
    A(f"s_lshl_b32 {sr(sT3)}, {sr(sWAVE)}, {rshift+4}")
    A(f"v_lshlrev_b32 {vr(t2)}, {rshift}, {vr(l4)}")
    A(f"v_add_u32 {vr(t2)}, {sr(sT3)}, {vr(t2)}")
    for t in range(4):
        bit = (t >> 1) & 1 if wflav else t & 1
        A(f"v_xor_b32 {vr(t1)}, {128*bit}, {vr(t0)}")
        A(f"v_add3_u32 {vr(vDW+t)}, {vr(t1)}, {vr(t2)}, 0")
        A(f"v_add_u32 {vr(vDW+t)}, {(4*t << rshift) - 1024*t}, {vr(vDW+t)}")


def tr_base(A, dst, gshift):
    g, r, c = vT, vT + 1, vT + 2
    A(f"v_lshrrev_b32 {vr(g)}, 4, {vr(vLANE)}")
    A(f"v_bfe_u32 {vr(r)}, {vr(vLANE)}, 2, 2")
    A(f"v_and_b32 {vr(c)}, 3, {vr(vLANE)}"); A(f"v_lshlrev_b32 {vr(c)}, 3, {vr(c)}")
    A(f"v_lshl_add_u32 {vr(c)}, {vr(g)}, {gshift}, {vr(c)}")
    A(f"v_lshl_add_u32 {vr(c)}, {vr(r)}, 8, {vr(c)}")
    A(f"v_lshl_add_u32 {vr(c)}, {vr(r)}, 5, {vr(c)}")
    A(f"v_and_b32 {vr(g)}, 1, {vr(g)}")
    A(f"v_lshl_add_u32 {vr(dst)}, {vr(g)}, 7, {vr(c)}")


def gemm_tr_bases(A, gshift):
    tr_base(A, vT + 3, gshift)
    A(f"s_lshl_b32 {sr(sT0)}, {sr(sC2)}, 7")
    A(f"v_xor_b32 {vr(vT+3)}, {sr(sT0)}, {vr(vT+3)}")
    for ct in range(4):
        A(f"v_xor_b32 {vr(vTB+ct)}, {32*ct}, {vr(vT+3)}")


def prologue(A, o):
    A(f"s_bfe_u32 {sr(sBR)}, s2, 0x10002")
    A(f"s_mul_i32 {sr(sT0)}, {sr(sBR)}, 40")
    A(f"s_add_u32 {sr(sKA)}, s0, {sr(sT0)}"); A(f"s_addc_u32 {sr(sKA+1)}, s1, 0")
    A(f"s_load_dwordx2 s[74:75], {sr(sKA,2)}, 0")
    A(f"s_load_dwordx2 s[66:67], {sr(sKA,2)}, 8")
    A(f"s_load_dwordx2 s[68:69], {sr(sKA,2)}, 16")
    A(f"s_load_dwordx2 s[70:71], {sr(sKA,2)}, 24")
    A(f"s_load_dwordx2 s[72:73], s[0:1], 80")
    A(f"s_load_dwordx2 {sr(sDBG,2)}, s[0:1], 88")
    A(f"s_load_dwordx2 {sr(sWS,2)}, s[0:1], 96")
    A(f"v_lshrrev_b32 v2, 6, v0")
    A(f"v_and_b32 {vr(vLANE)}, 63, v0")
    A(f"v_readfirstlane_b32 {sr(sWAVE)}, v2")
    A(f"s_and_b32 {sr(sHG)}, s2, 3")
    A(f"s_bfe_u32 {sr(sHL)}, s2, 0x30003")
    A(f"s_bfe_u32 {sr(sTAU)}, s2, 0x20006")
    A(f"s_lshl_b32 {sr(sH)}, {sr(sHG)}, 3"); A(f"s_add_u32 {sr(sH)}, {sr(sH)}, {sr(sHL)}")
    A(f"s_lshl_b32 {sr(sB)}, {sr(sTAU)}, 1")
    A(f"s_add_u32 {sr(sROT)}, {sr(sB)}, {sr(sHL)}"); A(f"s_and_b32 {sr(sROT)}, {sr(sROT)}, 7")
    A(f"s_lshr_b32 {sr(sU)}, {sr(sWAVE)}, 1"); A(f"s_and_b32 {sr(sC2)}, {sr(sWAVE)}, 1")
    A(f"s_lshl_b32 {sr(sWM)}, {sr(sWAVE)}, 12")
    A(f"s_mul_i32 {sr(sXM)}, {sr(sWAVE)}, 7168")
    A(f"s_mov_b32 {sr(sAM)}, {sr(sWM)}")
    A(f"s_lshl_b32 {sr(sXO)}, {sr(sROT)}, 8")
    A(f"s_lshl_b32 {sr(sWO_)}, {sr(sROT)}, 20")
    l3, l4, t0, t1 = vT, vT + 1, vT + 2, vT + 3
    A(f"v_lshrrev_b32 {vr(l3)}, 3, {vr(vLANE)}")
    A(f"v_lshrrev_b32 {vr(l4)}, 4, {vr(vLANE)}")
    A(f"s_mul_i32 {sr(sT2)}, {sr(sWAVE)}, {56*2048}")
    A(f"s_lshl_b32 {sr(sT1)}, {sr(sC2)}, 2")
    A(f"v_and_b32 {vr(t1)}, 7, {vr(vLANE)}")
    A(f"v_xor_b32 {vr(t1)}, {sr(sT1)}, {vr(t1)}")
    A(f"v_xor_b32 {vr(t1)}, {vr(t1)}, {vr(l4)}")
    A(f"v_lshlrev_b32 {vr(t1)}, 4, {vr(t1)}")
    A(f"v_lshl_add_u32 {vr(l3)}, {vr(l3)}, 11, {sr(sT2)}")
    for t in range(4):
        A(f"v_xor_b32 {vr(t0)}, {64*(t&1)}, {vr(t1)}")
        A(f"v_add_u32 {vr(t0)}, {vr(t0)}, {vr(l3)}")
        A(f"v_add_u32 {vr(vDX+t)}, {8*t*2048 - 1024*t}, {vr(t0)}")
    w_offsets(A, 13, True)
    A("s_waitcnt lgkmcnt(0)")
    A(f"s_lshl_b32 {sr(sT0)}, {sr(sH)}, 8")
    srd(A, S_W, 70, sr(sT0), "0")
    A(f"s_sub_u32 {sr(S_W+2)}, 0x800000, {sr(sT0)}")
    A(f"s_mul_i32 {sr(sT0)}, {sr(sB)}, 229376")
    srd(A, S_X, 74, sr(sT0), str(2 * 229376))
    A.groups(dma_w(o, "W", ("imm", 0)))
    A.groups(dma_x(o, "X", ("imm", XB)))
    A(f"s_add_u32 {sr(sT0)}, {sr(sB)}, {sr(sU)}"); A(f"s_lshl_b32 {sr(sT0)}, {sr(sT0)}, 5")
    A(f"s_add_u32 {sr(sT0)}, {sr(sT0)}, {sr(sH)}"); A(f"s_lshl_b32 {sr(sT0)}, {sr(sT0)}, 18")
    srd(A, S_K, 66, sr(sT0), "0" if o.nokv else "0x40000")
    srd(A, S_V, 68, sr(sT0), "0" if o.nokv else "0x40000")
    l4, t0, t1, t2 = vT, vT + 1, vT + 2, vT + 3
    A(f"v_lshrrev_b32 {vr(l4)}, 4, {vr(vLANE)}")
    A(f"v_and_b32 {vr(t1)}, 15, {vr(vLANE)}")
    A(f"s_lshl_b32 {sr(sT0)}, {sr(sC2)}, 12")
    A(f"v_lshl_add_u32 {vr(t2)}, {vr(l4)}, 8, {sr(sT0)}")
    A(f"v_xor_b32 {vr(t0)}, {vr(l4)}, {vr(t1)}")
    A(f"v_lshl_add_u32 {vr(vDK)}, {vr(t0)}, 4, {vr(t2)}")
    for t in range(1, 4):
        A(f"v_xor_b32 {vr(vDK+t)}, {64*t}, {vr(vDK)}")
    A(f"v_lshlrev_b32 {vr(t0)}, 1, {vr(l4)}")
    A(f"v_xor_b32 {vr(t0)}, {vr(t0)}, {vr(t1)}")
    A(f"v_lshl_add_u32 {vr(vDV)}, {vr(t0)}, 4, {vr(t2)}")
    A(f"v_xor_b32 {vr(vDV+1)}, 128, {vr(vDV)}")
    if o.krot:
        A(f"s_lshr_b32 {sr(sT0)}, s2, 3"); A(f"s_and_b32 {sr(sT1)}, s2, 7"); A(f"s_lshl_b32 {sr(sT1)}, {sr(sT1)}, 2")
        A(f"s_add_u32 {sr(sT0)}, {sr(sT0)}, {sr(sT1)}"); A(f"s_and_b32 {sr(sT0)}, {sr(sT0)}, 31"); A(f"s_lshl_b32 {sr(sKO)}, {sr(sT0)}, 13")
    else:
        A(f"s_mov_b32 {sr(sKO)}, 0")
    A(f"s_mov_b32 {sr(sVO)}, {sr(sKO)}")
    srd(A, S_OUT, 72, None, str(896 * 4096))
    srd(A, S_XC, sWS, str(X_OFF), str(X_BYTES))
    A(f"s_mov_b32 {sr(sC)}, {C_SCALE:#x}"); A(f"s_mov_b32 {sr(sTHR)}, {THR:#x}")
    A(f"s_mov_b32 {sr(sNON)}, 0"); A(f"s_mov_b32 {sr(sNON+1)}, 0"); A(f"s_mov_b32 {sr(sPEND)}, 0")
    l = A.newlab("L_notag")
    A(f"s_or_b32 {sr(sT0)}, s2, {sr(sWAVE)}"); A(f"s_cmp_lg_u32 {sr(sT0)}, 0"); A(f"s_cbranch_scc1 {l}")
    A(f"s_memrealtime {sr(sLD,2)}"); A("s_waitcnt lgkmcnt(0)")
    A(f"v_mov_b32 {vr(vT+2)}, {sr(sLD)}"); A(f"v_mov_b32 {vr(vT+3)}, {sr(sLD+1)}"); A(f"v_mov_b32 {vr(vT+4)}, 0")
    A(f"v_or_b32 {vr(vT+3)}, 0x80000000, {vr(vT+3)}")
    A("s_mov_b64 exec, 1")
    A(f"global_store_dwordx2 {vr(vT+4)}, {vr(vT+2,2)}, {sr(sDBG,2)} sc1")
    A("s_mov_b64 exec, -1")
    A.lab(l)
    q, g, r = vT, vT + 1, vT + 2
    A(f"v_lshlrev_b32 {vr(vL16)}, 4, {vr(vLANE)}")
    A(f"v_and_b32 {vr(q)}, 15, {vr(vLANE)}")
    A(f"v_lshrrev_b32 {vr(g)}, 4, {vr(vLANE)}")
    A(f"v_bfe_u32 {vr(r)}, {vr(vLANE)}, 1, 3")
    A(f"v_xor_b32 {vr(r)}, {vr(r)}, {vr(g)}")
    A(f"v_lshlrev_b32 {vr(r)}, 4, {vr(r)}")
    A(f"v_lshl_add_u32 {vr(r)}, {vr(q)}, 7, {vr(r)}")
    A(f"s_mul_i32 {sr(sT0)}, {sr(sU)}, {112*128}")
    A(f"v_add_u32 {vr(vXB)}, {sr(sT0)}, {vr(r)}")
    A(f"v_xor_b32 {vr(vXB+1)}, 64, {vr(vXB)}")
    gemm_tr_bases(A, 11)
    q, g, t0 = vT + 3, vT + 4, vT + 5
    A(f"v_and_b32 {vr(q)}, 15, {vr(vLANE)}"); A(f"v_lshrrev_b32 {vr(g)}, 4, {vr(vLANE)}")
    A(f"v_xor_b32 {vr(t0)}, {vr(g)}, {vr(q)}"); A(f"v_lshlrev_b32 {vr(t0)}, 4, {vr(t0)}")
    A(f"v_lshl_add_u32 {vr(t0)}, {vr(q)}, 8, {vr(t0)}")
    A(f"s_lshl_b32 {sr(sT0)}, {sr(sU)}, 13"); A(f"s_add_u32 {sr(sT1)}, {sr(sT0)}, {ASL}"); A(f"s_add_u32 {sr(sT0)}, {sr(sT0)}, {ASL + 16384}")
    A(f"v_add_u32 {vr(vKA)}, {sr(sT0)}, {vr(t0)}")
    for s in range(1, 4):
        A(f"v_xor_b32 {vr(vKA+s)}, {64*s}, {vr(vKA)}")
    for s in range(4):
        A(f"v_add_u32 {vr(vKA+4+s)}, 0x10000, {vr(vKA+s)}")
    tr_base(A, vVA, 10)
    A(f"v_add_u32 {vr(vVA)}, {sr(sT1)}, {vr(vVA)}")
    for dt in range(1, 8):
        A(f"v_xor_b32 {vr(vVA+dt)}, {32*dt}, {vr(vVA)}")
    for dt in range(8):
        A(f"v_add_u32 {vr(vVA+8+dt)}, 0x10000, {vr(vVA+dt)}")
    for i in range(24):
        A(f"v_mov_b32 {vr(vNM+i)}, 0")
    for i in range(128):
        A(f"v_accvgpr_write_b32 {vr(aO+i)}, 0")


def gemm(A, o, kind, vm0, tailfill):
    Q = kind == "Q"
    xk, wk = ("X", "W") if Q else ("O", "G")

    def addrs():
        L = [f"v_add_u32 {vr(vXA+s)}, {sr(sCX)}, {vr(vXB+s)}" for s in range(2)]
        return L + [f"v_add_u32 {vr(vTA+ct)}, {sr(sCW)}, {vr(vTB+ct)}" for ct in range(4)]

    def wr(s):
        L = []
        for ct in range(4):
            f = gW + 16 * s + 4 * ct
            for e in range(2):
                off = 8192 * s + (1024 if Q else 4096) * e
                L.append(("ds", f"ds_read_b64_tr_b16 {vr(f+2*e,2)}, {vr(vTA+ct)} offset:{off}", f"w{s}{ct}"))
        return L

    def xr(s, rt):
        return ("ds", f"ds_read_b128 {vr(gX+28*s+4*rt,4)}, {vr(vXA+s)} offset:{2048*rt}", f"x{s}{rt}")

    def adv(s, size, lo, n):
        return [f"s_add_u32 {sr(s)}, {sr(s)}, {size}", f"s_cmp_ge_u32 {sr(s)}, {lo + n*size}",
                f"s_cselect_b32 {sr(s)}, {lo}, {sr(s)}"]

    def carry():
        return wr(0) + [xr(0, rt) for rt in range(3)]

    def step(first, late, early, last, vm):
        mf, after = [], {}
        for s in range(2):
            for rt in range(7):
                for ct in range(4):
                    a = gACC + 28 * ct + 4 * rt
                    mf.append((mfma(a, gW + 16 * s + 4 * ct, gX + 28 * s + 4 * rt, "0" if (first and s == 0) else a),
                               [f"w{s}{ct}", f"x{s}{rt}"]))
        r = [xr(0, rt) for rt in range(3, 7)] + wr(1) + [xr(1, rt) for rt in range(7)]
        spread(after, [(x, 1) for x in r], 3, 30)
        if late:
            spread(after, [(g, 1) for g in late], 1, 34)
        if not last:
            put(after, 33, [f"s_mov_b32 {sr(sFW)}, {sr(sCW)}", f"s_mov_b32 {sr(sFX)}, {sr(sCX)}"])
            put(after, 34, adv(sCW, WSL, 0, 3)); put(after, 35, adv(sCX, XSL, XB, 3))
            ad = addrs()
            put(after, 36, ad[:2]); put(after, 37, ad[2:4]); put(after, 38, ad[4:])
            put(after, 40, [("bar", vm)])
            spread(after, [(x, 1) for x in carry()], 40, 54)
            if early:
                spread(after, [(g, 1) for g in early], 41, 56)
        A.run(mf, after)

    A(f"s_mov_b32 {sr(sCW)}, 0"); A(f"s_mov_b32 {sr(sCX)}, {XB}")
    for s in addrs(): A(s)
    A.emit(("bar", vm0))
    stamp(A, 6, o.stamps and (o.qst == Q))
    for it in carry(): A.emit(it)
    W = lambda sl: dma_w(o, wk, sl)
    X = lambda sl: dma_x(o, xk, sl)
    if Q:
        step(True, W(("imm", WSL)) + X(("imm", XB + XSL)), W(("imm", 2 * WSL)) + X(("imm", XB + 2 * XSL))[:3], False, 0)
        step(False, X(("imm", XB + 2 * XSL))[3:] + W(sFW) + X(sFX), W(sFW), False, 11)
    else:
        step(True, [], W(sFW), False, 7)
        step(False, X(sFX), W(sFW), False, 11)
    A(f"s_mov_b32 {sr(sCNT)}, 11")
    q0 = list(A.q)
    l = A.newlab("L_gl")
    A.lab(l)
    step(False, X(sFX), W(sFW), False, 11)
    assert A.q == q0
    A(f"s_sub_u32 {sr(sCNT)}, {sr(sCNT)}, 1"); A(f"s_cmp_lg_u32 {sr(sCNT)}, 0"); A(f"s_cbranch_scc1 {l}")
    step(False, X(sFX), tailfill.get(13, []), False, 11)
    step(False, [], tailfill.get(14, []), False, len(tailfill.get(13, [])))
    step(False, tailfill.get(15, []), [], True, 0)
    stamp(A, 7, o.stamps and (o.qst == Q))


def q_finish(A, o):
    A.emit(("bar", 63))
    A.groups(dma_k(o, 1)); A.groups(dma_v(o, 1))
    q, g, t0, t1 = vT, vT + 1, vT + 2, vT + 3
    A(f"v_and_b32 {vr(q)}, 15, {vr(vLANE)}")
    A(f"v_lshrrev_b32 {vr(g)}, 4, {vr(vLANE)}")
    A(f"v_lshrrev_b32 {vr(t0)}, 1, {vr(g)}")
    A(f"s_lshl_b32 {sr(sT0)}, {sr(sC2)}, 3")
    A(f"v_xor_b32 {vr(t0)}, {sr(sT0)}, {vr(t0)}")
    A(f"v_xor_b32 {vr(t0)}, {vr(t0)}, {vr(q)}")
    A(f"v_lshlrev_b32 {vr(t0)}, 4, {vr(t0)}")
    A(f"v_and_b32 {vr(t1)}, 1, {vr(g)}")
    A(f"v_lshl_add_u32 {vr(t0)}, {vr(t1)}, 3, {vr(t0)}")
    A(f"s_mul_i32 {sr(sT0)}, {sr(sU)}, {112*256}")
    A(f"v_lshl_add_u32 {vr(t1)}, {vr(q)}, 8, {sr(sT0)}")
    A(f"v_add_u32 {vr(vTA)}, {vr(t0)}, {vr(t1)}")
    for ct in range(1, 4):
        A(f"v_xor_b32 {vr(vTA+ct)}, {32*ct}, {vr(vTA)}")
    A(f"v_mov_b32 {vr(vXA)}, {sr(sC)}"); A(f"v_mov_b32 {vr(vXA+1)}, {sr(sC)}")
    for ct in range(4):
        for rt in range(7):
            a = gACC + 28 * ct + 4 * rt
            d = gX + 2 * ((ct * 7 + rt) % 8)
            A(f"v_pk_mul_f32 {vr(a,2)}, {vr(a,2)}, {vr(vXA,2)}")
            A(f"v_pk_mul_f32 {vr(a+2,2)}, {vr(a+2,2)}, {vr(vXA,2)}")
            A(f"v_cvt_pk_bf16_f32 {vr(d)}, {vr(a)}, {vr(a+1)}")
            A(f"v_cvt_pk_bf16_f32 {vr(d+1)}, {vr(a+2)}, {vr(a+3)}")
            A(f"ds_write_b64 {vr(vTA+ct)}, {vr(d,2)} offset:{4096*rt}")
            if (ct * 7 + rt) % 8 == 7:
                A("s_waitcnt lgkmcnt(4)")
    A(f"v_xor_b32 {vr(t0)}, {vr(g)}, {vr(q)}")
    A(f"v_lshlrev_b32 {vr(t0)}, 4, {vr(t0)}")
    A(f"s_lshl_b32 {sr(sT0)}, {sr(sC2)}, 14")
    A(f"v_add3_u32 {vr(t1)}, {vr(t1)}, {vr(t0)}, {sr(sT0)}")
    A.emit(("bar", 63))
    for s in range(4):
        A(f"v_xor_b32 {vr(vTA+s)}, {64*s}, {vr(t1)}")
    for qt in range(4):
        for s in range(4):
            A(f"ds_read_b128 {vr(aQ+16*qt+4*s,4)}, {vr(vTA+s)} offset:{4096*qt}")
            if qt == 2 and s == 3:
                A("s_waitcnt lgkmcnt(4)")
    A.emit(("bar", 16))
    A.groups(dma_k(o, 0)); A.groups(dma_v(o, 0))


def kreads(slot):
    L = []
    for s in range(4):
        for kt in range(2):
            L.append(("ds", f"ds_read_b128 {vr(vKF+16*kt+4*s,4)}, {vr(vKA+4*(slot>>1)+s)} offset:{(slot&1)*ASL+4096*kt}", f"k{kt}{s}"))
    return L


def new_max(S, NT, clamp):
    L = []
    for qt in range(NT):
        mx, o2 = vT, vT + 1
        a, b = S + 4 * qt, S + 16 + 4 * qt
        L += [f"v_max3_f32 {vr(mx)}, {vr(a)}, {vr(a+1)}, {vr(a+2)}", f"v_max3_f32 {vr(mx)}, {vr(mx)}, {vr(a+3)}, {vr(b)}",
              f"v_max3_f32 {vr(mx)}, {vr(mx)}, {vr(b+1)}, {vr(b+2)}", f"v_max_f32 {vr(mx)}, {vr(mx)}, {vr(b+3)}"]
        for sw in ("16", "32"):
            L += [f"v_mov_b32 {vr(o2)}, {vr(mx)}", "s_nop 1", f"v_permlane{sw}_swap_b32 {vr(mx)}, {vr(o2)}", "s_nop 1",
                  f"v_max_f32 {vr(mx)}, {vr(mx)}, {vr(o2)}"]
        if clamp:
            L += [f"v_max_f32 {vr(mx)}, 0, {vr(mx)}", f"v_exp_f32 {vr(vFAC+qt)}, -{vr(mx)}"]
        L += [f"v_sub_f32 {vr(x+i)}, {vr(x+i)}, {vr(mx)}" for x in (a, b, vNM + 4 * qt) for i in range(4)]
        if clamp:
            L += [f"v_mul_f32 {vr(vLS+2*qt+i)}, {vr(vLS+2*qt+i)}, {vr(vFAC+qt)}" for i in range(2)]
    return L


def attention(A, o0, NT, tail, br):
    import copy
    o = copy.copy(o0)
    o.nt = o0.ntA if br == 0 else o0.ntB
    tag = f"_{NT}_{br}"
    NQ = 8 * NT
    NE = 2 * NT
    sreg = lambda S, i: S + 16 * ((i >> 2) & 1) + 4 * (i >> 3) + (i & 3)

    def it(u, first=False):
        p = u & 1
        S, Sp = vS + 32 * p, vS + 32 * (1 - p)
        slot, nslot, pslot = (3 - u) & 3, (2 - u) & 3, (4 - u) & 3
        mf, after = [], {}
        allk = [f"k{kt}{s}" for kt in range(2) for s in range(4)]
        for s in range(4):
            for kt in range(2):
                for qt in range(NT):
                    d = S + 16 * kt + 4 * qt
                    mf.append((mfma(d, vKF + 16 * kt + 4 * s, aQ + 16 * qt + 4 * s, vNM + 4 * qt if s == 0 else d),
                               [f"k{kt}{s}"] if first else allk))
        mx = vT
        order = [sreg(S, i) for i in range(NQ)]
        order.sort(key=lambda r: ((r - S) >> 4, (r - S) & 15))
        m1 = [f"v_max3_f32 {vr(mx)}, {vr(order[0])}, {vr(order[1])}, {vr(order[2])}"]
        m1 += [f"v_max3_f32 {vr(mx)}, {vr(mx)}, {vr(order[i])}, {vr(order[i+1])}" for i in range(3, NQ - 1, 2)]
        m1 += [f"v_max_f32 {vr(mx)}, {vr(mx)}, {vr(order[NQ-1])}"]
        E1 = [f"v_exp_f32 {vr(sreg(S,i))}, {vr(sreg(S,i))}" for i in range(NE)]
        kr = kreads(nslot)
        if first:
            put(after, NQ - 1, [("bar", 16)] + kr + sum(dma_k(o, slot), []) + ["s_nop 3"] + new_max(S, NT, False) + E1)
            A.run(mf, after)
            return
        vrd = []
        for qt in range(NT):
            for dt in range(8):
                mf.append((mfma(aO + 16 * dt + 4 * qt, vVF + 4 * dt, vP + 4 * qt, aO + 16 * dt + 4 * qt), [f"v{dt}"]))
        for dt in range(8):
            for e in range(2):
                vrd.append(("ds", f"ds_read_b64_tr_b16 {vr(vVF+4*dt+2*e,2)}, {vr(vVA+8*(slot>>1)+dt)} offset:{(slot&1)*ASL+4096*e}", f"v{dt}"))
        spread(after, [(x, 1) for x in vrd], 0, NQ - 2)
        spread(after, [(g, 1) for g in dma_v(o, pslot)], 2, NQ - 2)
        l2, b2 = A.newlab("L_r2"), A.newlab("L_b2")
        put(after, 4, [f"s_cmp_lg_u32 {sr(sPEND)}, 0", f"s_cbranch_scc1 {l2}", ("lab", b2)])
        tail.append(("r2", l2, b2, NT))
        st = []
        due = {}
        for qt in range(NT):
            for i in range(8 * qt, 8 * qt + 8):
                if i + NE < NQ:
                    r = sreg(Sp, i + NE)
                    st.append((f"v_exp_f32 {vr(r)}, {vr(r)}", 8))
                if i & 1:
                    r = sreg(Sp, i - 1)
                    st.append((f"v_pk_add_f32 {vr(vLS+2*qt,2)}, {vr(vLS+2*qt,2)}, {vr(r,2)}", 4.5))
                    st.append((f"v_cvt_pk_bf16_f32 {vr(vP+4*qt+((i&7)>>1))}, {vr(r)}, {vr(r+1)}", 4.5))
            due[qt] = len(st) - 1
        i_m1 = len(st)
        l1, b1 = A.newlab("L_r1"), A.newlab("L_b1")
        tail.append(("r1", l1, b1, u == 0, S, NT))
        st += [(x, 4.5) for x in m1]
        st.append(([f"v_cmp_lt_f32 vcc, {sr(sTHR)}, {vr(mx)}", f"s_cbranch_vccnz {l1}", ("lab", b1)], 9))
        st += [(x, 8) for x in E1]
        pos = spread(after, st, 0, 2 * NQ)
        for qt in range(NT):
            assert pos[due[qt]] < NQ + 8 * qt - 2, (qt, pos[due[qt]])
        assert pos[i_m1] >= NQ + 4, pos[i_m1]
        put(after, NQ + 2, [("bar", 16)])
        spread(after, [(x, 1) for x in kr], NQ + 3, 2 * NQ - 6)
        if u == 0:
            put(after, NQ + 3, [f"s_cmp_eq_u32 {sr(sCNT)}, 2", f"s_cselect_b32 {sr(S_K+2)}, 0, {sr(S_K+2)}"])
        if u == 2:
            put(after, 0, [f"s_cmp_eq_u32 {sr(sCNT)}, 1", f"s_cselect_b32 {sr(S_V+2)}, 0, {sr(S_V+2)}"])
        spread(after, [(g, 1) for g in dma_k(o, slot)], NQ + 5, 2 * NQ)
        A.run(mf, after)

    A.q = []
    for x in kreads(3): A.emit(x)
    it(0, first=True)
    q0 = list(A.q)
    A(f"s_mov_b32 {sr(sCNT)}, 8")
    A.lab("L_aloop" + tag)
    l = A.newlab("L_gw")
    A(f"s_cmp_eq_u32 {sr(sCNT)}, 1"); A(f"s_cbranch_scc1 {l}"); A.lab(l + "b")
    tail.append(("gw", l))
    for u in (1, 2, 3, 0):
        it(u)
    assert A.q == q0
    A(f"s_sub_u32 {sr(sCNT)}, {sr(sCNT)}, 1"); A(f"s_cmp_lg_u32 {sr(sCNT)}, 0"); A(f"s_cbranch_scc1 L_aloop{tag}")
    if o.stamps:
        stamp(A, 2, True)
    A(f"s_lshl_b32 {sr(sT0)}, {sr(sBR)}, 3"); A(f"s_add_u32 {sr(sT0)}, {sr(sT0)}, {sr(sB)}"); A(f"s_add_u32 {sr(sT0)}, {sr(sT0)}, {sr(sU)}")
    A(f"s_mul_i32 {sr(sT0)}, {sr(sT0)}, 7"); A(f"s_lshl_b32 {sr(sT1)}, {sr(sC2)}, 2"); A(f"s_add_u32 {sr(sT0)}, {sr(sT0)}, {sr(sT1)}")
    A(f"s_lshl_b32 {sr(sT0)}, {sr(sT0)}, 17"); A(f"s_lshl_b32 {sr(sT1)}, {sr(sH)}, 12"); A(f"s_add_u32 {sr(sT0)}, {sr(sT0)}, {sr(sT1)}")
    srd(A, S_O, sWS, None, str(O_BYTES))
    A("s_waitcnt lgkmcnt(0)")
    for qt in range(NT):
        a, b = vLS + 2 * qt, vLS + 2 * qt + 1
        A(f"v_add_f32 {vr(a)}, {vr(a)}, {vr(b)}")
    for sw in ("16", "32"):
        for qt in range(NT):
            A(f"v_mov_b32 {vr(vLS+2*qt+1)}, {vr(vLS+2*qt)}")
        A("s_nop 1")
        for qt in range(NT):
            A(f"v_permlane{sw}_swap_b32 {vr(vLS+2*qt)}, {vr(vLS+2*qt+1)}")
        A("s_nop 1")
        for qt in range(NT):
            A(f"v_add_f32 {vr(vLS+2*qt)}, {vr(vLS+2*qt)}, {vr(vLS+2*qt+1)}")
    for qt in range(NT):
        A(f"v_rcp_f32 {vr(vLS+2*qt)}, {vr(vLS+2*qt)}")
    A("s_nop 0")
    for qt in range(NT):
        A(f"v_mov_b32 {vr(vLS+2*qt+1)}, {vr(vLS+2*qt)}")
    for qt in range(NT):
        for m in range(4):
            t = vS + 8 * ((4 * qt + m) % 8)
            d = vKF + 4 * (4 * qt + m)
            for i in range(8):
                A(f"v_accvgpr_read_b32 {vr(t+i)}, {vr(aO + 16*(2*m + (i>>2)) + 4*qt + (i&3))}")
            for i in range(4):
                A(f"v_pk_mul_f32 {vr(t+2*i,2)}, {vr(t+2*i,2)}, {vr(vLS+2*qt,2)}")
            for i in range(4):
                A(f"v_cvt_pk_bf16_f32 {vr(d+i)}, {vr(t+2*i)}, {vr(t+2*i+1)}")
            A(f"buffer_store_dwordx4 {vr(d,4)}, {vr(vL16)}, {sr(S_O,4)}, {sr(sT0)} offen offset:{m*1024} sc1")
        A(f"s_add_u32 {sr(sT0)}, {sr(sT0)}, 0x20000")


def rare_blocks(A, o, tail):
    r2 = {}
    for t in tail:
        if t[0] == "r1":
            _, l1, b1, last, S, NT = t
            A.lab(l1)
            if last:
                A(f"s_cmp_eq_u32 {sr(sCNT)}, 1"); A(f"s_cbranch_scc1 {b1}")
            for x in new_max(S, NT, True): A(x)
            A(f"s_mov_b32 {sr(sPEND)}, 1")
            A(f"s_branch {b1}")
        elif t[0] == "r2":
            _, l2, b2, NT = t
            k = len(r2.setdefault(NT, []))
            r2[NT].append(b2)
            A.lab(l2)
            A(f"s_mov_b32 {sr(sPEND)}, {k}"); A(f"s_branch L_r2c_{NT}")
        else:
            l = t[1]
            A.lab(l)
            A(f"s_load_dwordx2 {sr(sLD,2)}, {sr(sKA,2)}, 32")
            w_offsets(A, 11, False)
            A("s_waitcnt lgkmcnt(0)")
            A(f"s_lshl_b32 {sr(sT0)}, {sr(sHG)}, 21"); A(f"s_lshl_b32 {sr(sT1)}, {sr(sHL)}, 8"); A(f"s_add_u32 {sr(sT0)}, {sr(sT0)}, {sr(sT1)}")
            srd(A, S_W, sLD, sr(sT0), "0")
            A(f"s_sub_u32 {sr(S_W+2)}, 0x800000, {sr(sT0)}")
            A(f"s_lshl_b32 {sr(sWO_)}, {sr(sHL)}, 18")
            A(f"s_cmp_lg_u32 {sr(sWAVE)}, 0"); A(f"s_cbranch_scc1 {l}c")
            A("s_mov_b64 exec, 1")
            get_tag(A)
            A("s_mov_b64 exec, -1")
            A.lab(l + "c")
            for j in range(2):
                A.groups(dma_w(o, "G", ("imm", j * WSL)))
            A(f"s_branch {l}b")
    for NT, backs in r2.items():
        A.lab(f"L_r2c_{NT}")
        A("s_nop 7")
        for dt in range(8):
            for qt in range(NT):
                for i in range(4):
                    A(f"v_accvgpr_read_b32 {vr(vT+i)}, {vr(aO+16*dt+4*qt+i)}")
                for i in range(4):
                    A(f"v_mul_f32 {vr(vT+i)}, {vr(vT+i)}, {vr(vFAC+qt)}")
                for i in range(4):
                    A(f"v_accvgpr_write_b32 {vr(aO+16*dt+4*qt+i)}, {vr(vT+i)}")
        A(f"s_mov_b32 {sr(sT0)}, {sr(sPEND)}"); A(f"s_mov_b32 {sr(sPEND)}, 0")
        for k, b in enumerate(backs[:-1]):
            A(f"s_cmp_eq_u32 {sr(sT0)}, {k}"); A(f"s_cbranch_scc1 {b}")
        A(f"s_branch {backs[-1]}")


def g_begin(A, o):
    A(f"s_mul_i32 {sr(sT0)}, {sr(sWAVE)}, 7")
    for t in range(4):
        A(f"s_add_u32 {sr(sT1)}, {sr(sT0)}, {t}")
        A(f"s_lshr_b32 {sr(sT2)}, {sr(sT1)}, 1"); A(f"s_lshl_b32 {sr(sT2)}, {sr(sT2)}, 17")
        A(f"s_and_b32 {sr(sT1)}, {sr(sT1)}, 1"); A(f"s_lshl_b32 {sr(sT1)}, {sr(sT1)}, 10"); A(f"s_add_u32 {sr(sT1)}, {sr(sT1)}, {sr(sT2)}")
        A(f"s_sub_u32 {sr(sT1)}, {sr(sT1)}, {1024*t}")
        A(f"v_add_u32 {vr(vDX+t)}, {sr(sT1)}, {vr(vL16)}")
    A(f"s_mul_i32 {sr(sT0)}, {sr(sU)}, {14*1024}")
    A(f"v_add_u32 {vr(vXB)}, {sr(sT0)}, {vr(vL16)}")
    A(f"v_add_u32 {vr(vXB+1)}, 1024, {vr(vXB)}")
    gemm_tr_bases(A, 10)
    A(f"s_lshl_b32 {sr(sXO)}, {sr(sHL)}, 12")
    A(f"s_lshl_b32 {sr(sT2)}, {sr(sBR)}, 2"); A(f"s_add_u32 {sr(sT2)}, {sr(sT2)}, {sr(sTAU)}"); A(f"s_lshl_b32 {sr(sT2)}, {sr(sT2)}, 2")
    A(f"s_add_u32 {sr(sT2)}, {sr(sT2)}, {sr(sHG)}"); A(f"s_lshl_b32 {sr(sT2)}, {sr(sT2)}, 7"); A(f"s_add_u32 {sr(sT2)}, {sr(sT2)}, {F_RDY}")
    A(f"s_lshl_b32 {sr(sT1)}, {sr(sHL)}, 3"); A(f"s_add_u32 {sr(sT1)}, {sr(sT1)}, {sr(sT2)}")
    A(f"s_lshl_b32 {sr(sT0)}, {sr(sBR)}, 3"); A(f"s_add_u32 {sr(sT0)}, {sr(sT0)}, {sr(sB)}"); A(f"s_mul_i32 {sr(sT0)}, {sr(sT0)}, {7 << 17}")
    A(f"s_lshl_b32 {sr(sT3)}, {sr(sHG)}, 15"); A(f"s_add_u32 {sr(sT0)}, {sr(sT0)}, {sr(sT3)}")
    srd(A, S_O, sWS, sr(sT0), str(14 << 17))
    A.emit(("bar", 0))
    stamp(A, 3, o.stamps)
    l = A.newlab("L_sig")
    A(f"s_cmp_lg_u32 {sr(sWAVE)}, 0"); A(f"s_cbranch_scc1 {l}")
    raise_flag(A, sT1)
    A.lab(l)
    A.groups(dma_w(o, "G", ("imm", 2 * WSL)))
    for j in range(2):
        A.groups(dma_x(o, "O", ("imm", XB + j * XSL)))
    signal_wait(A, None, sT2, 8, 1)
    stamp(A, 4, o.stamps)
    A.groups(dma_x(o, "O", ("imm", XB + 2 * XSL)))


def exchange(A, o):
    A(f"s_lshl_b32 {sr(sT0)}, {sr(sBR)}, 2"); A(f"s_add_u32 {sr(sT0)}, {sr(sT0)}, {sr(sTAU)}")
    A(f"s_lshl_b32 {sr(sT0)}, {sr(sT0)}, 3"); A(f"s_add_u32 {sr(sT0)}, {sr(sT0)}, {sr(sHL)}")
    A(f"s_lshl_b32 {sr(sT2)}, {sr(sT0)}, 7"); A(f"s_add_u32 {sr(sT2)}, {sr(sT2)}, {F_XCH}")
    A(f"s_lshl_b32 {sr(sXB)}, {sr(sT0)}, 19"); A(f"s_lshl_b32 {sr(sT1)}, {sr(sWAVE)}, 13"); A(f"s_add_u32 {sr(sXB)}, {sr(sXB)}, {sr(sT1)}")
    A(f"s_lshl_b32 {sr(sT0)}, {sr(sHG)}, 15"); A(f"s_add_u32 {sr(sT0)}, {sr(sT0)}, {sr(sXB)}")
    for ow in range(4):
        ls = A.newlab("L_skip")
        A(f"s_cmp_eq_u32 {sr(sHG)}, {ow}"); A(f"s_cbranch_scc1 {ls}")
        A(f"s_add_u32 {sr(sT1)}, {sr(sT0)}, {ow << 17}")
        if o.xbf:
            t = gT + 16 * (ow % 3)
            for i in range(14):
                A(f"v_cvt_pk_bf16_f32 {vr(t+i)}, {vr(gACC+28*ow+2*i)}, {vr(gACC+28*ow+2*i+1)}")
            for j in range(3):
                A(f"buffer_store_dwordx4 {vr(t+4*j,4)}, {vr(vL16)}, {sr(S_XC,4)}, {sr(sT1)} offen offset:{j*1024} sc1")
            A(f"buffer_store_dwordx2 {vr(t+12,2)}, {vr(vL16)}, {sr(S_XC,4)}, {sr(sT1)} offen offset:3072 sc1")
        else:
            A(f"s_add_u32 {sr(sT3)}, {sr(sT1)}, 4096")
            for rt in range(7):
                A(f"buffer_store_dwordx4 {vr(gACC+28*ow+4*rt,4)}, {vr(vL16)}, {sr(S_XC,4)}, {sr(sT1 if rt < 4 else sT3)} offen offset:{(rt&3)*1024} sc1")
        A.lab(ls)
    R = gX
    lj = A.newlab("L_own")
    for ow in range(4):
        ls = A.newlab("L_no")
        A(f"s_cmp_eq_u32 {sr(sHG)}, {ow}"); A(f"s_cbranch_scc0 {ls}")
        for i in range(28):
            A(f"v_mov_b32 {vr(R+i)}, {vr(gACC+28*ow+i)}")
        A(f"s_branch {lj}")
        A.lab(ls)
    A.lab(lj)
    A(f"s_lshl_b32 {sr(sT1)}, {sr(sHG)}, 3"); A(f"s_add_u32 {sr(sT1)}, {sr(sT1)}, {sr(sT2)}")
    A.emit(("bar", 0))
    signal_wait(A, sT1, sT2, 4, 1)
    A(f"s_lshl_b32 {sr(sT0)}, {sr(sHG)}, 17"); A(f"s_add_u32 {sr(sXB)}, {sr(sXB)}, {sr(sT0)}")
    for k in range(1, 4):
        A(f"s_add_u32 {sr(sT1)}, {sr(sHG)}, {k}"); A(f"s_and_b32 {sr(sT1)}, {sr(sT1)}, 3"); A(f"s_lshl_b32 {sr(sT1)}, {sr(sT1)}, 15")
        A(f"s_add_u32 {sr(sT1)}, {sr(sT1)}, {sr(sXB)}"); A(f"s_add_u32 {sr(sT3)}, {sr(sT1)}, 4096")
        if o.xbf:
            for j in range(4):
                A(f"buffer_load_dwordx4 {vr(gACC+16*(k-1)+4*j,4)}, {vr(vL16)}, {sr(S_XC,4)}, {sr(sT1)} offen offset:{j*1024} sc1")
        else:
            for rt in range(7):
                A(f"buffer_load_dwordx4 {vr(gACC+28*(k-1)+4*rt,4)}, {vr(vL16)}, {sr(S_XC,4)}, {sr(sT1 if rt < 4 else sT3)} offen offset:{(rt&3)*1024} sc1")
    t1, t2 = vT, vT + 1
    A(f"s_add_u32 {sr(sT0)}, {sr(sB)}, {sr(sU)}"); A(f"s_mul_i32 {sr(sT0)}, {sr(sT0)}, {112*4096}")
    A(f"s_lshl_b32 {sr(sT1)}, {sr(sBR)}, 11"); A(f"s_add_u32 {sr(sT0)}, {sr(sT0)}, {sr(sT1)}")
    A(f"s_lshl_b32 {sr(sT1)}, {sr(sHL)}, 8"); A(f"s_add_u32 {sr(sT0)}, {sr(sT0)}, {sr(sT1)}")
    A(f"s_lshl_b32 {sr(sT1)}, {sr(sC2)}, 7"); A(f"s_add_u32 {sr(sT0)}, {sr(sT0)}, {sr(sT1)}")
    A(f"s_lshl_b32 {sr(sT1)}, {sr(sHG)}, 5"); A(f"s_add_u32 {sr(sT0)}, {sr(sT0)}, {sr(sT1)}")
    A(f"v_and_b32 {vr(t1)}, 15, {vr(vLANE)}"); A(f"v_lshlrev_b32 {vr(t1)}, 12, {vr(t1)}")
    A(f"v_lshrrev_b32 {vr(t2)}, 4, {vr(vLANE)}"); A(f"v_lshl_add_u32 {vr(t1)}, {vr(t2)}, 3, {vr(t1)}")
    for k in range(1, 4):
        if o.xbf:
            A(f"s_waitcnt vmcnt({12 - 4*k})")
            for i in range(14):
                p = gACC + 16 * (k - 1) + i
                A(f"v_lshlrev_b32 {vr(vT+2)}, 16, {vr(p)}"); A(f"v_and_b32 {vr(vT+3)}, 0xffff0000, {vr(p)}")
                A(f"v_pk_add_f32 {vr(R+2*i,2)}, {vr(R+2*i,2)}, {vr(vT+2,2)}")
        else:
            A(f"s_waitcnt vmcnt({21 - 7*k})")
            for i in range(0, 28, 2):
                A(f"v_pk_add_f32 {vr(R+i,2)}, {vr(R+i,2)}, {vr(gACC+28*(k-1)+i,2)}")
    for rt in range(7):
        A(f"v_cvt_pk_bf16_f32 {vr(gT+2*rt)}, {vr(R+4*rt)}, {vr(R+4*rt+1)}")
        A(f"v_cvt_pk_bf16_f32 {vr(gT+2*rt+1)}, {vr(R+4*rt+2)}, {vr(R+4*rt+3)}")
        A(f"buffer_store_dwordx2 {vr(gT+2*rt,2)}, {vr(t1)}, {sr(S_OUT,4)}, {sr(sT0)} offen{o.outfl}")
        A(f"s_add_u32 {sr(sT0)}, {sr(sT0)}, {16*4096}")


def build(o):
    A = Asm()
    st = o.stamps
    for l in HEADER.splitlines(): A(l)
    A(f"; @launch grid=(256,1,1) block=(256,1,1) lds={LDS}")
    A('.amdgcn_target "amdgcn-amd-amdhsa--gfx950"'); A(".text")
    A(f".globl {KN}"); A(".p2align 8"); A(f".type {KN},@function"); A.lab(KN)
    A(f"s_cmp_ge_u32 s2, 256"); A("s_cbranch_scc1 L_exit")
    tail = []
    stamp(A, 0, st)
    prologue(A, o)
    gemm(A, o, "Q", 0, {13: dma_k(o, 3), 14: dma_k(o, 2), 15: dma_v(o, 2)})
    q_finish(A, o)
    stamp(A, 1, st)
    if o.ntA != o.ntB:
        A(f"s_cmp_lg_u32 {sr(sBR)}, 0"); A("s_cbranch_scc1 L_attB")
    for br in range(2 if o.ntA != o.ntB else 1):
        if br: A.lab("L_attB")
        A(f"s_cmp_lg_u32 {sr(sC2)}, 0"); A(f"s_cbranch_scc1 L_att3_{br}")
        attention(A, o, 4, tail, br)
        A("s_branch L_attdone")
        A.lab(f"L_att3_{br}")
        attention(A, o, 3, tail, br)
        A("s_branch L_attdone")
    A.lab("L_attdone")
    g_begin(A, o)
    A.q = []
    gemm(A, o, "G", 14, {})
    exchange(A, o)
    A.lab("L_fin")
    stamp(A, 5, st)
    if st and o.dbgst:
        l = A.newlab("L_ds")
        A(f"s_cmp_eq_u32 s2, 253"); A(f"s_cselect_b32 {sr(sT1)}, 36, 8")
        A(f"s_cselect_b32 {sr(sT0)}, 0, s2"); A(f"s_or_b32 {sr(sT0)}, {sr(sT0)}, {sr(sWAVE)}"); A(f"s_cmp_lg_u32 {sr(sT0)}, 0"); A(f"s_cbranch_scc1 {l}")
        A(f"v_mov_b32 v2, {sr(sT1)}")
        for i in range(1, 8):
            A(f"s_sub_u32 {sr(sT0)}, {sr(sST+2*i)}, {sr(sST)}"); A(f"v_mov_b32 v3, {sr(sT0)}")
            A(f"global_store_dword v2, v3, {sr(sDBG,2)} offset:{4*(i-1)}")
        A.lab(l)
    elif st:
        write_stamps(A)
    A.lab("L_exit")
    A("s_endpgm")
    rare_blocks(A, o, tail)
    A('.section .rodata,"a"')
    A(".p2align 6")
    A(f".amdhsa_kernel {KN}")
    A("  .amdhsa_next_free_vgpr 480"); A("  .amdhsa_next_free_sgpr 96"); A("  .amdhsa_accum_offset 256")
    A("  .amdhsa_group_segment_fixed_size 0"); A("  .amdhsa_kernarg_size 104"); A("  .amdhsa_user_sgpr_count 2")
    A("  .amdhsa_user_sgpr_kernarg_segment_ptr 1"); A("  .amdhsa_system_sgpr_workgroup_id_x 1")
    A(".end_amdhsa_kernel")
    return A.text()


if __name__ == "__main__":
    ap = argparse.ArgumentParser()
    ap.add_argument("-o", default="concat_heads__mha_block_cached__gqa_block_cached__near_ridge.s")
    ap.add_argument("--stamps", action="store_true")
    ap.add_argument("--qst", action="store_true")
    ap.add_argument("--pst", action="store_true")
    ap.add_argument("--nt", default="KV")
    ap.add_argument("--krot", type=int, default=0)
    ap.add_argument("--ntA", default="KV")
    ap.add_argument("--ntB", default="KV")
    ap.add_argument("--dbgst", action="store_true")
    ap.add_argument("--xbf", type=int, default=1)
    ap.add_argument("--outfl", default=" sc1")
    ap.add_argument("--nokv", action="store_true")
    a = ap.parse_args()
    open(a.o, "w").write(build(a))
```

```python
import sys, argparse, struct, math

KN = "concat_heads__mha_block_cached__gqa_block_cached__near_ridge_kernel"
WS_BYTES = 305659904
O_BYTES = 16 * 7 * 128 * 1024
X_OFF = O_BYTES
X_BYTES = 8 * 8 * 4 * 4 * 4 * 8192
F_RDY = X_OFF + X_BYTES
F_XCH = F_RDY + 32 * 128
WSL, XSL, XB = 16384, 28672, 49152
ASL = 32768
LDS = 163840
f32 = lambda x: struct.unpack("<I", struct.pack("<f", x))[0]
C_SCALE = f32(math.log2(math.e) / math.sqrt(128.0))
THR = f32(8.0)
OOB = 0x40000000

HEADER = """\
; -> output projection tile (224x128 over 8 heads) -> partial sums exchanged through ws between 4 workgroups -> out.
"""


class Asm:
    def __init__(self):
        self.L = []
        self.uid = 0
        self.q = []

    def __call__(self, s):
        self.L.append(s)

    def lab(self, name):
        self.L.append(name + ":")

    def newlab(self, p="L"):
        self.uid += 1
        return f"{p}_{self.uid}"

    def ds(self, txt, tag):
        assert len(self.q) < 15, "too many LDS ops outstanding"
        self.L.append(txt); self.q.append(tag)

    def need(self, tags):
        pos = max([i for i, t in enumerate(self.q) if t in tags], default=-1)
        if pos >= 0:
            self.L.append(f"s_waitcnt lgkmcnt({len(self.q) - pos - 1})")
            self.q = self.q[pos + 1:]

    def emit(self, it):
        if isinstance(it, str):
            self(it)
        elif it[0] == "ds":
            if len(self.q) >= 15:
                self.need([self.q[3]])
            self.ds(it[1], it[2])
        elif it[0] == "bar":
            self(f"s_waitcnt vmcnt({it[1]}) lgkmcnt(0)"); self.q = []
            self("s_barrier")
        elif it[0] == "lab":
            self.lab(it[1])
        elif it[0] == "call":
            it[1]()

    def groups(self, gs):
        for g in gs:
            for s in g: self(s)

    def run(self, mf, after):
        for m, (txt, tags) in enumerate(mf):
            self.need(tags)
            self(txt)
            for it in after.get(m, []): self.emit(it)

    def text(self):
        return "\n".join(self.L) + "\n"


def vr(a, n=1):
    p, a = ("a", a - 256) if a >= 256 else ("v", a)
    return f"{p}{a}" if n == 1 else f"{p}[{a}:{a+n-1}]"


def sr(a, n=1):
    return f"s{a}" if n == 1 else f"s[{a}:{a+n-1}]"


def mfma(d, a, b, c):
    return f"v_mfma_f32_16x16x32_bf16 {vr(d,4)}, {vr(a,4)}, {vr(b,4)}, {c if c == '0' else vr(c,4)}"


def put(after, m, items):
    after.setdefault(m, []).extend(items)


def spread(after, items, lo, hi):
    tot = sum(c for _, c in items)
    acc, pos = 0.0, []
    for its, c in items:
        g = lo + int((acc + c / 2) / tot * (hi - lo))
        put(after, g, its if isinstance(its, list) else [its])
        pos.append(g); acc += c
    return pos


S_X, S_W, S_K, S_V, S_O, S_XC, S_OUT = 4, 8, 12, 16, 20, 24, 28
sWAVE, sBR, sB, sH, sHG, sHL = 32, 33, 34, 35, 38, 39
sKA = 36
sDBG = 40
sWS = 42
sT0, sT1, sT2, sT3 = 44, 45, 46, 47
sCW, sCX, sFW, sFX = 48, 49, 50, 51
sWM, sXM, sAM = 52, 80, 81
sCNT = 53
sXO, sWO_ = 54, 55
sKO, sVO = 56, 57
sC, sTHR = 58, 59
sEX = 60
sLD = 62
sST = 64
sPEND = 82
sSPIN = 83
sU, sC2 = 84, 85
sXB = 86
sROT = 87
sTAU = 88
sOST = 89
sFL = 92
sNON = 90
sPTR = 94
sSW, sSX = 96, 98

vLANE = 1
vT = 2
vDX = 10
vDW = 14
vDK = 18
vDV = 22
vXB = 24
vTB = 26
vXA = 30
vTA = 32
vL16 = 36
vOW = 37
vTAG = 38
vFAC = 40
vP = 44
vS = 60
vKF = 124
vVF = 156
vKA = 208
vVA = 216
vNM = 232
vLS = 248
aO = 256
aQ = 384
gACC = 40
gX = 152
gW = 448
gT = 208


def stamp(A, i, on):
    if on:
        q = list(A.q)
        A(f"s_memrealtime {sr(sST + 2*i, 2)}")
        A(f"s_memtime {sr(sPTR, 2)}")
        A("s_waitcnt lgkmcnt(0)")
        A(f"s_mov_b32 {sr(sST + 2*i + 1)}, {sr(sPTR)}")
        A.q = q


def write_stamps(A):
    l = A.newlab("L_st")
    A(f"s_mov_b32 {sr(sT0)}, {WS_BYTES - 512*64}")
    A(f"s_lshl_b32 {sr(sT1)}, s2, 6")
    A(f"s_add_u32 {sr(sT0)}, {sr(sT0)}, {sr(sT1)}")
    A(f"s_add_u32 {sr(sPTR)}, {sr(sWS)}, {sr(sT0)}")
    A(f"s_addc_u32 {sr(sPTR+1)}, {sr(sWS+1)}, 0")
    A(f"v_mov_b32 v2, 0")
    for i in range(16):
        A(f"v_mov_b32 v{4+i}, {sr(sST+i)}")
    A(f"v_cmp_eq_u32 vcc, 0, v0")
    A(f"s_and_saveexec_b64 {sr(sEX,2)}, vcc")
    A(f"s_cbranch_execz {l}")
    for i in range(4):
        A(f"global_store_dwordx4 v2, v[{4+4*i}:{7+4*i}], {sr(sPTR,2)} offset:{16*i}")
    A.lab(l)
    A(f"s_mov_b64 exec, {sr(sEX,2)}")


def srd(A, d, lo, add, nrec):
    if add is None:
        A(f"s_mov_b32 {sr(d)}, {sr(lo)}"); A(f"s_mov_b32 {sr(d+1)}, {sr(lo+1)}")
    else:
        A(f"s_add_u32 {sr(d)}, {sr(lo)}, {add}"); A(f"s_addc_u32 {sr(d+1)}, {sr(lo+1)}, 0")
    A(f"s_mov_b32 {sr(d+2)}, {nrec}")
    A(f"s_mov_b32 {sr(d+3)}, 0x20000")


def get_tag(A):
    ls, lg = A.newlab("L_tag"), A.newlab("L_tagok")
    A(f"s_cmp_lg_u32 {sr(sNON+1)}, 0"); A(f"s_cbranch_scc1 {lg}")
    A(f"v_mov_b32 {vr(vT+4)}, 0")
    A(f"s_mov_b32 {sr(sSPIN)}, 0")
    A.lab(ls)
    A(f"global_load_dwordx2 {vr(vT+2,2)}, {vr(vT+4)}, {sr(sDBG,2)} sc1")
    A("s_waitcnt vmcnt(0)")
    A(f"v_readfirstlane_b32 {sr(sNON)}, {vr(vT+2)}")
    A(f"v_readfirstlane_b32 {sr(sNON+1)}, {vr(vT+3)}")
    A(f"s_add_u32 {sr(sSPIN)}, {sr(sSPIN)}, 1")
    A(f"s_cmp_lg_u32 {sr(sNON+1)}, 0"); A(f"s_cbranch_scc1 {lg}")
    A("s_sleep 4")
    A(f"s_cmp_lt_u32 {sr(sSPIN)}, 0x4000"); A(f"s_cbranch_scc1 {ls}")
    A.lab(lg)


def raise_flag(A, sig_s):
    A("s_mov_b64 exec, 1")
    get_tag(A)
    A(f"v_mov_b32 {vr(vT+4)}, {sr(sig_s)}"); A(f"v_mov_b32 {vr(vT+2)}, {sr(sNON)}"); A(f"v_mov_b32 {vr(vT+3)}, {sr(sNON+1)}")
    A(f"global_store_dwordx2 {vr(vT+4)}, {vr(vT+2,2)}, {sr(sWS,2)} sc1")
    A("s_mov_b64 exec, -1")


def signal_wait(A, sig_s, off_s, n, sleep):
    le, ls, lg = A.newlab("L_wend"), A.newlab("L_spin"), A.newlab("L_go")
    A(f"s_cmp_lg_u32 {sr(sWAVE)}, 0"); A(f"s_cbranch_scc1 {le}")
    if sig_s is not None:
        raise_flag(A, sig_s)
    A(f"s_mov_b64 exec, {(1 << n) - 1}")
    A(f"v_lshlrev_b32 {vr(vT+5)}, 3, {vr(vLANE)}")
    A(f"v_add_u32 {vr(vT+5)}, {sr(off_s)}, {vr(vT+5)}")
    A(f"s_mov_b32 {sr(sSPIN)}, 0")
    A.lab(ls)
    A(f"global_load_dwordx2 {vr(vT+6,2)}, {vr(vT+5)}, {sr(sWS,2)} sc1")
    A("s_waitcnt vmcnt(0)")
    A(f"v_cmp_eq_u64 vcc, {sr(sNON,2)}, {vr(vT+6,2)}")
    A(f"s_add_u32 {sr(sSPIN)}, {sr(sSPIN)}, 1")
    A(f"s_cmp_eq_u32 vcc_lo, {(1 << n) - 1}")
    A(f"s_cbranch_scc1 {lg}")
    A(f"s_sleep {sleep}")
    A(f"s_cmp_lt_u32 {sr(sSPIN)}, 0x4000"); A(f"s_cbranch_scc1 {ls}")
    A.lab(lg)
    A("s_mov_b64 exec, -1")
    A.lab(le)
    A("s_barrier")


def team_signal(A):
    l = A.newlab("L_sig")
    A(f"s_cmp_lg_u32 {sr(sWAVE)}, 0"); A(f"s_cbranch_scc1 {l}")
    A(f"s_lshl_b32 {sr(sT1)}, {sr(sHL)}, 3"); A(f"s_add_u32 {sr(sT1)}, {sr(sT1)}, {sr(sFL)}")
    raise_flag(A, sT1)
    A.lab(l)


def team_wait(A):
    signal_wait(A, None, sFL, 8, 1)


def m0set(base_s, slot):
    return f"s_add_u32 m0, {sr(base_s)}, {slot[1]}" if isinstance(slot, tuple) else f"s_add_u32 m0, {sr(base_s)}, {sr(slot)}"


def next_chunk(seq, off, sh):
    return [f"s_lshr_b64 {sr(seq,2)}, {sr(seq,2)}, 4", f"s_and_b32 {sr(off)}, {sr(seq)}, 15", f"s_lshl_b32 {sr(off)}, {sr(off)}, {sh}"]


def seq_words(seq):
    v = sum(c << (4 * i) for i, c in enumerate(seq))
    return v & 0xffffffff, v >> 32


def seq_add(A, seq, add_s):
    A(f"s_mul_i32 {sr(sT0)}, {sr(add_s)}, 0x11111111")
    A(f"s_and_b32 {sr(sT1)}, {sr(sT0)}, 0x77777777")
    for w in (seq, seq + 1):
        A(f"s_xor_b32 {sr(sT2)}, {sr(w)}, {sr(sT0)}"); A(f"s_and_b32 {sr(sT2)}, {sr(sT2)}, 0x88888888")
        A(f"s_and_b32 {sr(w)}, {sr(w)}, 0x77777777"); A(f"s_add_u32 {sr(w)}, {sr(w)}, {sr(sT1)}"); A(f"s_xor_b32 {sr(w)}, {sr(w)}, {sr(sT2)}")


QSEQ = [0, 1, 4, 5, 2, 8, 9, 3, 12, 13, 6, 10, 14, 7, 11, 15]


def gseqs():
    own = [[2, 3, 4, 5], [6, 7, 8], [9, 10, 11, 12], [13, 14, 15]]
    at = [2, 3, 6, 9]
    when = {c: at[i] for o_ in own for i, c in enumerate(o_)}
    out = []
    for t in range(4):
        seq = [0, 1] + [None] * 14
        for i, c in enumerate(own[t]): seq[at[i]] = c
        rest = sorted((c for u in range(1, 4) for c in own[(t + u) % 4]), key=lambda c: when[c])
        for p in range(2, 16):
            if seq[p] is None:
                c = rest.pop(0); assert when[c] < p; seq[p] = c
        assert sorted(seq) == list(range(16))
        out.append(seq)
    return out


def dma_w(o, kind, slot):
    fl = " nt" if kind in o.nt else ""
    g = [[f"buffer_load_dwordx4 {vr(vDW+t)}, {sr(S_W,4)}, {sr(sWO_)} offen offset:{t*1024}{fl} lds"] for t in range(4)]
    g[0] = [m0set(sWM, slot), "s_nop 0"] + g[0]
    g[3] += next_chunk(sSW, sWO_, 19 if kind == "W" else 17)
    return g


def dma_x(o, kind, slot):
    srd_, fl = (S_X, " nt" if "X" in o.nt else "") if kind == "X" else (S_O, " sc1")
    g = []
    for t in range(7):
        so = sXO if t < 4 else sXB
        g.append([f"buffer_load_dwordx4 {vr(vDX+(t&3))}, {sr(srd_,4)}, {sr(so)} offen offset:{(t&3)*1024}{fl} lds"])
    g[0] = [m0set(sXM, slot), f"s_add_u32 {sr(sXB)}, {sr(sXO)}, {65536 if kind == 'X' else 262144}"] + g[0]
    g[4] = ["s_add_u32 m0, m0, 4096", "s_nop 0"] + g[4]
    g[6] += next_chunk(sSX, sXO, 7 if kind == "X" else 11)
    return g


def dma_k(o, slot, win=0):
    fl = " nt" if "K" in o.nt else ""
    w = [f"s_waitcnt vmcnt({win-1})"] if win else []
    g = [w + [f"buffer_load_dwordx4 {vr(vDK+t)}, {sr(S_K,4)}, {sr(sKO)} offen offset:{t*1024}{fl} lds"] for t in range(4)]
    g[0] = [f"s_add_u32 m0, {sr(sAM)}, {ASL*(1+slot) + 16384}", "s_nop 0"] + g[0]
    g[3] += [f"s_add_u32 {sr(sKO)}, {sr(sKO)}, 8192", f"s_bitset0_b32 {sr(sKO)}, 18"]
    return g


def dma_v(o, slot, win=0):
    fl = " nt" if "V" in o.nt else ""
    w = [f"s_waitcnt vmcnt({win-1})"] if win else []
    g = [w + [f"buffer_load_dwordx4 {vr(vDV+(t&1))}, {sr(S_V,4)}, {sr(sVO)} offen offset:{t*1024}{fl} lds"] for t in range(4)]
    g[0] = [f"s_add_u32 m0, {sr(sAM)}, {ASL*(1+slot)}", "s_nop 0"] + g[0]
    g[3] += [f"s_add_u32 {sr(sVO)}, {sr(sVO)}, 8192", f"s_bitset0_b32 {sr(sVO)}, 18"]
    return g


def w_offsets(A, rshift, wflav):
    l4, t0, t1, t2 = vT, vT + 1, vT + 2, vT + 3
    A(f"v_lshrrev_b32 {vr(l4)}, 4, {vr(vLANE)}")
    A(f"v_and_b32 {vr(t1)}, 15, {vr(vLANE)}")
    A(f"v_lshlrev_b32 {vr(t0)}, 1, {vr(l4)}")
    A(f"v_xor_b32 {vr(t0)}, {vr(t0)}, {vr(t1)}")
    A(f"v_lshlrev_b32 {vr(t0)}, 4, {vr(t0)}")
    A(f"s_lshl_b32 {sr(sT3)}, {sr(sWAVE)}, {rshift+4}")
    A(f"v_lshlrev_b32 {vr(t2)}, {rshift}, {vr(l4)}")
    A(f"v_add_u32 {vr(t2)}, {sr(sT3)}, {vr(t2)}")
    for t in range(4):
        bit = (t >> 1) & 1 if wflav else t & 1
        A(f"v_xor_b32 {vr(t1)}, {128*bit}, {vr(t0)}")
        A(f"v_add3_u32 {vr(vDW+t)}, {vr(t1)}, {vr(t2)}, 0")
        A(f"v_add_u32 {vr(vDW+t)}, {(4*t << rshift) - 1024*t}, {vr(vDW+t)}")


def tr_base(A, dst, gshift):
    g, r, c = vT, vT + 1, vT + 2
    A(f"v_lshrrev_b32 {vr(g)}, 4, {vr(vLANE)}")
    A(f"v_bfe_u32 {vr(r)}, {vr(vLANE)}, 2, 2")
    A(f"v_and_b32 {vr(c)}, 3, {vr(vLANE)}"); A(f"v_lshlrev_b32 {vr(c)}, 3, {vr(c)}")
    A(f"v_lshl_add_u32 {vr(c)}, {vr(g)}, {gshift}, {vr(c)}")
    A(f"v_lshl_add_u32 {vr(c)}, {vr(r)}, 8, {vr(c)}")
    A(f"v_lshl_add_u32 {vr(c)}, {vr(r)}, 5, {vr(c)}")
    A(f"v_and_b32 {vr(g)}, 1, {vr(g)}")
    A(f"v_lshl_add_u32 {vr(dst)}, {vr(g)}, 7, {vr(c)}")


def gemm_tr_bases(A, gshift):
    tr_base(A, vT + 3, gshift)
    A(f"s_lshl_b32 {sr(sT0)}, {sr(sC2)}, 7")
    A(f"v_xor_b32 {vr(vT+3)}, {sr(sT0)}, {vr(vT+3)}")
    for ct in range(4):
        A(f"v_xor_b32 {vr(vTB+ct)}, {32*ct}, {vr(vT+3)}")


def prologue(A, o):
    A(f"s_bfe_u32 {sr(sBR)}, s2, 0x10002")
    A(f"s_mul_i32 {sr(sT0)}, {sr(sBR)}, 40")
    A(f"s_add_u32 {sr(sKA)}, s0, {sr(sT0)}"); A(f"s_addc_u32 {sr(sKA+1)}, s1, 0")
    A(f"s_load_dwordx2 s[74:75], {sr(sKA,2)}, 0")
    A(f"s_load_dwordx2 s[66:67], {sr(sKA,2)}, 8")
    A(f"s_load_dwordx2 s[68:69], {sr(sKA,2)}, 16")
    A(f"s_load_dwordx2 s[70:71], {sr(sKA,2)}, 24")
    A(f"s_load_dwordx2 s[72:73], s[0:1], 80")
    A(f"s_load_dwordx2 {sr(sDBG,2)}, s[0:1], 88")
    A(f"s_load_dwordx2 {sr(sWS,2)}, s[0:1], 96")
    A(f"v_lshrrev_b32 v2, 6, v0")
    A(f"v_and_b32 {vr(vLANE)}, 63, v0")
    A(f"v_readfirstlane_b32 {sr(sWAVE)}, v2")
    A(f"s_and_b32 {sr(sHG)}, s2, 3")
    A(f"s_bfe_u32 {sr(sHL)}, s2, 0x30003")
    A(f"s_bfe_u32 {sr(sTAU)}, s2, 0x20006")
    A(f"s_lshl_b32 {sr(sH)}, {sr(sHG)}, 3"); A(f"s_add_u32 {sr(sH)}, {sr(sH)}, {sr(sHL)}")
    A(f"s_lshl_b32 {sr(sB)}, {sr(sTAU)}, 1")
    A(f"s_add_u32 {sr(sROT)}, {sr(sB)}, {sr(sHL)}"); A(f"s_and_b32 {sr(sROT)}, {sr(sROT)}, 7")
    A(f"s_lshr_b32 {sr(sU)}, {sr(sWAVE)}, 1"); A(f"s_and_b32 {sr(sC2)}, {sr(sWAVE)}, 1")
    A(f"s_lshl_b32 {sr(sWM)}, {sr(sWAVE)}, 12")
    A(f"s_mul_i32 {sr(sXM)}, {sr(sWAVE)}, 7168")
    A(f"s_mov_b32 {sr(sAM)}, {sr(sWM)}")
    A(f"s_lshl_b32 {sr(sXO)}, {sr(sROT)}, 8")
    A(f"s_lshl_b32 {sr(sWO_)}, {sr(sROT)}, 20")
    lo, hi = seq_words(QSEQ if o.qseq else list(range(16)))
    A(f"s_mov_b32 {sr(sSW)}, {lo:#x}"); A(f"s_mov_b32 {sr(sSW+1)}, {hi:#x}")
    A(f"s_lshl_b32 {sr(sT3)}, {sr(sROT)}, 1")
    seq_add(A, sSW, sT3)
    A(f"s_mov_b64 {sr(sSX,2)}, {sr(sSW,2)}")
    l3, l4, t0, t1 = vT, vT + 1, vT + 2, vT + 3
    A(f"v_lshrrev_b32 {vr(l3)}, 3, {vr(vLANE)}")
    A(f"v_lshrrev_b32 {vr(l4)}, 4, {vr(vLANE)}")
    A(f"s_mul_i32 {sr(sT2)}, {sr(sWAVE)}, {56*2048}")
    A(f"s_lshl_b32 {sr(sT1)}, {sr(sC2)}, 2")
    A(f"v_and_b32 {vr(t1)}, 7, {vr(vLANE)}")
    A(f"v_xor_b32 {vr(t1)}, {sr(sT1)}, {vr(t1)}")
    A(f"v_xor_b32 {vr(t1)}, {vr(t1)}, {vr(l4)}")
    A(f"v_lshlrev_b32 {vr(t1)}, 4, {vr(t1)}")
    A(f"v_lshl_add_u32 {vr(l3)}, {vr(l3)}, 11, {sr(sT2)}")
    for t in range(4):
        A(f"v_xor_b32 {vr(t0)}, {64*(t&1)}, {vr(t1)}")
        A(f"v_add_u32 {vr(t0)}, {vr(t0)}, {vr(l3)}")
        A(f"v_add_u32 {vr(vDX+t)}, {8*t*2048 - 1024*t}, {vr(t0)}")
    w_offsets(A, 13, True)
    A("s_waitcnt lgkmcnt(0)")
    A(f"s_lshl_b32 {sr(sT0)}, {sr(sH)}, 8")
    srd(A, S_W, 70, sr(sT0), "0")
    A(f"s_sub_u32 {sr(S_W+2)}, 0x800000, {sr(sT0)}")
    A(f"s_mul_i32 {sr(sT0)}, {sr(sB)}, 229376")
    srd(A, S_X, 74, sr(sT0), str(2 * 229376))
    A.groups(dma_w(o, "W", ("imm", 0)))
    A.groups(dma_x(o, "X", ("imm", XB)))
    A.groups(dma_w(o, "W", ("imm", WSL)))
    A.groups(dma_x(o, "X", ("imm", XB + XSL))[:o.xpre])
    A(f"s_add_u32 {sr(sT0)}, {sr(sB)}, {sr(sU)}"); A(f"s_lshl_b32 {sr(sT0)}, {sr(sT0)}, 5")
    A(f"s_add_u32 {sr(sT0)}, {sr(sT0)}, {sr(sH)}"); A(f"s_lshl_b32 {sr(sT0)}, {sr(sT0)}, 18")
    srd(A, S_K, 66, sr(sT0), "0" if o.nokv else "0x40000")
    srd(A, S_V, 68, sr(sT0), "0" if o.nokv else "0x40000")
    l4, t0, t1, t2 = vT, vT + 1, vT + 2, vT + 3
    A(f"v_lshrrev_b32 {vr(l4)}, 4, {vr(vLANE)}")
    A(f"v_and_b32 {vr(t1)}, 15, {vr(vLANE)}")
    A(f"s_lshl_b32 {sr(sT0)}, {sr(sC2)}, 12")
    A(f"v_lshl_add_u32 {vr(t2)}, {vr(l4)}, 8, {sr(sT0)}")
    A(f"v_xor_b32 {vr(t0)}, {vr(l4)}, {vr(t1)}")
    A(f"v_lshl_add_u32 {vr(vDK)}, {vr(t0)}, 4, {vr(t2)}")
    for t in range(1, 4):
        A(f"v_xor_b32 {vr(vDK+t)}, {64*t}, {vr(vDK)}")
    A(f"v_lshlrev_b32 {vr(t0)}, 1, {vr(l4)}")
    A(f"v_xor_b32 {vr(t0)}, {vr(t0)}, {vr(t1)}")
    A(f"v_lshl_add_u32 {vr(vDV)}, {vr(t0)}, 4, {vr(t2)}")
    A(f"v_xor_b32 {vr(vDV+1)}, 128, {vr(vDV)}")
    if o.krot:
        A(f"s_lshr_b32 {sr(sT0)}, s2, 3"); A(f"s_and_b32 {sr(sT1)}, s2, 7"); A(f"s_lshl_b32 {sr(sT1)}, {sr(sT1)}, 2")
        A(f"s_add_u32 {sr(sT0)}, {sr(sT0)}, {sr(sT1)}"); A(f"s_and_b32 {sr(sT0)}, {sr(sT0)}, 31"); A(f"s_lshl_b32 {sr(sKO)}, {sr(sT0)}, 13")
    else:
        A(f"s_mov_b32 {sr(sKO)}, 0")
    A(f"s_mov_b32 {sr(sVO)}, {sr(sKO)}")
    srd(A, S_OUT, 72, None, str(896 * 4096))
    srd(A, S_XC, sWS, str(X_OFF), str(X_BYTES))
    A(f"s_mov_b32 {sr(sC)}, {C_SCALE:#x}"); A(f"s_mov_b32 {sr(sTHR)}, {THR:#x}")
    A(f"s_mov_b32 {sr(sNON)}, 0"); A(f"s_mov_b32 {sr(sNON+1)}, 0"); A(f"s_mov_b32 {sr(sPEND)}, 0")
    l = A.newlab("L_notag")
    A(f"s_or_b32 {sr(sT0)}, s2, {sr(sWAVE)}"); A(f"s_cmp_lg_u32 {sr(sT0)}, 0"); A(f"s_cbranch_scc1 {l}")
    A(f"s_memrealtime {sr(sLD,2)}"); A("s_waitcnt lgkmcnt(0)")
    A(f"v_mov_b32 {vr(vT+2)}, {sr(sLD)}"); A(f"v_mov_b32 {vr(vT+3)}, {sr(sLD+1)}"); A(f"v_mov_b32 {vr(vT+4)}, 0")
    A(f"v_or_b32 {vr(vT+3)}, 0x80000000, {vr(vT+3)}")
    A("s_mov_b64 exec, 1")
    A(f"global_store_dwordx2 {vr(vT+4)}, {vr(vT+2,2)}, {sr(sDBG,2)} sc1")
    A("s_mov_b64 exec, -1")
    A.lab(l)
    q, g, r = vT, vT + 1, vT + 2
    A(f"v_lshlrev_b32 {vr(vL16)}, 4, {vr(vLANE)}")
    A(f"v_and_b32 {vr(q)}, 15, {vr(vLANE)}")
    A(f"v_lshrrev_b32 {vr(g)}, 4, {vr(vLANE)}")
    A(f"v_bfe_u32 {vr(r)}, {vr(vLANE)}, 1, 3")
    A(f"v_xor_b32 {vr(r)}, {vr(r)}, {vr(g)}")
    A(f"v_lshlrev_b32 {vr(r)}, 4, {vr(r)}")
    A(f"v_lshl_add_u32 {vr(r)}, {vr(q)}, 7, {vr(r)}")
    A(f"s_mul_i32 {sr(sT0)}, {sr(sU)}, {112*128}")
    A(f"v_add_u32 {vr(vXB)}, {sr(sT0)}, {vr(r)}")
    A(f"v_xor_b32 {vr(vXB+1)}, 64, {vr(vXB)}")
    gemm_tr_bases(A, 11)
    q, g, t0 = vT + 3, vT + 4, vT + 5
    A(f"v_and_b32 {vr(q)}, 15, {vr(vLANE)}"); A(f"v_lshrrev_b32 {vr(g)}, 4, {vr(vLANE)}")
    A(f"v_xor_b32 {vr(t0)}, {vr(g)}, {vr(q)}"); A(f"v_lshlrev_b32 {vr(t0)}, 4, {vr(t0)}")
    A(f"v_lshl_add_u32 {vr(t0)}, {vr(q)}, 8, {vr(t0)}")
    A(f"s_lshl_b32 {sr(sT0)}, {sr(sU)}, 13"); A(f"s_add_u32 {sr(sT1)}, {sr(sT0)}, {ASL}"); A(f"s_add_u32 {sr(sT0)}, {sr(sT0)}, {ASL + 16384}")
    A(f"v_add_u32 {vr(vKA)}, {sr(sT0)}, {vr(t0)}")
    for s in range(1, 4):
        A(f"v_xor_b32 {vr(vKA+s)}, {64*s}, {vr(vKA)}")
    for s in range(4):
        A(f"v_add_u32 {vr(vKA+4+s)}, 0x10000, {vr(vKA+s)}")
    tr_base(A, vVA, 10)
    A(f"v_add_u32 {vr(vVA)}, {sr(sT1)}, {vr(vVA)}")
    for dt in range(1, 8):
        A(f"v_xor_b32 {vr(vVA+dt)}, {32*dt}, {vr(vVA)}")
    for dt in range(8):
        A(f"v_add_u32 {vr(vVA+8+dt)}, 0x10000, {vr(vVA+dt)}")
    for i in range(24):
        A(f"v_mov_b32 {vr(vNM+i)}, 0")
    for i in range(128):
        A(f"v_accvgpr_write_b32 {vr(aO+i)}, 0")


def gemm(A, o, kind, vm0, tailfill):
    Q = kind == "Q"
    xk, wk = ("X", "W") if Q else ("O", "G")

    def addrs():
        L = [f"v_add_u32 {vr(vXA+s)}, {sr(sCX)}, {vr(vXB+s)}" for s in range(2)]
        return L + [f"v_add_u32 {vr(vTA+ct)}, {sr(sCW)}, {vr(vTB+ct)}" for ct in range(4)]

    def wr(s):
        L = []
        for ct in range(4):
            f = gW + 16 * s + 4 * ct
            for e in range(2):
                off = 8192 * s + (1024 if Q else 4096) * e
                L.append(("ds", f"ds_read_b64_tr_b16 {vr(f+2*e,2)}, {vr(vTA+ct)} offset:{off}", f"w{s}{ct}"))
        return L

    def xr(s, rt):
        return ("ds", f"ds_read_b128 {vr(gX+28*s+4*rt,4)}, {vr(vXA+s)} offset:{2048*rt}", f"x{s}{rt}")

    def adv(s, size, lo, n):
        return [f"s_add_u32 {sr(s)}, {sr(s)}, {size}", f"s_cmp_ge_u32 {sr(s)}, {lo + n*size}",
                f"s_cselect_b32 {sr(s)}, {lo}, {sr(s)}"]

    def carry():
        return wr(0) + [xr(0, rt) for rt in range(3)]

    def step(first, late, early, last, vm, hook=None, latelo=1):
        mf, after = [], {}
        for k_, v_ in (hook or {}).items():
            put(after, k_, v_)
        for s in range(2):
            for rt in range(7):
                for ct in range(4):
                    a = gACC + 28 * ct + 4 * rt
                    mf.append((mfma(a, gW + 16 * s + 4 * ct, gX + 28 * s + 4 * rt, "0" if (first and s == 0) else a),
                               [f"w{s}{ct}", f"x{s}{rt}"]))
        r = [xr(0, rt) for rt in range(3, 7)] + wr(1) + [xr(1, rt) for rt in range(7)]
        spread(after, [(x, 1) for x in r], 3, 30)
        if late:
            spread(after, [(g, 1) for g in late], latelo, 33)
        if not last:
            put(after, 33, [f"s_mov_b32 {sr(sFW)}, {sr(sCW)}", f"s_mov_b32 {sr(sFX)}, {sr(sCX)}"])
            put(after, 34, adv(sCW, WSL, 0, 3)); put(after, 35, adv(sCX, XSL, XB, 3))
            ad = addrs()
            put(after, 36, ad[:2]); put(after, 37, ad[2:4]); put(after, 38, ad[4:])
            put(after, 40, [("bar", vm)])
            if first and not Q:
                put(after, 40, [("call", lambda: team_signal(A))])
            spread(after, [(x, 1) for x in carry()], 40, 54)
            if early:
                spread(after, [(g, 1) for g in early], 41, 56)
        A.run(mf, after)

    A(f"s_mov_b32 {sr(sCW)}, 0"); A(f"s_mov_b32 {sr(sCX)}, {XB}")
    for s in addrs(): A(s)
    A.emit(("bar", vm0))
    stamp(A, 6, o.stamps and (o.qst == Q))
    for it in carry(): A.emit(it)
    W = lambda sl: dma_w(o, wk, sl)
    X = lambda sl: dma_x(o, xk, sl)
    if Q:
        step(True, X(("imm", XB + XSL))[o.xpre:] + W(("imm", 2 * WSL)), X(("imm", XB + 2 * XSL))[:5], False, 4)
        step(False, X(("imm", XB + 2 * XSL))[5:] + W(sFW) + X(sFX), W(sFW), False, 11)
    else:
        step(True, [], W(sFW), False, 0, {40: []})
        step(False, X(("imm", XB + 2 * XSL)) + X(sFX), W(sFW), False, 7, {o.pollgap: [("call", lambda: team_wait(A))]}, o.pollgap + 1)
    if o.steps == kind:
        stamp(A, 1, True)
        for j in range(2, 13):
            step(False, X(sFX), W(sFW), False, 11)
            if j in (2, 3, 5, 8): stamp(A, {2: 2, 3: 3, 5: 4, 8: 5}[j], True)
    else:
        A(f"s_mov_b32 {sr(sCNT)}, 11")
        q0 = list(A.q)
        l = A.newlab("L_gl")
        A.lab(l)
        step(False, X(sFX), W(sFW), False, 11)
        assert A.q == q0
        A(f"s_sub_u32 {sr(sCNT)}, {sr(sCNT)}, 1"); A(f"s_cmp_lg_u32 {sr(sCNT)}, 0"); A(f"s_cbranch_scc1 {l}")
    step(False, X(sFX), tailfill.get(13, []), False, 11)
    step(False, [], tailfill.get(14, []), False, len(tailfill.get(13, [])))
    step(False, tailfill.get(15, []), [], True, 0)
    stamp(A, 7, o.stamps and (o.qst == Q))
    if o.steps == kind:
        A("s_waitcnt vmcnt(0)"); write_stamps(A); A("s_endpgm")


def q_finish(A, o):
    A.emit(("bar", 63))
    A(f"v_mov_b32 {vr(vT)}, 0")
    A(f"global_load_dwordx2 {vr(vTAG,2)}, {vr(vT)}, {sr(sDBG,2)} sc1")
    A.groups(dma_k(o, 1)); A.groups(dma_v(o, 1))
    q, g, t0, t1 = vT, vT + 1, vT + 2, vT + 3
    A(f"v_and_b32 {vr(q)}, 15, {vr(vLANE)}")
    A(f"v_lshrrev_b32 {vr(g)}, 4, {vr(vLANE)}")
    A(f"v_lshrrev_b32 {vr(t0)}, 1, {vr(g)}")
    A(f"s_lshl_b32 {sr(sT0)}, {sr(sC2)}, 3")
    A(f"v_xor_b32 {vr(t0)}, {sr(sT0)}, {vr(t0)}")
    A(f"v_xor_b32 {vr(t0)}, {vr(t0)}, {vr(q)}")
    A(f"v_lshlrev_b32 {vr(t0)}, 4, {vr(t0)}")
    A(f"v_and_b32 {vr(t1)}, 1, {vr(g)}")
    A(f"v_lshl_add_u32 {vr(t0)}, {vr(t1)}, 3, {vr(t0)}")
    A(f"s_mul_i32 {sr(sT0)}, {sr(sU)}, {112*256}")
    A(f"v_lshl_add_u32 {vr(t1)}, {vr(q)}, 8, {sr(sT0)}")
    A(f"v_add_u32 {vr(vTA)}, {vr(t0)}, {vr(t1)}")
    for ct in range(1, 4):
        A(f"v_xor_b32 {vr(vTA+ct)}, {32*ct}, {vr(vTA)}")
    A(f"v_mov_b32 {vr(vXA)}, {sr(sC)}"); A(f"v_mov_b32 {vr(vXA+1)}, {sr(sC)}")
    for ct in range(4):
        for rt in range(7):
            a = gACC + 28 * ct + 4 * rt
            d = gX + 2 * ((ct * 7 + rt) % 8)
            A(f"v_pk_mul_f32 {vr(a,2)}, {vr(a,2)}, {vr(vXA,2)}")
            A(f"v_pk_mul_f32 {vr(a+2,2)}, {vr(a+2,2)}, {vr(vXA,2)}")
            A(f"v_cvt_pk_bf16_f32 {vr(d)}, {vr(a)}, {vr(a+1)}")
            A(f"v_cvt_pk_bf16_f32 {vr(d+1)}, {vr(a+2)}, {vr(a+3)}")
            A(f"ds_write_b64 {vr(vTA+ct)}, {vr(d,2)} offset:{4096*rt}")
            if (ct * 7 + rt) % 8 == 7:
                A("s_waitcnt lgkmcnt(4)")
    A(f"v_xor_b32 {vr(t0)}, {vr(g)}, {vr(q)}")
    A(f"v_lshlrev_b32 {vr(t0)}, 4, {vr(t0)}")
    A(f"s_lshl_b32 {sr(sT0)}, {sr(sC2)}, 14")
    A(f"v_add3_u32 {vr(t1)}, {vr(t1)}, {vr(t0)}, {sr(sT0)}")
    A.emit(("bar", 63))
    for s in range(4):
        A(f"v_xor_b32 {vr(vTA+s)}, {64*s}, {vr(t1)}")
    for qt in range(4):
        for s in range(4):
            A(f"ds_read_b128 {vr(aQ+16*qt+4*s,4)}, {vr(vTA+s)} offset:{4096*qt}")
            if qt == 2 and s == 3:
                A("s_waitcnt lgkmcnt(4)")
    A.emit(("bar", 17))


def kreads(slot):
    L = []
    for s in range(4):
        for kt in range(2):
            L.append(("ds", f"ds_read_b128 {vr(vKF+16*kt+4*s,4)}, {vr(vKA+4*(slot>>1)+s)} offset:{(slot&1)*ASL+4096*kt}", f"k{kt}{s}"))
    return L


def new_max(S, NT, clamp):
    L = []
    for qt in range(NT):
        mx, o2 = vT, vT + 1
        a, b = S + 4 * qt, S + 16 + 4 * qt
        L += [f"v_max3_f32 {vr(mx)}, {vr(a)}, {vr(a+1)}, {vr(a+2)}", f"v_max3_f32 {vr(mx)}, {vr(mx)}, {vr(a+3)}, {vr(b)}",
              f"v_max3_f32 {vr(mx)}, {vr(mx)}, {vr(b+1)}, {vr(b+2)}", f"v_max_f32 {vr(mx)}, {vr(mx)}, {vr(b+3)}"]
        for sw in ("16", "32"):
            L += [f"v_mov_b32 {vr(o2)}, {vr(mx)}", "s_nop 1", f"v_permlane{sw}_swap_b32 {vr(mx)}, {vr(o2)}", "s_nop 1",
                  f"v_max_f32 {vr(mx)}, {vr(mx)}, {vr(o2)}"]
        if clamp:
            L += [f"v_max_f32 {vr(mx)}, 0, {vr(mx)}", f"v_exp_f32 {vr(vFAC+qt)}, -{vr(mx)}"]
        L += [f"v_sub_f32 {vr(x+i)}, {vr(x+i)}, {vr(mx)}" for x in (a, b, vNM + 4 * qt) for i in range(4)]
        if clamp:
            L += [f"v_mul_f32 {vr(vLS+2*qt+i)}, {vr(vLS+2*qt+i)}, {vr(vFAC+qt)}" for i in range(2)]
    return L


def attention(A, o0, NT, tail, br):
    import copy
    o = copy.copy(o0)
    o.nt = o0.ntA if br == 0 else o0.ntB
    o.win = o0.win if br == 0 else (o0.winB if o0.winB >= 0 else o0.win)
    tag = f"_{NT}_{br}"
    NQ = 8 * NT
    NE = 2 * NT
    sreg = lambda S, i: S + 16 * ((i >> 2) & 1) + 4 * (i >> 3) + (i & 3)

    def vreads(slot):
        return [("ds", f"ds_read_b64_tr_b16 {vr(vVF+4*dt+2*e,2)}, {vr(vVA+8*(slot>>1)+dt)} offset:{(slot&1)*ASL+4096*e}", f"v{dt}")
                for dt in range(8) for e in range(2)]

    def part2(Sp, qt):
        st = []
        for i in range(8 * qt, 8 * qt + 8):
            if i + NE < NQ:
                r = sreg(Sp, i + NE)
                st.append((f"v_exp_f32 {vr(r)}, {vr(r)}", 8))
            if i & 1:
                r = sreg(Sp, i - 1)
                st.append((f"v_pk_add_f32 {vr(vLS+2*qt,2)}, {vr(vLS+2*qt,2)}, {vr(r,2)}", 4.5))
                st.append((f"v_cvt_pk_bf16_f32 {vr(vP+4*qt+((i&7)>>1))}, {vr(r)}, {vr(r+1)}", 4.5))
        return st

    def pend_check():
        l2, b2 = A.newlab("L_r2"), A.newlab("L_b2")
        tail.append(("r2", l2, b2, NT))
        return [f"s_cmp_lg_u32 {sr(sPEND)}, 0", f"s_cbranch_scc1 {l2}", ("lab", b2)]

    def it(u, first=False, kload=True, vload=True, vmb=8, extra=(), knext=True):
        p = u & 1
        S, Sp = vS + 32 * p, vS + 32 * (1 - p)
        slot, nslot, kslot, pslot = (3 - u) & 3, (2 - u) & 3, (-u) & 3, (1 - u) & 3
        mf, after = [], {}
        allk = [f"k{kt}{s}" for kt in range(2) for s in range(4)]
        for s in range(4):
            for kt in range(2):
                for qt in range(NT):
                    d = S + 16 * kt + 4 * qt
                    mf.append((mfma(d, vKF + 16 * kt + 4 * s, aQ + 16 * qt + 4 * s, vNM + 4 * qt if s == 0 else d),
                               [f"k{kt}{s}"] if first else allk))
        mx = vT
        order = [sreg(S, i) for i in range(NQ)]
        order.sort(key=lambda r: ((r - S) >> 4, (r - S) & 15))
        m1 = [f"v_max3_f32 {vr(mx)}, {vr(order[0])}, {vr(order[1])}, {vr(order[2])}"]
        m1 += [f"v_max3_f32 {vr(mx)}, {vr(mx)}, {vr(order[i])}, {vr(order[i+1])}" for i in range(3, NQ - 1, 2)]
        m1 += [f"v_max_f32 {vr(mx)}, {vr(mx)}, {vr(order[NQ-1])}"]
        E1 = [f"v_exp_f32 {vr(sreg(S,i))}, {vr(sreg(S,i))}" for i in range(NE)]
        kr = kreads(nslot)
        if first:
            put(after, NQ - 1, [("bar", vmb)] + kr + sum(dma_k(o, kslot), []) + ["s_nop 3"] + new_max(S, NT, False) + E1)
            A.run(mf, after)
            return
        for qt in range(NT):
            for dt in range(8):
                mf.append((mfma(aO + 16 * dt + 4 * qt, vVF + 4 * dt, vP + 4 * qt, aO + 16 * dt + 4 * qt), [f"v{dt}"]))
        spread(after, [(x, 1) for x in vreads(slot)], 0, NQ - 2)
        if vload:
            spread(after, [(g, 1) for g in dma_v(o, pslot, o.win)], 0, NQ + 2)
        put(after, 4, pend_check())
        st, due = [], {}
        for qt in range(NT):
            st += part2(Sp, qt)
            due[qt] = len(st) - 1
        i_m1 = len(st)
        l1, b1 = A.newlab("L_r1"), A.newlab("L_b1")
        tail.append(("r1", l1, b1, S, NT))
        st += [(x, 4.5) for x in m1]
        st.append(([f"v_cmp_lt_f32 vcc, {sr(sTHR)}, {vr(mx)}", f"s_cbranch_vccnz {l1}", ("lab", b1)], 9))
        st += [(x, 8) for x in E1]
        pos = spread(after, st, 0, 2 * NQ)
        for qt in range(NT):
            assert pos[due[qt]] < NQ + 8 * qt - 2, (qt, pos[due[qt]])
        assert pos[i_m1] >= NQ + 4, pos[i_m1]
        put(after, NQ + 2, [("bar", vmb)])
        if knext:
            spread(after, [(x, 1) for x in kr], NQ + 3, 2 * NQ - 6)
        if kload:
            spread(after, [(g, 1) for g in dma_k(o, kslot, o.win)], NQ + 3, 2 * NQ)
        if extra:
            spread(after, [(g, 1) for g in extra], NQ + 3, 2 * NQ)
        A.run(mf, after)

    A.q = []
    for x in kreads(3): A.emit(x)
    it(0, first=True)
    q0 = list(A.q)
    g_setup(A, o)
    A(f"s_mov_b32 {sr(sCNT)}, 7")
    A.lab("L_aloop" + tag)
    for u in (1, 2, 3, 0):
        it(u)
    assert A.q == q0
    A(f"s_sub_u32 {sr(sCNT)}, {sr(sCNT)}, 1"); A(f"s_cmp_lg_u32 {sr(sCNT)}, 0"); A(f"s_cbranch_scc1 L_aloop{tag}")
    it(1, kload=False)
    it(2, kload=False, vmb=4)
    wpre = dma_w(o, "G", ("imm", 0)) + dma_w(o, "G", ("imm", WSL)) + dma_w(o, "G", ("imm", 2 * WSL))
    itq = list(A.q)
    it31(A, o, NT, it, wpre)
    stamp(A, 2, o.stamps)
    Sp = vS + 32
    for x in vreads(3): A.emit(x)
    for x in pend_check(): A.emit(x)

    def lred(qt):
        a, b = vLS + 2 * qt, vLS + 2 * qt + 1
        L = [f"v_add_f32 {vr(a)}, {vr(a)}, {vr(b)}"]
        for sw in ("16", "32"):
            L += [f"v_mov_b32 {vr(b)}, {vr(a)}", "s_nop 1", f"v_permlane{sw}_swap_b32 {vr(a)}, {vr(b)}", "s_nop 1", f"v_add_f32 {vr(a)}, {vr(a)}, {vr(b)}"]
        return L + [f"v_rcp_f32 {vr(a)}, {vr(a)}", "s_nop 0", f"v_mov_b32 {vr(b)}, {vr(a)}"]

    def outq(qt):
        L = []
        for m in range(4):
            t = vS + 8 * m
            d = vKF + 4 * ((4 * qt + m) % 8)
            L += [f"v_accvgpr_read_b32 {vr(t+i)}, {vr(aO + 16*(2*m + (i>>2)) + 4*qt + (i&3))}" for i in range(8)]
            L += [f"v_pk_mul_f32 {vr(t+2*i,2)}, {vr(t+2*i,2)}, {vr(vLS+2*qt,2)}" for i in range(4)]
            L += [f"v_cvt_pk_bf16_f32 {vr(d+i)}, {vr(t+2*i)}, {vr(t+2*i+1)}" for i in range(4)]
            L.append(f"buffer_store_dwordx4 {vr(d,4)}, {vr(vL16)}, {sr(S_X,4)}, {sr(sOST)} offen offset:{m*1024} sc1")
            L.append(f"ds_write_b128 {vr(vOW)}, {vr(d,4)} offset:{(m>>1)*XSL + qt*2048 + (m&1)*1024}")
        L.append(f"s_add_u32 {sr(sOST)}, {sr(sOST)}, 0x20000")
        return L

    for x, _ in part2(Sp, 0): A(x)
    mf, after = [], {}
    for qt in range(NT):
        for dt in range(8):
            mf.append((mfma(aO + 16 * dt + 4 * qt, vVF + 4 * dt, vP + 4 * qt, aO + 16 * dt + 4 * qt), [f"v{dt}"]))
        st = [(x, 1) for x in lred(qt)]
        if qt + 1 < NT:
            st = [(x, 1) for x, _ in part2(Sp, qt + 1)] + st
        spread(after, st, 8 * qt, 8 * qt + 7)
        put(after, 8 * qt + 7, ["s_nop 1"])
    A("s_nop 1")
    A.run(mf, after)
    A("s_nop 3")
    for qt in range(NT):
        for x in outq(qt): A(x)
    A(f"s_waitcnt vmcnt({4*NT}) lgkmcnt(0)")


def it31(A, o, NT, it, wpre):
    it(3, kload=False, vload=False, vmb=0, extra=wpre, knext=None)


def rare_blocks(A, o, tail):
    r2, r1 = {}, {}
    for t in tail:
        if t[0] == "r1":
            _, l1, b1, S, NT = t
            k = len(r1.setdefault((NT, S), []))
            r1[(NT, S)].append(b1)
            A.lab(l1)
            A(f"s_mov_b32 {sr(sT0)}, {k}"); A(f"s_branch L_r1c_{NT}_{S}")
        else:
            _, l2, b2, NT = t
            k = len(r2.setdefault(NT, []))
            r2[NT].append(b2)
            A.lab(l2)
            A(f"s_mov_b32 {sr(sPEND)}, {k}"); A(f"s_branch L_r2c_{NT}")
    for (NT, S), backs in r1.items():
        A.lab(f"L_r1c_{NT}_{S}")
        for x in new_max(S, NT, True): A(x)
        A(f"s_mov_b32 {sr(sPEND)}, 1")
        for k, b in enumerate(backs[:-1]):
            A(f"s_cmp_eq_u32 {sr(sT0)}, {k}"); A(f"s_cbranch_scc1 {b}")
        A(f"s_branch {backs[-1]}")
    for NT, backs in r2.items():
        A.lab(f"L_r2c_{NT}")
        A("s_nop 7")
        for dt in range(8):
            for qt in range(NT):
                for i in range(4):
                    A(f"v_accvgpr_read_b32 {vr(vT+i)}, {vr(aO+16*dt+4*qt+i)}")
                for i in range(4):
                    A(f"v_mul_f32 {vr(vT+i)}, {vr(vT+i)}, {vr(vFAC+qt)}")
                for i in range(4):
                    A(f"v_accvgpr_write_b32 {vr(aO+16*dt+4*qt+i)}, {vr(vT+i)}")
        A(f"s_mov_b32 {sr(sT0)}, {sr(sPEND)}"); A(f"s_mov_b32 {sr(sPEND)}, 0")
        for k, b in enumerate(backs[:-1]):
            A(f"s_cmp_eq_u32 {sr(sT0)}, {k}"); A(f"s_cbranch_scc1 {b}")
        A(f"s_branch {backs[-1]}")


def g_setup(A, o):
    q0 = list(A.q)
    A(f"s_load_dwordx2 {sr(sLD,2)}, {sr(sKA,2)}, 32")
    w_offsets(A, 11, False)
    A("s_waitcnt lgkmcnt(0)")
    A(f"s_lshl_b32 {sr(sT0)}, {sr(sHG)}, 21"); A(f"s_lshl_b32 {sr(sT1)}, {sr(sHL)}, 8"); A(f"s_add_u32 {sr(sT0)}, {sr(sT0)}, {sr(sT1)}")
    srd(A, S_W, sLD, sr(sT0), "0")
    A(f"s_sub_u32 {sr(S_W+2)}, 0x800000, {sr(sT0)}")
    A(f"s_lshl_b32 {sr(sWO_)}, {sr(sHL)}, 18")
    for t_, sq in enumerate(gseqs()):
        lo, hi = seq_words(sq)
        if t_ == 0:
            A(f"s_mov_b32 {sr(sSW)}, {lo:#x}"); A(f"s_mov_b32 {sr(sSW+1)}, {hi:#x}")
        else:
            A(f"s_cmp_eq_u32 {sr(sTAU)}, {t_}")
            A(f"s_cselect_b32 {sr(sSW)}, {lo:#x}, {sr(sSW)}"); A(f"s_cselect_b32 {sr(sSW+1)}, {hi:#x}, {sr(sSW+1)}")
    A(f"s_lshl_b32 {sr(sT3)}, {sr(sHL)}, 1")
    seq_add(A, sSW, sT3)
    A(f"s_lshr_b64 {sr(sSX,2)}, {sr(sSW,2)}, 4")
    for x in next_chunk(sSX, sXO, 11): A(x)
    A(f"s_mul_i32 {sr(sT0)}, {sr(sWAVE)}, 7")
    for t in range(4):
        A(f"s_add_u32 {sr(sT1)}, {sr(sT0)}, {t}")
        A(f"s_lshr_b32 {sr(sT2)}, {sr(sT1)}, 1"); A(f"s_lshl_b32 {sr(sT2)}, {sr(sT2)}, 17")
        A(f"s_and_b32 {sr(sT1)}, {sr(sT1)}, 1"); A(f"s_lshl_b32 {sr(sT1)}, {sr(sT1)}, 10"); A(f"s_add_u32 {sr(sT1)}, {sr(sT1)}, {sr(sT2)}")
        A(f"s_sub_u32 {sr(sT1)}, {sr(sT1)}, {1024*t}")
        A(f"v_add_u32 {vr(vDX+t)}, {sr(sT1)}, {vr(vL16)}")
    A(f"s_mul_i32 {sr(sT0)}, {sr(sU)}, {14*1024}")
    A(f"v_add_u32 {vr(vXB)}, {sr(sT0)}, {vr(vL16)}")
    A(f"v_add_u32 {vr(vXB+1)}, 1024, {vr(vXB)}")
    A(f"s_lshl_b32 {sr(sT1)}, {sr(sC2)}, 13"); A(f"s_add_u32 {sr(sT1)}, {sr(sT1)}, {XB}")
    A(f"v_add_u32 {vr(vOW)}, {sr(sT1)}, {vr(vXB)}")
    gemm_tr_bases(A, 10)
    A(f"s_lshl_b32 {sr(sT0)}, {sr(sBR)}, 3"); A(f"s_add_u32 {sr(sT0)}, {sr(sT0)}, {sr(sB)}"); A(f"s_mul_i32 {sr(sT0)}, {sr(sT0)}, {7 << 17}")
    A(f"s_mul_i32 {sr(sOST)}, {sr(sU)}, 7"); A(f"s_lshl_b32 {sr(sT1)}, {sr(sC2)}, 2"); A(f"s_add_u32 {sr(sOST)}, {sr(sOST)}, {sr(sT1)}")
    A(f"s_lshl_b32 {sr(sOST)}, {sr(sOST)}, 17"); A(f"s_add_u32 {sr(sOST)}, {sr(sOST)}, {sr(sT0)}")
    A(f"s_lshl_b32 {sr(sT1)}, {sr(sH)}, 12"); A(f"s_add_u32 {sr(sOST)}, {sr(sOST)}, {sr(sT1)}")
    A(f"s_lshl_b32 {sr(sT3)}, {sr(sHG)}, 15"); A(f"s_add_u32 {sr(sT0)}, {sr(sT0)}, {sr(sT3)}")
    srd(A, S_O, sWS, sr(sT0), str(14 << 17))
    srd(A, S_X, sWS, None, str(O_BYTES))
    A(f"s_lshl_b32 {sr(sFL)}, {sr(sBR)}, 2"); A(f"s_add_u32 {sr(sFL)}, {sr(sFL)}, {sr(sTAU)}"); A(f"s_lshl_b32 {sr(sFL)}, {sr(sFL)}, 2")
    A(f"s_add_u32 {sr(sFL)}, {sr(sFL)}, {sr(sHG)}"); A(f"s_lshl_b32 {sr(sFL)}, {sr(sFL)}, 7"); A(f"s_add_u32 {sr(sFL)}, {sr(sFL)}, {F_RDY}")
    A(f"v_readfirstlane_b32 {sr(sNON)}, {vr(vTAG)}"); A(f"v_readfirstlane_b32 {sr(sNON+1)}, {vr(vTAG+1)}")
    A.q = q0


def exchange(A, o):
    A(f"s_lshl_b32 {sr(sT0)}, {sr(sBR)}, 2"); A(f"s_add_u32 {sr(sT0)}, {sr(sT0)}, {sr(sTAU)}")
    A(f"s_lshl_b32 {sr(sT0)}, {sr(sT0)}, 3"); A(f"s_add_u32 {sr(sT0)}, {sr(sT0)}, {sr(sHL)}")
    A(f"s_lshl_b32 {sr(sT2)}, {sr(sT0)}, 7"); A(f"s_add_u32 {sr(sT2)}, {sr(sT2)}, {F_XCH}")
    A(f"s_lshl_b32 {sr(sXB)}, {sr(sT0)}, 19"); A(f"s_lshl_b32 {sr(sT1)}, {sr(sWAVE)}, 13"); A(f"s_add_u32 {sr(sXB)}, {sr(sXB)}, {sr(sT1)}")
    A(f"s_lshl_b32 {sr(sT0)}, {sr(sHG)}, 15"); A(f"s_add_u32 {sr(sT0)}, {sr(sT0)}, {sr(sXB)}")
    for ow in range(4):
        ls = A.newlab("L_skip")
        A(f"s_cmp_eq_u32 {sr(sHG)}, {ow}"); A(f"s_cbranch_scc1 {ls}")
        A(f"s_add_u32 {sr(sT1)}, {sr(sT0)}, {ow << 17}")
        if o.xbf:
            t = gT + 16 * (ow % 3)
            for i in range(14):
                A(f"v_cvt_pk_bf16_f32 {vr(t+i)}, {vr(gACC+28*ow+2*i)}, {vr(gACC+28*ow+2*i+1)}")
            for j in range(3):
                A(f"buffer_store_dwordx4 {vr(t+4*j,4)}, {vr(vL16)}, {sr(S_XC,4)}, {sr(sT1)} offen offset:{j*1024} sc1")
            A(f"buffer_store_dwordx2 {vr(t+12,2)}, {vr(vL16)}, {sr(S_XC,4)}, {sr(sT1)} offen offset:3072 sc1")
        else:
            A(f"s_add_u32 {sr(sT3)}, {sr(sT1)}, 4096")
            for rt in range(7):
                A(f"buffer_store_dwordx4 {vr(gACC+28*ow+4*rt,4)}, {vr(vL16)}, {sr(S_XC,4)}, {sr(sT1 if rt < 4 else sT3)} offen offset:{(rt&3)*1024} sc1")
        A.lab(ls)
    R = gX
    lj = A.newlab("L_own")
    for ow in range(4):
        ls = A.newlab("L_no")
        A(f"s_cmp_eq_u32 {sr(sHG)}, {ow}"); A(f"s_cbranch_scc0 {ls}")
        for i in range(28):
            A(f"v_mov_b32 {vr(R+i)}, {vr(gACC+28*ow+i)}")
        A(f"s_branch {lj}")
        A.lab(ls)
    A.lab(lj)
    A(f"s_lshl_b32 {sr(sT1)}, {sr(sHG)}, 3"); A(f"s_add_u32 {sr(sT1)}, {sr(sT1)}, {sr(sT2)}")
    stamp(A, 1, o.xst)
    A.emit(("bar", 0))
    stamp(A, 2, o.xst)
    signal_wait(A, sT1, sT2, 4, 1)
    stamp(A, 3, o.xst)
    A(f"s_lshl_b32 {sr(sT0)}, {sr(sHG)}, 17"); A(f"s_add_u32 {sr(sXB)}, {sr(sXB)}, {sr(sT0)}")
    for k in range(1, 4):
        A(f"s_add_u32 {sr(sT1)}, {sr(sHG)}, {k}"); A(f"s_and_b32 {sr(sT1)}, {sr(sT1)}, 3"); A(f"s_lshl_b32 {sr(sT1)}, {sr(sT1)}, 15")
        A(f"s_add_u32 {sr(sT1)}, {sr(sT1)}, {sr(sXB)}"); A(f"s_add_u32 {sr(sT3)}, {sr(sT1)}, 4096")
        if o.xbf:
            for j in range(4):
                A(f"buffer_load_dwordx4 {vr(gACC+16*(k-1)+4*j,4)}, {vr(vL16)}, {sr(S_XC,4)}, {sr(sT1)} offen offset:{j*1024} sc1")
        else:
            for rt in range(7):
                A(f"buffer_load_dwordx4 {vr(gACC+28*(k-1)+4*rt,4)}, {vr(vL16)}, {sr(S_XC,4)}, {sr(sT1 if rt < 4 else sT3)} offen offset:{(rt&3)*1024} sc1")
    t1, t2 = vT, vT + 1
    A(f"s_add_u32 {sr(sT0)}, {sr(sB)}, {sr(sU)}"); A(f"s_mul_i32 {sr(sT0)}, {sr(sT0)}, {112*4096}")
    A(f"s_lshl_b32 {sr(sT1)}, {sr(sBR)}, 11"); A(f"s_add_u32 {sr(sT0)}, {sr(sT0)}, {sr(sT1)}")
    A(f"s_lshl_b32 {sr(sT1)}, {sr(sHL)}, 8"); A(f"s_add_u32 {sr(sT0)}, {sr(sT0)}, {sr(sT1)}")
    A(f"s_lshl_b32 {sr(sT1)}, {sr(sC2)}, 7"); A(f"s_add_u32 {sr(sT0)}, {sr(sT0)}, {sr(sT1)}")
    A(f"s_lshl_b32 {sr(sT1)}, {sr(sHG)}, 5"); A(f"s_add_u32 {sr(sT0)}, {sr(sT0)}, {sr(sT1)}")
    A(f"v_and_b32 {vr(t1)}, 15, {vr(vLANE)}"); A(f"v_lshlrev_b32 {vr(t1)}, 12, {vr(t1)}")
    A(f"v_lshrrev_b32 {vr(t2)}, 4, {vr(vLANE)}"); A(f"v_lshl_add_u32 {vr(t1)}, {vr(t2)}, 3, {vr(t1)}")
    for k in range(1, 4):
        if o.xbf:
            A(f"s_waitcnt vmcnt({12 - 4*k})")
            for i in range(14):
                p = gACC + 16 * (k - 1) + i
                A(f"v_lshlrev_b32 {vr(vT+2)}, 16, {vr(p)}"); A(f"v_and_b32 {vr(vT+3)}, 0xffff0000, {vr(p)}")
                A(f"v_pk_add_f32 {vr(R+2*i,2)}, {vr(R+2*i,2)}, {vr(vT+2,2)}")
        else:
            A(f"s_waitcnt vmcnt({21 - 7*k})")
            for i in range(0, 28, 2):
                A(f"v_pk_add_f32 {vr(R+i,2)}, {vr(R+i,2)}, {vr(gACC+28*(k-1)+i,2)}")
    stamp(A, 4, o.xst)
    for rt in range(7):
        A(f"v_cvt_pk_bf16_f32 {vr(gT+2*rt)}, {vr(R+4*rt)}, {vr(R+4*rt+1)}")
        A(f"v_cvt_pk_bf16_f32 {vr(gT+2*rt+1)}, {vr(R+4*rt+2)}, {vr(R+4*rt+3)}")
        A(f"buffer_store_dwordx2 {vr(gT+2*rt,2)}, {vr(t1)}, {sr(S_OUT,4)}, {sr(sT0)} offen{o.outfl}")
        A(f"s_add_u32 {sr(sT0)}, {sr(sT0)}, {16*4096}")


def build(o):
    A = Asm()
    st = o.stamps
    for l in HEADER.splitlines(): A(l)
    A(f"; @launch grid=(256,1,1) block=(256,1,1) lds={LDS}")
    A('.amdgcn_target "amdgcn-amd-amdhsa--gfx950"'); A(".text")
    A(f".globl {KN}"); A(".p2align 8"); A(f".type {KN},@function"); A.lab(KN)
    A(f"s_cmp_ge_u32 s2, 256"); A("s_cbranch_scc1 L_exit")
    tail = []
    stamp(A, 0, st)
    prologue(A, o)
    gemm(A, o, "Q", 4 + o.xpre, {13: dma_k(o, 3), 14: dma_k(o, 2), 15: dma_v(o, 2)})
    q_finish(A, o)
    stamp(A, 1, st)
    two = o.ntA != o.ntB or o.winB >= 0
    if two:
        A(f"s_bitcmp1_b32 s2, {o.selbit}"); A("s_cbranch_scc1 L_attB")
    for br in range(2 if two else 1):
        if br: A.lab("L_attB")
        A(f"s_cmp_lg_u32 {sr(sC2)}, 0"); A(f"s_cbranch_scc1 L_att3_{br}")
        attention(A, o, 4, tail, br)
        A("s_branch L_attdone")
        A.lab(f"L_att3_{br}")
        attention(A, o, 3, tail, br)
        A("s_branch L_attdone")
    A.lab("L_attdone")
    stamp(A, 3, st)
    A.q = []
    gemm(A, o, "G", 63, {})
    exchange(A, o)
    if o.xst:
        stamp(A, 6, True); A("s_waitcnt vmcnt(0)")
    A.lab("L_fin")
    stamp(A, 5, st)
    if st and o.dbgst:
        l = A.newlab("L_ds")
        A(f"s_cmp_eq_u32 s2, 253"); A(f"s_cselect_b32 {sr(sT1)}, 36, 8")
        A(f"s_cselect_b32 {sr(sT0)}, 0, s2"); A(f"s_or_b32 {sr(sT0)}, {sr(sT0)}, {sr(sWAVE)}"); A(f"s_cmp_lg_u32 {sr(sT0)}, 0"); A(f"s_cbranch_scc1 {l}")
        A(f"v_mov_b32 v2, {sr(sT1)}")
        for i in range(1, 8):
            A(f"s_sub_u32 {sr(sT0)}, {sr(sST+2*i)}, {sr(sST)}"); A(f"v_mov_b32 v3, {sr(sT0)}")
            A(f"global_store_dword v2, v3, {sr(sDBG,2)} offset:{4*(i-1)}")
        A.lab(l)
    elif st:
        write_stamps(A)
    A.lab("L_exit")
    A("s_endpgm")
    rare_blocks(A, o, tail)
    A('.section .rodata,"a"')
    A(".p2align 6")
    A(f".amdhsa_kernel {KN}")
    A("  .amdhsa_next_free_vgpr 480"); A("  .amdhsa_next_free_sgpr 100"); A("  .amdhsa_accum_offset 256")
    A("  .amdhsa_group_segment_fixed_size 0"); A("  .amdhsa_kernarg_size 104"); A("  .amdhsa_user_sgpr_count 2")
    A("  .amdhsa_user_sgpr_kernarg_segment_ptr 1"); A("  .amdhsa_system_sgpr_workgroup_id_x 1")
    A(".end_amdhsa_kernel")
    return A.text()


if __name__ == "__main__":
    ap = argparse.ArgumentParser()
    ap.add_argument("-o", default="concat_heads__mha_block_cached__gqa_block_cached__near_ridge.s")
    ap.add_argument("--stamps", action="store_true")
    ap.add_argument("--qst", action="store_true")
    ap.add_argument("--pst", action="store_true")
    ap.add_argument("--nt", default="KV")
    ap.add_argument("--krot", type=int, default=0)
    ap.add_argument("--ntA", default="KV")
    ap.add_argument("--ntB", default="KV")
    ap.add_argument("--dbgst", action="store_true")
    ap.add_argument("--steps", default="")
    ap.add_argument("--qseq", type=int, default=1)
    ap.add_argument("--la", type=int, default=3)
    ap.add_argument("--win", type=int, default=5)
    ap.add_argument("--pollgap", type=int, default=6)
    ap.add_argument("--xpre", type=int, default=2)
    ap.add_argument("--xst", action="store_true")
    ap.add_argument("--winB", type=int, default=-1)
    ap.add_argument("--selbit", type=int, default=2)
    ap.add_argument("--xbf", type=int, default=1)
    ap.add_argument("--outfl", default=" sc1")
    ap.add_argument("--nokv", action="store_true")
    a = ap.parse_args()
    open(a.o, "w").write(build(a))
```

```python
import sys, argparse, struct, math

KN = "concat_heads__mha_block_cached__gqa_block_cached__near_ridge_kernel"
WS_BYTES = 305659904
O_BYTES = 16 * 7 * 128 * 1024
X_OFF = O_BYTES
X_BYTES = 8 * 8 * 4 * 4 * 4 * 8192
F_RDY = X_OFF + X_BYTES
F_XCH = F_RDY + 32 * 128
WSL, XSL, XB = 16384, 28672, 49152
ASL = 32768
LDS = 163840
f32 = lambda x: struct.unpack("<I", struct.pack("<f", x))[0]
C_SCALE = f32(math.log2(math.e) / math.sqrt(128.0))
THR = f32(8.0)
OOB = 0x40000000

HEADER = """\
; -> output projection tile (224x128 over 8 heads) -> partial sums exchanged through ws between 4 workgroups -> out.
"""


class Asm:
    def __init__(self):
        self.L = []
        self.uid = 0
        self.q = []

    def __call__(self, s):
        self.L.append(s)

    def lab(self, name):
        self.L.append(name + ":")

    def newlab(self, p="L"):
        self.uid += 1
        return f"{p}_{self.uid}"

    def ds(self, txt, tag):
        assert len(self.q) < 15, "too many LDS ops outstanding"
        self.L.append(txt); self.q.append(tag)

    def need(self, tags):
        pos = max([i for i, t in enumerate(self.q) if t in tags], default=-1)
        if pos >= 0:
            self.L.append(f"s_waitcnt lgkmcnt({len(self.q) - pos - 1})")
            self.q = self.q[pos + 1:]

    def emit(self, it):
        if isinstance(it, str):
            self(it)
        elif it[0] == "ds":
            if len(self.q) >= 15:
                self.need([self.q[3]])
            self.ds(it[1], it[2])
        elif it[0] == "bar":
            self(f"s_waitcnt vmcnt({it[1]}) lgkmcnt(0)"); self.q = []
            self("s_barrier")
        elif it[0] == "lab":
            self.lab(it[1])
        elif it[0] == "call":
            it[1]()

    def groups(self, gs):
        for g in gs:
            for s in g: self(s)

    def run(self, mf, after):
        for m, (txt, tags) in enumerate(mf):
            self.need(tags)
            self(txt)
            for it in after.get(m, []): self.emit(it)

    def text(self):
        return "\n".join(self.L) + "\n"


def vr(a, n=1):
    p, a = ("a", a - 256) if a >= 256 else ("v", a)
    return f"{p}{a}" if n == 1 else f"{p}[{a}:{a+n-1}]"


def sr(a, n=1):
    return f"s{a}" if n == 1 else f"s[{a}:{a+n-1}]"


def mfma(d, a, b, c):
    return f"v_mfma_f32_16x16x32_bf16 {vr(d,4)}, {vr(a,4)}, {vr(b,4)}, {c if c == '0' else vr(c,4)}"


def put(after, m, items):
    after.setdefault(m, []).extend(items)


def spread(after, items, lo, hi):
    tot = sum(c for _, c in items)
    acc, pos = 0.0, []
    for its, c in items:
        g = lo + int((acc + c / 2) / tot * (hi - lo))
        put(after, g, its if isinstance(its, list) else [its])
        pos.append(g); acc += c
    return pos


S_X, S_W, S_K, S_V, S_O, S_XC, S_OUT = 4, 8, 12, 16, 20, 24, 28
sWAVE, sBR, sB, sH, sHG, sHL = 32, 33, 34, 35, 38, 39
sKA = 36
sDBG = 40
sWS = 42
sT0, sT1, sT2, sT3 = 44, 45, 46, 47
sCW, sCX, sFW, sFX = 48, 49, 50, 51
sWM, sXM, sAM = 52, 80, 81
sCNT = 53
sXO, sWO_ = 54, 55
sKO, sVO = 56, 57
sC, sTHR = 58, 59
sEX = 60
sLD = 62
sST = 64
sPEND = 82
sSPIN = 83
sU, sC2 = 84, 85
sXB = 86
sROT = 87
sTAU = 88
sOST = 89
sFL = 92
sNON = 90
sPTR = 94
sSW, sSX = 96, 98

vLANE = 1
vT = 2
vDX = 10
vDW = 14
vDK = 18
vDV = 22
vXB = 24
vTB = 26
vXA = 30
vTA = 32
vL16 = 36
vOW = 37
vTAG = 38
vFAC = 40
vP = 44
vS = 60
vKF = 124
vVF = 156
vKA = 208
vVA = 216
vNM = 232
vLS = 248
aO = 256
aQ = 384
gACC = 40
gX = 152
gW = 448
gT = 208


def stamp(A, i, on):
    if on:
        q = list(A.q)
        A(f"s_memrealtime {sr(sST + 2*i, 2)}")
        A(f"s_memtime {sr(sPTR, 2)}")
        A("s_waitcnt lgkmcnt(0)")
        A(f"s_mov_b32 {sr(sST + 2*i + 1)}, {sr(sPTR)}")
        A.q = q


def write_stamps(A):
    l = A.newlab("L_st")
    A(f"s_mov_b32 {sr(sT0)}, {WS_BYTES - 512*64}")
    A(f"s_lshl_b32 {sr(sT1)}, s2, 6")
    A(f"s_add_u32 {sr(sT0)}, {sr(sT0)}, {sr(sT1)}")
    A(f"s_add_u32 {sr(sPTR)}, {sr(sWS)}, {sr(sT0)}")
    A(f"s_addc_u32 {sr(sPTR+1)}, {sr(sWS+1)}, 0")
    A(f"v_mov_b32 v2, 0")
    for i in range(16):
        A(f"v_mov_b32 v{4+i}, {sr(sST+i)}")
    A(f"v_cmp_eq_u32 vcc, 0, v0")
    A(f"s_and_saveexec_b64 {sr(sEX,2)}, vcc")
    A(f"s_cbranch_execz {l}")
    for i in range(4):
        A(f"global_store_dwordx4 v2, v[{4+4*i}:{7+4*i}], {sr(sPTR,2)} offset:{16*i}")
    A.lab(l)
    A(f"s_mov_b64 exec, {sr(sEX,2)}")


def srd(A, d, lo, add, nrec):
    if add is None:
        A(f"s_mov_b32 {sr(d)}, {sr(lo)}"); A(f"s_mov_b32 {sr(d+1)}, {sr(lo+1)}")
    else:
        A(f"s_add_u32 {sr(d)}, {sr(lo)}, {add}"); A(f"s_addc_u32 {sr(d+1)}, {sr(lo+1)}, 0")
    A(f"s_mov_b32 {sr(d+2)}, {nrec}")
    A(f"s_mov_b32 {sr(d+3)}, 0x20000")


def get_tag(A):
    ls, lg = A.newlab("L_tag"), A.newlab("L_tagok")
    A(f"s_cmp_lg_u32 {sr(sNON+1)}, 0"); A(f"s_cbranch_scc1 {lg}")
    A(f"v_mov_b32 {vr(vT+4)}, 0")
    A(f"s_mov_b32 {sr(sSPIN)}, 0")
    A.lab(ls)
    A(f"global_load_dwordx2 {vr(vT+2,2)}, {vr(vT+4)}, {sr(sDBG,2)} sc1")
    A("s_waitcnt vmcnt(0)")
    A(f"v_readfirstlane_b32 {sr(sNON)}, {vr(vT+2)}")
    A(f"v_readfirstlane_b32 {sr(sNON+1)}, {vr(vT+3)}")
    A(f"s_add_u32 {sr(sSPIN)}, {sr(sSPIN)}, 1")
    A(f"s_cmp_lg_u32 {sr(sNON+1)}, 0"); A(f"s_cbranch_scc1 {lg}")
    A("s_sleep 4")
    A(f"s_cmp_lt_u32 {sr(sSPIN)}, 0x4000"); A(f"s_cbranch_scc1 {ls}")
    A.lab(lg)


def raise_flag(A, sig_s):
    A("s_mov_b64 exec, 1")
    get_tag(A)
    A(f"v_mov_b32 {vr(vT+4)}, {sr(sig_s)}"); A(f"v_mov_b32 {vr(vT+2)}, {sr(sNON)}"); A(f"v_mov_b32 {vr(vT+3)}, {sr(sNON+1)}")
    A(f"global_store_dwordx2 {vr(vT+4)}, {vr(vT+2,2)}, {sr(sWS,2)} sc1")
    A("s_mov_b64 exec, -1")


def signal_wait(A, sig_s, off_s, n, sleep):
    le, ls, lg = A.newlab("L_wend"), A.newlab("L_spin"), A.newlab("L_go")
    A(f"s_cmp_lg_u32 {sr(sWAVE)}, 0"); A(f"s_cbranch_scc1 {le}")
    if sig_s is not None:
        raise_flag(A, sig_s)
    A(f"s_mov_b64 exec, {(1 << n) - 1}")
    A(f"v_lshlrev_b32 {vr(vT+5)}, 3, {vr(vLANE)}")
    A(f"v_add_u32 {vr(vT+5)}, {sr(off_s)}, {vr(vT+5)}")
    A(f"s_mov_b32 {sr(sSPIN)}, 0")
    A.lab(ls)
    A(f"global_load_dwordx2 {vr(vT+6,2)}, {vr(vT+5)}, {sr(sWS,2)} sc1")
    A("s_waitcnt vmcnt(0)")
    A(f"v_cmp_eq_u64 vcc, {sr(sNON,2)}, {vr(vT+6,2)}")
    A(f"s_add_u32 {sr(sSPIN)}, {sr(sSPIN)}, 1")
    A(f"s_cmp_eq_u32 vcc_lo, {(1 << n) - 1}")
    A(f"s_cbranch_scc1 {lg}")
    A(f"s_sleep {sleep}")
    A(f"s_cmp_lt_u32 {sr(sSPIN)}, 0x4000"); A(f"s_cbranch_scc1 {ls}")
    A.lab(lg)
    A("s_mov_b64 exec, -1")
    A.lab(le)
    A("s_barrier")


def team_signal(A):
    l = A.newlab("L_sig")
    A(f"s_cmp_lg_u32 {sr(sWAVE)}, 0"); A(f"s_cbranch_scc1 {l}")
    A(f"s_lshl_b32 {sr(sT1)}, {sr(sHL)}, 3"); A(f"s_add_u32 {sr(sT1)}, {sr(sT1)}, {sr(sFL)}")
    raise_flag(A, sT1)
    A.lab(l)


def team_wait(A):
    signal_wait(A, None, sFL, 8, 1)


def m0set(base_s, slot):
    return f"s_add_u32 m0, {sr(base_s)}, {slot[1]}" if isinstance(slot, tuple) else f"s_add_u32 m0, {sr(base_s)}, {sr(slot)}"


def next_chunk(seq, off, sh):
    return [f"s_lshr_b64 {sr(seq,2)}, {sr(seq,2)}, 4", f"s_and_b32 {sr(off)}, {sr(seq)}, 15", f"s_lshl_b32 {sr(off)}, {sr(off)}, {sh}"]


def seq_words(seq):
    v = sum(c << (4 * i) for i, c in enumerate(seq))
    return v & 0xffffffff, v >> 32


def seq_add(A, seq, add_s):
    A(f"s_mul_i32 {sr(sT0)}, {sr(add_s)}, 0x11111111")
    A(f"s_and_b32 {sr(sT1)}, {sr(sT0)}, 0x77777777")
    for w in (seq, seq + 1):
        A(f"s_xor_b32 {sr(sT2)}, {sr(w)}, {sr(sT0)}"); A(f"s_and_b32 {sr(sT2)}, {sr(sT2)}, 0x88888888")
        A(f"s_and_b32 {sr(w)}, {sr(w)}, 0x77777777"); A(f"s_add_u32 {sr(w)}, {sr(w)}, {sr(sT1)}"); A(f"s_xor_b32 {sr(w)}, {sr(w)}, {sr(sT2)}")


QSEQ = [0, 1, 4, 5, 2, 8, 9, 3, 12, 13, 6, 10, 14, 7, 11, 15]


def gseqs():
    own = [[2, 3, 4, 5], [6, 7, 8], [9, 10, 11, 12], [13, 14, 15]]
    at = [2, 3, 6, 9]
    when = {c: at[i] for o_ in own for i, c in enumerate(o_)}
    out = []
    for t in range(4):
        seq = [0, 1] + [None] * 14
        for i, c in enumerate(own[t]): seq[at[i]] = c
        rest = sorted((c for u in range(1, 4) for c in own[(t + u) % 4]), key=lambda c: when[c])
        for p in range(2, 16):
            if seq[p] is None:
                c = rest.pop(0); assert when[c] < p; seq[p] = c
        assert sorted(seq) == list(range(16))
        out.append(seq)
    return out


def dma_w(o, kind, slot):
    fl = " nt" if kind in o.nt else ""
    g = [[f"buffer_load_dwordx4 {vr(vDW+t)}, {sr(S_W,4)}, {sr(sWO_)} offen offset:{t*1024}{fl} lds"] for t in range(4)]
    g[0] = [m0set(sWM, slot), "s_nop 0"] + g[0]
    g[3] += next_chunk(sSW, sWO_, 19 if kind == "W" else 17)
    return g


def dma_x(o, kind, slot):
    srd_, fl = (S_X, " nt" if "X" in o.nt else "") if kind == "X" else (S_O, " sc1")
    g = []
    for t in range(7):
        so = sXO if t < 4 else sXB
        g.append([f"buffer_load_dwordx4 {vr(vDX+(t&3))}, {sr(srd_,4)}, {sr(so)} offen offset:{(t&3)*1024}{fl} lds"])
    g[0] = [m0set(sXM, slot), f"s_add_u32 {sr(sXB)}, {sr(sXO)}, {65536 if kind == 'X' else 262144}"] + g[0]
    g[4] = ["s_add_u32 m0, m0, 4096", "s_nop 0"] + g[4]
    g[6] += next_chunk(sSX, sXO, 7 if kind == "X" else 11)
    return g


def dma_k(o, slot, win=0):
    fl = " nt" if "K" in o.nt else ""
    w = [f"s_waitcnt vmcnt({win-1})"] if win else []
    g = [w + [f"buffer_load_dwordx4 {vr(vDK+t)}, {sr(S_K,4)}, {sr(sKO)} offen offset:{t*1024}{fl} lds"] for t in range(4)]
    g[0] = [f"s_add_u32 m0, {sr(sAM)}, {ASL*(1+slot) + 16384}", "s_nop 0"] + g[0]
    g[3] += [f"s_add_u32 {sr(sKO)}, {sr(sKO)}, 8192", f"s_bitset0_b32 {sr(sKO)}, 18"]
    return g


def dma_v(o, slot, win=0):
    fl = " nt" if "V" in o.nt else ""
    w = [f"s_waitcnt vmcnt({win-1})"] if win else []
    g = [w + [f"buffer_load_dwordx4 {vr(vDV+(t&1))}, {sr(S_V,4)}, {sr(sVO)} offen offset:{t*1024}{fl} lds"] for t in range(4)]
    g[0] = [f"s_add_u32 m0, {sr(sAM)}, {ASL*(1+slot)}", "s_nop 0"] + g[0]
    g[3] += [f"s_add_u32 {sr(sVO)}, {sr(sVO)}, 8192", f"s_bitset0_b32 {sr(sVO)}, 18"]
    return g


def w_offsets(A, rshift, wflav):
    l4, t0, t1, t2 = vT, vT + 1, vT + 2, vT + 3
    A(f"v_lshrrev_b32 {vr(l4)}, 4, {vr(vLANE)}")
    A(f"v_and_b32 {vr(t1)}, 15, {vr(vLANE)}")
    A(f"v_lshlrev_b32 {vr(t0)}, 1, {vr(l4)}")
    A(f"v_xor_b32 {vr(t0)}, {vr(t0)}, {vr(t1)}")
    A(f"v_lshlrev_b32 {vr(t0)}, 4, {vr(t0)}")
    A(f"s_lshl_b32 {sr(sT3)}, {sr(sWAVE)}, {rshift+4}")
    A(f"v_lshlrev_b32 {vr(t2)}, {rshift}, {vr(l4)}")
    A(f"v_add_u32 {vr(t2)}, {sr(sT3)}, {vr(t2)}")
    for t in range(4):
        bit = (t >> 1) & 1 if wflav else t & 1
        A(f"v_xor_b32 {vr(t1)}, {128*bit}, {vr(t0)}")
        A(f"v_add3_u32 {vr(vDW+t)}, {vr(t1)}, {vr(t2)}, 0")
        A(f"v_add_u32 {vr(vDW+t)}, {(4*t << rshift) - 1024*t}, {vr(vDW+t)}")


def tr_base(A, dst, gshift):
    g, r, c = vT, vT + 1, vT + 2
    A(f"v_lshrrev_b32 {vr(g)}, 4, {vr(vLANE)}")
    A(f"v_bfe_u32 {vr(r)}, {vr(vLANE)}, 2, 2")
    A(f"v_and_b32 {vr(c)}, 3, {vr(vLANE)}"); A(f"v_lshlrev_b32 {vr(c)}, 3, {vr(c)}")
    A(f"v_lshl_add_u32 {vr(c)}, {vr(g)}, {gshift}, {vr(c)}")
    A(f"v_lshl_add_u32 {vr(c)}, {vr(r)}, 8, {vr(c)}")
    A(f"v_lshl_add_u32 {vr(c)}, {vr(r)}, 5, {vr(c)}")
    A(f"v_and_b32 {vr(g)}, 1, {vr(g)}")
    A(f"v_lshl_add_u32 {vr(dst)}, {vr(g)}, 7, {vr(c)}")


def gemm_tr_bases(A, gshift):
    tr_base(A, vT + 3, gshift)
    A(f"s_lshl_b32 {sr(sT0)}, {sr(sC2)}, 7")
    A(f"v_xor_b32 {vr(vT+3)}, {sr(sT0)}, {vr(vT+3)}")
    for ct in range(4):
        A(f"v_xor_b32 {vr(vTB+ct)}, {32*ct}, {vr(vT+3)}")


def ticket(A):
    lw, lt, lo = A.newlab("L_tk"), A.newlab("L_tk"), A.newlab("L_tk")
    A(f"s_load_dwordx2 {sr(sDBG,2)}, s[0:1], 88")
    A(f"s_getreg_b32 {sr(sT0)}, hwreg(HW_REG_XCC_ID)")
    A(f"v_readfirstlane_b32 {sr(sT3)}, v0")
    A(f"v_mov_b32 v4, {LDS - 4}")
    A(f"s_cmp_ge_u32 {sr(sT3)}, 64"); A(f"s_cbranch_scc1 {lw}")
    A("s_mov_b64 exec, 1")
    A(f"v_mov_b32 v3, 1"); A(f"s_mov_b32 {sr(sT2)}, 0")
    A("s_waitcnt lgkmcnt(0)")
    A.lab(lt)
    A(f"s_and_b32 {sr(sT0)}, {sr(sT0)}, 7")
    A(f"s_lshl_b32 {sr(sT1)}, {sr(sT0)}, 4"); A(f"s_add_u32 {sr(sT1)}, {sr(sT1)}, 64")
    A(f"v_mov_b32 v2, {sr(sT1)}")
    A(f"global_atomic_add v5, v2, v3, {sr(sDBG,2)} sc0 sc1")
    A("s_waitcnt vmcnt(0)")
    A(f"v_readfirstlane_b32 {sr(sT1)}, v5")
    A(f"s_add_u32 {sr(sT2)}, {sr(sT2)}, 1")
    A(f"s_cmp_lt_u32 {sr(sT1)}, 32"); A(f"s_cbranch_scc1 {lo}")
    A(f"s_add_u32 {sr(sT0)}, {sr(sT0)}, 1")
    A(f"s_cmp_lt_u32 {sr(sT2)}, 8"); A(f"s_cbranch_scc1 {lt}")
    A.lab(lo)
    A(f"s_lshl_b32 {sr(sT1)}, {sr(sT1)}, 3"); A(f"s_add_u32 {sr(sT1)}, {sr(sT1)}, {sr(sT0)}")
    A(f"v_mov_b32 v5, {sr(sT1)}")
    A("ds_write_b32 v4, v5")
    A("s_mov_b64 exec, -1")
    A.lab(lw)
    A("s_waitcnt lgkmcnt(0)")
    A("s_barrier")
    A("ds_read_b32 v5, v4")
    A("s_waitcnt lgkmcnt(0)")
    A("v_readfirstlane_b32 s2, v5")
    A("s_nop 3")
    A(f"s_cmp_ge_u32 s2, 256"); A("s_cbranch_scc1 L_exit")


def prologue(A, o):
    A(f"s_bfe_u32 {sr(sBR)}, s2, 0x10002")
    A(f"s_mul_i32 {sr(sT0)}, {sr(sBR)}, 40")
    A(f"s_add_u32 {sr(sKA)}, s0, {sr(sT0)}"); A(f"s_addc_u32 {sr(sKA+1)}, s1, 0")
    A(f"s_load_dwordx2 s[74:75], {sr(sKA,2)}, 0")
    A(f"s_load_dwordx2 s[66:67], {sr(sKA,2)}, 8")
    A(f"s_load_dwordx2 s[68:69], {sr(sKA,2)}, 16")
    A(f"s_load_dwordx2 s[70:71], {sr(sKA,2)}, 24")
    A(f"s_load_dwordx2 s[72:73], s[0:1], 80")
    A(f"s_load_dwordx2 {sr(sDBG,2)}, s[0:1], 88")
    A(f"s_load_dwordx2 {sr(sWS,2)}, s[0:1], 96")
    A(f"v_lshrrev_b32 v2, 6, v0")
    A(f"v_and_b32 {vr(vLANE)}, 63, v0")
    A(f"v_readfirstlane_b32 {sr(sWAVE)}, v2")
    A(f"s_and_b32 {sr(sHG)}, s2, 3")
    A(f"s_bfe_u32 {sr(sHL)}, s2, 0x30003")
    A(f"s_bfe_u32 {sr(sTAU)}, s2, 0x20006")
    A(f"s_lshl_b32 {sr(sH)}, {sr(sHG)}, 3"); A(f"s_add_u32 {sr(sH)}, {sr(sH)}, {sr(sHL)}")
    A(f"s_lshl_b32 {sr(sB)}, {sr(sTAU)}, 1")
    A(f"s_add_u32 {sr(sROT)}, {sr(sB)}, {sr(sHL)}"); A(f"s_and_b32 {sr(sROT)}, {sr(sROT)}, 7")
    A(f"s_lshr_b32 {sr(sU)}, {sr(sWAVE)}, 1"); A(f"s_and_b32 {sr(sC2)}, {sr(sWAVE)}, 1")
    A(f"s_lshl_b32 {sr(sWM)}, {sr(sWAVE)}, 12")
    A(f"s_mul_i32 {sr(sXM)}, {sr(sWAVE)}, 7168")
    A(f"s_mov_b32 {sr(sAM)}, {sr(sWM)}")
    A(f"s_lshl_b32 {sr(sXO)}, {sr(sROT)}, 8")
    A(f"s_lshl_b32 {sr(sWO_)}, {sr(sROT)}, 20")
    lo, hi = seq_words(QSEQ if o.qseq else list(range(16)))
    A(f"s_mov_b32 {sr(sSW)}, {lo:#x}"); A(f"s_mov_b32 {sr(sSW+1)}, {hi:#x}")
    A(f"s_lshl_b32 {sr(sT3)}, {sr(sROT)}, 1")
    seq_add(A, sSW, sT3)
    A(f"s_mov_b64 {sr(sSX,2)}, {sr(sSW,2)}")
    l3, l4, t0, t1 = vT, vT + 1, vT + 2, vT + 3
    A(f"v_lshrrev_b32 {vr(l3)}, 3, {vr(vLANE)}")
    A(f"v_lshrrev_b32 {vr(l4)}, 4, {vr(vLANE)}")
    A(f"s_mul_i32 {sr(sT2)}, {sr(sWAVE)}, {56*2048}")
    A(f"s_lshl_b32 {sr(sT1)}, {sr(sC2)}, 2")
    A(f"v_and_b32 {vr(t1)}, 7, {vr(vLANE)}")
    A(f"v_xor_b32 {vr(t1)}, {sr(sT1)}, {vr(t1)}")
    A(f"v_xor_b32 {vr(t1)}, {vr(t1)}, {vr(l4)}")
    A(f"v_lshlrev_b32 {vr(t1)}, 4, {vr(t1)}")
    A(f"v_lshl_add_u32 {vr(l3)}, {vr(l3)}, 11, {sr(sT2)}")
    for t in range(4):
        A(f"v_xor_b32 {vr(t0)}, {64*(t&1)}, {vr(t1)}")
        A(f"v_add_u32 {vr(t0)}, {vr(t0)}, {vr(l3)}")
        A(f"v_add_u32 {vr(vDX+t)}, {8*t*2048 - 1024*t}, {vr(t0)}")
    w_offsets(A, 13, True)
    A("s_waitcnt lgkmcnt(0)")
    A(f"s_lshl_b32 {sr(sT0)}, {sr(sH)}, 8")
    srd(A, S_W, 70, sr(sT0), "0")
    A(f"s_sub_u32 {sr(S_W+2)}, 0x800000, {sr(sT0)}")
    A(f"s_mul_i32 {sr(sT0)}, {sr(sB)}, 229376")
    srd(A, S_X, 74, sr(sT0), str(2 * 229376))
    A.groups(dma_w(o, "W", ("imm", 0)))
    A.groups(dma_x(o, "X", ("imm", XB)))
    A.groups(dma_w(o, "W", ("imm", WSL)))
    A.groups(dma_x(o, "X", ("imm", XB + XSL))[:o.xpre])
    A(f"s_add_u32 {sr(sT0)}, {sr(sB)}, {sr(sU)}"); A(f"s_lshl_b32 {sr(sT0)}, {sr(sT0)}, 5")
    A(f"s_add_u32 {sr(sT0)}, {sr(sT0)}, {sr(sH)}"); A(f"s_lshl_b32 {sr(sT0)}, {sr(sT0)}, 18")
    srd(A, S_K, 66, sr(sT0), "0" if o.nokv else "0x40000")
    srd(A, S_V, 68, sr(sT0), "0" if o.nokv else "0x40000")
    l4, t0, t1, t2 = vT, vT + 1, vT + 2, vT + 3
    A(f"v_lshrrev_b32 {vr(l4)}, 4, {vr(vLANE)}")
    A(f"v_and_b32 {vr(t1)}, 15, {vr(vLANE)}")
    A(f"s_lshl_b32 {sr(sT0)}, {sr(sC2)}, 12")
    A(f"v_lshl_add_u32 {vr(t2)}, {vr(l4)}, 8, {sr(sT0)}")
    A(f"v_xor_b32 {vr(t0)}, {vr(l4)}, {vr(t1)}")
    A(f"v_lshl_add_u32 {vr(vDK)}, {vr(t0)}, 4, {vr(t2)}")
    for t in range(1, 4):
        A(f"v_xor_b32 {vr(vDK+t)}, {64*t}, {vr(vDK)}")
    A(f"v_lshlrev_b32 {vr(t0)}, 1, {vr(l4)}")
    A(f"v_xor_b32 {vr(t0)}, {vr(t0)}, {vr(t1)}")
    A(f"v_lshl_add_u32 {vr(vDV)}, {vr(t0)}, 4, {vr(t2)}")
    A(f"v_xor_b32 {vr(vDV+1)}, 128, {vr(vDV)}")
    if o.krot:
        A(f"s_lshr_b32 {sr(sT0)}, s2, 3"); A(f"s_and_b32 {sr(sT1)}, s2, 7"); A(f"s_lshl_b32 {sr(sT1)}, {sr(sT1)}, 2")
        A(f"s_add_u32 {sr(sT0)}, {sr(sT0)}, {sr(sT1)}"); A(f"s_and_b32 {sr(sT0)}, {sr(sT0)}, 31"); A(f"s_lshl_b32 {sr(sKO)}, {sr(sT0)}, 13")
    else:
        A(f"s_mov_b32 {sr(sKO)}, 0")
    A(f"s_mov_b32 {sr(sVO)}, {sr(sKO)}")
    srd(A, S_OUT, 72, None, str(896 * 4096))
    srd(A, S_XC, sWS, str(X_OFF), str(X_BYTES))
    A(f"s_mov_b32 {sr(sC)}, {C_SCALE:#x}"); A(f"s_mov_b32 {sr(sTHR)}, {THR:#x}")
    A(f"s_mov_b32 {sr(sNON)}, 0"); A(f"s_mov_b32 {sr(sNON+1)}, 0"); A(f"s_mov_b32 {sr(sPEND)}, 0")
    l = A.newlab("L_notag")
    A(f"s_or_b32 {sr(sT0)}, s2, {sr(sWAVE)}"); A(f"s_cmp_lg_u32 {sr(sT0)}, 0"); A(f"s_cbranch_scc1 {l}")
    A(f"s_memrealtime {sr(sLD,2)}"); A("s_waitcnt lgkmcnt(0)")
    A(f"v_mov_b32 {vr(vT+2)}, {sr(sLD)}"); A(f"v_mov_b32 {vr(vT+3)}, {sr(sLD+1)}"); A(f"v_mov_b32 {vr(vT+4)}, 0")
    A(f"v_or_b32 {vr(vT+3)}, 0x80000000, {vr(vT+3)}")
    A("s_mov_b64 exec, 1")
    A(f"global_store_dwordx2 {vr(vT+4)}, {vr(vT+2,2)}, {sr(sDBG,2)} sc1")
    A("s_mov_b64 exec, -1")
    A.lab(l)
    q, g, r = vT, vT + 1, vT + 2
    A(f"v_lshlrev_b32 {vr(vL16)}, 4, {vr(vLANE)}")
    A(f"v_and_b32 {vr(q)}, 15, {vr(vLANE)}")
    A(f"v_lshrrev_b32 {vr(g)}, 4, {vr(vLANE)}")
    A(f"v_bfe_u32 {vr(r)}, {vr(vLANE)}, 1, 3")
    A(f"v_xor_b32 {vr(r)}, {vr(r)}, {vr(g)}")
    A(f"v_lshlrev_b32 {vr(r)}, 4, {vr(r)}")
    A(f"v_lshl_add_u32 {vr(r)}, {vr(q)}, 7, {vr(r)}")
    A(f"s_mul_i32 {sr(sT0)}, {sr(sU)}, {112*128}")
    A(f"v_add_u32 {vr(vXB)}, {sr(sT0)}, {vr(r)}")
    A(f"v_xor_b32 {vr(vXB+1)}, 64, {vr(vXB)}")
    gemm_tr_bases(A, 11)
    q, g, t0 = vT + 3, vT + 4, vT + 5
    A(f"v_and_b32 {vr(q)}, 15, {vr(vLANE)}"); A(f"v_lshrrev_b32 {vr(g)}, 4, {vr(vLANE)}")
    A(f"v_xor_b32 {vr(t0)}, {vr(g)}, {vr(q)}"); A(f"v_lshlrev_b32 {vr(t0)}, 4, {vr(t0)}")
    A(f"v_lshl_add_u32 {vr(t0)}, {vr(q)}, 8, {vr(t0)}")
    A(f"s_lshl_b32 {sr(sT0)}, {sr(sU)}, 13"); A(f"s_add_u32 {sr(sT1)}, {sr(sT0)}, {ASL}"); A(f"s_add_u32 {sr(sT0)}, {sr(sT0)}, {ASL + 16384}")
    A(f"v_add_u32 {vr(vKA)}, {sr(sT0)}, {vr(t0)}")
    for s in range(1, 4):
        A(f"v_xor_b32 {vr(vKA+s)}, {64*s}, {vr(vKA)}")
    for s in range(4):
        A(f"v_add_u32 {vr(vKA+4+s)}, 0x10000, {vr(vKA+s)}")
    tr_base(A, vVA, 10)
    A(f"v_add_u32 {vr(vVA)}, {sr(sT1)}, {vr(vVA)}")
    for dt in range(1, 8):
        A(f"v_xor_b32 {vr(vVA+dt)}, {32*dt}, {vr(vVA)}")
    for dt in range(8):
        A(f"v_add_u32 {vr(vVA+8+dt)}, 0x10000, {vr(vVA+dt)}")
    for i in range(24):
        A(f"v_mov_b32 {vr(vNM+i)}, 0")
    for i in range(128):
        A(f"v_accvgpr_write_b32 {vr(aO+i)}, 0")


def gemm(A, o, kind, vm0, tailfill):
    Q = kind == "Q"
    xk, wk = ("X", "W") if Q else ("O", "G")

    def addrs():
        L = [f"v_add_u32 {vr(vXA+s)}, {sr(sCX)}, {vr(vXB+s)}" for s in range(2)]
        return L + [f"v_add_u32 {vr(vTA+ct)}, {sr(sCW)}, {vr(vTB+ct)}" for ct in range(4)]

    def wr(s):
        L = []
        for ct in range(4):
            f = gW + 16 * s + 4 * ct
            for e in range(2):
                off = 8192 * s + (1024 if Q else 4096) * e
                L.append(("ds", f"ds_read_b64_tr_b16 {vr(f+2*e,2)}, {vr(vTA+ct)} offset:{off}", f"w{s}{ct}"))
        return L

    def xr(s, rt):
        return ("ds", f"ds_read_b128 {vr(gX+28*s+4*rt,4)}, {vr(vXA+s)} offset:{2048*rt}", f"x{s}{rt}")

    def adv(s, size, lo, n):
        return [f"s_add_u32 {sr(s)}, {sr(s)}, {size}", f"s_cmp_ge_u32 {sr(s)}, {lo + n*size}",
                f"s_cselect_b32 {sr(s)}, {lo}, {sr(s)}"]

    def carry():
        return wr(0) + [xr(0, rt) for rt in range(3)]

    def step(first, late, early, last, vm, hook=None, latelo=1):
        mf, after = [], {}
        for k_, v_ in (hook or {}).items():
            put(after, k_, v_)
        for s in range(2):
            for rt in range(7):
                for ct in range(4):
                    a = gACC + 28 * ct + 4 * rt
                    mf.append((mfma(a, gW + 16 * s + 4 * ct, gX + 28 * s + 4 * rt, "0" if (first and s == 0) else a),
                               [f"w{s}{ct}", f"x{s}{rt}"]))
        r = [xr(0, rt) for rt in range(3, 7)] + wr(1) + [xr(1, rt) for rt in range(7)]
        spread(after, [(x, 1) for x in r], 3, 30)
        if late:
            spread(after, [(g, 1) for g in late], latelo, 33)
        if not last:
            put(after, 33, [f"s_mov_b32 {sr(sFW)}, {sr(sCW)}", f"s_mov_b32 {sr(sFX)}, {sr(sCX)}"])
            put(after, 34, adv(sCW, WSL, 0, 3)); put(after, 35, adv(sCX, XSL, XB, 3))
            ad = addrs()
            put(after, 36, ad[:2]); put(after, 37, ad[2:4]); put(after, 38, ad[4:])
            put(after, 40, [("bar", vm)])
            if first and not Q:
                put(after, 40, [("call", lambda: team_signal(A))])
            spread(after, [(x, 1) for x in carry()], 40, 54)
            if early:
                spread(after, [(g, 1) for g in early], 41, 56)
        A.run(mf, after)

    A(f"s_mov_b32 {sr(sCW)}, 0"); A(f"s_mov_b32 {sr(sCX)}, {XB}")
    for s in addrs(): A(s)
    A.emit(("bar", vm0))
    stamp(A, 6, o.stamps and (o.qst == Q))
    for it in carry(): A.emit(it)
    W = lambda sl: dma_w(o, wk, sl)
    X = lambda sl: dma_x(o, xk, sl)
    if Q:
        step(True, X(("imm", XB + XSL))[o.xpre:] + W(("imm", 2 * WSL)), X(("imm", XB + 2 * XSL))[:5], False, 4)
        step(False, X(("imm", XB + 2 * XSL))[5:] + W(sFW) + X(sFX), W(sFW), False, 11)
    else:
        step(True, [], W(sFW), False, 0, {40: []})
        step(False, X(("imm", XB + 2 * XSL)) + X(sFX), W(sFW), False, 7, {o.pollgap: [("call", lambda: team_wait(A))]}, o.pollgap + 1)
    if o.steps == kind:
        stamp(A, 1, True)
        for j in range(2, 13):
            step(False, X(sFX), W(sFW), False, 11)
            if j in (2, 3, 5, 8): stamp(A, {2: 2, 3: 3, 5: 4, 8: 5}[j], True)
    else:
        A(f"s_mov_b32 {sr(sCNT)}, 11")
        q0 = list(A.q)
        l = A.newlab("L_gl")
        A.lab(l)
        step(False, X(sFX), W(sFW), False, 11)
        assert A.q == q0
        A(f"s_sub_u32 {sr(sCNT)}, {sr(sCNT)}, 1"); A(f"s_cmp_lg_u32 {sr(sCNT)}, 0"); A(f"s_cbranch_scc1 {l}")
    step(False, X(sFX), tailfill.get(13, []), False, 11)
    step(False, [], tailfill.get(14, []), False, len(tailfill.get(13, [])))
    step(False, tailfill.get(15, []), [], True, 0)
    stamp(A, 7, o.stamps and (o.qst == Q))
    if o.steps == kind:
        A("s_waitcnt vmcnt(0)"); write_stamps(A); A("s_endpgm")


def q_finish(A, o):
    A.emit(("bar", 63))
    A(f"v_mov_b32 {vr(vT)}, 0")
    A(f"global_load_dwordx2 {vr(vTAG,2)}, {vr(vT)}, {sr(sDBG,2)} sc1")
    A.groups(dma_k(o, 1)); A.groups(dma_v(o, 1))
    q, g, t0, t1 = vT, vT + 1, vT + 2, vT + 3
    A(f"v_and_b32 {vr(q)}, 15, {vr(vLANE)}")
    A(f"v_lshrrev_b32 {vr(g)}, 4, {vr(vLANE)}")
    A(f"v_lshrrev_b32 {vr(t0)}, 1, {vr(g)}")
    A(f"s_lshl_b32 {sr(sT0)}, {sr(sC2)}, 3")
    A(f"v_xor_b32 {vr(t0)}, {sr(sT0)}, {vr(t0)}")
    A(f"v_xor_b32 {vr(t0)}, {vr(t0)}, {vr(q)}")
    A(f"v_lshlrev_b32 {vr(t0)}, 4, {vr(t0)}")
    A(f"v_and_b32 {vr(t1)}, 1, {vr(g)}")
    A(f"v_lshl_add_u32 {vr(t0)}, {vr(t1)}, 3, {vr(t0)}")
    A(f"s_mul_i32 {sr(sT0)}, {sr(sU)}, {112*256}")
    A(f"v_lshl_add_u32 {vr(t1)}, {vr(q)}, 8, {sr(sT0)}")
    A(f"v_add_u32 {vr(vTA)}, {vr(t0)}, {vr(t1)}")
    for ct in range(1, 4):
        A(f"v_xor_b32 {vr(vTA+ct)}, {32*ct}, {vr(vTA)}")
    A(f"v_mov_b32 {vr(vXA)}, {sr(sC)}"); A(f"v_mov_b32 {vr(vXA+1)}, {sr(sC)}")
    for ct in range(4):
        for rt in range(7):
            a = gACC + 28 * ct + 4 * rt
            d = gX + 2 * ((ct * 7 + rt) % 8)
            A(f"v_pk_mul_f32 {vr(a,2)}, {vr(a,2)}, {vr(vXA,2)}")
            A(f"v_pk_mul_f32 {vr(a+2,2)}, {vr(a+2,2)}, {vr(vXA,2)}")
            A(f"v_cvt_pk_bf16_f32 {vr(d)}, {vr(a)}, {vr(a+1)}")
            A(f"v_cvt_pk_bf16_f32 {vr(d+1)}, {vr(a+2)}, {vr(a+3)}")
            A(f"ds_write_b64 {vr(vTA+ct)}, {vr(d,2)} offset:{4096*rt}")
            if (ct * 7 + rt) % 8 == 7:
                A("s_waitcnt lgkmcnt(4)")
    A(f"v_xor_b32 {vr(t0)}, {vr(g)}, {vr(q)}")
    A(f"v_lshlrev_b32 {vr(t0)}, 4, {vr(t0)}")
    A(f"s_lshl_b32 {sr(sT0)}, {sr(sC2)}, 14")
    A(f"v_add3_u32 {vr(t1)}, {vr(t1)}, {vr(t0)}, {sr(sT0)}")
    A.emit(("bar", 63))
    for s in range(4):
        A(f"v_xor_b32 {vr(vTA+s)}, {64*s}, {vr(t1)}")
    for qt in range(4):
        for s in range(4):
            A(f"ds_read_b128 {vr(aQ+16*qt+4*s,4)}, {vr(vTA+s)} offset:{4096*qt}")
            if qt == 2 and s == 3:
                A("s_waitcnt lgkmcnt(4)")
    A.emit(("bar", 17))


def kreads(slot):
    L = []
    for s in range(4):
        for kt in range(2):
            L.append(("ds", f"ds_read_b128 {vr(vKF+16*kt+4*s,4)}, {vr(vKA+4*(slot>>1)+s)} offset:{(slot&1)*ASL+4096*kt}", f"k{kt}{s}"))
    return L


def new_max(S, NT, clamp):
    L = []
    for qt in range(NT):
        mx, o2 = vT, vT + 1
        a, b = S + 4 * qt, S + 16 + 4 * qt
        L += [f"v_max3_f32 {vr(mx)}, {vr(a)}, {vr(a+1)}, {vr(a+2)}", f"v_max3_f32 {vr(mx)}, {vr(mx)}, {vr(a+3)}, {vr(b)}",
              f"v_max3_f32 {vr(mx)}, {vr(mx)}, {vr(b+1)}, {vr(b+2)}", f"v_max_f32 {vr(mx)}, {vr(mx)}, {vr(b+3)}"]
        for sw in ("16", "32"):
            L += [f"v_mov_b32 {vr(o2)}, {vr(mx)}", "s_nop 1", f"v_permlane{sw}_swap_b32 {vr(mx)}, {vr(o2)}", "s_nop 1",
                  f"v_max_f32 {vr(mx)}, {vr(mx)}, {vr(o2)}"]
        if clamp:
            L += [f"v_max_f32 {vr(mx)}, 0, {vr(mx)}", f"v_exp_f32 {vr(vFAC+qt)}, -{vr(mx)}"]
        L += [f"v_sub_f32 {vr(x+i)}, {vr(x+i)}, {vr(mx)}" for x in (a, b, vNM + 4 * qt) for i in range(4)]
        if clamp:
            L += [f"v_mul_f32 {vr(vLS+2*qt+i)}, {vr(vLS+2*qt+i)}, {vr(vFAC+qt)}" for i in range(2)]
    return L


def attention(A, o0, NT, tail, br):
    import copy
    o = copy.copy(o0)
    o.nt = o0.ntA if br == 0 else o0.ntB
    o.win = o0.win if br == 0 else (o0.winB if o0.winB >= 0 else o0.win)
    tag = f"_{NT}_{br}"
    NQ = 8 * NT
    NE = 2 * NT
    sreg = lambda S, i: S + 16 * ((i >> 2) & 1) + 4 * (i >> 3) + (i & 3)

    def vreads(slot):
        return [("ds", f"ds_read_b64_tr_b16 {vr(vVF+4*dt+2*e,2)}, {vr(vVA+8*(slot>>1)+dt)} offset:{(slot&1)*ASL+4096*e}", f"v{dt}")
                for dt in range(8) for e in range(2)]

    def part2(Sp, qt):
        st = []
        for i in range(8 * qt, 8 * qt + 8):
            if i + NE < NQ:
                r = sreg(Sp, i + NE)
                st.append((f"v_exp_f32 {vr(r)}, {vr(r)}", 8))
            if i & 1:
                r = sreg(Sp, i - 1)
                st.append((f"v_pk_add_f32 {vr(vLS+2*qt,2)}, {vr(vLS+2*qt,2)}, {vr(r,2)}", 4.5))
                st.append((f"v_cvt_pk_bf16_f32 {vr(vP+4*qt+((i&7)>>1))}, {vr(r)}, {vr(r+1)}", 4.5))
        return st

    def pend_check():
        l2, b2 = A.newlab("L_r2"), A.newlab("L_b2")
        tail.append(("r2", l2, b2, NT))
        return [f"s_cmp_lg_u32 {sr(sPEND)}, 0", f"s_cbranch_scc1 {l2}", ("lab", b2)]

    def it(u, first=False, kload=True, vload=True, vmb=8, extra=(), knext=True):
        p = u & 1
        S, Sp = vS + 32 * p, vS + 32 * (1 - p)
        slot, nslot, kslot, pslot = (3 - u) & 3, (2 - u) & 3, (-u) & 3, (1 - u) & 3
        mf, after = [], {}
        allk = [f"k{kt}{s}" for kt in range(2) for s in range(4)]
        for s in range(4):
            for kt in range(2):
                for qt in range(NT):
                    d = S + 16 * kt + 4 * qt
                    mf.append((mfma(d, vKF + 16 * kt + 4 * s, aQ + 16 * qt + 4 * s, vNM + 4 * qt if s == 0 else d),
                               [f"k{kt}{s}"] if first else allk))
        mx = vT
        order = [sreg(S, i) for i in range(NQ)]
        order.sort(key=lambda r: ((r - S) >> 4, (r - S) & 15))
        m1 = [f"v_max3_f32 {vr(mx)}, {vr(order[0])}, {vr(order[1])}, {vr(order[2])}"]
        m1 += [f"v_max3_f32 {vr(mx)}, {vr(mx)}, {vr(order[i])}, {vr(order[i+1])}" for i in range(3, NQ - 1, 2)]
        m1 += [f"v_max_f32 {vr(mx)}, {vr(mx)}, {vr(order[NQ-1])}"]
        E1 = [f"v_exp_f32 {vr(sreg(S,i))}, {vr(sreg(S,i))}" for i in range(NE)]
        kr = kreads(nslot)
        if first:
            put(after, NQ - 1, [("bar", vmb)] + kr + sum(dma_k(o, kslot), []) + ["s_nop 3"] + new_max(S, NT, False) + E1)
            A.run(mf, after)
            return
        for qt in range(NT):
            for dt in range(8):
                mf.append((mfma(aO + 16 * dt + 4 * qt, vVF + 4 * dt, vP + 4 * qt, aO + 16 * dt + 4 * qt), [f"v{dt}"]))
        spread(after, [(x, 1) for x in vreads(slot)], 0, NQ - 2)
        if vload:
            spread(after, [(g, 1) for g in dma_v(o, pslot, o.win)], 0, NQ + 2)
        put(after, 4, pend_check())
        st, due = [], {}
        for qt in range(NT):
            st += part2(Sp, qt)
            due[qt] = len(st) - 1
        i_m1 = len(st)
        l1, b1 = A.newlab("L_r1"), A.newlab("L_b1")
        tail.append(("r1", l1, b1, S, NT))
        st += [(x, 4.5) for x in m1]
        st.append(([f"v_cmp_lt_f32 vcc, {sr(sTHR)}, {vr(mx)}", f"s_cbranch_vccnz {l1}", ("lab", b1)], 9))
        st += [(x, 8) for x in E1]
        pos = spread(after, st, 0, 2 * NQ)
        for qt in range(NT):
            assert pos[due[qt]] < NQ + 8 * qt - 2, (qt, pos[due[qt]])
        assert pos[i_m1] >= NQ + 4, pos[i_m1]
        put(after, NQ + 2, [("bar", vmb)])
        if knext:
            spread(after, [(x, 1) for x in kr], NQ + 3, 2 * NQ - 6)
        if kload:
            spread(after, [(g, 1) for g in dma_k(o, kslot, o.win)], NQ + 3, 2 * NQ)
        if extra:
            spread(after, [(g, 1) for g in extra], NQ + 3, 2 * NQ)
        A.run(mf, after)

    A.q = []
    for x in kreads(3): A.emit(x)
    it(0, first=True)
    q0 = list(A.q)
    g_setup(A, o)
    A(f"s_mov_b32 {sr(sCNT)}, 7")
    A.lab("L_aloop" + tag)
    for u in (1, 2, 3, 0):
        it(u)
    assert A.q == q0
    A(f"s_sub_u32 {sr(sCNT)}, {sr(sCNT)}, 1"); A(f"s_cmp_lg_u32 {sr(sCNT)}, 0"); A(f"s_cbranch_scc1 L_aloop{tag}")
    it(1, kload=False)
    it(2, kload=False, vmb=4)
    wpre = dma_w(o, "G", ("imm", 0)) + dma_w(o, "G", ("imm", WSL)) + dma_w(o, "G", ("imm", 2 * WSL))
    itq = list(A.q)
    it31(A, o, NT, it, wpre)
    stamp(A, 2, o.stamps)
    Sp = vS + 32
    for x in vreads(3): A.emit(x)
    for x in pend_check(): A.emit(x)

    def lred(qt):
        a, b = vLS + 2 * qt, vLS + 2 * qt + 1
        L = [f"v_add_f32 {vr(a)}, {vr(a)}, {vr(b)}"]
        for sw in ("16", "32"):
            L += [f"v_mov_b32 {vr(b)}, {vr(a)}", "s_nop 1", f"v_permlane{sw}_swap_b32 {vr(a)}, {vr(b)}", "s_nop 1", f"v_add_f32 {vr(a)}, {vr(a)}, {vr(b)}"]
        return L + [f"v_rcp_f32 {vr(a)}, {vr(a)}", "s_nop 0", f"v_mov_b32 {vr(b)}, {vr(a)}"]

    def outq(qt):
        L = []
        for m in range(4):
            t = vS + 8 * m
            d = vKF + 4 * ((4 * qt + m) % 8)
            L += [f"v_accvgpr_read_b32 {vr(t+i)}, {vr(aO + 16*(2*m + (i>>2)) + 4*qt + (i&3))}" for i in range(8)]
            L += [f"v_pk_mul_f32 {vr(t+2*i,2)}, {vr(t+2*i,2)}, {vr(vLS+2*qt,2)}" for i in range(4)]
            L += [f"v_cvt_pk_bf16_f32 {vr(d+i)}, {vr(t+2*i)}, {vr(t+2*i+1)}" for i in range(4)]
            L.append(f"buffer_store_dwordx4 {vr(d,4)}, {vr(vL16)}, {sr(S_X,4)}, {sr(sOST)} offen offset:{m*1024} sc1")
            L.append(f"ds_write_b128 {vr(vOW)}, {vr(d,4)} offset:{(m>>1)*XSL + qt*2048 + (m&1)*1024}")
        L.append(f"s_add_u32 {sr(sOST)}, {sr(sOST)}, 0x20000")
        return L

    for x, _ in part2(Sp, 0): A(x)
    mf, after = [], {}
    for qt in range(NT):
        for dt in range(8):
            mf.append((mfma(aO + 16 * dt + 4 * qt, vVF + 4 * dt, vP + 4 * qt, aO + 16 * dt + 4 * qt), [f"v{dt}"]))
        st = [(x, 1) for x in lred(qt)]
        if qt + 1 < NT:
            st = [(x, 1) for x, _ in part2(Sp, qt + 1)] + st
        spread(after, st, 8 * qt, 8 * qt + 7)
        put(after, 8 * qt + 7, ["s_nop 1"])
    A("s_nop 1")
    A.run(mf, after)
    A("s_nop 3")
    for qt in range(NT):
        for x in outq(qt): A(x)
    A(f"s_waitcnt vmcnt({4*NT}) lgkmcnt(0)")


def it31(A, o, NT, it, wpre):
    it(3, kload=False, vload=False, vmb=0, extra=wpre, knext=None)


def rare_blocks(A, o, tail):
    r2, r1 = {}, {}
    for t in tail:
        if t[0] == "r1":
            _, l1, b1, S, NT = t
            k = len(r1.setdefault((NT, S), []))
            r1[(NT, S)].append(b1)
            A.lab(l1)
            A(f"s_mov_b32 {sr(sT0)}, {k}"); A(f"s_branch L_r1c_{NT}_{S}")
        else:
            _, l2, b2, NT = t
            k = len(r2.setdefault(NT, []))
            r2[NT].append(b2)
            A.lab(l2)
            A(f"s_mov_b32 {sr(sPEND)}, {k}"); A(f"s_branch L_r2c_{NT}")
    for (NT, S), backs in r1.items():
        A.lab(f"L_r1c_{NT}_{S}")
        for x in new_max(S, NT, True): A(x)
        A(f"s_mov_b32 {sr(sPEND)}, 1")
        for k, b in enumerate(backs[:-1]):
            A(f"s_cmp_eq_u32 {sr(sT0)}, {k}"); A(f"s_cbranch_scc1 {b}")
        A(f"s_branch {backs[-1]}")
    for NT, backs in r2.items():
        A.lab(f"L_r2c_{NT}")
        A("s_nop 7")
        for dt in range(8):
            for qt in range(NT):
                for i in range(4):
                    A(f"v_accvgpr_read_b32 {vr(vT+i)}, {vr(aO+16*dt+4*qt+i)}")
                for i in range(4):
                    A(f"v_mul_f32 {vr(vT+i)}, {vr(vT+i)}, {vr(vFAC+qt)}")
                for i in range(4):
                    A(f"v_accvgpr_write_b32 {vr(aO+16*dt+4*qt+i)}, {vr(vT+i)}")
        A(f"s_mov_b32 {sr(sT0)}, {sr(sPEND)}"); A(f"s_mov_b32 {sr(sPEND)}, 0")
        for k, b in enumerate(backs[:-1]):
            A(f"s_cmp_eq_u32 {sr(sT0)}, {k}"); A(f"s_cbranch_scc1 {b}")
        A(f"s_branch {backs[-1]}")


def g_setup(A, o):
    q0 = list(A.q)
    A(f"s_load_dwordx2 {sr(sLD,2)}, {sr(sKA,2)}, 32")
    w_offsets(A, 11, False)
    A("s_waitcnt lgkmcnt(0)")
    A(f"s_lshl_b32 {sr(sT0)}, {sr(sHG)}, 21"); A(f"s_lshl_b32 {sr(sT1)}, {sr(sHL)}, 8"); A(f"s_add_u32 {sr(sT0)}, {sr(sT0)}, {sr(sT1)}")
    srd(A, S_W, sLD, sr(sT0), "0")
    A(f"s_sub_u32 {sr(S_W+2)}, 0x800000, {sr(sT0)}")
    A(f"s_lshl_b32 {sr(sWO_)}, {sr(sHL)}, 18")
    for t_, sq in enumerate(gseqs()):
        lo, hi = seq_words(sq)
        if t_ == 0:
            A(f"s_mov_b32 {sr(sSW)}, {lo:#x}"); A(f"s_mov_b32 {sr(sSW+1)}, {hi:#x}")
        else:
            A(f"s_cmp_eq_u32 {sr(sTAU)}, {t_}")
            A(f"s_cselect_b32 {sr(sSW)}, {lo:#x}, {sr(sSW)}"); A(f"s_cselect_b32 {sr(sSW+1)}, {hi:#x}, {sr(sSW+1)}")
    A(f"s_lshl_b32 {sr(sT3)}, {sr(sHL)}, 1")
    seq_add(A, sSW, sT3)
    A(f"s_lshr_b64 {sr(sSX,2)}, {sr(sSW,2)}, 4")
    for x in next_chunk(sSX, sXO, 11): A(x)
    A(f"s_mul_i32 {sr(sT0)}, {sr(sWAVE)}, 7")
    for t in range(4):
        A(f"s_add_u32 {sr(sT1)}, {sr(sT0)}, {t}")
        A(f"s_lshr_b32 {sr(sT2)}, {sr(sT1)}, 1"); A(f"s_lshl_b32 {sr(sT2)}, {sr(sT2)}, 17")
        A(f"s_and_b32 {sr(sT1)}, {sr(sT1)}, 1"); A(f"s_lshl_b32 {sr(sT1)}, {sr(sT1)}, 10"); A(f"s_add_u32 {sr(sT1)}, {sr(sT1)}, {sr(sT2)}")
        A(f"s_sub_u32 {sr(sT1)}, {sr(sT1)}, {1024*t}")
        A(f"v_add_u32 {vr(vDX+t)}, {sr(sT1)}, {vr(vL16)}")
    A(f"s_mul_i32 {sr(sT0)}, {sr(sU)}, {14*1024}")
    A(f"v_add_u32 {vr(vXB)}, {sr(sT0)}, {vr(vL16)}")
    A(f"v_add_u32 {vr(vXB+1)}, 1024, {vr(vXB)}")
    A(f"s_lshl_b32 {sr(sT1)}, {sr(sC2)}, 13"); A(f"s_add_u32 {sr(sT1)}, {sr(sT1)}, {XB}")
    A(f"v_add_u32 {vr(vOW)}, {sr(sT1)}, {vr(vXB)}")
    gemm_tr_bases(A, 10)
    A(f"s_lshl_b32 {sr(sT0)}, {sr(sBR)}, 3"); A(f"s_add_u32 {sr(sT0)}, {sr(sT0)}, {sr(sB)}"); A(f"s_mul_i32 {sr(sT0)}, {sr(sT0)}, {7 << 17}")
    A(f"s_mul_i32 {sr(sOST)}, {sr(sU)}, 7"); A(f"s_lshl_b32 {sr(sT1)}, {sr(sC2)}, 2"); A(f"s_add_u32 {sr(sOST)}, {sr(sOST)}, {sr(sT1)}")
    A(f"s_lshl_b32 {sr(sOST)}, {sr(sOST)}, 17"); A(f"s_add_u32 {sr(sOST)}, {sr(sOST)}, {sr(sT0)}")
    A(f"s_lshl_b32 {sr(sT1)}, {sr(sH)}, 12"); A(f"s_add_u32 {sr(sOST)}, {sr(sOST)}, {sr(sT1)}")
    A(f"s_lshl_b32 {sr(sT3)}, {sr(sHG)}, 15"); A(f"s_add_u32 {sr(sT0)}, {sr(sT0)}, {sr(sT3)}")
    srd(A, S_O, sWS, sr(sT0), str(14 << 17))
    srd(A, S_X, sWS, None, str(O_BYTES))
    A(f"s_lshl_b32 {sr(sFL)}, {sr(sBR)}, 2"); A(f"s_add_u32 {sr(sFL)}, {sr(sFL)}, {sr(sTAU)}"); A(f"s_lshl_b32 {sr(sFL)}, {sr(sFL)}, 2")
    A(f"s_add_u32 {sr(sFL)}, {sr(sFL)}, {sr(sHG)}"); A(f"s_lshl_b32 {sr(sFL)}, {sr(sFL)}, 7"); A(f"s_add_u32 {sr(sFL)}, {sr(sFL)}, {F_RDY}")
    A(f"v_readfirstlane_b32 {sr(sNON)}, {vr(vTAG)}"); A(f"v_readfirstlane_b32 {sr(sNON+1)}, {vr(vTAG+1)}")
    A.q = q0


def exchange(A, o):
    A(f"s_lshl_b32 {sr(sT0)}, {sr(sBR)}, 2"); A(f"s_add_u32 {sr(sT0)}, {sr(sT0)}, {sr(sTAU)}")
    A(f"s_lshl_b32 {sr(sT0)}, {sr(sT0)}, 3"); A(f"s_add_u32 {sr(sT0)}, {sr(sT0)}, {sr(sHL)}")
    A(f"s_lshl_b32 {sr(sT2)}, {sr(sT0)}, 7"); A(f"s_add_u32 {sr(sT2)}, {sr(sT2)}, {F_XCH}")
    A(f"s_lshl_b32 {sr(sXB)}, {sr(sT0)}, 19"); A(f"s_lshl_b32 {sr(sT1)}, {sr(sWAVE)}, 13"); A(f"s_add_u32 {sr(sXB)}, {sr(sXB)}, {sr(sT1)}")
    A(f"s_lshl_b32 {sr(sT0)}, {sr(sHG)}, 15"); A(f"s_add_u32 {sr(sT0)}, {sr(sT0)}, {sr(sXB)}")
    for ow in range(4):
        ls = A.newlab("L_skip")
        A(f"s_cmp_eq_u32 {sr(sHG)}, {ow}"); A(f"s_cbranch_scc1 {ls}")
        A(f"s_add_u32 {sr(sT1)}, {sr(sT0)}, {ow << 17}")
        if o.xbf:
            t = gT + 16 * (ow % 3)
            for i in range(14):
                A(f"v_cvt_pk_bf16_f32 {vr(t+i)}, {vr(gACC+28*ow+2*i)}, {vr(gACC+28*ow+2*i+1)}")
            for j in range(3):
                A(f"buffer_store_dwordx4 {vr(t+4*j,4)}, {vr(vL16)}, {sr(S_XC,4)}, {sr(sT1)} offen offset:{j*1024} sc1")
            A(f"buffer_store_dwordx2 {vr(t+12,2)}, {vr(vL16)}, {sr(S_XC,4)}, {sr(sT1)} offen offset:3072 sc1")
        else:
            A(f"s_add_u32 {sr(sT3)}, {sr(sT1)}, 4096")
            for rt in range(7):
                A(f"buffer_store_dwordx4 {vr(gACC+28*ow+4*rt,4)}, {vr(vL16)}, {sr(S_XC,4)}, {sr(sT1 if rt < 4 else sT3)} offen offset:{(rt&3)*1024} sc1")
        A.lab(ls)
    R = gX
    lj = A.newlab("L_own")
    for ow in range(4):
        ls = A.newlab("L_no")
        A(f"s_cmp_eq_u32 {sr(sHG)}, {ow}"); A(f"s_cbranch_scc0 {ls}")
        for i in range(28):
            A(f"v_mov_b32 {vr(R+i)}, {vr(gACC+28*ow+i)}")
        A(f"s_branch {lj}")
        A.lab(ls)
    A.lab(lj)
    A(f"s_lshl_b32 {sr(sT1)}, {sr(sHG)}, 3"); A(f"s_add_u32 {sr(sT1)}, {sr(sT1)}, {sr(sT2)}")
    stamp(A, 1, o.xst)
    A.emit(("bar", 0))
    stamp(A, 2, o.xst)
    signal_wait(A, sT1, sT2, 4, 1)
    stamp(A, 3, o.xst)
    A(f"s_lshl_b32 {sr(sT0)}, {sr(sHG)}, 17"); A(f"s_add_u32 {sr(sXB)}, {sr(sXB)}, {sr(sT0)}")
    for k in range(1, 4):
        A(f"s_add_u32 {sr(sT1)}, {sr(sHG)}, {k}"); A(f"s_and_b32 {sr(sT1)}, {sr(sT1)}, 3"); A(f"s_lshl_b32 {sr(sT1)}, {sr(sT1)}, 15")
        A(f"s_add_u32 {sr(sT1)}, {sr(sT1)}, {sr(sXB)}"); A(f"s_add_u32 {sr(sT3)}, {sr(sT1)}, 4096")
        if o.xbf:
            for j in range(4):
                A(f"buffer_load_dwordx4 {vr(gACC+16*(k-1)+4*j,4)}, {vr(vL16)}, {sr(S_XC,4)}, {sr(sT1)} offen offset:{j*1024} sc1")
        else:
            for rt in range(7):
                A(f"buffer_load_dwordx4 {vr(gACC+28*(k-1)+4*rt,4)}, {vr(vL16)}, {sr(S_XC,4)}, {sr(sT1 if rt < 4 else sT3)} offen offset:{(rt&3)*1024} sc1")
    t1, t2 = vT, vT + 1
    A(f"s_add_u32 {sr(sT0)}, {sr(sB)}, {sr(sU)}"); A(f"s_mul_i32 {sr(sT0)}, {sr(sT0)}, {112*4096}")
    A(f"s_lshl_b32 {sr(sT1)}, {sr(sBR)}, 11"); A(f"s_add_u32 {sr(sT0)}, {sr(sT0)}, {sr(sT1)}")
    A(f"s_lshl_b32 {sr(sT1)}, {sr(sHL)}, 8"); A(f"s_add_u32 {sr(sT0)}, {sr(sT0)}, {sr(sT1)}")
    A(f"s_lshl_b32 {sr(sT1)}, {sr(sC2)}, 7"); A(f"s_add_u32 {sr(sT0)}, {sr(sT0)}, {sr(sT1)}")
    A(f"s_lshl_b32 {sr(sT1)}, {sr(sHG)}, 5"); A(f"s_add_u32 {sr(sT0)}, {sr(sT0)}, {sr(sT1)}")
    A(f"v_and_b32 {vr(t1)}, 15, {vr(vLANE)}"); A(f"v_lshlrev_b32 {vr(t1)}, 12, {vr(t1)}")
    A(f"v_lshrrev_b32 {vr(t2)}, 4, {vr(vLANE)}"); A(f"v_lshl_add_u32 {vr(t1)}, {vr(t2)}, 3, {vr(t1)}")
    for k in range(1, 4):
        if o.xbf:
            A(f"s_waitcnt vmcnt({12 - 4*k})")
            for i in range(14):
                p = gACC + 16 * (k - 1) + i
                A(f"v_lshlrev_b32 {vr(vT+2)}, 16, {vr(p)}"); A(f"v_and_b32 {vr(vT+3)}, 0xffff0000, {vr(p)}")
                A(f"v_pk_add_f32 {vr(R+2*i,2)}, {vr(R+2*i,2)}, {vr(vT+2,2)}")
        else:
            A(f"s_waitcnt vmcnt({21 - 7*k})")
            for i in range(0, 28, 2):
                A(f"v_pk_add_f32 {vr(R+i,2)}, {vr(R+i,2)}, {vr(gACC+28*(k-1)+i,2)}")
    stamp(A, 4, o.xst)
    for rt in range(7):
        A(f"v_cvt_pk_bf16_f32 {vr(gT+2*rt)}, {vr(R+4*rt)}, {vr(R+4*rt+1)}")
        A(f"v_cvt_pk_bf16_f32 {vr(gT+2*rt+1)}, {vr(R+4*rt+2)}, {vr(R+4*rt+3)}")
        A(f"buffer_store_dwordx2 {vr(gT+2*rt,2)}, {vr(t1)}, {sr(S_OUT,4)}, {sr(sT0)} offen{o.outfl}")
        A(f"s_add_u32 {sr(sT0)}, {sr(sT0)}, {16*4096}")


def build(o):
    A = Asm()
    st = o.stamps
    for l in HEADER.splitlines(): A(l)
    A(f"; @launch grid=(256,1,1) block=(256,1,1) lds={LDS}")
    A('.amdgcn_target "amdgcn-amd-amdhsa--gfx950"'); A(".text")
    A(f".globl {KN}"); A(".p2align 8"); A(f".type {KN},@function"); A.lab(KN)
    A(f"s_cmp_ge_u32 s2, 256"); A("s_cbranch_scc1 L_exit")
    tail = []
    stamp(A, 0, st)
    if o.ticket:
        ticket(A)
    prologue(A, o)
    gemm(A, o, "Q", 4 + o.xpre, {13: dma_k(o, 3), 14: dma_k(o, 2), 15: dma_v(o, 2)})
    q_finish(A, o)
    stamp(A, 1, st)
    two = o.ntA != o.ntB or o.winB >= 0
    if two:
        A(f"s_bitcmp1_b32 s2, {o.selbit}"); A("s_cbranch_scc1 L_attB")
    for br in range(2 if two else 1):
        if br: A.lab("L_attB")
        A(f"s_cmp_lg_u32 {sr(sC2)}, 0"); A(f"s_cbranch_scc1 L_att3_{br}")
        attention(A, o, 4, tail, br)
        A("s_branch L_attdone")
        A.lab(f"L_att3_{br}")
        attention(A, o, 3, tail, br)
        A("s_branch L_attdone")
    A.lab("L_attdone")
    stamp(A, 3, st)
    A.q = []
    gemm(A, o, "G", 63, {})
    exchange(A, o)
    if o.xst:
        stamp(A, 6, True); A("s_waitcnt vmcnt(0)")
    A.lab("L_fin")
    stamp(A, 5, st)
    if st and o.dbgst:
        l = A.newlab("L_ds")
        A(f"s_cmp_eq_u32 s2, 253"); A(f"s_cselect_b32 {sr(sT1)}, 36, 8")
        A(f"s_cselect_b32 {sr(sT0)}, 0, s2"); A(f"s_or_b32 {sr(sT0)}, {sr(sT0)}, {sr(sWAVE)}"); A(f"s_cmp_lg_u32 {sr(sT0)}, 0"); A(f"s_cbranch_scc1 {l}")
        A(f"v_mov_b32 v2, {sr(sT1)}")
        for i in range(1, 8):
            A(f"s_sub_u32 {sr(sT0)}, {sr(sST+2*i)}, {sr(sST)}"); A(f"v_mov_b32 v3, {sr(sT0)}")
            A(f"global_store_dword v2, v3, {sr(sDBG,2)} offset:{4*(i-1)}")
        A.lab(l)
    elif st:
        write_stamps(A)
    A.lab("L_exit")
    A("s_endpgm")
    rare_blocks(A, o, tail)
    A('.section .rodata,"a"')
    A(".p2align 6")
    A(f".amdhsa_kernel {KN}")
    A("  .amdhsa_next_free_vgpr 480"); A("  .amdhsa_next_free_sgpr 100"); A("  .amdhsa_accum_offset 256")
    A("  .amdhsa_group_segment_fixed_size 0"); A("  .amdhsa_kernarg_size 104"); A("  .amdhsa_user_sgpr_count 2")
    A("  .amdhsa_user_sgpr_kernarg_segment_ptr 1"); A("  .amdhsa_system_sgpr_workgroup_id_x 1")
    A(".end_amdhsa_kernel")
    return A.text()


if __name__ == "__main__":
    ap = argparse.ArgumentParser()
    ap.add_argument("-o", default="concat_heads__mha_block_cached__gqa_block_cached__near_ridge.s")
    ap.add_argument("--stamps", action="store_true")
    ap.add_argument("--qst", action="store_true")
    ap.add_argument("--pst", action="store_true")
    ap.add_argument("--nt", default="KV")
    ap.add_argument("--krot", type=int, default=0)
    ap.add_argument("--ntA", default="KV")
    ap.add_argument("--ntB", default="KV")
    ap.add_argument("--dbgst", action="store_true")
    ap.add_argument("--steps", default="")
    ap.add_argument("--qseq", type=int, default=1)
    ap.add_argument("--la", type=int, default=3)
    ap.add_argument("--win", type=int, default=5)
    ap.add_argument("--pollgap", type=int, default=6)
    ap.add_argument("--xpre", type=int, default=2)
    ap.add_argument("--xst", action="store_true")
    ap.add_argument("--winB", type=int, default=-1)
    ap.add_argument("--selbit", type=int, default=2)
    ap.add_argument("--ticket", type=int, default=1)
    ap.add_argument("--xbf", type=int, default=1)
    ap.add_argument("--outfl", default=" sc1")
    ap.add_argument("--nokv", action="store_true")
    a = ap.parse_args()
    open(a.o, "w").write(build(a))
```

```python
import sys, argparse, struct, math

KN = "concat_heads__mha_block_cached__gqa_block_cached__near_ridge_kernel"
WS_BYTES = 305659904
O_BYTES = 16 * 7 * 128 * 1024
X_OFF = O_BYTES
X_BYTES = 8 * 8 * 4 * 4 * 4 * 8192
F_RDY = X_OFF + X_BYTES
F_XCH = F_RDY + 32 * 128
WSL, XSL, XB = 16384, 28672, 49152
ASL = 32768
LDS = 163840
f32 = lambda x: struct.unpack("<I", struct.pack("<f", x))[0]
C_SCALE = f32(math.log2(math.e) / math.sqrt(128.0))
THR = f32(8.0)
OOB = 0x40000000

HEADER = """\
; -> output projection tile (224x128 over 8 heads) -> partial sums exchanged through ws between 4 workgroups -> out.
"""


class Asm:
    def __init__(self):
        self.L = []
        self.uid = 0
        self.q = []
        self.clock = 0
        self.born = {}
        self.lazy = 0

    def __call__(self, s):
        self.L.append(s)

    def lab(self, name):
        self.L.append(name + ":")

    def newlab(self, p="L"):
        self.uid += 1
        return f"{p}_{self.uid}"

    def ds(self, txt, tag):
        assert len(self.q) < 15, "too many LDS ops outstanding"
        self.L.append(txt); self.q.append(tag); self.born[tag] = self.clock

    def need(self, tags):
        pos = max([i for i, t in enumerate(self.q) if t in tags], default=-1)
        if pos >= 0:
            while self.lazy and pos + 1 < len(self.q) and self.clock - self.born[self.q[pos + 1]] >= self.lazy:
                pos += 1
            self.L.append(f"s_waitcnt lgkmcnt({len(self.q) - pos - 1})")
            self.q = self.q[pos + 1:]

    def emit(self, it):
        if isinstance(it, str):
            self(it)
        elif it[0] == "ds":
            if len(self.q) >= 15:
                self.need([self.q[3]])
            self.ds(it[1], it[2])
        elif it[0] == "bar":
            self(f"s_waitcnt vmcnt({it[1]}) lgkmcnt(0)"); self.q = []
            self("s_barrier")
        elif it[0] == "lab":
            self.lab(it[1])
        elif it[0] == "call":
            it[1]()

    def groups(self, gs):
        for g in gs:
            for s in g: self(s)

    def run(self, mf, after):
        for m, (txt, tags) in enumerate(mf):
            self.need(tags)
            self(txt)
            self.clock += 1
            for it in after.get(m, []): self.emit(it)

    def text(self):
        return "\n".join(self.L) + "\n"


def vr(a, n=1):
    p, a = ("a", a - 256) if a >= 256 else ("v", a)
    return f"{p}{a}" if n == 1 else f"{p}[{a}:{a+n-1}]"


def sr(a, n=1):
    return f"s{a}" if n == 1 else f"s[{a}:{a+n-1}]"


def mfma(d, a, b, c):
    return f"v_mfma_f32_16x16x32_bf16 {vr(d,4)}, {vr(a,4)}, {vr(b,4)}, {c if c == '0' else vr(c,4)}"


def put(after, m, items):
    after.setdefault(m, []).extend(items)


def spread(after, items, lo, hi):
    tot = sum(c for _, c in items)
    acc, pos = 0.0, []
    for its, c in items:
        g = lo + int((acc + c / 2) / tot * (hi - lo))
        put(after, g, its if isinstance(its, list) else [its])
        pos.append(g); acc += c
    return pos


S_X, S_W, S_K, S_V, S_O, S_XC, S_OUT = 4, 8, 12, 16, 20, 24, 28
S_T = S_O
sWAVE, sBR, sB, sH, sHG, sHL = 32, 33, 34, 35, 38, 39
sKA = 36
sDBG = 40
sWS = 42
sT0, sT1, sT2, sT3 = 44, 45, 46, 47
sXS = 48
sXF = 51
sXL = [3, 100, 101]
sOO = 93
sWM, sXM, sAM = 52, 80, 81
sCNT = 53
sXO, sWO_ = 54, 55
sKO, sVO = 56, 57
sC, sTHR = 58, 59
sEX = 60
sLD = 62
sST = 64
sPEND = 82
sSPIN = 83
sU, sC2 = 84, 85
sXB = 86
sROT = 87
sTAU = 88
sOST = 89
sFL = 92
sNON = 90
sPTR = 94
sSW, sSX = 96, 98

vLANE = 1
vT = 2
vDX = 10
vDW = 14
vDK = 18
vDV = 22
vXB = 24
vTB = 26
vXA = 30
vTA = 32
vL16 = 36
vOW = 37
vTAG = 38
aTCH = 480
vFAC = 40
vP = 44
vS = 60
vKF = 124
vVF = 156
vKA = 208
vVA = 216
vNM = 232
vLS = 248
aO = 256
aQ = 384
gACC = 40
gX = 152
gW = 448
gT = 208


def stamp(A, i, on):
    if on:
        q = list(A.q)
        A(f"s_memrealtime {sr(sST + 2*i, 2)}")
        A(f"s_memtime {sr(sPTR, 2)}")
        A("s_waitcnt lgkmcnt(0)")
        A(f"s_mov_b32 {sr(sST + 2*i + 1)}, {sr(sPTR)}")
        A.q = q


def write_stamps(A):
    l = A.newlab("L_st")
    A(f"s_mov_b32 {sr(sT0)}, {WS_BYTES - 512*64}")
    A(f"s_lshl_b32 {sr(sT1)}, s2, 6")
    A(f"s_add_u32 {sr(sT0)}, {sr(sT0)}, {sr(sT1)}")
    A(f"s_add_u32 {sr(sPTR)}, {sr(sWS)}, {sr(sT0)}")
    A(f"s_addc_u32 {sr(sPTR+1)}, {sr(sWS+1)}, 0")
    A(f"v_mov_b32 v2, 0")
    for i in range(16):
        A(f"v_mov_b32 v{4+i}, {sr(sST+i)}")
    A(f"v_cmp_eq_u32 vcc, 0, v0")
    A(f"s_and_saveexec_b64 {sr(sEX,2)}, vcc")
    A(f"s_cbranch_execz {l}")
    for i in range(4):
        A(f"global_store_dwordx4 v2, v[{4+4*i}:{7+4*i}], {sr(sPTR,2)} offset:{16*i}")
    A.lab(l)
    A(f"s_mov_b64 exec, {sr(sEX,2)}")


def srd(A, d, lo, add, nrec):
    if add is None:
        A(f"s_mov_b32 {sr(d)}, {sr(lo)}"); A(f"s_mov_b32 {sr(d+1)}, {sr(lo+1)}")
    else:
        A(f"s_add_u32 {sr(d)}, {sr(lo)}, {add}"); A(f"s_addc_u32 {sr(d+1)}, {sr(lo+1)}, 0")
    A(f"s_mov_b32 {sr(d+2)}, {nrec}")
    A(f"s_mov_b32 {sr(d+3)}, 0x20000")


def get_tag(A):
    ls, lg = A.newlab("L_tag"), A.newlab("L_tagok")
    A(f"s_cmp_lg_u32 {sr(sNON+1)}, 0"); A(f"s_cbranch_scc1 {lg}")
    A(f"v_mov_b32 {vr(vT+4)}, 0")
    A(f"s_mov_b32 {sr(sSPIN)}, 0")
    A.lab(ls)
    A(f"global_load_dwordx2 {vr(vT+2,2)}, {vr(vT+4)}, {sr(sDBG,2)} sc1")
    A("s_waitcnt vmcnt(0)")
    A(f"v_readfirstlane_b32 {sr(sNON)}, {vr(vT+2)}")
    A(f"v_readfirstlane_b32 {sr(sNON+1)}, {vr(vT+3)}")
    A(f"s_add_u32 {sr(sSPIN)}, {sr(sSPIN)}, 1")
    A(f"s_cmp_lg_u32 {sr(sNON+1)}, 0"); A(f"s_cbranch_scc1 {lg}")
    A("s_sleep 4")
    A(f"s_cmp_lt_u32 {sr(sSPIN)}, 0x4000"); A(f"s_cbranch_scc1 {ls}")
    A.lab(lg)


def raise_flag(A, sig_s):
    A("s_mov_b64 exec, 1")
    get_tag(A)
    A(f"v_mov_b32 {vr(vT+4)}, {sr(sig_s)}"); A(f"v_mov_b32 {vr(vT+2)}, {sr(sNON)}"); A(f"v_mov_b32 {vr(vT+3)}, {sr(sNON+1)}")
    A(f"global_store_dwordx2 {vr(vT+4)}, {vr(vT+2,2)}, {sr(sWS,2)} sc1")
    A("s_mov_b64 exec, -1")


def signal_wait(A, sig_s, off_s, n, sleep):
    le, ls, lg = A.newlab("L_wend"), A.newlab("L_spin"), A.newlab("L_go")
    A(f"s_cmp_lg_u32 {sr(sWAVE)}, 0"); A(f"s_cbranch_scc1 {le}")
    if sig_s is not None:
        raise_flag(A, sig_s)
    A(f"s_mov_b64 exec, {(1 << n) - 1}")
    A(f"v_lshlrev_b32 {vr(vT+5)}, 3, {vr(vLANE)}")
    A(f"v_add_u32 {vr(vT+5)}, {sr(off_s)}, {vr(vT+5)}")
    A(f"s_mov_b32 {sr(sSPIN)}, 0")
    A.lab(ls)
    A(f"global_load_dwordx2 {vr(vT+6,2)}, {vr(vT+5)}, {sr(sWS,2)} sc1")
    A("s_waitcnt vmcnt(0)")
    A(f"v_cmp_eq_u64 vcc, {sr(sNON,2)}, {vr(vT+6,2)}")
    A(f"s_add_u32 {sr(sSPIN)}, {sr(sSPIN)}, 1")
    A(f"s_cmp_eq_u32 vcc_lo, {(1 << n) - 1}")
    A(f"s_cbranch_scc1 {lg}")
    A(f"s_sleep {sleep}")
    A(f"s_cmp_lt_u32 {sr(sSPIN)}, 0x4000"); A(f"s_cbranch_scc1 {ls}")
    A.lab(lg)
    A("s_mov_b64 exec, -1")
    A.lab(le)
    A("s_barrier")


def poll2(A, n, own_s, first_done):
    ls, lg = A.newlab("L_spin"), A.newlab("L_go")
    ld = lambda r: f"global_load_dwordx2 {vr(r,2)}, {vr(vT+5)}, {sr(sWS,2)} sc1"

    def check(r):
        A(f"v_cmp_eq_u64 vcc, {sr(sNON,2)}, {vr(r,2)}")
        A(f"s_add_u32 {sr(sSPIN)}, {sr(sSPIN)}, 1")
        A(f"s_or_b32 {sr(sT2)}, vcc_lo, {sr(own_s)}")
        A(f"s_cmp_eq_u32 {sr(sT2)}, {(1 << n) - 1}")
        A(f"s_cbranch_scc1 {lg}")
    A(f"s_mov_b32 {sr(sSPIN)}, 0")
    if first_done:
        check(vT + 6)
    A(ld(vT + 6))
    A("s_sleep 4")
    A.lab(ls)
    A(ld(vT + 2)); A("s_waitcnt vmcnt(1)"); check(vT + 6)
    A(ld(vT + 6)); A("s_waitcnt vmcnt(1)"); check(vT + 2)
    A(f"s_cmp_lt_u32 {sr(sSPIN)}, 0x8000"); A(f"s_cbranch_scc1 {ls}")
    A.lab(lg)


def team_signal(A):
    l = A.newlab("L_sig")
    A(f"s_cmp_lg_u32 {sr(sWAVE)}, 0"); A(f"s_cbranch_scc1 {l}")
    A(f"s_lshl_b32 {sr(sT1)}, {sr(sHL)}, 3"); A(f"s_add_u32 {sr(sT1)}, {sr(sT1)}, {sr(sFL)}")
    A("s_mov_b64 exec, 255")
    A(f"v_lshlrev_b32 {vr(vT+5)}, 3, {vr(vLANE)}")
    A(f"v_add_u32 {vr(vT+5)}, {sr(sFL)}, {vr(vT+5)}")
    raise_flag(A, sT1)
    A.lab(l)


def team_wait(A):
    le = A.newlab("L_wend")
    A(f"s_cmp_lg_u32 {sr(sWAVE)}, 0"); A(f"s_cbranch_scc1 {le}")
    A("s_mov_b64 exec, 255")
    A(f"s_lshl_b32 {sr(sT3)}, 1, {sr(sHL)}")
    poll2(A, 8, sT3, False)
    A("s_mov_b64 exec, -1")
    A.lab(le)
    A("s_barrier")


def m0set(base_s, slot):
    return f"s_add_u32 m0, {sr(base_s)}, {slot[1]}" if isinstance(slot, tuple) else f"s_add_u32 m0, {sr(base_s)}, {sr(slot)}"


def next_chunk(seq, off, sh):
    return [f"s_lshr_b64 {sr(seq,2)}, {sr(seq,2)}, 4", f"s_and_b32 {sr(off)}, {sr(seq)}, 15", f"s_lshl_b32 {sr(off)}, {sr(off)}, {sh}"]


def seq_words(seq):
    v = sum(c << (4 * i) for i, c in enumerate(seq))
    return v & 0xffffffff, v >> 32


def seq_add(A, seq, add_s):
    A(f"s_mul_i32 {sr(sT0)}, {sr(add_s)}, 0x11111111")
    A(f"s_and_b32 {sr(sT1)}, {sr(sT0)}, 0x77777777")
    for w in (seq, seq + 1):
        A(f"s_xor_b32 {sr(sT2)}, {sr(w)}, {sr(sT0)}"); A(f"s_and_b32 {sr(sT2)}, {sr(sT2)}, 0x88888888")
        A(f"s_and_b32 {sr(w)}, {sr(w)}, 0x77777777"); A(f"s_add_u32 {sr(w)}, {sr(w)}, {sr(sT1)}"); A(f"s_xor_b32 {sr(w)}, {sr(w)}, {sr(sT2)}")


QSEQ = [0, 1, 4, 5, 2, 8, 9, 3, 12, 13, 6, 10, 14, 7, 11, 15]


def gseqs():
    own = [[2, 3, 4, 5], [6, 7, 8], [9, 10, 11, 12], [13, 14, 15]]
    at = [2, 3, 6, 9]
    when = {c: at[i] for o_ in own for i, c in enumerate(o_)}
    out = []
    for t in range(4):
        seq = [0, 1] + [None] * 14
        for i, c in enumerate(own[t]): seq[at[i]] = c
        rest = sorted((c for u in range(1, 4) for c in own[(t + u) % 4]), key=lambda c: when[c])
        for p in range(2, 16):
            if seq[p] is None:
                c = rest.pop(0); assert when[c] < p; seq[p] = c
        assert sorted(seq) == list(range(16))
        out.append(seq)
    return out


def touch_round():
    return [f"global_load_dword {vr(aTCH)}, {vr(vTAG,2)}, off",
            f"v_add_co_u32 {vr(vTAG)}, vcc, {vr(vOW)}, {vr(vTAG)}", "s_nop 1", f"v_addc_co_u32 {vr(vTAG+1)}, vcc, 0, {vr(vTAG+1)}, vcc"]


def touch_setup(A):
    a, b, hi = vT, vT + 1, vT + 2
    A(f"s_lshl_b32 {sr(sT0)}, {sr(sTAU)}, 5")
    A(f"v_add_u32 {vr(a)}, {sr(sT0)}, {vr(vLANE)}")
    A(f"v_lshrrev_b32 {vr(b)}, 1, {vr(a)}"); A(f"v_lshlrev_b32 {vr(b)}, 13, {vr(b)}")
    A(f"v_and_b32 {vr(a)}, 1, {vr(a)}"); A(f"v_lshl_add_u32 {vr(a)}, {vr(a)}, 7, {vr(b)}")
    A(f"s_lshl_b32 {sr(sT0)}, {sr(sWAVE)}, 19"); A(f"v_add_u32 {vr(a)}, {sr(sT0)}, {vr(a)}")
    A(f"v_min_u32 {vr(b)}, 59, {vr(vLANE)}")
    A(f"s_mul_i32 {sr(sT0)}, {sr(sHL)}, 28"); A(f"s_sub_u32 {sr(sT0)}, {sr(sT0)}, 32")
    A(f"v_add_u32 {vr(b)}, {sr(sT0)}, {vr(b)}"); A(f"v_lshlrev_b32 {vr(b)}, 11, {vr(b)}")
    A(f"s_lshl_b32 {sr(sT0)}, {sr(sWAVE)}, 7"); A(f"v_add_u32 {vr(b)}, {sr(sT0)}, {vr(b)}")
    A(f"v_cmp_gt_u32 vcc, 32, {vr(vLANE)}")
    A(f"v_mov_b32 {vr(vOW)}, 512"); A(f"v_mov_b32 {vr(hi)}, 0x200000")
    A(f"v_cndmask_b32 {vr(a)}, {vr(b)}, {vr(a)}, vcc")
    A(f"v_cndmask_b32 {vr(vOW)}, {vr(vOW)}, {vr(hi)}, vcc")


def touch_bases(A):
    a, lo, hi = vT, vT + 1, vT + 2
    A(f"v_mov_b32 {vr(lo)}, {sr(S_X)}"); A(f"v_mov_b32 {vr(hi)}, {sr(S_W)}")
    A(f"v_cndmask_b32 {vr(lo)}, {vr(lo)}, {vr(hi)}, vcc")
    A(f"v_mov_b32 {vr(vTAG+1)}, {sr(S_X+1)}"); A(f"v_mov_b32 {vr(hi)}, {sr(S_W+1)}")
    A(f"v_cndmask_b32 {vr(vTAG+1)}, {vr(vTAG+1)}, {vr(hi)}, vcc")
    A(f"v_add_co_u32 {vr(vTAG)}, vcc, {vr(lo)}, {vr(a)}"); A("s_nop 1")
    A(f"v_addc_co_u32 {vr(vTAG+1)}, vcc, 0, {vr(vTAG+1)}, vcc")


def dma_w(o, kind, slot):
    fl = " nt" if kind in o.nt else ""
    g = [[f"buffer_load_dwordx4 {vr(vDW+t)}, {sr(S_W,4)}, {sr(sWO_)} offen offset:{t*1024}{fl} lds"] for t in range(4)]
    g[0] = [m0set(sWM, slot), "s_nop 0"] + g[0]
    g[3] += next_chunk(sSW, sWO_, 19 if kind == "W" else 17)
    return g


def dma_x(o, kind, slot):
    srd_, fl = (S_X, " nt" if "X" in o.nt else "") if kind == "X" else (S_O, " sc1")
    g = []
    for t in range(7):
        so = sXO if t < 4 else sXB
        g.append([f"buffer_load_dwordx4 {vr(vDX+(t&3))}, {sr(srd_,4)}, {sr(so)} offen offset:{(t&3)*1024}{fl} lds"])
    g[0] = [m0set(sXM, slot), f"s_add_u32 {sr(sXB)}, {sr(sXO)}, {65536 if kind == 'X' else 262144}"] + g[0]
    g[4] = ["s_add_u32 m0, m0, 4096", "s_nop 0"] + g[4]
    g[6] += next_chunk(sSX, sXO, 7 if kind == "X" else 11)
    return g


def dma_k(o, slot, win=0):
    fl = " nt" if "K" in o.nt else ""
    w = [f"s_waitcnt vmcnt({win-1})"] if win else []
    g = [w + [f"buffer_load_dwordx4 {vr(vDK+t)}, {sr(S_K,4)}, {sr(sKO)} offen offset:{t*1024}{fl} lds"] for t in range(4)]
    g[0] = [f"s_add_u32 m0, {sr(sAM)}, {ASL*(1+slot) + 16384}", "s_nop 0"] + g[0]
    g[3] += [f"s_add_u32 {sr(sKO)}, {sr(sKO)}, 8192", f"s_bitset0_b32 {sr(sKO)}, 18"]
    return g


def dma_v(o, slot, win=0):
    fl = " nt" if "V" in o.nt else ""
    w = [f"s_waitcnt vmcnt({win-1})"] if win else []
    g = [w + [f"buffer_load_dwordx4 {vr(vDV+(t&1))}, {sr(S_V,4)}, {sr(sVO)} offen offset:{t*1024}{fl} lds"] for t in range(4)]
    g[0] = [f"s_add_u32 m0, {sr(sAM)}, {ASL*(1+slot)}", "s_nop 0"] + g[0]
    g[3] += [f"s_add_u32 {sr(sVO)}, {sr(sVO)}, 8192", f"s_bitset0_b32 {sr(sVO)}, 18"]
    return g


def w_offsets(A, rshift, wflav):
    l4, t0, t1, t2 = vT, vT + 1, vT + 2, vT + 3
    A(f"v_lshrrev_b32 {vr(l4)}, 4, {vr(vLANE)}")
    A(f"v_and_b32 {vr(t1)}, 15, {vr(vLANE)}")
    A(f"v_lshlrev_b32 {vr(t0)}, 1, {vr(l4)}")
    A(f"v_xor_b32 {vr(t0)}, {vr(t0)}, {vr(t1)}")
    A(f"v_lshlrev_b32 {vr(t0)}, 4, {vr(t0)}")
    A(f"s_lshl_b32 {sr(sT3)}, {sr(sWAVE)}, {rshift+4}")
    A(f"v_lshlrev_b32 {vr(t2)}, {rshift}, {vr(l4)}")
    A(f"v_add_u32 {vr(t2)}, {sr(sT3)}, {vr(t2)}")
    for t in range(4):
        bit = (t >> 1) & 1 if wflav else t & 1
        A(f"v_xor_b32 {vr(t1)}, {128*bit}, {vr(t0)}")
        A(f"v_add3_u32 {vr(vDW+t)}, {vr(t1)}, {vr(t2)}, 0")
        A(f"v_add_u32 {vr(vDW+t)}, {(4*t << rshift) - 1024*t}, {vr(vDW+t)}")


def tr_base(A, dst, gshift):
    g, r, c = vT, vT + 1, vT + 2
    A(f"v_lshrrev_b32 {vr(g)}, 4, {vr(vLANE)}")
    A(f"v_bfe_u32 {vr(r)}, {vr(vLANE)}, 2, 2")
    A(f"v_and_b32 {vr(c)}, 3, {vr(vLANE)}"); A(f"v_lshlrev_b32 {vr(c)}, 3, {vr(c)}")
    A(f"v_lshl_add_u32 {vr(c)}, {vr(g)}, {gshift}, {vr(c)}")
    A(f"v_lshl_add_u32 {vr(c)}, {vr(r)}, 8, {vr(c)}")
    A(f"v_lshl_add_u32 {vr(c)}, {vr(r)}, 5, {vr(c)}")
    A(f"v_and_b32 {vr(g)}, 1, {vr(g)}")
    A(f"v_lshl_add_u32 {vr(dst)}, {vr(g)}, 7, {vr(c)}")


def gemm_tr_bases(A, gshift, rot=False):
    tr_base(A, vT + 3, gshift)
    A(f"s_lshl_b32 {sr(sT0)}, {sr(sC2)}, 7")
    A(f"v_xor_b32 {vr(vT+3)}, {sr(sT0)}, {vr(vT+3)}")
    for ct in range(4):
        if rot:
            A(f"s_add_u32 {sr(sT0)}, {sr(sHG)}, {ct}"); A(f"s_and_b32 {sr(sT0)}, {sr(sT0)}, 3"); A(f"s_lshl_b32 {sr(sT0)}, {sr(sT0)}, 5")
            A(f"v_xor_b32 {vr(vTB+ct)}, {sr(sT0)}, {vr(vT+3)}")
        else:
            A(f"v_xor_b32 {vr(vTB+ct)}, {32*ct}, {vr(vT+3)}")


def ticket(A):
    lw, lt, lo = A.newlab("L_tk"), A.newlab("L_tk"), A.newlab("L_tk")
    A(f"s_load_dwordx2 {sr(sDBG,2)}, s[0:1], 88")
    A(f"s_getreg_b32 {sr(sT0)}, hwreg(HW_REG_XCC_ID)")
    A(f"v_readfirstlane_b32 {sr(sT3)}, v0")
    A(f"v_mov_b32 v4, {LDS - 4}")
    A(f"s_cmp_ge_u32 {sr(sT3)}, 64"); A(f"s_cbranch_scc1 {lw}")
    A("s_mov_b64 exec, 1")
    A(f"v_mov_b32 v3, 1"); A(f"s_mov_b32 {sr(sT2)}, 0")
    A("s_waitcnt lgkmcnt(0)")
    A.lab(lt)
    A(f"s_and_b32 {sr(sT0)}, {sr(sT0)}, 7")
    A(f"s_lshl_b32 {sr(sT1)}, {sr(sT0)}, 4"); A(f"s_add_u32 {sr(sT1)}, {sr(sT1)}, 64")
    A(f"v_mov_b32 v2, {sr(sT1)}")
    A(f"global_atomic_add v5, v2, v3, {sr(sDBG,2)} sc0 sc1")
    A("s_waitcnt vmcnt(0)")
    A(f"v_readfirstlane_b32 {sr(sT1)}, v5")
    A(f"s_add_u32 {sr(sT2)}, {sr(sT2)}, 1")
    A(f"s_cmp_lt_u32 {sr(sT1)}, 32"); A(f"s_cbranch_scc1 {lo}")
    A(f"s_add_u32 {sr(sT0)}, {sr(sT0)}, 1")
    A(f"s_cmp_lt_u32 {sr(sT2)}, 8"); A(f"s_cbranch_scc1 {lt}")
    A.lab(lo)
    A(f"s_lshl_b32 {sr(sT1)}, {sr(sT1)}, 3"); A(f"s_add_u32 {sr(sT1)}, {sr(sT1)}, {sr(sT0)}")
    A(f"v_mov_b32 v5, {sr(sT1)}")
    A("ds_write_b32 v4, v5")
    A("s_mov_b64 exec, -1")
    A.lab(lw)
    A("s_waitcnt lgkmcnt(0)")
    A("s_barrier")
    A("ds_read_b32 v5, v4")
    A("s_waitcnt lgkmcnt(0)")
    A("v_readfirstlane_b32 s2, v5")
    A("s_nop 3")
    A(f"s_cmp_ge_u32 s2, 256"); A("s_cbranch_scc1 L_exit")


def prologue(A, o):
    A(f"s_bfe_u32 {sr(sBR)}, s2, 0x10002")
    A(f"s_mul_i32 {sr(sT0)}, {sr(sBR)}, 40")
    A(f"s_add_u32 {sr(sKA)}, s0, {sr(sT0)}"); A(f"s_addc_u32 {sr(sKA+1)}, s1, 0")
    A(f"s_load_dwordx2 s[74:75], {sr(sKA,2)}, 0")
    A(f"s_load_dwordx2 s[66:67], {sr(sKA,2)}, 8")
    A(f"s_load_dwordx2 s[68:69], {sr(sKA,2)}, 16")
    A(f"s_load_dwordx2 s[70:71], {sr(sKA,2)}, 24")
    A(f"s_load_dwordx2 s[76:77], {sr(sKA,2)}, 32")
    A(f"s_load_dwordx2 s[72:73], s[0:1], 80")
    A(f"s_load_dwordx2 {sr(sDBG,2)}, s[0:1], 88")
    A(f"s_load_dwordx2 {sr(sWS,2)}, s[0:1], 96")
    A(f"v_lshrrev_b32 v2, 6, v0")
    A(f"v_and_b32 {vr(vLANE)}, 63, v0")
    A(f"v_readfirstlane_b32 {sr(sWAVE)}, v2")
    A(f"s_and_b32 {sr(sHG)}, s2, 3")
    A(f"s_bfe_u32 {sr(sHL)}, s2, 0x30003")
    A(f"s_bfe_u32 {sr(sTAU)}, s2, 0x20006")
    A(f"s_lshl_b32 {sr(sH)}, {sr(sHG)}, 3"); A(f"s_add_u32 {sr(sH)}, {sr(sH)}, {sr(sHL)}")
    A(f"s_lshl_b32 {sr(sB)}, {sr(sTAU)}, 1")
    A(f"s_add_u32 {sr(sROT)}, {sr(sB)}, {sr(sHL)}"); A(f"s_and_b32 {sr(sROT)}, {sr(sROT)}, {0 if o.coop else 7}")
    A(f"s_lshr_b32 {sr(sU)}, {sr(sWAVE)}, 1"); A(f"s_and_b32 {sr(sC2)}, {sr(sWAVE)}, 1")
    A(f"s_lshl_b32 {sr(sWM)}, {sr(sWAVE)}, 12")
    A(f"s_mul_i32 {sr(sXM)}, {sr(sWAVE)}, 7168")
    A(f"s_mov_b32 {sr(sAM)}, {sr(sWM)}")
    A(f"s_lshl_b32 {sr(sXO)}, {sr(sROT)}, 8")
    A(f"s_lshl_b32 {sr(sWO_)}, {sr(sROT)}, 20")
    lo, hi = seq_words(QSEQ if (o.qseq and not o.coop) else list(range(16)))
    A(f"s_mov_b32 {sr(sSW)}, {lo:#x}"); A(f"s_mov_b32 {sr(sSW+1)}, {hi:#x}")
    A(f"s_lshl_b32 {sr(sT3)}, {sr(sROT)}, 1")
    seq_add(A, sSW, sT3)
    A(f"s_mov_b64 {sr(sSX,2)}, {sr(sSW,2)}")
    l3, l4, t0, t1 = vT, vT + 1, vT + 2, vT + 3
    A(f"v_lshrrev_b32 {vr(l3)}, 3, {vr(vLANE)}")
    A(f"v_lshrrev_b32 {vr(l4)}, 4, {vr(vLANE)}")
    A(f"s_mul_i32 {sr(sT2)}, {sr(sWAVE)}, {56*2048}")
    A(f"s_lshl_b32 {sr(sT1)}, {sr(sC2)}, 2")
    A(f"v_and_b32 {vr(t1)}, 7, {vr(vLANE)}")
    A(f"v_xor_b32 {vr(t1)}, {sr(sT1)}, {vr(t1)}")
    A(f"v_xor_b32 {vr(t1)}, {vr(t1)}, {vr(l4)}")
    A(f"v_lshlrev_b32 {vr(t1)}, 4, {vr(t1)}")
    A(f"v_lshl_add_u32 {vr(l3)}, {vr(l3)}, 11, {sr(sT2)}")
    for t in range(4):
        A(f"v_xor_b32 {vr(t0)}, {64*(t&1)}, {vr(t1)}")
        A(f"v_add_u32 {vr(t0)}, {vr(t0)}, {vr(l3)}")
        A(f"v_add_u32 {vr(vDX+t)}, {8*t*2048 - 1024*t}, {vr(t0)}")
    w_offsets(A, 13, True)
    if o.coop:
        touch_setup(A)
    A("s_waitcnt lgkmcnt(0)")
    A(f"s_lshl_b32 {sr(sT0)}, {sr(sH)}, 8")
    srd(A, S_W, 70, sr(sT0), "0")
    A(f"s_sub_u32 {sr(S_W+2)}, 0x800000, {sr(sT0)}")
    A(f"s_mul_i32 {sr(sT0)}, {sr(sB)}, 229376")
    srd(A, S_X, 74, sr(sT0), str(2 * 229376))
    if o.coop:
        touch_bases(A)
        for x in touch_round(): A(x)
        if o.coop > 1:
            for x in touch_round(): A(x)
    A.groups(dma_w(o, "W", ("imm", 0)))
    A.groups(dma_x(o, "X", ("imm", XB)))
    A.groups(dma_w(o, "W", ("imm", WSL)))
    A.groups(dma_x(o, "X", ("imm", XB + XSL))[:o.xpre])
    A(f"s_add_u32 {sr(sT0)}, {sr(sB)}, {sr(sU)}"); A(f"s_lshl_b32 {sr(sT0)}, {sr(sT0)}, 5")
    A(f"s_add_u32 {sr(sT0)}, {sr(sT0)}, {sr(sH)}"); A(f"s_lshl_b32 {sr(sT0)}, {sr(sT0)}, 18")
    srd(A, S_K, 66, sr(sT0), "0" if o.nokv else "0x40000")
    srd(A, S_V, 68, sr(sT0), "0" if o.nokv else "0x40000")
    l4, t0, t1, t2 = vT, vT + 1, vT + 2, vT + 3
    A(f"v_lshrrev_b32 {vr(l4)}, 4, {vr(vLANE)}")
    A(f"v_and_b32 {vr(t1)}, 15, {vr(vLANE)}")
    A(f"s_lshl_b32 {sr(sT0)}, {sr(sC2)}, 12")
    A(f"v_lshl_add_u32 {vr(t2)}, {vr(l4)}, 8, {sr(sT0)}")
    A(f"v_xor_b32 {vr(t0)}, {vr(l4)}, {vr(t1)}")
    A(f"v_lshl_add_u32 {vr(vDK)}, {vr(t0)}, 4, {vr(t2)}")
    for t in range(1, 4):
        A(f"v_xor_b32 {vr(vDK+t)}, {64*t}, {vr(vDK)}")
    A(f"v_lshlrev_b32 {vr(t0)}, 1, {vr(l4)}")
    A(f"v_xor_b32 {vr(t0)}, {vr(t0)}, {vr(t1)}")
    A(f"v_lshl_add_u32 {vr(vDV)}, {vr(t0)}, 4, {vr(t2)}")
    A(f"v_xor_b32 {vr(vDV+1)}, 128, {vr(vDV)}")
    if o.krot:
        A(f"s_lshr_b32 {sr(sT0)}, s2, 3"); A(f"s_and_b32 {sr(sT1)}, s2, 7"); A(f"s_lshl_b32 {sr(sT1)}, {sr(sT1)}, 2")
        A(f"s_add_u32 {sr(sT0)}, {sr(sT0)}, {sr(sT1)}"); A(f"s_and_b32 {sr(sT0)}, {sr(sT0)}, 31"); A(f"s_lshl_b32 {sr(sKO)}, {sr(sT0)}, 13")
    else:
        A(f"s_mov_b32 {sr(sKO)}, 0")
    A(f"s_mov_b32 {sr(sVO)}, {sr(sKO)}")
    srd(A, S_OUT, 72, None, str(896 * 4096))
    srd(A, S_XC, sWS, str(X_OFF), str(X_BYTES))
    x_setup(A)
    if o.tlb:
        A(f"s_lshl_b32 {sr(sT0)}, {sr(sBR)}, 3"); A(f"s_add_u32 {sr(sT0)}, {sr(sT0)}, {sr(sB)}"); A(f"s_mul_i32 {sr(sT0)}, {sr(sT0)}, {7 << 17}")
        A(f"s_lshl_b32 {sr(sT1)}, {sr(sHG)}, 21")
        A(f"v_mov_b32 {vr(vT)}, 0"); A(f"v_mov_b32 {vr(vT+1)}, {sr(sT0)}"); A(f"v_add_u32 {vr(vT+2)}, {(14 << 17) - 4}, {vr(vT+1)}")
        A(f"v_mov_b32 {vr(vT+3)}, {sr(sXF)}"); A(f"v_mov_b32 {vr(vT+4)}, {sr(sT1)}"); A(f"v_add_u32 {vr(vT+5)}, {(1 << 21) - 4}, {vr(vT+4)}")
        A("s_mov_b64 exec, 1")
        for i, (srd_, so) in enumerate(((S_K, "0"), (S_V, "0"), (S_OUT, sr(sOO)), (S_XC, sr(sXS)))):
            A(f"buffer_load_dword {vr(aTCH+i)}, {vr(vT)}, {sr(srd_,4)}, {so} offen")
        for i in range(3):
            A(f"global_load_dword {vr(aTCH+4+i)}, {vr(vT+1+i)}, {sr(sWS,2)}")
        A(f"global_load_dword {vr(aTCH+7)}, {vr(vT+4)}, s[76:77]")
        A(f"global_load_dword {vr(aTCH+7)}, {vr(vT+5)}, s[76:77]")
        A("s_mov_b64 exec, -1")
    A(f"s_mov_b32 {sr(sC)}, {C_SCALE:#x}"); A(f"s_mov_b32 {sr(sTHR)}, {THR:#x}")
    A(f"s_mov_b32 {sr(sNON)}, 0"); A(f"s_mov_b32 {sr(sNON+1)}, 0"); A(f"s_mov_b32 {sr(sPEND)}, 0")
    l = A.newlab("L_notag")
    A(f"s_or_b32 {sr(sT0)}, s2, {sr(sWAVE)}"); A(f"s_cmp_lg_u32 {sr(sT0)}, 0"); A(f"s_cbranch_scc1 {l}")
    A(f"s_memrealtime {sr(sLD,2)}"); A("s_waitcnt lgkmcnt(0)")
    A(f"v_mov_b32 {vr(vT+2)}, {sr(sLD)}"); A(f"v_mov_b32 {vr(vT+3)}, {sr(sLD+1)}"); A(f"v_mov_b32 {vr(vT+4)}, 0")
    A(f"v_or_b32 {vr(vT+3)}, 0x80000000, {vr(vT+3)}")
    A("s_mov_b64 exec, 1")
    A(f"global_store_dwordx2 {vr(vT+4)}, {vr(vT+2,2)}, {sr(sDBG,2)} sc1")
    A("s_mov_b64 exec, -1")
    A.lab(l)
    q, g, r = vT, vT + 1, vT + 2
    A(f"v_lshlrev_b32 {vr(vL16)}, 4, {vr(vLANE)}")
    A(f"v_and_b32 {vr(q)}, 15, {vr(vLANE)}")
    A(f"v_lshrrev_b32 {vr(g)}, 4, {vr(vLANE)}")
    A(f"v_bfe_u32 {vr(r)}, {vr(vLANE)}, 1, 3")
    A(f"v_xor_b32 {vr(r)}, {vr(r)}, {vr(g)}")
    A(f"v_lshlrev_b32 {vr(r)}, 4, {vr(r)}")
    A(f"v_lshl_add_u32 {vr(r)}, {vr(q)}, 7, {vr(r)}")
    A(f"s_mul_i32 {sr(sT0)}, {sr(sU)}, {112*128}"); A(f"s_add_u32 {sr(sT0)}, {sr(sT0)}, {XB}")
    A(f"v_add_u32 {vr(vXB)}, {sr(sT0)}, {vr(r)}")
    A(f"v_xor_b32 {vr(vXB+1)}, 64, {vr(vXB)}")
    for s_ in range(2):
        A(f"v_add_u32 {vr(vXA+s_)}, {2*XSL}, {vr(vXB+s_)}")
    gemm_tr_bases(A, 11)
    q, g, t0 = vT + 3, vT + 4, vT + 5
    A(f"v_and_b32 {vr(q)}, 15, {vr(vLANE)}"); A(f"v_lshrrev_b32 {vr(g)}, 4, {vr(vLANE)}")
    A(f"v_xor_b32 {vr(t0)}, {vr(g)}, {vr(q)}"); A(f"v_lshlrev_b32 {vr(t0)}, 4, {vr(t0)}")
    A(f"v_lshl_add_u32 {vr(t0)}, {vr(q)}, 8, {vr(t0)}")
    A(f"s_lshl_b32 {sr(sT0)}, {sr(sU)}, 13"); A(f"s_add_u32 {sr(sT1)}, {sr(sT0)}, {ASL}"); A(f"s_add_u32 {sr(sT0)}, {sr(sT0)}, {ASL + 16384}")
    A(f"v_add_u32 {vr(vKA)}, {sr(sT0)}, {vr(t0)}")
    for s in range(1, 4):
        A(f"v_xor_b32 {vr(vKA+s)}, {64*s}, {vr(vKA)}")
    for s in range(4):
        A(f"v_add_u32 {vr(vKA+4+s)}, 0x10000, {vr(vKA+s)}")
    tr_base(A, vVA, 10)
    A(f"v_add_u32 {vr(vVA)}, {sr(sT1)}, {vr(vVA)}")
    for dt in range(1, 8):
        A(f"v_xor_b32 {vr(vVA+dt)}, {32*dt}, {vr(vVA)}")
    for dt in range(8):
        A(f"v_add_u32 {vr(vVA+8+dt)}, 0x10000, {vr(vVA+dt)}")
    for i in range(24):
        A(f"v_mov_b32 {vr(vNM+i)}, 0")
    for i in range(128):
        A(f"v_accvgpr_write_b32 {vr(aO+i)}, 0")


def gemm(A, o, kind, vm0, tailfill):
    Q = kind == "Q"
    xk, wk = ("X", "W") if Q else ("O", "G")
    A.lazy = o.lazy

    def wr(j, s):
        L = []
        for ct in range(4):
            f = gW + 16 * s + 4 * ct
            for e in range(2):
                off = (j % 3) * WSL + 8192 * s + (1024 if Q else 4096) * e
                L.append(("ds", f"ds_read_b64_tr_b16 {vr(f+2*e,2)}, {vr(vTB+ct)} offset:{off}", f"w{s}{ct}"))
        return L

    def xr(j, s, rt):
        reg, off = (vXA + s, 0) if j % 3 == 2 else (vXB + s, (j % 3) * XSL)
        return ("ds", f"ds_read_b128 {vr(gX+28*s+4*rt,4)}, {vr(reg)} offset:{off + 2048*rt}", f"x{s}{rt}")

    def carry(j):
        return wr(j, 0) + [xr(j, 0, rt) for rt in range(3)]

    W = lambda j: dma_w(o, wk, ("imm", (j % 3) * WSL))
    X = lambda j: dma_x(o, xk, ("imm", XB + (j % 3) * XSL))

    tset = set(int(c, 16) for c in o.touch) if (Q and o.coop) else set()
    assert not (tset & {2, 3, 4, 5, 6, 7, 8, 9, 10}) or o.unrollq

    def step(j, late, early, vm, hook=None, latelo=1):
        mf, after = [], {}
        if j - 1 in tset: vm += 1
        if j in tset:
            early = [touch_round()] + list(early)
        for k_, v_ in (hook or {}).items():
            put(after, k_, v_)
        for s in range(2):
            tiles = [(rt, ct) for rt in range(7) for ct in range(4)]
            if j == 15 and s == 1 and not Q:
                tiles = [(rt, ct) for ct in (1, 2, 3, 0) for rt in range(7)]
            for rt, ct in tiles:
                a = gACC + 28 * ct + 4 * rt
                mf.append((mfma(a, gW + 16 * s + 4 * ct, gX + 28 * s + 4 * rt, "0" if (j == 0 and s == 0) else a),
                           [f"w{s}{ct}", f"x{s}{rt}"]))
        r = [xr(j, 0, rt) for rt in range(3, 7)] + wr(j, 1) + [xr(j, 1, rt) for rt in range(7)]
        spread(after, [(x, 1) for x in r], 2, 26 if j == 15 else 30)
        if late:
            spread(after, [(g, 1) for g in late], latelo, 36)
        if j < 15:
            put(after, 40, [("bar", vm)])
            if j == 0 and not Q:
                put(after, 40, [("call", lambda: team_signal(A))])
            spread(after, [(x, 1) for x in carry(j + 1)], 40, 53)
            if early:
                spread(after, [(g, 1) for g in early], 41, 56)
        A.run(mf, after)

    A.emit(("bar", vm0))
    stamp(A, 6, o.stamps and (o.qst == Q))
    for it in carry(0): A.emit(it)
    if Q:
        step(0, X(1)[o.xpre:] + W(2), X(2)[:5], 4)
        step(1, X(2)[5:] + W(3) + X(3), W(4), 11)
    else:
        step(0, [], [], 0)
        step(1, X(2) + W(3) + X(3), W(4), 11, {o.pollgap: [("call", lambda: team_wait(A))]}, o.pollgap + 1)
    if Q and o.unrollq and o.steps != kind:
        for j in range(2, 11):
            step(j, X(j + 2), W(j + 3), 11)
    elif o.steps == kind:
        stamp(A, 1, True)
        for j in range(2, 11):
            step(j, X(j + 2), W(j + 3), 11)
            if j in (2, 3, 5, 8): stamp(A, {2: 2, 3: 3, 5: 4, 8: 5}[j], True)
    else:
        A(f"s_mov_b32 {sr(sCNT)}, 3")
        q0 = list(A.q)
        l = A.newlab("L_gl")
        A.lab(l)
        n0 = len(A.L)
        for j in (2, 3, 4):
            step(j, X(j + 2), W(j + 3), 11)
        assert A.q == q0
        A(f"s_sub_u32 {sr(sCNT)}, {sr(sCNT)}, 1"); A(f"s_cmp_lg_u32 {sr(sCNT)}, 0"); A(f"s_cbranch_scc1 {l}")
    step(11, X(13), W(14), 11)
    step(12, X(14), W(15), 11)
    step(13, X(15), tailfill.get(13, []), 11)
    step(14, [], tailfill.get(14, []), len(tailfill.get(13, [])))
    step(15, tailfill.get(15, []), [], 0, tailfill.get("hook"))
    A.lazy = 0
    stamp(A, 7, o.stamps and (o.qst == Q))
    if o.steps == kind:
        A("s_waitcnt vmcnt(0)"); write_stamps(A); A("s_endpgm")


def q_finish(A, o):
    A.emit(("bar", 63))
    A(f"v_mov_b32 {vr(vT)}, 0")
    A(f"global_load_dwordx2 {vr(vTAG,2)}, {vr(vT)}, {sr(sDBG,2)} sc1")
    A.groups(dma_k(o, 1)); A.groups(dma_v(o, 1))
    q, g, t0, t1 = vT, vT + 1, vT + 2, vT + 3
    A(f"v_and_b32 {vr(q)}, 15, {vr(vLANE)}")
    A(f"v_lshrrev_b32 {vr(g)}, 4, {vr(vLANE)}")
    A(f"v_lshrrev_b32 {vr(t0)}, 1, {vr(g)}")
    A(f"s_lshl_b32 {sr(sT0)}, {sr(sC2)}, 3")
    A(f"v_xor_b32 {vr(t0)}, {sr(sT0)}, {vr(t0)}")
    A(f"v_xor_b32 {vr(t0)}, {vr(t0)}, {vr(q)}")
    A(f"v_lshlrev_b32 {vr(t0)}, 4, {vr(t0)}")
    A(f"v_and_b32 {vr(t1)}, 1, {vr(g)}")
    A(f"v_lshl_add_u32 {vr(t0)}, {vr(t1)}, 3, {vr(t0)}")
    A(f"s_mul_i32 {sr(sT0)}, {sr(sU)}, {112*256}")
    A(f"v_lshl_add_u32 {vr(t1)}, {vr(q)}, 8, {sr(sT0)}")
    A(f"v_add_u32 {vr(vTA)}, {vr(t0)}, {vr(t1)}")
    for ct in range(1, 4):
        A(f"v_xor_b32 {vr(vTA+ct)}, {32*ct}, {vr(vTA)}")
    A(f"v_mov_b32 {vr(vXA)}, {sr(sC)}"); A(f"v_mov_b32 {vr(vXA+1)}, {sr(sC)}")
    for ct in range(4):
        for rt in range(7):
            a = gACC + 28 * ct + 4 * rt
            d = gX + 2 * ((ct * 7 + rt) % 8)
            A(f"v_pk_mul_f32 {vr(a,2)}, {vr(a,2)}, {vr(vXA,2)}")
            A(f"v_pk_mul_f32 {vr(a+2,2)}, {vr(a+2,2)}, {vr(vXA,2)}")
            A(f"v_cvt_pk_bf16_f32 {vr(d)}, {vr(a)}, {vr(a+1)}")
            A(f"v_cvt_pk_bf16_f32 {vr(d+1)}, {vr(a+2)}, {vr(a+3)}")
            A(f"ds_write_b64 {vr(vTA+ct)}, {vr(d,2)} offset:{4096*rt}")
            if (ct * 7 + rt) % 8 == 7:
                A("s_waitcnt lgkmcnt(4)")
    A(f"v_xor_b32 {vr(t0)}, {vr(g)}, {vr(q)}")
    A(f"v_lshlrev_b32 {vr(t0)}, 4, {vr(t0)}")
    A(f"s_lshl_b32 {sr(sT0)}, {sr(sC2)}, 14")
    A(f"v_add3_u32 {vr(t1)}, {vr(t1)}, {vr(t0)}, {sr(sT0)}")
    A.emit(("bar", 63))
    for s in range(4):
        A(f"v_xor_b32 {vr(vTA+s)}, {64*s}, {vr(t1)}")
    for qt in range(4):
        for s in range(4):
            A(f"ds_read_b128 {vr(aQ+16*qt+4*s,4)}, {vr(vTA+s)} offset:{4096*qt}")
            if qt == 2 and s == 3:
                A("s_waitcnt lgkmcnt(4)")
    A.emit(("bar", 17))


def kreads(slot):
    L = []
    for s in range(4):
        for kt in range(2):
            L.append(("ds", f"ds_read_b128 {vr(vKF+16*kt+4*s,4)}, {vr(vKA+4*(slot>>1)+s)} offset:{(slot&1)*ASL+4096*kt}", f"k{kt}{s}"))
    return L


def new_max(S, NT, clamp):
    L = []
    for qt in range(NT):
        mx, o2 = vT, vT + 1
        a, b = S + 4 * qt, S + 16 + 4 * qt
        L += [f"v_max3_f32 {vr(mx)}, {vr(a)}, {vr(a+1)}, {vr(a+2)}", f"v_max3_f32 {vr(mx)}, {vr(mx)}, {vr(a+3)}, {vr(b)}",
              f"v_max3_f32 {vr(mx)}, {vr(mx)}, {vr(b+1)}, {vr(b+2)}", f"v_max_f32 {vr(mx)}, {vr(mx)}, {vr(b+3)}"]
        for sw in ("16", "32"):
            L += [f"v_mov_b32 {vr(o2)}, {vr(mx)}", "s_nop 1", f"v_permlane{sw}_swap_b32 {vr(mx)}, {vr(o2)}", "s_nop 1",
                  f"v_max_f32 {vr(mx)}, {vr(mx)}, {vr(o2)}"]
        if clamp:
            L += [f"v_max_f32 {vr(mx)}, 0, {vr(mx)}", f"v_exp_f32 {vr(vFAC+qt)}, -{vr(mx)}"]
        L += [f"v_sub_f32 {vr(x+i)}, {vr(x+i)}, {vr(mx)}" for x in (a, b, vNM + 4 * qt) for i in range(4)]
        if clamp:
            L += [f"v_mul_f32 {vr(vLS+2*qt+i)}, {vr(vLS+2*qt+i)}, {vr(vFAC+qt)}" for i in range(2)]
    return L


def attention(A, o0, NT, tail, br):
    import copy
    o = copy.copy(o0)
    o.nt = o0.ntA if br == 0 else o0.ntB
    o.win = o0.win if br == 0 else (o0.winB if o0.winB >= 0 else o0.win)
    tag = f"_{NT}_{br}"
    NQ = 8 * NT
    NE = 2 * NT
    sreg = lambda S, i: S + 16 * ((i >> 2) & 1) + 4 * (i >> 3) + (i & 3)

    def vreads(slot):
        return [("ds", f"ds_read_b64_tr_b16 {vr(vVF+4*dt+2*e,2)}, {vr(vVA+8*(slot>>1)+dt)} offset:{(slot&1)*ASL+4096*e}", f"v{dt}")
                for dt in range(8) for e in range(2)]

    def part2(Sp, qt):
        st = []
        for i in range(8 * qt, 8 * qt + 8):
            if i + NE < NQ:
                r = sreg(Sp, i + NE)
                st.append((f"v_exp_f32 {vr(r)}, {vr(r)}", 8))
            if i & 1:
                r = sreg(Sp, i - 1)
                st.append((f"v_pk_add_f32 {vr(vLS+2*qt,2)}, {vr(vLS+2*qt,2)}, {vr(r,2)}", 4.5))
                st.append((f"v_cvt_pk_bf16_f32 {vr(vP+4*qt+((i&7)>>1))}, {vr(r)}, {vr(r+1)}", 4.5))
        return st

    def pend_check():
        l2, b2 = A.newlab("L_r2"), A.newlab("L_b2")
        tail.append(("r2", l2, b2, NT))
        return [f"s_cmp_lg_u32 {sr(sPEND)}, 0", f"s_cbranch_scc1 {l2}", ("lab", b2)]

    def it(u, first=False, kload=True, vload=True, vmb=8, extra=(), knext=True):
        p = u & 1
        S, Sp = vS + 32 * p, vS + 32 * (1 - p)
        slot, nslot, kslot, pslot = (3 - u) & 3, (2 - u) & 3, (-u) & 3, (1 - u) & 3
        mf, after = [], {}
        allk = [f"k{kt}{s}" for kt in range(2) for s in range(4)]
        for s in range(4):
            for kt in range(2):
                for qt in range(NT):
                    d = S + 16 * kt + 4 * qt
                    mf.append((mfma(d, vKF + 16 * kt + 4 * s, aQ + 16 * qt + 4 * s, vNM + 4 * qt if s == 0 else d),
                               [f"k{kt}{s}"] if first else allk))
        mx = vT
        order = [sreg(S, i) for i in range(NQ)]
        order.sort(key=lambda r: ((r - S) >> 4, (r - S) & 15))
        m1 = [f"v_max3_f32 {vr(mx)}, {vr(order[0])}, {vr(order[1])}, {vr(order[2])}"]
        m1 += [f"v_max3_f32 {vr(mx)}, {vr(mx)}, {vr(order[i])}, {vr(order[i+1])}" for i in range(3, NQ - 1, 2)]
        m1 += [f"v_max_f32 {vr(mx)}, {vr(mx)}, {vr(order[NQ-1])}"]
        E1 = [f"v_exp_f32 {vr(sreg(S,i))}, {vr(sreg(S,i))}" for i in range(NE)]
        kr = kreads(nslot)
        if first:
            put(after, NQ - 1, [("bar", vmb)] + kr + sum(dma_k(o, kslot), []) + ["s_nop 3"] + new_max(S, NT, False) + E1)
            A.run(mf, after)
            return
        for qt in range(NT):
            for dt in range(8):
                mf.append((mfma(aO + 16 * dt + 4 * qt, vVF + 4 * dt, vP + 4 * qt, aO + 16 * dt + 4 * qt), [f"v{dt}"]))
        spread(after, [(x, 1) for x in vreads(slot)], 0, NQ - 2)
        if vload:
            spread(after, [(g, 1) for g in dma_v(o, pslot, o.win)], 0, NQ + 2)
        put(after, 4, pend_check())
        st, due = [], {}
        for qt in range(NT):
            st += part2(Sp, qt)
            due[qt] = len(st) - 1
        i_m1 = len(st)
        l1, b1 = A.newlab("L_r1"), A.newlab("L_b1")
        tail.append(("r1", l1, b1, S, NT))
        st += [(x, 4.5) for x in m1]
        st.append(([f"v_cmp_lt_f32 vcc, {sr(sTHR)}, {vr(mx)}", f"s_cbranch_vccnz {l1}", ("lab", b1)], 9))
        st += [(x, 8) for x in E1]
        pos = spread(after, st, 0, 2 * NQ)
        for qt in range(NT):
            assert pos[due[qt]] < NQ + 8 * qt - 2, (qt, pos[due[qt]])
        assert pos[i_m1] >= NQ + 4, pos[i_m1]
        put(after, NQ + 2, [("bar", vmb)])
        if knext:
            spread(after, [(x, 1) for x in kr], NQ + 3, 2 * NQ - 6)
        if kload:
            spread(after, [(g, 1) for g in dma_k(o, kslot, o.win)], NQ + 3, 2 * NQ)
        if extra:
            spread(after, [(g, 1) for g in extra], NQ + 3, 2 * NQ)
        A.run(mf, after)

    A.q = []
    for x in kreads(3): A.emit(x)
    it(0, first=True)
    q0 = list(A.q)
    g_setup(A, o)
    A(f"s_mov_b32 {sr(sCNT)}, 7")
    A.lab("L_aloop" + tag)
    for u in (1, 2, 3, 0):
        it(u)
    assert A.q == q0
    A(f"s_sub_u32 {sr(sCNT)}, {sr(sCNT)}, 1"); A(f"s_cmp_lg_u32 {sr(sCNT)}, 0"); A(f"s_cbranch_scc1 L_aloop{tag}")
    it(1, kload=False)
    it(2, kload=False, vmb=4)
    wpre = dma_w(o, "G", ("imm", 0)) + dma_w(o, "G", ("imm", WSL)) + dma_w(o, "G", ("imm", 2 * WSL))
    itq = list(A.q)
    it31(A, o, NT, it, wpre)
    stamp(A, 2, o.stamps)
    Sp = vS + 32
    for x in vreads(3): A.emit(x)
    for x in pend_check(): A.emit(x)

    def lred(qt):
        a, b = vLS + 2 * qt, vLS + 2 * qt + 1
        L = [f"v_add_f32 {vr(a)}, {vr(a)}, {vr(b)}"]
        for sw in ("16", "32"):
            L += [f"v_mov_b32 {vr(b)}, {vr(a)}", "s_nop 1", f"v_permlane{sw}_swap_b32 {vr(a)}, {vr(b)}", "s_nop 1", f"v_add_f32 {vr(a)}, {vr(a)}, {vr(b)}"]
        return L + [f"v_rcp_f32 {vr(a)}, {vr(a)}", "s_nop 0", f"v_mov_b32 {vr(b)}, {vr(a)}"]

    def outq(qt):
        L = []
        for m in range(4):
            t = vS + 8 * m
            d = vKF + 4 * ((4 * qt + m) % 8)
            L += [f"v_accvgpr_read_b32 {vr(t+i)}, {vr(aO + 16*(2*m + (i>>2)) + 4*qt + (i&3))}" for i in range(8)]
            L += [f"v_pk_mul_f32 {vr(t+2*i,2)}, {vr(t+2*i,2)}, {vr(vLS+2*qt,2)}" for i in range(4)]
            L += [f"v_cvt_pk_bf16_f32 {vr(d+i)}, {vr(t+2*i)}, {vr(t+2*i+1)}" for i in range(4)]
            L.append(f"buffer_store_dwordx4 {vr(d,4)}, {vr(vL16)}, {sr(S_X,4)}, {sr(sOST)} offen offset:{m*1024}{o.ofl}")
            L.append(f"ds_write_b128 {vr(vOW)}, {vr(d,4)} offset:{(m>>1)*XSL + qt*2048 + (m&1)*1024}")
        L.append(f"s_add_u32 {sr(sOST)}, {sr(sOST)}, 0x20000")
        return L

    for x, _ in part2(Sp, 0): A(x)
    mf, after = [], {}
    for qt in range(NT):
        for dt in range(8):
            mf.append((mfma(aO + 16 * dt + 4 * qt, vVF + 4 * dt, vP + 4 * qt, aO + 16 * dt + 4 * qt), [f"v{dt}"]))
        st = [(x, 1) for x in lred(qt)]
        if qt + 1 < NT:
            st = [(x, 1) for x, _ in part2(Sp, qt + 1)] + st
        spread(after, st, 8 * qt, 8 * qt + 7)
        put(after, 8 * qt + 7, ["s_nop 1"])
    A("s_nop 1")
    A.run(mf, after)
    A("s_nop 3")
    for qt in range(NT):
        for x in outq(qt): A(x)
    A(f"s_waitcnt vmcnt({4*NT}) lgkmcnt(0)")


def it31(A, o, NT, it, wpre):
    it(3, kload=False, vload=False, vmb=0, extra=wpre, knext=None)


def rare_blocks(A, o, tail):
    r2, r1 = {}, {}
    for t in tail:
        if t[0] == "r1":
            _, l1, b1, S, NT = t
            k = len(r1.setdefault((NT, S), []))
            r1[(NT, S)].append(b1)
            A.lab(l1)
            A(f"s_mov_b32 {sr(sT0)}, {k}"); A(f"s_branch L_r1c_{NT}_{S}")
        else:
            _, l2, b2, NT = t
            k = len(r2.setdefault(NT, []))
            r2[NT].append(b2)
            A.lab(l2)
            A(f"s_mov_b32 {sr(sPEND)}, {k}"); A(f"s_branch L_r2c_{NT}")
    for (NT, S), backs in r1.items():
        A.lab(f"L_r1c_{NT}_{S}")
        for x in new_max(S, NT, True): A(x)
        A(f"s_mov_b32 {sr(sPEND)}, 1")
        for k, b in enumerate(backs[:-1]):
            A(f"s_cmp_eq_u32 {sr(sT0)}, {k}"); A(f"s_cbranch_scc1 {b}")
        A(f"s_branch {backs[-1]}")
    for NT, backs in r2.items():
        A.lab(f"L_r2c_{NT}")
        A("s_nop 7")
        for dt in range(8):
            for qt in range(NT):
                for i in range(4):
                    A(f"v_accvgpr_read_b32 {vr(vT+i)}, {vr(aO+16*dt+4*qt+i)}")
                for i in range(4):
                    A(f"v_mul_f32 {vr(vT+i)}, {vr(vT+i)}, {vr(vFAC+qt)}")
                for i in range(4):
                    A(f"v_accvgpr_write_b32 {vr(aO+16*dt+4*qt+i)}, {vr(vT+i)}")
        A(f"s_mov_b32 {sr(sT0)}, {sr(sPEND)}"); A(f"s_mov_b32 {sr(sPEND)}, 0")
        for k, b in enumerate(backs[:-1]):
            A(f"s_cmp_eq_u32 {sr(sT0)}, {k}"); A(f"s_cbranch_scc1 {b}")
        A(f"s_branch {backs[-1]}")


def g_setup(A, o):
    q0 = list(A.q)
    A(f"s_load_dwordx2 {sr(sLD,2)}, {sr(sKA,2)}, 32")
    w_offsets(A, 11, False)
    A("s_waitcnt lgkmcnt(0)")
    A(f"s_lshl_b32 {sr(sT0)}, {sr(sHG)}, 21"); A(f"s_lshl_b32 {sr(sT1)}, {sr(sHL)}, 8"); A(f"s_add_u32 {sr(sT0)}, {sr(sT0)}, {sr(sT1)}")
    srd(A, S_W, sLD, sr(sT0), "0")
    A(f"s_sub_u32 {sr(S_W+2)}, 0x800000, {sr(sT0)}")
    A(f"s_lshl_b32 {sr(sWO_)}, {sr(sHL)}, 18")
    for t_, sq in enumerate(gseqs()):
        lo, hi = seq_words(sq)
        if t_ == 0:
            A(f"s_mov_b32 {sr(sSW)}, {lo:#x}"); A(f"s_mov_b32 {sr(sSW+1)}, {hi:#x}")
        else:
            A(f"s_cmp_eq_u32 {sr(sTAU)}, {t_}")
            A(f"s_cselect_b32 {sr(sSW)}, {lo:#x}, {sr(sSW)}"); A(f"s_cselect_b32 {sr(sSW+1)}, {hi:#x}, {sr(sSW+1)}")
    A(f"s_lshl_b32 {sr(sT3)}, {sr(sHL)}, 1")
    seq_add(A, sSW, sT3)
    A(f"s_lshr_b64 {sr(sSX,2)}, {sr(sSW,2)}, 4")
    for x in next_chunk(sSX, sXO, 11): A(x)
    A(f"s_mul_i32 {sr(sT0)}, {sr(sWAVE)}, 7")
    for t in range(4):
        A(f"s_add_u32 {sr(sT1)}, {sr(sT0)}, {t}")
        A(f"s_lshr_b32 {sr(sT2)}, {sr(sT1)}, 1"); A(f"s_lshl_b32 {sr(sT2)}, {sr(sT2)}, 17")
        A(f"s_and_b32 {sr(sT1)}, {sr(sT1)}, 1"); A(f"s_lshl_b32 {sr(sT1)}, {sr(sT1)}, 10"); A(f"s_add_u32 {sr(sT1)}, {sr(sT1)}, {sr(sT2)}")
        A(f"s_sub_u32 {sr(sT1)}, {sr(sT1)}, {1024*t}")
        A(f"v_add_u32 {vr(vDX+t)}, {sr(sT1)}, {vr(vL16)}")
    A(f"s_mul_i32 {sr(sT0)}, {sr(sU)}, {14*1024}"); A(f"s_add_u32 {sr(sT0)}, {sr(sT0)}, {XB}")
    A(f"v_add_u32 {vr(vXB)}, {sr(sT0)}, {vr(vL16)}")
    A(f"v_add_u32 {vr(vXB+1)}, 1024, {vr(vXB)}")
    for s_ in range(2):
        A(f"v_add_u32 {vr(vXA+s_)}, {2*XSL}, {vr(vXB+s_)}")
    A(f"s_lshl_b32 {sr(sT1)}, {sr(sC2)}, 13")
    A(f"v_add_u32 {vr(vOW)}, {sr(sT1)}, {vr(vXB)}")
    gemm_tr_bases(A, 10, True)
    A(f"s_lshl_b32 {sr(sT0)}, {sr(sBR)}, 3"); A(f"s_add_u32 {sr(sT0)}, {sr(sT0)}, {sr(sB)}"); A(f"s_mul_i32 {sr(sT0)}, {sr(sT0)}, {7 << 17}")
    A(f"s_mul_i32 {sr(sOST)}, {sr(sU)}, 7"); A(f"s_lshl_b32 {sr(sT1)}, {sr(sC2)}, 2"); A(f"s_add_u32 {sr(sOST)}, {sr(sOST)}, {sr(sT1)}")
    A(f"s_lshl_b32 {sr(sOST)}, {sr(sOST)}, 17"); A(f"s_add_u32 {sr(sOST)}, {sr(sOST)}, {sr(sT0)}")
    A(f"s_lshl_b32 {sr(sT1)}, {sr(sH)}, 12"); A(f"s_add_u32 {sr(sOST)}, {sr(sOST)}, {sr(sT1)}")
    A(f"s_lshl_b32 {sr(sT3)}, {sr(sHG)}, 15"); A(f"s_add_u32 {sr(sT0)}, {sr(sT0)}, {sr(sT3)}")
    srd(A, S_O, sWS, sr(sT0), str(14 << 17))
    srd(A, S_X, sWS, None, str(O_BYTES))
    A(f"s_lshl_b32 {sr(sFL)}, {sr(sBR)}, 2"); A(f"s_add_u32 {sr(sFL)}, {sr(sFL)}, {sr(sTAU)}"); A(f"s_lshl_b32 {sr(sFL)}, {sr(sFL)}, 2")
    A(f"s_add_u32 {sr(sFL)}, {sr(sFL)}, {sr(sHG)}"); A(f"s_lshl_b32 {sr(sFL)}, {sr(sFL)}, 7"); A(f"s_add_u32 {sr(sFL)}, {sr(sFL)}, {F_RDY}")
    A(f"v_readfirstlane_b32 {sr(sNON)}, {vr(vTAG)}"); A(f"v_readfirstlane_b32 {sr(sNON+1)}, {vr(vTAG+1)}")
    A.q = q0


def x_setup(A):
    A(f"s_lshl_b32 {sr(sT0)}, {sr(sBR)}, 2"); A(f"s_add_u32 {sr(sT0)}, {sr(sT0)}, {sr(sTAU)}")
    A(f"s_lshl_b32 {sr(sT0)}, {sr(sT0)}, 3"); A(f"s_add_u32 {sr(sT0)}, {sr(sT0)}, {sr(sHL)}")
    A(f"s_lshl_b32 {sr(sXF)}, {sr(sT0)}, 2"); A(f"s_add_u32 {sr(sXF)}, {sr(sXF)}, {sr(sWAVE)}")
    A(f"s_lshl_b32 {sr(sXF)}, {sr(sXF)}, 7"); A(f"s_add_u32 {sr(sXF)}, {sr(sXF)}, {F_XCH}")
    A(f"s_lshl_b32 {sr(sT0)}, {sr(sT0)}, 19"); A(f"s_lshl_b32 {sr(sT1)}, {sr(sWAVE)}, 13"); A(f"s_add_u32 {sr(sT0)}, {sr(sT0)}, {sr(sT1)}")
    for k in range(1, 4):
        A(f"s_add_u32 {sr(sT1)}, {sr(sHG)}, {k}"); A(f"s_and_b32 {sr(sT1)}, {sr(sT1)}, 3")
        A(f"s_lshl_b32 {sr(sT2)}, {sr(sT1)}, 17"); A(f"s_lshl_b32 {sr(sT3)}, {sr(sHG)}, 15")
        A(f"s_add_u32 {sr(sXS+k-1)}, {sr(sT2)}, {sr(sT3)}"); A(f"s_add_u32 {sr(sXS+k-1)}, {sr(sXS+k-1)}, {sr(sT0)}")
        A(f"s_lshl_b32 {sr(sT2)}, {sr(sT1)}, 15"); A(f"s_lshl_b32 {sr(sT3)}, {sr(sHG)}, 17")
        A(f"s_add_u32 {sr(sXL[k-1])}, {sr(sT2)}, {sr(sT3)}"); A(f"s_add_u32 {sr(sXL[k-1])}, {sr(sXL[k-1])}, {sr(sT0)}")
    A(f"s_add_u32 {sr(sOO)}, {sr(sB)}, {sr(sU)}"); A(f"s_mul_i32 {sr(sOO)}, {sr(sOO)}, {112*4096}")
    for reg, sh in ((sBR, 11), (sHL, 8), (sC2, 7), (sHG, 5)):
        A(f"s_lshl_b32 {sr(sT1)}, {sr(reg)}, {sh}"); A(f"s_add_u32 {sr(sOO)}, {sr(sOO)}, {sr(sT1)}")


def x_send(o, k):
    t = gT + 16 * (k - 1)
    L = [f"v_cvt_pk_bf16_f32 {vr(t+i)}, {vr(gACC+28*k+2*i)}, {vr(gACC+28*k+2*i+1)}" for i in range(14)]
    for j in (2, 1, 0):
        L.insert(4 * j + 4, f"buffer_store_dwordx4 {vr(t+4*j,4)}, {vr(vL16)}, {sr(S_XC,4)}, {sr(sXS+k-1)} offen offset:{j*1024}{o.xfl}")
    L.append(f"buffer_store_dwordx2 {vr(t+12,2)}, {vr(vL16)}, {sr(S_XC,4)}, {sr(sXS+k-1)} offen offset:3072{o.xfl}")
    return L


def x_hook(o):
    hook = {}
    for k in (1, 2):
        spread(hook, [(x, 1) for x in x_send(o, k)], 28 + 7 * k + 3, 28 + 7 * k + 10)
    return hook


def exchange(A, o):
    for x in x_send(o, 3): A(x)
    stamp(A, 1, o.xst)
    A("s_mov_b64 exec, 15")
    A(f"v_lshlrev_b32 {vr(vT+5)}, 3, {vr(vLANE)}")
    A(f"v_add_u32 {vr(vT+5)}, {sr(sXF)}, {vr(vT+5)}")
    A(f"s_lshl_b32 {sr(sT1)}, {sr(sHG)}, 3"); A(f"s_add_u32 {sr(sT1)}, {sr(sT1)}, {sr(sXF)}")
    A(f"s_lshl_b32 {sr(sT3)}, 1, {sr(sHG)}")
    A(f"global_load_dwordx2 {vr(vT+6,2)}, {vr(vT+5)}, {sr(sWS,2)} sc1")
    A("s_waitcnt vmcnt(0)")
    stamp(A, 2, o.xst)
    raise_flag(A, sT1)
    A("s_mov_b64 exec, 15")
    poll2(A, 4, sT3, True)
    A("s_mov_b64 exec, -1")
    stamp(A, 3, o.xst)
    for k in range(1, 4):
        for j in range(4):
            A(f"buffer_load_dwordx4 {vr(gX+16*(k-1)+4*j,4)}, {vr(vL16)}, {sr(S_XC,4)}, {sr(sXL[k-1])} offen offset:{j*1024} sc1")
    t1, t2 = vT, vT + 1
    A(f"v_and_b32 {vr(t1)}, 15, {vr(vLANE)}"); A(f"v_lshlrev_b32 {vr(t1)}, 12, {vr(t1)}")
    A(f"v_lshrrev_b32 {vr(t2)}, 4, {vr(vLANE)}"); A(f"v_lshl_add_u32 {vr(t1)}, {vr(t2)}, 3, {vr(t1)}")
    R = gACC
    for k in range(1, 4):
        A(f"s_waitcnt vmcnt({12 - 4*k})")
        if k == 3: stamp(A, 4, o.xst)
        for i in range(14):
            p, t = gX + 16 * (k - 1) + i, gACC + 28 + 2 * (i % 4)
            A(f"v_lshlrev_b32 {vr(t)}, 16, {vr(p)}"); A(f"v_and_b32 {vr(t+1)}, 0xffff0000, {vr(p)}")
            A(f"v_pk_add_f32 {vr(R+2*i,2)}, {vr(R+2*i,2)}, {vr(t,2)}")
            if k == 3 and i & 1:
                rt = i >> 1
                A(f"v_cvt_pk_bf16_f32 {vr(gT+2*rt)}, {vr(R+4*rt)}, {vr(R+4*rt+1)}")
                A(f"v_cvt_pk_bf16_f32 {vr(gT+2*rt+1)}, {vr(R+4*rt+2)}, {vr(R+4*rt+3)}")
                A(f"buffer_store_dwordx2 {vr(gT+2*rt,2)}, {vr(t1)}, {sr(S_OUT,4)}, {sr(sOO)} offen{o.outfl}")
                A(f"s_add_u32 {sr(sOO)}, {sr(sOO)}, {16*4096}")


def build(o):
    A = Asm()
    st = o.stamps
    for l in HEADER.splitlines(): A(l)
    A(f"; @launch grid=(256,1,1) block=(256,1,1) lds={LDS}")
    A('.amdgcn_target "amdgcn-amd-amdhsa--gfx950"'); A(".text")
    A(f".globl {KN}"); A(".p2align 8"); A(f".type {KN},@function"); A.lab(KN)
    A(f"s_cmp_ge_u32 s2, 256"); A("s_cbranch_scc1 L_exit")
    tail = []
    stamp(A, 0, st)
    if o.ticket:
        ticket(A)
    prologue(A, o)
    gemm(A, o, "Q", 4 + o.xpre + (9 if o.tlb else 0), {13: dma_k(o, 3), 14: dma_k(o, 2), 15: dma_v(o, 2)})
    q_finish(A, o)
    stamp(A, 1, st)
    two = o.ntA != o.ntB or o.winB >= 0
    if two:
        A(f"s_bitcmp1_b32 s2, {o.selbit}"); A("s_cbranch_scc1 L_attB")
    for br in range(2 if two else 1):
        if br: A.lab("L_attB")
        A(f"s_cmp_lg_u32 {sr(sC2)}, 0"); A(f"s_cbranch_scc1 L_att3_{br}")
        attention(A, o, 4, tail, br)
        A("s_branch L_attdone")
        A.lab(f"L_att3_{br}")
        attention(A, o, 3, tail, br)
        A("s_branch L_attdone")
    A.lab("L_attdone")
    stamp(A, 3, st)
    A.q = []
    gemm(A, o, "G", 63, {"hook": x_hook(o)})
    exchange(A, o)
    if o.xst:
        stamp(A, 6, True); A("s_waitcnt vmcnt(0)")
    A.lab("L_fin")
    stamp(A, 5, st)
    if st and o.dbgst:
        l = A.newlab("L_ds")
        A(f"s_cmp_eq_u32 s2, 253"); A(f"s_cselect_b32 {sr(sT1)}, 36, 8")
        A(f"s_cselect_b32 {sr(sT0)}, 0, s2"); A(f"s_or_b32 {sr(sT0)}, {sr(sT0)}, {sr(sWAVE)}"); A(f"s_cmp_lg_u32 {sr(sT0)}, 0"); A(f"s_cbranch_scc1 {l}")
        A(f"v_mov_b32 v2, {sr(sT1)}")
        for i in range(1, 8):
            A(f"s_sub_u32 {sr(sT0)}, {sr(sST+2*i)}, {sr(sST)}"); A(f"v_mov_b32 v3, {sr(sT0)}")
            A(f"global_store_dword v2, v3, {sr(sDBG,2)} offset:{4*(i-1)}")
        A.lab(l)
    elif st:
        write_stamps(A)
    A.lab("L_exit")
    A("s_endpgm")
    rare_blocks(A, o, tail)
    A('.section .rodata,"a"')
    A(".p2align 6")
    A(f".amdhsa_kernel {KN}")
    A("  .amdhsa_next_free_vgpr 488"); A("  .amdhsa_next_free_sgpr 102"); A("  .amdhsa_accum_offset 256")
    A("  .amdhsa_group_segment_fixed_size 0"); A("  .amdhsa_kernarg_size 104"); A("  .amdhsa_user_sgpr_count 2")
    A("  .amdhsa_user_sgpr_kernarg_segment_ptr 1"); A("  .amdhsa_system_sgpr_workgroup_id_x 1")
    A(".end_amdhsa_kernel")
    return A.text()


if __name__ == "__main__":
    ap = argparse.ArgumentParser()
    ap.add_argument("-o", default="concat_heads__mha_block_cached__gqa_block_cached__near_ridge.s")
    ap.add_argument("--stamps", action="store_true")
    ap.add_argument("--qst", action="store_true")
    ap.add_argument("--pst", action="store_true")
    ap.add_argument("--nt", default="KV")
    ap.add_argument("--krot", type=int, default=0)
    ap.add_argument("--ntA", default="KV")
    ap.add_argument("--ntB", default="KV")
    ap.add_argument("--dbgst", action="store_true")
    ap.add_argument("--steps", default="")
    ap.add_argument("--qseq", type=int, default=1)
    ap.add_argument("--la", type=int, default=3)
    ap.add_argument("--win", type=int, default=5)
    ap.add_argument("--pollgap", type=int, default=6)
    ap.add_argument("--xpre", type=int, default=2)
    ap.add_argument("--xst", action="store_true")
    ap.add_argument("--winB", type=int, default=-1)
    ap.add_argument("--selbit", type=int, default=2)
    ap.add_argument("--ticket", type=int, default=0)
    ap.add_argument("--ofl", default=" sc1")
    ap.add_argument("--xfl", default=" sc1")
    ap.add_argument("--lazy", type=int, default=5)
    ap.add_argument("--touch", default="037")
    ap.add_argument("--coop", type=int, default=0)
    ap.add_argument("--tlb", type=int, default=1)
    ap.add_argument("--unrollq", type=int, default=0)
    ap.add_argument("--tfl", default=" nt")
    ap.add_argument("--xbf", type=int, default=1)
    ap.add_argument("--outfl", default=" sc1")
    ap.add_argument("--nokv", action="store_true")
    a = ap.parse_args()
    open(a.o, "w").write(build(a))
```

```python
import sys, argparse, struct, math

KN = "concat_heads__mha_block_cached__gqa_block_cached__near_ridge_kernel"
WS_BYTES = 305659904
O_BYTES = 16 * 7 * 128 * 1024
X_OFF = O_BYTES
X_BYTES = 8 * 8 * 4 * 4 * 4 * 8192
F_RDY = X_OFF + X_BYTES
F_XCH = F_RDY + 32 * 128
WSL, XSL, XB = 16384, 28672, 49152
ASL = 32768
LDS = 163840
f32 = lambda x: struct.unpack("<I", struct.pack("<f", x))[0]
C_SCALE = f32(math.log2(math.e) / math.sqrt(128.0))
THR = f32(8.0)
OOB = 0x40000000

HEADER = """\
; -> output projection tile (224x128 over 8 heads) -> partial sums exchanged through ws between 4 workgroups -> out.
"""


class Asm:
    def __init__(self):
        self.L = []
        self.uid = 0
        self.q = []
        self.clock = 0
        self.born = {}
        self.lazy = 0

    def __call__(self, s):
        self.L.append(s)

    def lab(self, name):
        self.L.append(name + ":")

    def newlab(self, p="L"):
        self.uid += 1
        return f"{p}_{self.uid}"

    def ds(self, txt, tag):
        assert len(self.q) < 15, "too many LDS ops outstanding"
        self.L.append(txt); self.q.append(tag); self.born[tag] = self.clock

    def need(self, tags):
        pos = max([i for i, t in enumerate(self.q) if t in tags], default=-1)
        if pos >= 0:
            while self.lazy and pos + 1 < len(self.q) and self.clock - self.born[self.q[pos + 1]] >= self.lazy:
                pos += 1
            self.L.append(f"s_waitcnt lgkmcnt({len(self.q) - pos - 1})")
            self.q = self.q[pos + 1:]

    def emit(self, it):
        if isinstance(it, str):
            self(it)
        elif it[0] == "ds":
            if len(self.q) >= 15:
                self.need([self.q[3]])
            self.ds(it[1], it[2])
        elif it[0] == "bar":
            self(f"s_waitcnt vmcnt({it[1]}) lgkmcnt(0)"); self.q = []
            self("s_barrier")
        elif it[0] == "lab":
            self.lab(it[1])
        elif it[0] == "call":
            it[1]()

    def groups(self, gs):
        for g in gs:
            for s in g: self(s)

    def run(self, mf, after):
        for m, (txt, tags) in enumerate(mf):
            self.need(tags)
            self(txt)
            self.clock += 1
            for it in after.get(m, []): self.emit(it)

    def text(self):
        return "\n".join(self.L) + "\n"


def vr(a, n=1):
    p, a = ("a", a - 256) if a >= 256 else ("v", a)
    return f"{p}{a}" if n == 1 else f"{p}[{a}:{a+n-1}]"


def sr(a, n=1):
    return f"s{a}" if n == 1 else f"s[{a}:{a+n-1}]"


def mfma(d, a, b, c):
    return f"v_mfma_f32_16x16x32_bf16 {vr(d,4)}, {vr(a,4)}, {vr(b,4)}, {c if c == '0' else vr(c,4)}"


def put(after, m, items):
    after.setdefault(m, []).extend(items)


def spread(after, items, lo, hi):
    tot = sum(c for _, c in items)
    acc, pos = 0.0, []
    for its, c in items:
        g = lo + int((acc + c / 2) / tot * (hi - lo))
        put(after, g, its if isinstance(its, list) else [its])
        pos.append(g); acc += c
    return pos


S_X, S_W, S_K, S_V, S_O, S_XC, S_OUT = 4, 8, 12, 16, 20, 24, 28
S_T = S_O
sWAVE, sBR, sB, sH, sHG, sHL = 32, 33, 34, 35, 38, 39
sKA = 36
sDBG = 40
sWS = 42
sT0, sT1, sT2, sT3 = 44, 45, 46, 47
sXS = 48
sXF = 51
sXL = [3, 100, 101]
sOO = 93
sWM, sXM, sAM = 52, 80, 81
sCNT = 53
sXO, sWO_ = 54, 55
sKO, sVO = 56, 57
sC, sTHR = 58, 59
sEX = 60
sLD = 62
sST = 64
sPEND = 82
sSPIN = 83
sU, sC2 = 84, 85
sXB = 86
sROT = 87
sTAU = 88
sOST = 89
sFL = 92
sNON = 90
sPTR = 94
sSW, sSX = 96, 98

vLANE = 1
vT = 2
vDX = 10
vDW = 14
vDK = 18
vDV = 22
vXB = 24
vTB = 26
vXA = 30
vTA = 32
vL16 = 36
vOW = 37
vTAG = 38
aTCH = 480
vFAC = 40
vP = 44
vS = 60
vKF = 124
vVF = 156
vKA = 208
vVA = 216
vNM = 232
vLS = 248
aO = 256
aQ = 384
gACC = 40
gX = 152
gW = 448
gT = 208


def stamp(A, i, on):
    if on:
        q = list(A.q)
        A(f"s_memrealtime {sr(sST + 2*i, 2)}")
        A(f"s_memtime {sr(sPTR, 2)}")
        A("s_waitcnt lgkmcnt(0)")
        A(f"s_mov_b32 {sr(sST + 2*i + 1)}, {sr(sPTR)}")
        A.q = q


def write_stamps(A):
    l = A.newlab("L_st")
    A(f"s_mov_b32 {sr(sT0)}, {WS_BYTES - 512*64}")
    A(f"s_lshl_b32 {sr(sT1)}, s2, 6")
    A(f"s_add_u32 {sr(sT0)}, {sr(sT0)}, {sr(sT1)}")
    A(f"s_add_u32 {sr(sPTR)}, {sr(sWS)}, {sr(sT0)}")
    A(f"s_addc_u32 {sr(sPTR+1)}, {sr(sWS+1)}, 0")
    A(f"v_mov_b32 v2, 0")
    for i in range(16):
        A(f"v_mov_b32 v{4+i}, {sr(sST+i)}")
    A(f"v_cmp_eq_u32 vcc, 0, v0")
    A(f"s_and_saveexec_b64 {sr(sEX,2)}, vcc")
    A(f"s_cbranch_execz {l}")
    for i in range(4):
        A(f"global_store_dwordx4 v2, v[{4+4*i}:{7+4*i}], {sr(sPTR,2)} offset:{16*i}")
    A.lab(l)
    A(f"s_mov_b64 exec, {sr(sEX,2)}")


def srd(A, d, lo, add, nrec):
    if add is None:
        A(f"s_mov_b32 {sr(d)}, {sr(lo)}"); A(f"s_mov_b32 {sr(d+1)}, {sr(lo+1)}")
    else:
        A(f"s_add_u32 {sr(d)}, {sr(lo)}, {add}"); A(f"s_addc_u32 {sr(d+1)}, {sr(lo+1)}, 0")
    A(f"s_mov_b32 {sr(d+2)}, {nrec}")
    A(f"s_mov_b32 {sr(d+3)}, 0x20000")


def get_tag(A):
    ls, lg = A.newlab("L_tag"), A.newlab("L_tagok")
    A(f"s_cmp_lg_u32 {sr(sNON+1)}, 0"); A(f"s_cbranch_scc1 {lg}")
    A(f"v_mov_b32 {vr(vT+4)}, 0")
    A(f"s_mov_b32 {sr(sSPIN)}, 0")
    A.lab(ls)
    A(f"global_load_dwordx2 {vr(vT+2,2)}, {vr(vT+4)}, {sr(sDBG,2)} sc1")
    A("s_waitcnt vmcnt(0)")
    A(f"v_readfirstlane_b32 {sr(sNON)}, {vr(vT+2)}")
    A(f"v_readfirstlane_b32 {sr(sNON+1)}, {vr(vT+3)}")
    A(f"s_add_u32 {sr(sSPIN)}, {sr(sSPIN)}, 1")
    A(f"s_cmp_lg_u32 {sr(sNON+1)}, 0"); A(f"s_cbranch_scc1 {lg}")
    A("s_sleep 4")
    A(f"s_cmp_lt_u32 {sr(sSPIN)}, 0x4000"); A(f"s_cbranch_scc1 {ls}")
    A.lab(lg)


def raise_flag(A, sig_s):
    A("s_mov_b64 exec, 1")
    get_tag(A)
    A(f"v_mov_b32 {vr(vT+4)}, {sr(sig_s)}"); A(f"v_mov_b32 {vr(vT+2)}, {sr(sNON)}"); A(f"v_mov_b32 {vr(vT+3)}, {sr(sNON+1)}")
    A(f"global_store_dwordx2 {vr(vT+4)}, {vr(vT+2,2)}, {sr(sWS,2)} sc1")
    A("s_mov_b64 exec, -1")


def signal_wait(A, sig_s, off_s, n, sleep):
    le, ls, lg = A.newlab("L_wend"), A.newlab("L_spin"), A.newlab("L_go")
    A(f"s_cmp_lg_u32 {sr(sWAVE)}, 0"); A(f"s_cbranch_scc1 {le}")
    if sig_s is not None:
        raise_flag(A, sig_s)
    A(f"s_mov_b64 exec, {(1 << n) - 1}")
    A(f"v_lshlrev_b32 {vr(vT+5)}, 3, {vr(vLANE)}")
    A(f"v_add_u32 {vr(vT+5)}, {sr(off_s)}, {vr(vT+5)}")
    A(f"s_mov_b32 {sr(sSPIN)}, 0")
    A.lab(ls)
    A(f"global_load_dwordx2 {vr(vT+6,2)}, {vr(vT+5)}, {sr(sWS,2)} sc1")
    A("s_waitcnt vmcnt(0)")
    A(f"v_cmp_eq_u64 vcc, {sr(sNON,2)}, {vr(vT+6,2)}")
    A(f"s_add_u32 {sr(sSPIN)}, {sr(sSPIN)}, 1")
    A(f"s_cmp_eq_u32 vcc_lo, {(1 << n) - 1}")
    A(f"s_cbranch_scc1 {lg}")
    A(f"s_sleep {sleep}")
    A(f"s_cmp_lt_u32 {sr(sSPIN)}, 0x4000"); A(f"s_cbranch_scc1 {ls}")
    A.lab(lg)
    A("s_mov_b64 exec, -1")
    A.lab(le)
    A("s_barrier")


def poll2(A, n, own_s, first_done):
    ls, lg = A.newlab("L_spin"), A.newlab("L_go")
    ld = lambda r: f"global_load_dwordx2 {vr(r,2)}, {vr(vT+5)}, {sr(sWS,2)} sc1"

    def check(r):
        A(f"v_cmp_eq_u64 vcc, {sr(sNON,2)}, {vr(r,2)}")
        A(f"s_add_u32 {sr(sSPIN)}, {sr(sSPIN)}, 1")
        A(f"s_or_b32 {sr(sT2)}, vcc_lo, {sr(own_s)}")
        A(f"s_cmp_eq_u32 {sr(sT2)}, {(1 << n) - 1}")
        A(f"s_cbranch_scc1 {lg}")
    A(f"s_mov_b32 {sr(sSPIN)}, 0")
    if first_done:
        check(vT + 6)
    A(ld(vT + 6))
    A("s_sleep 4")
    A.lab(ls)
    A(ld(vT + 2)); A("s_waitcnt vmcnt(1)"); check(vT + 6)
    A(ld(vT + 6)); A("s_waitcnt vmcnt(1)"); check(vT + 2)
    A(f"s_cmp_lt_u32 {sr(sSPIN)}, 0x8000"); A(f"s_cbranch_scc1 {ls}")
    A.lab(lg)


def team_signal(A):
    l = A.newlab("L_sig")
    A(f"s_cmp_lg_u32 {sr(sWAVE)}, 0"); A(f"s_cbranch_scc1 {l}")
    A(f"s_lshl_b32 {sr(sT1)}, {sr(sHL)}, 3"); A(f"s_add_u32 {sr(sT1)}, {sr(sT1)}, {sr(sFL)}")
    A("s_mov_b64 exec, 255")
    A(f"v_lshlrev_b32 {vr(vT+5)}, 3, {vr(vLANE)}")
    A(f"v_add_u32 {vr(vT+5)}, {sr(sFL)}, {vr(vT+5)}")
    raise_flag(A, sT1)
    A.lab(l)


def team_wait(A):
    le = A.newlab("L_wend")
    A(f"s_cmp_lg_u32 {sr(sWAVE)}, 0"); A(f"s_cbranch_scc1 {le}")
    A("s_mov_b64 exec, 255")
    A(f"s_lshl_b32 {sr(sT3)}, 1, {sr(sHL)}")
    poll2(A, 8, sT3, False)
    A("s_mov_b64 exec, -1")
    A.lab(le)
    A("s_barrier")


def m0set(base_s, slot):
    return f"s_add_u32 m0, {sr(base_s)}, {slot[1]}" if isinstance(slot, tuple) else f"s_add_u32 m0, {sr(base_s)}, {sr(slot)}"


def next_chunk(seq, off, sh):
    return [f"s_lshr_b64 {sr(seq,2)}, {sr(seq,2)}, 4", f"s_and_b32 {sr(off)}, {sr(seq)}, 15", f"s_lshl_b32 {sr(off)}, {sr(off)}, {sh}"]


def seq_words(seq):
    v = sum(c << (4 * i) for i, c in enumerate(seq))
    return v & 0xffffffff, v >> 32


def seq_add(A, seq, add_s):
    A(f"s_mul_i32 {sr(sT0)}, {sr(add_s)}, 0x11111111")
    A(f"s_and_b32 {sr(sT1)}, {sr(sT0)}, 0x77777777")
    for w in (seq, seq + 1):
        A(f"s_xor_b32 {sr(sT2)}, {sr(w)}, {sr(sT0)}"); A(f"s_and_b32 {sr(sT2)}, {sr(sT2)}, 0x88888888")
        A(f"s_and_b32 {sr(w)}, {sr(w)}, 0x77777777"); A(f"s_add_u32 {sr(w)}, {sr(w)}, {sr(sT1)}"); A(f"s_xor_b32 {sr(w)}, {sr(w)}, {sr(sT2)}")


QSEQ = [0, 1, 4, 5, 2, 8, 9, 3, 12, 13, 6, 10, 14, 7, 11, 15]


def gseqs():
    own = [[2, 3, 4, 5], [6, 7, 8], [9, 10, 11, 12], [13, 14, 15]]
    at = [2, 3, 6, 9]
    when = {c: at[i] for o_ in own for i, c in enumerate(o_)}
    out = []
    for t in range(4):
        seq = [0, 1] + [None] * 14
        for i, c in enumerate(own[t]): seq[at[i]] = c
        rest = sorted((c for u in range(1, 4) for c in own[(t + u) % 4]), key=lambda c: when[c])
        for p in range(2, 16):
            if seq[p] is None:
                c = rest.pop(0); assert when[c] < p; seq[p] = c
        assert sorted(seq) == list(range(16))
        out.append(seq)
    return out


def touch_round():
    return [f"global_load_dword {vr(aTCH)}, {vr(vTAG,2)}, off",
            f"v_add_co_u32 {vr(vTAG)}, vcc, {vr(vOW)}, {vr(vTAG)}", "s_nop 1", f"v_addc_co_u32 {vr(vTAG+1)}, vcc, 0, {vr(vTAG+1)}, vcc"]


def touch_setup(A):
    a, b, hi = vT, vT + 1, vT + 2
    A(f"s_lshl_b32 {sr(sT0)}, {sr(sTAU)}, 5")
    A(f"v_add_u32 {vr(a)}, {sr(sT0)}, {vr(vLANE)}")
    A(f"v_lshrrev_b32 {vr(b)}, 1, {vr(a)}"); A(f"v_lshlrev_b32 {vr(b)}, 13, {vr(b)}")
    A(f"v_and_b32 {vr(a)}, 1, {vr(a)}"); A(f"v_lshl_add_u32 {vr(a)}, {vr(a)}, 7, {vr(b)}")
    A(f"s_lshl_b32 {sr(sT0)}, {sr(sWAVE)}, 19"); A(f"v_add_u32 {vr(a)}, {sr(sT0)}, {vr(a)}")
    A(f"v_min_u32 {vr(b)}, 59, {vr(vLANE)}")
    A(f"s_mul_i32 {sr(sT0)}, {sr(sHL)}, 28"); A(f"s_sub_u32 {sr(sT0)}, {sr(sT0)}, 32")
    A(f"v_add_u32 {vr(b)}, {sr(sT0)}, {vr(b)}"); A(f"v_lshlrev_b32 {vr(b)}, 11, {vr(b)}")
    A(f"s_lshl_b32 {sr(sT0)}, {sr(sWAVE)}, 7"); A(f"v_add_u32 {vr(b)}, {sr(sT0)}, {vr(b)}")
    A(f"v_cmp_gt_u32 vcc, 32, {vr(vLANE)}")
    A(f"v_mov_b32 {vr(vOW)}, 512"); A(f"v_mov_b32 {vr(hi)}, 0x200000")
    A(f"v_cndmask_b32 {vr(a)}, {vr(b)}, {vr(a)}, vcc")
    A(f"v_cndmask_b32 {vr(vOW)}, {vr(vOW)}, {vr(hi)}, vcc")


def touch_bases(A):
    a, lo, hi = vT, vT + 1, vT + 2
    A(f"v_mov_b32 {vr(lo)}, {sr(S_X)}"); A(f"v_mov_b32 {vr(hi)}, {sr(S_W)}")
    A(f"v_cndmask_b32 {vr(lo)}, {vr(lo)}, {vr(hi)}, vcc")
    A(f"v_mov_b32 {vr(vTAG+1)}, {sr(S_X+1)}"); A(f"v_mov_b32 {vr(hi)}, {sr(S_W+1)}")
    A(f"v_cndmask_b32 {vr(vTAG+1)}, {vr(vTAG+1)}, {vr(hi)}, vcc")
    A(f"v_add_co_u32 {vr(vTAG)}, vcc, {vr(lo)}, {vr(a)}"); A("s_nop 1")
    A(f"v_addc_co_u32 {vr(vTAG+1)}, vcc, 0, {vr(vTAG+1)}, vcc")


def dma_w(o, kind, slot):
    fl = " nt" if kind in o.nt else ""
    g = [[f"buffer_load_dwordx4 {vr(vDW+t)}, {sr(S_W,4)}, {sr(sWO_)} offen offset:{t*1024}{fl} lds"] for t in range(4)]
    g[0] = [m0set(sWM, slot), "s_nop 0"] + g[0]
    g[3] += next_chunk(sSW, sWO_, 19 if kind == "W" else 17)
    return g


def dma_x(o, kind, slot):
    srd_, fl = (S_X, " nt" if "X" in o.nt else "") if kind == "X" else (S_O, " sc1")
    g = []
    for t in range(7):
        so = sXO if t < 4 else sXB
        g.append([f"buffer_load_dwordx4 {vr(vDX+(t&3))}, {sr(srd_,4)}, {sr(so)} offen offset:{(t&3)*1024}{fl} lds"])
    g[0] = [m0set(sXM, slot), f"s_add_u32 {sr(sXB)}, {sr(sXO)}, {65536 if kind == 'X' else 262144}"] + g[0]
    g[4] = ["s_add_u32 m0, m0, 4096", "s_nop 0"] + g[4]
    g[6] += next_chunk(sSX, sXO, 7 if kind == "X" else 11)
    return g


def dma_half(o, kv, slot, tile):
    srd_, va, n, off = (S_K, vDK, 4, 16384) if kv == "K" else (S_V, vDV, 2, 0)
    fl = " nt" if kv in o.nt else ""
    g = [[f"buffer_load_dwordx4 {vr(va+t%n)}, {sr(srd_,4)}, {sr(sKO)} offen offset:{t*1024}{fl} lds"] for t in range(4)]
    g[0] = [f"s_add_u32 m0, {sr(sWM)}, {ASL*(1+slot) + off}", f"s_lshl_b32 {sr(sKO)}, {sr(sC2)}, 12", f"s_add_u32 {sr(sKO)}, {sr(sKO)}, {tile*8192}"] + g[0]
    return g


def dma_tile(o, kv, slot, win):
    srd_, va, n, off, so = (S_K, vDK, 4, 16384, sKO) if kv == "K" else (S_V, vDV, 2, 0, sVO)
    fl = " nt" if kv in o.nt else ""
    wp = o.winpat or str(win) * 8
    w = lambda t: [f"s_waitcnt vmcnt({int(wp[t])-1})"] if int(wp[t]) else []
    g = [w(t) + [f"buffer_load_dwordx4 {vr(va+t%n)}, {sr(srd_,4)}, {sr(so)} offen offset:{(t&3)*1024}{fl} lds"] for t in range(8)]
    g[0] = [f"s_add_u32 m0, {sr(sAM)}, {ASL*(1+slot) + off}", "s_nop 0"] + g[0]
    g[3] += [f"s_add_u32 {sr(so)}, {sr(so)}, 4096"]
    g[4] = [f"s_add_u32 m0, {sr(sAM)}, {ASL*(1+slot) + off + 4096}", "s_nop 0"] + g[4]
    g[7] += [f"s_add_u32 {sr(so)}, {sr(so)}, 12288"]
    return g


def w_offsets(A, rshift, wflav):
    l4, t0, t1, t2 = vT, vT + 1, vT + 2, vT + 3
    A(f"v_lshrrev_b32 {vr(l4)}, 4, {vr(vLANE)}")
    A(f"v_and_b32 {vr(t1)}, 15, {vr(vLANE)}")
    A(f"v_lshlrev_b32 {vr(t0)}, 1, {vr(l4)}")
    A(f"v_xor_b32 {vr(t0)}, {vr(t0)}, {vr(t1)}")
    A(f"v_lshlrev_b32 {vr(t0)}, 4, {vr(t0)}")
    A(f"s_lshl_b32 {sr(sT3)}, {sr(sWAVE)}, {rshift+4}")
    A(f"v_lshlrev_b32 {vr(t2)}, {rshift}, {vr(l4)}")
    A(f"v_add_u32 {vr(t2)}, {sr(sT3)}, {vr(t2)}")
    for t in range(4):
        bit = (t >> 1) & 1 if wflav else t & 1
        A(f"v_xor_b32 {vr(t1)}, {128*bit}, {vr(t0)}")
        A(f"v_add3_u32 {vr(vDW+t)}, {vr(t1)}, {vr(t2)}, 0")
        A(f"v_add_u32 {vr(vDW+t)}, {(4*t << rshift) - 1024*t}, {vr(vDW+t)}")


def tr_base(A, dst, gshift):
    g, r, c = vT, vT + 1, vT + 2
    A(f"v_lshrrev_b32 {vr(g)}, 4, {vr(vLANE)}")
    A(f"v_bfe_u32 {vr(r)}, {vr(vLANE)}, 2, 2")
    A(f"v_and_b32 {vr(c)}, 3, {vr(vLANE)}"); A(f"v_lshlrev_b32 {vr(c)}, 3, {vr(c)}")
    A(f"v_lshl_add_u32 {vr(c)}, {vr(g)}, {gshift}, {vr(c)}")
    A(f"v_lshl_add_u32 {vr(c)}, {vr(r)}, 8, {vr(c)}")
    A(f"v_lshl_add_u32 {vr(c)}, {vr(r)}, 5, {vr(c)}")
    A(f"v_and_b32 {vr(g)}, 1, {vr(g)}")
    A(f"v_lshl_add_u32 {vr(dst)}, {vr(g)}, 7, {vr(c)}")


def gemm_tr_bases(A, gshift, rot=False):
    tr_base(A, vT + 3, gshift)
    A(f"s_lshl_b32 {sr(sT0)}, {sr(sC2)}, 7")
    A(f"v_xor_b32 {vr(vT+3)}, {sr(sT0)}, {vr(vT+3)}")
    for ct in range(4):
        if rot:
            A(f"s_add_u32 {sr(sT0)}, {sr(sHG)}, {ct}"); A(f"s_and_b32 {sr(sT0)}, {sr(sT0)}, 3"); A(f"s_lshl_b32 {sr(sT0)}, {sr(sT0)}, 5")
            A(f"v_xor_b32 {vr(vTB+ct)}, {sr(sT0)}, {vr(vT+3)}")
        else:
            A(f"v_xor_b32 {vr(vTB+ct)}, {32*ct}, {vr(vT+3)}")


def ticket(A):
    lw, lt, lo = A.newlab("L_tk"), A.newlab("L_tk"), A.newlab("L_tk")
    A(f"s_load_dwordx2 {sr(sDBG,2)}, s[0:1], 88")
    A(f"s_getreg_b32 {sr(sT0)}, hwreg(HW_REG_XCC_ID)")
    A(f"v_readfirstlane_b32 {sr(sT3)}, v0")
    A(f"v_mov_b32 v4, {LDS - 4}")
    A(f"s_cmp_ge_u32 {sr(sT3)}, 64"); A(f"s_cbranch_scc1 {lw}")
    A("s_mov_b64 exec, 1")
    A(f"v_mov_b32 v3, 1"); A(f"s_mov_b32 {sr(sT2)}, 0")
    A("s_waitcnt lgkmcnt(0)")
    A.lab(lt)
    A(f"s_and_b32 {sr(sT0)}, {sr(sT0)}, 7")
    A(f"s_lshl_b32 {sr(sT1)}, {sr(sT0)}, 4"); A(f"s_add_u32 {sr(sT1)}, {sr(sT1)}, 64")
    A(f"v_mov_b32 v2, {sr(sT1)}")
    A(f"global_atomic_add v5, v2, v3, {sr(sDBG,2)} sc0 sc1")
    A("s_waitcnt vmcnt(0)")
    A(f"v_readfirstlane_b32 {sr(sT1)}, v5")
    A(f"s_add_u32 {sr(sT2)}, {sr(sT2)}, 1")
    A(f"s_cmp_lt_u32 {sr(sT1)}, 32"); A(f"s_cbranch_scc1 {lo}")
    A(f"s_add_u32 {sr(sT0)}, {sr(sT0)}, 1")
    A(f"s_cmp_lt_u32 {sr(sT2)}, 8"); A(f"s_cbranch_scc1 {lt}")
    A.lab(lo)
    A(f"s_lshl_b32 {sr(sT1)}, {sr(sT1)}, 3"); A(f"s_add_u32 {sr(sT1)}, {sr(sT1)}, {sr(sT0)}")
    A(f"v_mov_b32 v5, {sr(sT1)}")
    A("ds_write_b32 v4, v5")
    A("s_mov_b64 exec, -1")
    A.lab(lw)
    A("s_waitcnt lgkmcnt(0)")
    A("s_barrier")
    A("ds_read_b32 v5, v4")
    A("s_waitcnt lgkmcnt(0)")
    A("v_readfirstlane_b32 s2, v5")
    A("s_nop 3")
    A(f"s_cmp_ge_u32 s2, 256"); A("s_cbranch_scc1 L_exit")


def prologue(A, o):
    A(f"s_bfe_u32 {sr(sBR)}, s2, 0x10002")
    A(f"s_mul_i32 {sr(sT0)}, {sr(sBR)}, 40")
    A(f"s_add_u32 {sr(sKA)}, s0, {sr(sT0)}"); A(f"s_addc_u32 {sr(sKA+1)}, s1, 0")
    A(f"s_load_dwordx2 s[74:75], {sr(sKA,2)}, 0")
    A(f"s_load_dwordx2 s[66:67], {sr(sKA,2)}, 8")
    A(f"s_load_dwordx2 s[68:69], {sr(sKA,2)}, 16")
    A(f"s_load_dwordx2 s[70:71], {sr(sKA,2)}, 24")
    A(f"s_load_dwordx2 s[76:77], {sr(sKA,2)}, 32")
    A(f"s_load_dwordx2 s[72:73], s[0:1], 80")
    A(f"s_load_dwordx2 {sr(sDBG,2)}, s[0:1], 88")
    A(f"s_load_dwordx2 {sr(sWS,2)}, s[0:1], 96")
    A(f"v_lshrrev_b32 v2, 6, v0")
    A(f"v_and_b32 {vr(vLANE)}, 63, v0")
    A(f"v_readfirstlane_b32 {sr(sWAVE)}, v2")
    A(f"s_and_b32 {sr(sHG)}, s2, 3")
    A(f"s_bfe_u32 {sr(sHL)}, s2, 0x30003")
    A(f"s_bfe_u32 {sr(sTAU)}, s2, 0x20006")
    A(f"s_lshl_b32 {sr(sH)}, {sr(sHG)}, 3"); A(f"s_add_u32 {sr(sH)}, {sr(sH)}, {sr(sHL)}")
    A(f"s_lshl_b32 {sr(sB)}, {sr(sTAU)}, 1")
    A(f"s_add_u32 {sr(sROT)}, {sr(sB)}, {sr(sHL)}"); A(f"s_and_b32 {sr(sROT)}, {sr(sROT)}, {0 if o.coop else 7}")
    A(f"s_lshr_b32 {sr(sU)}, {sr(sWAVE)}, 1"); A(f"s_and_b32 {sr(sC2)}, {sr(sWAVE)}, 1")
    A(f"s_lshl_b32 {sr(sWM)}, {sr(sWAVE)}, 12")
    A(f"s_mul_i32 {sr(sXM)}, {sr(sWAVE)}, 7168")
    A(f"s_lshl_b32 {sr(sAM)}, {sr(sU)}, 13")
    A(f"s_lshl_b32 {sr(sXO)}, {sr(sROT)}, 8")
    A(f"s_lshl_b32 {sr(sWO_)}, {sr(sROT)}, 20")
    lo, hi = seq_words(QSEQ if (o.qseq and not o.coop) else list(range(16)))
    A(f"s_mov_b32 {sr(sSW)}, {lo:#x}"); A(f"s_mov_b32 {sr(sSW+1)}, {hi:#x}")
    A(f"s_lshl_b32 {sr(sT3)}, {sr(sROT)}, 1")
    seq_add(A, sSW, sT3)
    A(f"s_mov_b64 {sr(sSX,2)}, {sr(sSW,2)}")
    l3, l4, t0, t1 = vT, vT + 1, vT + 2, vT + 3
    A(f"v_lshrrev_b32 {vr(l3)}, 3, {vr(vLANE)}")
    A(f"v_lshrrev_b32 {vr(l4)}, 4, {vr(vLANE)}")
    A(f"s_mul_i32 {sr(sT2)}, {sr(sWAVE)}, {56*2048}")
    A(f"s_lshl_b32 {sr(sT1)}, {sr(sC2)}, 2")
    A(f"v_and_b32 {vr(t1)}, 7, {vr(vLANE)}")
    A(f"v_xor_b32 {vr(t1)}, {sr(sT1)}, {vr(t1)}")
    A(f"v_xor_b32 {vr(t1)}, {vr(t1)}, {vr(l4)}")
    A(f"v_lshlrev_b32 {vr(t1)}, 4, {vr(t1)}")
    A(f"v_lshl_add_u32 {vr(l3)}, {vr(l3)}, 11, {sr(sT2)}")
    for t in range(4):
        A(f"v_xor_b32 {vr(t0)}, {64*(t&1)}, {vr(t1)}")
        A(f"v_add_u32 {vr(t0)}, {vr(t0)}, {vr(l3)}")
        A(f"v_add_u32 {vr(vDX+t)}, {8*t*2048 - 1024*t}, {vr(t0)}")
    w_offsets(A, 13, True)
    if o.coop:
        touch_setup(A)
    A("s_waitcnt lgkmcnt(0)")
    A(f"s_lshl_b32 {sr(sT0)}, {sr(sH)}, 8")
    srd(A, S_W, 70, sr(sT0), "0")
    A(f"s_sub_u32 {sr(S_W+2)}, 0x800000, {sr(sT0)}")
    A(f"s_mul_i32 {sr(sT0)}, {sr(sB)}, 229376")
    srd(A, S_X, 74, sr(sT0), str(2 * 229376))
    if o.coop:
        touch_bases(A)
        for x in touch_round(): A(x)
        if o.coop > 1:
            for x in touch_round(): A(x)
    A.groups(dma_w(o, "W", ("imm", 0)))
    A.groups(dma_x(o, "X", ("imm", XB)))
    A.groups(dma_w(o, "W", ("imm", WSL)))
    A.groups(dma_x(o, "X", ("imm", XB + XSL))[:o.xpre])
    A(f"s_add_u32 {sr(sT0)}, {sr(sB)}, {sr(sU)}"); A(f"s_lshl_b32 {sr(sT0)}, {sr(sT0)}, 5")
    A(f"s_add_u32 {sr(sT0)}, {sr(sT0)}, {sr(sH)}"); A(f"s_lshl_b32 {sr(sT0)}, {sr(sT0)}, 18")
    srd(A, S_K, 66, sr(sT0), "0" if o.nokv else "0x40000")
    srd(A, S_V, 68, sr(sT0), "0" if o.nokv else "0x40000")
    l4, t0, t1, t2 = vT, vT + 1, vT + 2, vT + 3
    A(f"v_lshrrev_b32 {vr(l4)}, 4, {vr(vLANE)}")
    A(f"v_and_b32 {vr(t1)}, 15, {vr(vLANE)}")
    A(f"v_lshlrev_b32 {vr(t2)}, 8, {vr(l4)}")
    A(f"v_xor_b32 {vr(t0)}, {vr(l4)}, {vr(t1)}")
    A(f"v_lshl_add_u32 {vr(vDK)}, {vr(t0)}, 4, {vr(t2)}")
    for t in range(1, 4):
        A(f"v_xor_b32 {vr(vDK+t)}, {64*t}, {vr(vDK)}")
    A(f"v_lshlrev_b32 {vr(t0)}, 1, {vr(l4)}")
    A(f"v_xor_b32 {vr(t0)}, {vr(t0)}, {vr(t1)}")
    A(f"v_lshl_add_u32 {vr(vDV)}, {vr(t0)}, 4, {vr(t2)}")
    A(f"v_xor_b32 {vr(vDV+1)}, 128, {vr(vDV)}")
    srd(A, S_OUT, 72, None, str(896 * 4096))
    srd(A, S_XC, sWS, str(X_OFF), str(X_BYTES))
    x_setup(A)
    if o.tlb:
        A(f"s_lshl_b32 {sr(sT0)}, {sr(sBR)}, 3"); A(f"s_add_u32 {sr(sT0)}, {sr(sT0)}, {sr(sB)}"); A(f"s_mul_i32 {sr(sT0)}, {sr(sT0)}, {7 << 17}")
        A(f"s_lshl_b32 {sr(sT1)}, {sr(sHG)}, 21")
        A(f"v_mov_b32 {vr(vT)}, 0"); A(f"v_mov_b32 {vr(vT+1)}, {sr(sT0)}"); A(f"v_add_u32 {vr(vT+2)}, {(14 << 17) - 4}, {vr(vT+1)}")
        A(f"v_mov_b32 {vr(vT+3)}, {sr(sXF)}"); A(f"v_mov_b32 {vr(vT+4)}, {sr(sT1)}"); A(f"v_add_u32 {vr(vT+5)}, {(1 << 21) - 4}, {vr(vT+4)}")
        A("s_mov_b64 exec, 1")
        for i, (srd_, so) in enumerate(((S_K, "0"), (S_V, "0"), (S_OUT, sr(sOO)), (S_XC, sr(sXS)))):
            A(f"buffer_load_dword {vr(aTCH+i)}, {vr(vT)}, {sr(srd_,4)}, {so} offen")
        for i in range(3):
            A(f"global_load_dword {vr(aTCH+4+i)}, {vr(vT+1+i)}, {sr(sWS,2)}")
        A(f"global_load_dword {vr(aTCH+7)}, {vr(vT+4)}, s[76:77]")
        A(f"global_load_dword {vr(aTCH+7)}, {vr(vT+5)}, s[76:77]")
        A("s_mov_b64 exec, -1")
    A(f"s_mov_b32 {sr(sC)}, {C_SCALE:#x}"); A(f"s_mov_b32 {sr(sTHR)}, {THR:#x}")
    A(f"s_mov_b32 {sr(sNON)}, 0"); A(f"s_mov_b32 {sr(sNON+1)}, 0"); A(f"s_mov_b32 {sr(sPEND)}, 0")
    l = A.newlab("L_notag")
    A(f"s_or_b32 {sr(sT0)}, s2, {sr(sWAVE)}"); A(f"s_cmp_lg_u32 {sr(sT0)}, 0"); A(f"s_cbranch_scc1 {l}")
    A(f"s_memrealtime {sr(sLD,2)}"); A("s_waitcnt lgkmcnt(0)")
    A(f"v_mov_b32 {vr(vT+2)}, {sr(sLD)}"); A(f"v_mov_b32 {vr(vT+3)}, {sr(sLD+1)}"); A(f"v_mov_b32 {vr(vT+4)}, 0")
    A(f"v_or_b32 {vr(vT+3)}, 0x80000000, {vr(vT+3)}")
    A("s_mov_b64 exec, 1")
    A(f"global_store_dwordx2 {vr(vT+4)}, {vr(vT+2,2)}, {sr(sDBG,2)} sc1")
    A("s_mov_b64 exec, -1")
    A.lab(l)
    q, g, r = vT, vT + 1, vT + 2
    A(f"v_lshlrev_b32 {vr(vL16)}, 4, {vr(vLANE)}")
    A(f"v_and_b32 {vr(q)}, 15, {vr(vLANE)}")
    A(f"v_lshrrev_b32 {vr(g)}, 4, {vr(vLANE)}")
    A(f"v_bfe_u32 {vr(r)}, {vr(vLANE)}, 1, 3")
    A(f"v_xor_b32 {vr(r)}, {vr(r)}, {vr(g)}")
    A(f"v_lshlrev_b32 {vr(r)}, 4, {vr(r)}")
    A(f"v_lshl_add_u32 {vr(r)}, {vr(q)}, 7, {vr(r)}")
    A(f"s_mul_i32 {sr(sT0)}, {sr(sU)}, {112*128}"); A(f"s_add_u32 {sr(sT0)}, {sr(sT0)}, {XB}")
    A(f"v_add_u32 {vr(vXB)}, {sr(sT0)}, {vr(r)}")
    A(f"v_xor_b32 {vr(vXB+1)}, 64, {vr(vXB)}")
    for s_ in range(2):
        A(f"v_add_u32 {vr(vXA+s_)}, {2*XSL}, {vr(vXB+s_)}")
    gemm_tr_bases(A, 11)
    q, g, t0 = vT + 3, vT + 4, vT + 5
    A(f"v_and_b32 {vr(q)}, 15, {vr(vLANE)}"); A(f"v_lshrrev_b32 {vr(g)}, 4, {vr(vLANE)}")
    A(f"v_xor_b32 {vr(t0)}, {vr(g)}, {vr(q)}"); A(f"v_lshlrev_b32 {vr(t0)}, 4, {vr(t0)}")
    A(f"v_lshl_add_u32 {vr(t0)}, {vr(q)}, 8, {vr(t0)}")
    A(f"s_lshl_b32 {sr(sT0)}, {sr(sU)}, 13"); A(f"s_add_u32 {sr(sT1)}, {sr(sT0)}, {ASL}"); A(f"s_add_u32 {sr(sT0)}, {sr(sT0)}, {ASL + 16384}")
    A(f"v_add_u32 {vr(vKA)}, {sr(sT0)}, {vr(t0)}")
    for s in range(1, 4):
        A(f"v_xor_b32 {vr(vKA+s)}, {64*s}, {vr(vKA)}")
    for s in range(4):
        A(f"v_add_u32 {vr(vKA+4+s)}, 0x10000, {vr(vKA+s)}")
    tr_base(A, vVA, 10)
    A(f"v_add_u32 {vr(vVA)}, {sr(sT1)}, {vr(vVA)}")
    for dt in range(1, 8):
        A(f"v_xor_b32 {vr(vVA+dt)}, {32*dt}, {vr(vVA)}")
    for dt in range(8):
        A(f"v_add_u32 {vr(vVA+8+dt)}, 0x10000, {vr(vVA+dt)}")
    for i in range(24):
        A(f"v_mov_b32 {vr(vNM+i)}, 0")
    for i in range(128):
        A(f"v_accvgpr_write_b32 {vr(aO+i)}, 0")


def gemm(A, o, kind, vm0, tailfill):
    Q = kind == "Q"
    xk, wk = ("X", "W") if Q else ("O", "G")
    A.lazy = o.lazy

    def wr(j, s):
        L = []
        for ct in range(4):
            f = gW + 16 * s + 4 * ct
            for e in range(2):
                off = (j % 3) * WSL + 8192 * s + (1024 if Q else 4096) * e
                L.append(("ds", f"ds_read_b64_tr_b16 {vr(f+2*e,2)}, {vr(vTB+ct)} offset:{off}", f"w{s}{ct}"))
        return L

    def xr(j, s, rt):
        reg, off = (vXA + s, 0) if j % 3 == 2 else (vXB + s, (j % 3) * XSL)
        return ("ds", f"ds_read_b128 {vr(gX+28*s+4*rt,4)}, {vr(reg)} offset:{off + 2048*rt}", f"x{s}{rt}")

    def carry(j):
        return wr(j, 0) + [xr(j, 0, rt) for rt in range(3)]

    W = lambda j: dma_w(o, wk, ("imm", (j % 3) * WSL))
    X = lambda j: dma_x(o, xk, ("imm", XB + (j % 3) * XSL))

    tset = set(int(c, 16) for c in o.touch) if (Q and o.coop) else set()
    assert not (tset & {2, 3, 4, 5, 6, 7, 8, 9, 10}) or o.unrollq

    def step(j, late, early, vm, hook=None, latelo=1):
        mf, after = [], {}
        if j - 1 in tset: vm += 1
        if j in tset:
            early = [touch_round()] + list(early)
        for k_, v_ in (hook or {}).items():
            put(after, k_, v_)
        for s in range(2):
            tiles = [(rt, ct) for rt in range(7) for ct in range(4)]
            if j == 15 and s == 1 and not Q:
                tiles = [(rt, ct) for ct in (1, 2, 3, 0) for rt in range(7)]
            for rt, ct in tiles:
                a = gACC + 28 * ct + 4 * rt
                mf.append((mfma(a, gW + 16 * s + 4 * ct, gX + 28 * s + 4 * rt, "0" if (j == 0 and s == 0) else a),
                           [f"w{s}{ct}", f"x{s}{rt}"]))
        r = [xr(j, 0, rt) for rt in range(3, 7)] + wr(j, 1) + [xr(j, 1, rt) for rt in range(7)]
        spread(after, [(x, 1) for x in r], 2, 26 if j == 15 else 30)
        if late:
            spread(after, [(g, 1) for g in late], latelo, 36)
        if j < 15:
            put(after, 40, [("bar", vm)])
            if j == 0 and not Q:
                put(after, 40, [("call", lambda: team_signal(A))])
            spread(after, [(x, 1) for x in carry(j + 1)], 40, 53)
            if early:
                spread(after, [(g, 1) for g in early], 41, 56)
        A.run(mf, after)

    A.emit(("bar", vm0))
    stamp(A, 6, o.stamps and (o.qst == Q))
    for it in carry(0): A.emit(it)
    if Q:
        step(0, X(1)[o.xpre:] + W(2), X(2)[:5], 4)
        step(1, X(2)[5:] + W(3) + X(3), W(4), 11)
    else:
        step(0, [], [], 0)
        step(1, X(2) + W(3) + X(3), W(4), 11, {o.pollgap: [("call", lambda: team_wait(A))]}, o.pollgap + 1)
    if Q and o.unrollq and o.steps != kind:
        for j in range(2, 11):
            step(j, X(j + 2), W(j + 3), 11)
    elif o.steps == kind:
        stamp(A, 1, True)
        for j in range(2, 11):
            step(j, X(j + 2), W(j + 3), 11)
            if j in (2, 3, 5, 8): stamp(A, {2: 2, 3: 3, 5: 4, 8: 5}[j], True)
    else:
        A(f"s_mov_b32 {sr(sCNT)}, 3")
        q0 = list(A.q)
        l = A.newlab("L_gl")
        A.lab(l)
        n0 = len(A.L)
        for j in (2, 3, 4):
            step(j, X(j + 2), W(j + 3), 11)
        assert A.q == q0
        A(f"s_sub_u32 {sr(sCNT)}, {sr(sCNT)}, 1"); A(f"s_cmp_lg_u32 {sr(sCNT)}, 0"); A(f"s_cbranch_scc1 {l}")
    step(11, X(13), W(14), 11)
    step(12, X(14), W(15), 11)
    step(13, X(15), tailfill.get(13, []), 11)
    step(14, [], tailfill.get(14, []), len(tailfill.get(13, [])))
    step(15, tailfill.get(15, []), [], 0, tailfill.get("hook"))
    A.lazy = 0
    stamp(A, 7, o.stamps and (o.qst == Q))
    if o.steps == kind:
        A("s_waitcnt vmcnt(0)"); write_stamps(A); A("s_endpgm")


def q_finish(A, o):
    A.emit(("bar", 63))
    A(f"v_mov_b32 {vr(vT)}, 0")
    A(f"global_load_dwordx2 {vr(vTAG,2)}, {vr(vT)}, {sr(sDBG,2)} sc1")
    A.groups(dma_half(o, "K", 1, 2)); A.groups(dma_half(o, "V", 1, 1))
    q, g, t0, t1 = vT, vT + 1, vT + 2, vT + 3
    A(f"v_and_b32 {vr(q)}, 15, {vr(vLANE)}")
    A(f"v_lshrrev_b32 {vr(g)}, 4, {vr(vLANE)}")
    A(f"v_lshrrev_b32 {vr(t0)}, 1, {vr(g)}")
    A(f"s_lshl_b32 {sr(sT0)}, {sr(sC2)}, 3")
    A(f"v_xor_b32 {vr(t0)}, {sr(sT0)}, {vr(t0)}")
    A(f"v_xor_b32 {vr(t0)}, {vr(t0)}, {vr(q)}")
    A(f"v_lshlrev_b32 {vr(t0)}, 4, {vr(t0)}")
    A(f"v_and_b32 {vr(t1)}, 1, {vr(g)}")
    A(f"v_lshl_add_u32 {vr(t0)}, {vr(t1)}, 3, {vr(t0)}")
    A(f"s_mul_i32 {sr(sT0)}, {sr(sU)}, {112*256}")
    A(f"v_lshl_add_u32 {vr(t1)}, {vr(q)}, 8, {sr(sT0)}")
    A(f"v_add_u32 {vr(vTA)}, {vr(t0)}, {vr(t1)}")
    for ct in range(1, 4):
        A(f"v_xor_b32 {vr(vTA+ct)}, {32*ct}, {vr(vTA)}")
    A(f"v_mov_b32 {vr(vXA)}, {sr(sC)}"); A(f"v_mov_b32 {vr(vXA+1)}, {sr(sC)}")
    for ct in range(4):
        for rt in range(7):
            a = gACC + 28 * ct + 4 * rt
            d = gX + 2 * ((ct * 7 + rt) % 8)
            A(f"v_pk_mul_f32 {vr(a,2)}, {vr(a,2)}, {vr(vXA,2)}")
            A(f"v_pk_mul_f32 {vr(a+2,2)}, {vr(a+2,2)}, {vr(vXA,2)}")
            A(f"v_cvt_pk_bf16_f32 {vr(d)}, {vr(a)}, {vr(a+1)}")
            A(f"v_cvt_pk_bf16_f32 {vr(d+1)}, {vr(a+2)}, {vr(a+3)}")
            A(f"ds_write_b64 {vr(vTA+ct)}, {vr(d,2)} offset:{4096*rt}")
            if (ct * 7 + rt) % 8 == 7:
                A("s_waitcnt lgkmcnt(4)")
    A(f"v_xor_b32 {vr(t0)}, {vr(g)}, {vr(q)}")
    A(f"v_lshlrev_b32 {vr(t0)}, 4, {vr(t0)}")
    A(f"s_lshl_b32 {sr(sT0)}, {sr(sC2)}, 14")
    A(f"v_add3_u32 {vr(t1)}, {vr(t1)}, {vr(t0)}, {sr(sT0)}")
    A.emit(("bar", 63))
    for s in range(4):
        A(f"v_xor_b32 {vr(vTA+s)}, {64*s}, {vr(t1)}")
    for qt in range(4):
        for s in range(4):
            A(f"ds_read_b128 {vr(aQ+16*qt+4*s,4)}, {vr(vTA+s)} offset:{4096*qt}")
            if qt == 2 and s == 3:
                A("s_waitcnt lgkmcnt(4)")
    A.emit(("bar", 17))
    A.groups(dma_half(o, "V", 0, 2))
    A(f"s_add_u32 {sr(sKO)}, {sr(sC2)}, 3"); A(f"s_lshl_b32 {sr(sKO)}, {sr(sKO)}, 13"); A(f"s_mov_b32 {sr(sVO)}, {sr(sKO)}")


def kreads(slot):
    L = []
    for s in range(4):
        for kt in range(2):
            L.append(("ds", f"ds_read_b128 {vr(vKF+16*kt+4*s,4)}, {vr(vKA+4*(slot>>1)+s)} offset:{(slot&1)*ASL+4096*kt}", f"k{kt}{s}"))
    return L


def new_max(S, NT, clamp):
    L = []
    for qt in range(NT):
        mx, o2 = vT, vT + 1
        a, b = S + 4 * qt, S + 16 + 4 * qt
        L += [f"v_max3_f32 {vr(mx)}, {vr(a)}, {vr(a+1)}, {vr(a+2)}", f"v_max3_f32 {vr(mx)}, {vr(mx)}, {vr(a+3)}, {vr(b)}",
              f"v_max3_f32 {vr(mx)}, {vr(mx)}, {vr(b+1)}, {vr(b+2)}", f"v_max_f32 {vr(mx)}, {vr(mx)}, {vr(b+3)}"]
        for sw in ("16", "32"):
            L += [f"v_mov_b32 {vr(o2)}, {vr(mx)}", "s_nop 1", f"v_permlane{sw}_swap_b32 {vr(mx)}, {vr(o2)}", "s_nop 1",
                  f"v_max_f32 {vr(mx)}, {vr(mx)}, {vr(o2)}"]
        if clamp:
            L += [f"v_max_f32 {vr(mx)}, 0, {vr(mx)}", f"v_exp_f32 {vr(vFAC+qt)}, -{vr(mx)}"]
        L += [f"v_sub_f32 {vr(x+i)}, {vr(x+i)}, {vr(mx)}" for x in (a, b, vNM + 4 * qt) for i in range(4)]
        if clamp:
            L += [f"v_mul_f32 {vr(vLS+2*qt+i)}, {vr(vLS+2*qt+i)}, {vr(vFAC+qt)}" for i in range(2)]
    return L


def attention(A, o0, NT, tail, br):
    import copy
    o = copy.copy(o0)
    o.nt = o0.ntA if br == 0 else o0.ntB
    o.win = o0.win if br == 0 else (o0.winB if o0.winB >= 0 else o0.win)
    tag = f"_{NT}_{br}"
    NQ = 8 * NT
    NE = 2 * NT
    sreg = lambda S, i: S + 16 * ((i >> 2) & 1) + 4 * (i >> 3) + (i & 3)

    def vreads(slot):
        return [("ds", f"ds_read_b64_tr_b16 {vr(vVF+4*dt+2*e,2)}, {vr(vVA+8*(slot>>1)+dt)} offset:{(slot&1)*ASL+4096*e}", f"v{dt}")
                for dt in range(8) for e in range(2)]

    def part2(Sp, qt):
        st = []
        for i in range(8 * qt, 8 * qt + 8):
            if i + NE < NQ:
                r = sreg(Sp, i + NE)
                st.append((f"v_exp_f32 {vr(r)}, {vr(r)}", 8))
            if i & 1:
                r = sreg(Sp, i - 1)
                st.append((f"v_pk_add_f32 {vr(vLS+2*qt,2)}, {vr(vLS+2*qt,2)}, {vr(r,2)}", 4.5))
                st.append((f"v_cvt_pk_bf16_f32 {vr(vP+4*qt+((i&7)>>1))}, {vr(r)}, {vr(r+1)}", 4.5))
        return st

    def pend_check():
        l2, b2 = A.newlab("L_r2"), A.newlab("L_b2")
        tail.append(("r2", l2, b2, NT))
        return [f"s_cmp_lg_u32 {sr(sPEND)}, 0", f"s_cbranch_scc1 {l2}", ("lab", b2)]

    c2 = 4 - NT

    def group(t):
        return dma_tile(o, "V" if t & 1 else "K", (-t - c2) & 3, o.win)

    def it(u, first=False, kload=True, vload=True, vmb=8, extra=(), knext=True):
        p = u & 1
        S, Sp = vS + 32 * p, vS + 32 * (1 - p)
        slot, nslot = (3 - u) & 3, (2 - u) & 3
        mf, after = [], {}
        allk = [f"k{kt}{s}" for kt in range(2) for s in range(4)]
        for s in range(4):
            for kt in range(2):
                for qt in range(NT):
                    d = S + 16 * kt + 4 * qt
                    mf.append((mfma(d, vKF + 16 * kt + 4 * s, aQ + 16 * qt + 4 * s, vNM + 4 * qt if s == 0 else d),
                               [f"k{kt}{s}"] if first else allk))
        mx = vT
        order = [sreg(S, i) for i in range(NQ)]
        order.sort(key=lambda r: ((r - S) >> 4, (r - S) & 15))
        m1 = [f"v_max3_f32 {vr(mx)}, {vr(order[0])}, {vr(order[1])}, {vr(order[2])}"]
        m1 += [f"v_max3_f32 {vr(mx)}, {vr(mx)}, {vr(order[i])}, {vr(order[i+1])}" for i in range(3, NQ - 1, 2)]
        m1 += [f"v_max_f32 {vr(mx)}, {vr(mx)}, {vr(order[NQ-1])}"]
        E1 = [f"v_exp_f32 {vr(sreg(S,i))}, {vr(sreg(S,i))}" for i in range(NE)]
        kr = kreads(nslot)
        if first:
            put(after, NQ - 1, [("bar", 12)] + kr + sum(group(0)[:o.nearly], []) + ["s_nop 3"] + new_max(S, NT, False) + E1)
            A.run(mf, after)
            return
        for qt in range(NT):
            for dt in range(8):
                mf.append((mfma(aO + 16 * dt + 4 * qt, vVF + 4 * dt, vP + 4 * qt, aO + 16 * dt + 4 * qt), [f"v{dt}"]))
        spread(after, [(x, 1) for x in vreads(slot)], 0, NQ - 2)
        if vload:
            spread(after, [(g, 1) for g in group(u - 1)[o.nearly:]], 0, NQ + 2 - o.lateend)
        put(after, 4, pend_check())
        st, due = [], {}
        for qt in range(NT):
            st += part2(Sp, qt)
            due[qt] = len(st) - 1
        i_m1 = len(st)
        l1, b1 = A.newlab("L_r1"), A.newlab("L_b1")
        tail.append(("r1", l1, b1, S, NT))
        st += [(x, 4.5) for x in m1]
        st.append(([f"v_cmp_lt_f32 vcc, {sr(sTHR)}, {vr(mx)}", f"s_cbranch_vccnz {l1}", ("lab", b1)], 9))
        st += [(x, 8) for x in E1]
        pos = spread(after, st, 0, 2 * NQ)
        for qt in range(NT):
            assert pos[due[qt]] < NQ + 8 * qt - 2, (qt, pos[due[qt]])
        assert pos[i_m1] >= NQ + 4, pos[i_m1]
        put(after, NQ + 2, [("bar", vmb)])
        if knext:
            spread(after, [(x, 1) for x in kr], NQ + 3, 2 * NQ - 6)
        if kload:
            spread(after, [(g, 1) for g in group(u)[:o.nearly]], NQ + 3, 2 * NQ)
        if extra:
            spread(after, [(g, 1) for g in extra], NQ + 3, 2 * NQ)
        A.run(mf, after)

    A.q = []
    for x in kreads(3): A.emit(x)
    it(0, first=True)
    q0 = list(A.q)
    g_setup(A, o)
    A(f"s_mov_b32 {sr(sCNT)}, 7")
    A.lab("L_aloop" + tag)
    for u in (1, 2, 3, 0):
        it(u)
    assert A.q == q0
    A(f"s_sub_u32 {sr(sCNT)}, {sr(sCNT)}, 1"); A(f"s_cmp_lg_u32 {sr(sCNT)}, 0"); A(f"s_cbranch_scc1 L_aloop{tag}")
    it(1)
    it(2, kload=False)
    wpre = dma_w(o, "G", ("imm", 0)) + dma_w(o, "G", ("imm", WSL)) + dma_w(o, "G", ("imm", 2 * WSL))
    itq = list(A.q)
    it31(A, o, NT, it, wpre)
    stamp(A, 2, o.stamps)
    Sp = vS + 32
    for x in vreads(3): A.emit(x)
    for x in pend_check(): A.emit(x)

    def lred(qt):
        a, b = vLS + 2 * qt, vLS + 2 * qt + 1
        L = [f"v_add_f32 {vr(a)}, {vr(a)}, {vr(b)}"]
        for sw in ("16", "32"):
            L += [f"v_mov_b32 {vr(b)}, {vr(a)}", "s_nop 1", f"v_permlane{sw}_swap_b32 {vr(a)}, {vr(b)}", "s_nop 1", f"v_add_f32 {vr(a)}, {vr(a)}, {vr(b)}"]
        return L + [f"v_rcp_f32 {vr(a)}, {vr(a)}", "s_nop 0", f"v_mov_b32 {vr(b)}, {vr(a)}"]

    def outq(qt):
        L = []
        for m in range(4):
            t = vS + 8 * m
            d = vKF + 4 * ((4 * qt + m) % 8)
            L += [f"v_accvgpr_read_b32 {vr(t+i)}, {vr(aO + 16*(2*m + (i>>2)) + 4*qt + (i&3))}" for i in range(8)]
            L += [f"v_pk_mul_f32 {vr(t+2*i,2)}, {vr(t+2*i,2)}, {vr(vLS+2*qt,2)}" for i in range(4)]
            L += [f"v_cvt_pk_bf16_f32 {vr(d+i)}, {vr(t+2*i)}, {vr(t+2*i+1)}" for i in range(4)]
            L.append(f"buffer_store_dwordx4 {vr(d,4)}, {vr(vL16)}, {sr(S_X,4)}, {sr(sOST)} offen offset:{m*1024}{o.ofl}")
            L.append(f"ds_write_b128 {vr(vOW)}, {vr(d,4)} offset:{(m>>1)*XSL + qt*2048 + (m&1)*1024}")
        L.append(f"s_add_u32 {sr(sOST)}, {sr(sOST)}, 0x20000")
        return L

    for x, _ in part2(Sp, 0): A(x)
    mf, after = [], {}
    for qt in range(NT):
        for dt in range(8):
            mf.append((mfma(aO + 16 * dt + 4 * qt, vVF + 4 * dt, vP + 4 * qt, aO + 16 * dt + 4 * qt), [f"v{dt}"]))
        st = [(x, 1) for x in lred(qt)]
        if qt + 1 < NT:
            st = [(x, 1) for x, _ in part2(Sp, qt + 1)] + st
        spread(after, st, 8 * qt, 8 * qt + 7)
        put(after, 8 * qt + 7, ["s_nop 1"])
    A("s_nop 1")
    A.run(mf, after)
    A("s_nop 3")
    for qt in range(NT):
        for x in outq(qt): A(x)
    A(f"s_waitcnt vmcnt({4*NT}) lgkmcnt(0)")


def it31(A, o, NT, it, wpre):
    it(3, kload=False, vload=False, vmb=0, extra=wpre, knext=None)


def rare_blocks(A, o, tail):
    r2, r1 = {}, {}
    for t in tail:
        if t[0] == "r1":
            _, l1, b1, S, NT = t
            k = len(r1.setdefault((NT, S), []))
            r1[(NT, S)].append(b1)
            A.lab(l1)
            A(f"s_mov_b32 {sr(sT0)}, {k}"); A(f"s_branch L_r1c_{NT}_{S}")
        else:
            _, l2, b2, NT = t
            k = len(r2.setdefault(NT, []))
            r2[NT].append(b2)
            A.lab(l2)
            A(f"s_mov_b32 {sr(sPEND)}, {k}"); A(f"s_branch L_r2c_{NT}")
    for (NT, S), backs in r1.items():
        A.lab(f"L_r1c_{NT}_{S}")
        for x in new_max(S, NT, True): A(x)
        A(f"s_mov_b32 {sr(sPEND)}, 1")
        for k, b in enumerate(backs[:-1]):
            A(f"s_cmp_eq_u32 {sr(sT0)}, {k}"); A(f"s_cbranch_scc1 {b}")
        A(f"s_branch {backs[-1]}")
    for NT, backs in r2.items():
        A.lab(f"L_r2c_{NT}")
        A("s_nop 7")
        for dt in range(8):
            for qt in range(NT):
                for i in range(4):
                    A(f"v_accvgpr_read_b32 {vr(vT+i)}, {vr(aO+16*dt+4*qt+i)}")
                for i in range(4):
                    A(f"v_mul_f32 {vr(vT+i)}, {vr(vT+i)}, {vr(vFAC+qt)}")
                for i in range(4):
                    A(f"v_accvgpr_write_b32 {vr(aO+16*dt+4*qt+i)}, {vr(vT+i)}")
        A(f"s_mov_b32 {sr(sT0)}, {sr(sPEND)}"); A(f"s_mov_b32 {sr(sPEND)}, 0")
        for k, b in enumerate(backs[:-1]):
            A(f"s_cmp_eq_u32 {sr(sT0)}, {k}"); A(f"s_cbranch_scc1 {b}")
        A(f"s_branch {backs[-1]}")


def g_setup(A, o):
    q0 = list(A.q)
    A(f"s_load_dwordx2 {sr(sLD,2)}, {sr(sKA,2)}, 32")
    w_offsets(A, 11, False)
    A("s_waitcnt lgkmcnt(0)")
    A(f"s_lshl_b32 {sr(sT0)}, {sr(sHG)}, 21"); A(f"s_lshl_b32 {sr(sT1)}, {sr(sHL)}, 8"); A(f"s_add_u32 {sr(sT0)}, {sr(sT0)}, {sr(sT1)}")
    srd(A, S_W, sLD, sr(sT0), "0")
    A(f"s_sub_u32 {sr(S_W+2)}, 0x800000, {sr(sT0)}")
    A(f"s_lshl_b32 {sr(sWO_)}, {sr(sHL)}, 18")
    for t_, sq in enumerate(gseqs()):
        lo, hi = seq_words(sq)
        if t_ == 0:
            A(f"s_mov_b32 {sr(sSW)}, {lo:#x}"); A(f"s_mov_b32 {sr(sSW+1)}, {hi:#x}")
        else:
            A(f"s_cmp_eq_u32 {sr(sTAU)}, {t_}")
            A(f"s_cselect_b32 {sr(sSW)}, {lo:#x}, {sr(sSW)}"); A(f"s_cselect_b32 {sr(sSW+1)}, {hi:#x}, {sr(sSW+1)}")
    A(f"s_lshl_b32 {sr(sT3)}, {sr(sHL)}, 1")
    seq_add(A, sSW, sT3)
    A(f"s_lshr_b64 {sr(sSX,2)}, {sr(sSW,2)}, 4")
    for x in next_chunk(sSX, sXO, 11): A(x)
    A(f"s_mul_i32 {sr(sT0)}, {sr(sWAVE)}, 7")
    for t in range(4):
        A(f"s_add_u32 {sr(sT1)}, {sr(sT0)}, {t}")
        A(f"s_lshr_b32 {sr(sT2)}, {sr(sT1)}, 1"); A(f"s_lshl_b32 {sr(sT2)}, {sr(sT2)}, 17")
        A(f"s_and_b32 {sr(sT1)}, {sr(sT1)}, 1"); A(f"s_lshl_b32 {sr(sT1)}, {sr(sT1)}, 10"); A(f"s_add_u32 {sr(sT1)}, {sr(sT1)}, {sr(sT2)}")
        A(f"s_sub_u32 {sr(sT1)}, {sr(sT1)}, {1024*t}")
        A(f"v_add_u32 {vr(vDX+t)}, {sr(sT1)}, {vr(vL16)}")
    A(f"s_mul_i32 {sr(sT0)}, {sr(sU)}, {14*1024}"); A(f"s_add_u32 {sr(sT0)}, {sr(sT0)}, {XB}")
    A(f"v_add_u32 {vr(vXB)}, {sr(sT0)}, {vr(vL16)}")
    A(f"v_add_u32 {vr(vXB+1)}, 1024, {vr(vXB)}")
    for s_ in range(2):
        A(f"v_add_u32 {vr(vXA+s_)}, {2*XSL}, {vr(vXB+s_)}")
    A(f"s_lshl_b32 {sr(sT1)}, {sr(sC2)}, 13")
    A(f"v_add_u32 {vr(vOW)}, {sr(sT1)}, {vr(vXB)}")
    gemm_tr_bases(A, 10, True)
    A(f"s_lshl_b32 {sr(sT0)}, {sr(sBR)}, 3"); A(f"s_add_u32 {sr(sT0)}, {sr(sT0)}, {sr(sB)}"); A(f"s_mul_i32 {sr(sT0)}, {sr(sT0)}, {7 << 17}")
    A(f"s_mul_i32 {sr(sOST)}, {sr(sU)}, 7"); A(f"s_lshl_b32 {sr(sT1)}, {sr(sC2)}, 2"); A(f"s_add_u32 {sr(sOST)}, {sr(sOST)}, {sr(sT1)}")
    A(f"s_lshl_b32 {sr(sOST)}, {sr(sOST)}, 17"); A(f"s_add_u32 {sr(sOST)}, {sr(sOST)}, {sr(sT0)}")
    A(f"s_lshl_b32 {sr(sT1)}, {sr(sH)}, 12"); A(f"s_add_u32 {sr(sOST)}, {sr(sOST)}, {sr(sT1)}")
    A(f"s_lshl_b32 {sr(sT3)}, {sr(sHG)}, 15"); A(f"s_add_u32 {sr(sT0)}, {sr(sT0)}, {sr(sT3)}")
    srd(A, S_O, sWS, sr(sT0), str(14 << 17))
    srd(A, S_X, sWS, None, str(O_BYTES))
    A(f"s_lshl_b32 {sr(sFL)}, {sr(sBR)}, 2"); A(f"s_add_u32 {sr(sFL)}, {sr(sFL)}, {sr(sTAU)}"); A(f"s_lshl_b32 {sr(sFL)}, {sr(sFL)}, 2")
    A(f"s_add_u32 {sr(sFL)}, {sr(sFL)}, {sr(sHG)}"); A(f"s_lshl_b32 {sr(sFL)}, {sr(sFL)}, 7"); A(f"s_add_u32 {sr(sFL)}, {sr(sFL)}, {F_RDY}")
    A(f"v_readfirstlane_b32 {sr(sNON)}, {vr(vTAG)}"); A(f"v_readfirstlane_b32 {sr(sNON+1)}, {vr(vTAG+1)}")
    A.q = q0


def x_setup(A):
    A(f"s_lshl_b32 {sr(sT0)}, {sr(sBR)}, 2"); A(f"s_add_u32 {sr(sT0)}, {sr(sT0)}, {sr(sTAU)}")
    A(f"s_lshl_b32 {sr(sT0)}, {sr(sT0)}, 3"); A(f"s_add_u32 {sr(sT0)}, {sr(sT0)}, {sr(sHL)}")
    A(f"s_lshl_b32 {sr(sXF)}, {sr(sT0)}, 2"); A(f"s_add_u32 {sr(sXF)}, {sr(sXF)}, {sr(sWAVE)}")
    A(f"s_lshl_b32 {sr(sXF)}, {sr(sXF)}, 7"); A(f"s_add_u32 {sr(sXF)}, {sr(sXF)}, {F_XCH}")
    A(f"s_lshl_b32 {sr(sT0)}, {sr(sT0)}, 19"); A(f"s_lshl_b32 {sr(sT1)}, {sr(sWAVE)}, 13"); A(f"s_add_u32 {sr(sT0)}, {sr(sT0)}, {sr(sT1)}")
    for k in range(1, 4):
        A(f"s_add_u32 {sr(sT1)}, {sr(sHG)}, {k}"); A(f"s_and_b32 {sr(sT1)}, {sr(sT1)}, 3")
        A(f"s_lshl_b32 {sr(sT2)}, {sr(sT1)}, 17"); A(f"s_lshl_b32 {sr(sT3)}, {sr(sHG)}, 15")
        A(f"s_add_u32 {sr(sXS+k-1)}, {sr(sT2)}, {sr(sT3)}"); A(f"s_add_u32 {sr(sXS+k-1)}, {sr(sXS+k-1)}, {sr(sT0)}")
        A(f"s_lshl_b32 {sr(sT2)}, {sr(sT1)}, 15"); A(f"s_lshl_b32 {sr(sT3)}, {sr(sHG)}, 17")
        A(f"s_add_u32 {sr(sXL[k-1])}, {sr(sT2)}, {sr(sT3)}"); A(f"s_add_u32 {sr(sXL[k-1])}, {sr(sXL[k-1])}, {sr(sT0)}")
    A(f"s_add_u32 {sr(sOO)}, {sr(sB)}, {sr(sU)}"); A(f"s_mul_i32 {sr(sOO)}, {sr(sOO)}, {112*4096}")
    for reg, sh in ((sBR, 11), (sHL, 8), (sC2, 7), (sHG, 5)):
        A(f"s_lshl_b32 {sr(sT1)}, {sr(reg)}, {sh}"); A(f"s_add_u32 {sr(sOO)}, {sr(sOO)}, {sr(sT1)}")


def x_send(o, k):
    t = gT + 16 * (k - 1)
    L = [f"v_cvt_pk_bf16_f32 {vr(t+i)}, {vr(gACC+28*k+2*i)}, {vr(gACC+28*k+2*i+1)}" for i in range(14)]
    for j in (2, 1, 0):
        L.insert(4 * j + 4, f"buffer_store_dwordx4 {vr(t+4*j,4)}, {vr(vL16)}, {sr(S_XC,4)}, {sr(sXS+k-1)} offen offset:{j*1024}{o.xfl}")
    L.append(f"buffer_store_dwordx2 {vr(t+12,2)}, {vr(vL16)}, {sr(S_XC,4)}, {sr(sXS+k-1)} offen offset:3072{o.xfl}")
    return L


def x_hook(o):
    hook = {}
    for k in (1, 2):
        spread(hook, [(x, 1) for x in x_send(o, k)], 28 + 7 * k + 3, 28 + 7 * k + 10)
    return hook


def exchange(A, o):
    for x in x_send(o, 3): A(x)
    stamp(A, 1, o.xst)
    A("s_mov_b64 exec, 15")
    A(f"v_lshlrev_b32 {vr(vT+5)}, 3, {vr(vLANE)}")
    A(f"v_add_u32 {vr(vT+5)}, {sr(sXF)}, {vr(vT+5)}")
    A(f"s_lshl_b32 {sr(sT1)}, {sr(sHG)}, 3"); A(f"s_add_u32 {sr(sT1)}, {sr(sT1)}, {sr(sXF)}")
    A(f"s_lshl_b32 {sr(sT3)}, 1, {sr(sHG)}")
    A(f"global_load_dwordx2 {vr(vT+6,2)}, {vr(vT+5)}, {sr(sWS,2)} sc1")
    A("s_waitcnt vmcnt(0)")
    stamp(A, 2, o.xst)
    raise_flag(A, sT1)
    A("s_mov_b64 exec, 15")
    poll2(A, 4, sT3, True)
    A("s_mov_b64 exec, -1")
    stamp(A, 3, o.xst)
    for k in range(1, 4):
        for j in range(4):
            A(f"buffer_load_dwordx4 {vr(gX+16*(k-1)+4*j,4)}, {vr(vL16)}, {sr(S_XC,4)}, {sr(sXL[k-1])} offen offset:{j*1024} sc1")
    t1, t2 = vT, vT + 1
    A(f"v_and_b32 {vr(t1)}, 15, {vr(vLANE)}"); A(f"v_lshlrev_b32 {vr(t1)}, 12, {vr(t1)}")
    A(f"v_lshrrev_b32 {vr(t2)}, 4, {vr(vLANE)}"); A(f"v_lshl_add_u32 {vr(t1)}, {vr(t2)}, 3, {vr(t1)}")
    R = gACC
    for k in range(1, 4):
        A(f"s_waitcnt vmcnt({12 - 4*k})")
        if k == 3: stamp(A, 4, o.xst)
        for i in range(14):
            p, t = gX + 16 * (k - 1) + i, gACC + 28 + 2 * (i % 4)
            A(f"v_lshlrev_b32 {vr(t)}, 16, {vr(p)}"); A(f"v_and_b32 {vr(t+1)}, 0xffff0000, {vr(p)}")
            A(f"v_pk_add_f32 {vr(R+2*i,2)}, {vr(R+2*i,2)}, {vr(t,2)}")
            if k == 3 and i & 1:
                rt = i >> 1
                A(f"v_cvt_pk_bf16_f32 {vr(gT+2*rt)}, {vr(R+4*rt)}, {vr(R+4*rt+1)}")
                A(f"v_cvt_pk_bf16_f32 {vr(gT+2*rt+1)}, {vr(R+4*rt+2)}, {vr(R+4*rt+3)}")
                A(f"buffer_store_dwordx2 {vr(gT+2*rt,2)}, {vr(t1)}, {sr(S_OUT,4)}, {sr(sOO)} offen{o.outfl}")
                A(f"s_add_u32 {sr(sOO)}, {sr(sOO)}, {16*4096}")


def build(o):
    A = Asm()
    st = o.stamps
    for l in HEADER.splitlines(): A(l)
    A(f"; @launch grid=(256,1,1) block=(256,1,1) lds={LDS}")
    A('.amdgcn_target "amdgcn-amd-amdhsa--gfx950"'); A(".text")
    A(f".globl {KN}"); A(".p2align 8"); A(f".type {KN},@function"); A.lab(KN)
    A(f"s_cmp_ge_u32 s2, 256"); A("s_cbranch_scc1 L_exit")
    tail = []
    stamp(A, 0, st)
    if o.ticket:
        ticket(A)
    prologue(A, o)
    gemm(A, o, "Q", 4 + o.xpre + (9 if o.tlb else 0), {13: dma_half(o, "K", 3, 0), 14: dma_half(o, "K", 2, 1), 15: dma_half(o, "V", 2, 0)})
    q_finish(A, o)
    stamp(A, 1, st)
    two = o.ntA != o.ntB or o.winB >= 0
    if two:
        A(f"s_bitcmp1_b32 s2, {o.selbit}"); A("s_cbranch_scc1 L_attB")
    for br in range(2 if two else 1):
        if br: A.lab("L_attB")
        A(f"s_cmp_lg_u32 {sr(sC2)}, 0"); A(f"s_cbranch_scc1 L_att3_{br}")
        attention(A, o, 4, tail, br)
        A("s_branch L_attdone")
        A.lab(f"L_att3_{br}")
        attention(A, o, 3, tail, br)
        A("s_branch L_attdone")
    A.lab("L_attdone")
    stamp(A, 3, st)
    A.q = []
    gemm(A, o, "G", 63, {"hook": x_hook(o)})
    exchange(A, o)
    if o.xst:
        stamp(A, 6, True); A("s_waitcnt vmcnt(0)")
    A.lab("L_fin")
    stamp(A, 5, st)
    if st and o.dbgst:
        l = A.newlab("L_ds")
        A(f"s_cmp_eq_u32 s2, 253"); A(f"s_cselect_b32 {sr(sT1)}, 36, 8")
        A(f"s_cselect_b32 {sr(sT0)}, 0, s2"); A(f"s_or_b32 {sr(sT0)}, {sr(sT0)}, {sr(sWAVE)}"); A(f"s_cmp_lg_u32 {sr(sT0)}, 0"); A(f"s_cbranch_scc1 {l}")
        A(f"v_mov_b32 v2, {sr(sT1)}")
        for i in range(1, 8):
            A(f"s_sub_u32 {sr(sT0)}, {sr(sST+2*i)}, {sr(sST)}"); A(f"v_mov_b32 v3, {sr(sT0)}")
            A(f"global_store_dword v2, v3, {sr(sDBG,2)} offset:{4*(i-1)}")
        A.lab(l)
    elif st:
        write_stamps(A)
    A.lab("L_exit")
    A("s_endpgm")
    rare_blocks(A, o, tail)
    A('.section .rodata,"a"')
    A(".p2align 6")
    A(f".amdhsa_kernel {KN}")
    A("  .amdhsa_next_free_vgpr 488"); A("  .amdhsa_next_free_sgpr 102"); A("  .amdhsa_accum_offset 256")
    A("  .amdhsa_group_segment_fixed_size 0"); A("  .amdhsa_kernarg_size 104"); A("  .amdhsa_user_sgpr_count 2")
    A("  .amdhsa_user_sgpr_kernarg_segment_ptr 1"); A("  .amdhsa_system_sgpr_workgroup_id_x 1")
    A(".end_amdhsa_kernel")
    return A.text()


if __name__ == "__main__":
    ap = argparse.ArgumentParser()
    ap.add_argument("-o", default="concat_heads__mha_block_cached__gqa_block_cached__near_ridge.s")
    ap.add_argument("--stamps", action="store_true")
    ap.add_argument("--qst", action="store_true")
    ap.add_argument("--pst", action="store_true")
    ap.add_argument("--nt", default="KV")
    ap.add_argument("--krot", type=int, default=0)
    ap.add_argument("--ntA", default="KV")
    ap.add_argument("--ntB", default="KV")
    ap.add_argument("--dbgst", action="store_true")
    ap.add_argument("--steps", default="")
    ap.add_argument("--qseq", type=int, default=1)
    ap.add_argument("--la", type=int, default=3)
    ap.add_argument("--win", type=int, default=5)
    ap.add_argument("--pollgap", type=int, default=6)
    ap.add_argument("--xpre", type=int, default=2)
    ap.add_argument("--xst", action="store_true")
    ap.add_argument("--winB", type=int, default=-1)
    ap.add_argument("--selbit", type=int, default=2)
    ap.add_argument("--ticket", type=int, default=0)
    ap.add_argument("--ofl", default=" sc1")
    ap.add_argument("--xfl", default=" sc1")
    ap.add_argument("--lazy", type=int, default=5)
    ap.add_argument("--touch", default="037")
    ap.add_argument("--coop", type=int, default=0)
    ap.add_argument("--tlb", type=int, default=0)
    ap.add_argument("--unrollq", type=int, default=0)
    ap.add_argument("--tfl", default=" nt")
    ap.add_argument("--winpat", default="")
    ap.add_argument("--nearly", type=int, default=4)
    ap.add_argument("--lateend", type=int, default=0)
    ap.add_argument("--xbf", type=int, default=1)
    ap.add_argument("--outfl", default=" sc1")
    ap.add_argument("--nokv", action="store_true")
    a = ap.parse_args()
    open(a.o, "w").write(build(a))
```

```python
import argparse, struct, math

KN = "concat_heads__mha_block_cached__gqa_block_cached__near_ridge_kernel"
WS_BYTES = 305659904
O_BYTES = 16 * 7 * 128 * 1024
X_OFF = O_BYTES
X_BYTES = 64 * 4 * 4 * 4 * 8192
F_RDY = X_OFF + X_BYTES
F_XCH = F_RDY + 64 * 128
WSL, XSL, XB = 32768, 16384, 98304
ASL = 32768
QIMG1 = 98304
LDS = 163840
f32 = lambda x: struct.unpack("<I", struct.pack("<f", x))[0]
C_SCALE = f32(math.log2(math.e) / math.sqrt(128.0))
THR = f32(8.0)
OOB = 0x40000000

HEADER = """\
; One launch, 256 workgroups of 4 waves, one per CU.  Workgroup = (branch, batch, two adjacent heads).
; -> output projection tile (112x256 over 8 heads) -> partial sums exchanged through ws between 4 workgroups -> out.
"""


class Asm:
    def __init__(self):
        self.L = []
        self.uid = 0
        self.q = []
        self.clock = 0
        self.born = {}
        self.lazy = 0

    def __call__(self, s):
        self.L.append(s)

    def lab(self, name):
        self.L.append(name + ":")

    def newlab(self, p="L"):
        self.uid += 1
        return f"{p}_{self.uid}"

    def need(self, tags):
        pos = max([i for i, t in enumerate(self.q) if t in tags], default=-1)
        if pos >= 0:
            while self.lazy and pos + 1 < len(self.q) and self.clock - self.born[self.q[pos + 1]] >= self.lazy:
                pos += 1
            self.L.append(f"s_waitcnt lgkmcnt({len(self.q) - pos - 1})")
            self.q = self.q[pos + 1:]

    def emit(self, it):
        if isinstance(it, str):
            self(it)
        elif it[0] == "ds":
            if len(self.q) >= 15:
                self.need([self.q[3]])
            self.L.append(it[1]); self.q.append(it[2]); self.born[it[2]] = self.clock
        elif it[0] == "bar":
            self(f"s_waitcnt vmcnt({it[1]}) lgkmcnt(0)"); self.q = []
            self("s_barrier")
        elif it[0] == "lab":
            self.lab(it[1])
        elif it[0] == "call":
            it[1]()

    def groups(self, gs):
        for g in gs:
            for s in g: self(s)

    def run(self, mf, after):
        for m, (txt, tags) in enumerate(mf):
            self.need(tags)
            self(txt)
            self.clock += 1
            for it in after.get(m, []): self.emit(it)

    def text(self):
        return "\n".join(self.L) + "\n"


def vr(a, n=1):
    p, a = ("a", a - 256) if a >= 256 else ("v", a)
    return f"{p}{a}" if n == 1 else f"{p}[{a}:{a+n-1}]"


def sr(a, n=1):
    return f"s{a}" if n == 1 else f"s[{a}:{a+n-1}]"


def mfma(d, a, b, c):
    return f"v_mfma_f32_16x16x32_bf16 {vr(d,4)}, {vr(a,4)}, {vr(b,4)}, {c if c == '0' else vr(c,4)}"


def put(after, m, items):
    after.setdefault(m, []).extend(items)


def spread(after, items, lo, hi):
    tot = sum(c for _, c in items)
    acc, pos = 0.0, []
    for its, c in items:
        g = lo + int((acc + c / 2) / tot * (hi - lo))
        put(after, g, its if isinstance(its, list) else [its])
        pos.append(g); acc += c
    return pos


S_X, S_W, S_K, S_V, S_O, S_WS, S_OUT = 4, 8, 12, 16, 20, 24, 28
sWAVE, sBR, sB, sH0, sHG, sHP = 32, 33, 34, 35, 38, 39
sKA = 36
sDBG = 40
sWS = 42
sT0, sT1, sT2, sT3 = 44, 45, 46, 47
sXS = 48
sXF = 51
sW8, sW4, sAM = 52, 80, 81
sCNT = 53
sXO, sWO_ = 54, 55
sKO, sVO = 56, 57
sC, sTHR = 58, 59
sGS = 60
sWOP = 62
sST = 64
sPEND = 82
sSPIN = 83
sU, sC2 = 84, 85
sWB = 86
sROT = 87
sTO = 88
sOST = 89
sNON = 90
sFL = 92
sOO = 93
sPTR = 94
sSW, sSX = 96, 98
sXL = [3, 100, 101]

vLANE = 1
vT = 2
vDX = 10
vDW = 14
vXB = 18
vTB = 20
vDK = 28
vDV = 32
vSC = 34
vL16 = 36
vOW = 37
vTAG = 38
vFAC = 40
vP = 44
vS = 60
vKF = 124
vVF = 156
vKA = 208
vVA = 216
vNM = 232
vLS = 248
aO = 256
aQ = 384
aG = 480
aTCH = 498
gACC = 40
gX = 152
gW = 448
gT = 208


def stamp(A, i, on):
    if on:
        q = list(A.q)
        A(f"s_memrealtime {sr(sST + 2*i, 2)}")
        A(f"s_memtime {sr(sPTR, 2)}")
        A("s_waitcnt lgkmcnt(0)")
        A(f"s_mov_b32 {sr(sST + 2*i + 1)}, {sr(sPTR)}")
        A.q = q


def write_stamps(A):
    l = A.newlab("L_st")
    A(f"s_cmp_lg_u32 {sr(sWAVE)}, 0"); A(f"s_cbranch_scc1 {l}")
    A(f"s_mov_b32 {sr(sT0)}, {WS_BYTES - 512*64}")
    A(f"s_lshl_b32 {sr(sT1)}, s2, 6")
    A(f"s_add_u32 {sr(sT0)}, {sr(sT0)}, {sr(sT1)}")
    A(f"s_add_u32 {sr(sPTR)}, {sr(sWS)}, {sr(sT0)}")
    A(f"s_addc_u32 {sr(sPTR+1)}, {sr(sWS+1)}, 0")
    A(f"v_mov_b32 v2, 0")
    for i in range(16):
        A(f"v_mov_b32 v{4+i}, {sr(sST+i)}")
    A("s_mov_b64 exec, 1")
    for i in range(4):
        A(f"global_store_dwordx4 v2, v[{4+4*i}:{7+4*i}], {sr(sPTR,2)} offset:{16*i}")
    A.lab(l)


def srd(A, d, lo, add, nrec):
    if add is None:
        A(f"s_mov_b32 {sr(d)}, {sr(lo)}"); A(f"s_mov_b32 {sr(d+1)}, {sr(lo+1)}")
    else:
        A(f"s_add_u32 {sr(d)}, {sr(lo)}, {add}"); A(f"s_addc_u32 {sr(d+1)}, {sr(lo+1)}, 0")
    A(f"s_mov_b32 {sr(d+2)}, {nrec}")
    A(f"s_mov_b32 {sr(d+3)}, 0x20000")


def raise_flag(A, sig_s):
    ls, lg = A.newlab("L_tag"), A.newlab("L_tagok")
    A("s_mov_b64 exec, 1")
    A(f"s_cmp_lg_u32 {sr(sNON+1)}, 0"); A(f"s_cbranch_scc1 {lg}")
    A(f"v_mov_b32 {vr(vT+4)}, 0")
    A(f"s_mov_b32 {sr(sSPIN)}, 0")
    A.lab(ls)
    A(f"global_load_dwordx2 {vr(vT+2,2)}, {vr(vT+4)}, {sr(sDBG,2)} sc1")
    A("s_waitcnt vmcnt(0)")
    A(f"v_readfirstlane_b32 {sr(sNON)}, {vr(vT+2)}")
    A(f"v_readfirstlane_b32 {sr(sNON+1)}, {vr(vT+3)}")
    A(f"s_add_u32 {sr(sSPIN)}, {sr(sSPIN)}, 1")
    A(f"s_cmp_lg_u32 {sr(sNON+1)}, 0"); A(f"s_cbranch_scc1 {lg}")
    A("s_sleep 4")
    A(f"s_cmp_lt_u32 {sr(sSPIN)}, 0x4000"); A(f"s_cbranch_scc1 {ls}")
    A.lab(lg)
    A(f"v_mov_b32 {vr(vT+4)}, {sr(sig_s)}"); A(f"v_mov_b32 {vr(vT+2)}, {sr(sNON)}"); A(f"v_mov_b32 {vr(vT+3)}, {sr(sNON+1)}")
    A(f"global_store_dwordx2 {vr(vT+4)}, {vr(vT+2,2)}, {sr(sWS,2)} sc1")
    A("s_mov_b64 exec, -1")


def poll4(A, own_s, first_done):
    ls, lg = A.newlab("L_spin"), A.newlab("L_go")
    ld = lambda r: f"global_load_dwordx2 {vr(r,2)}, {vr(vT+5)}, {sr(sWS,2)} sc1"

    def check(r):
        A(f"v_cmp_eq_u64 vcc, {sr(sNON,2)}, {vr(r,2)}")
        A(f"s_add_u32 {sr(sSPIN)}, {sr(sSPIN)}, 1")
        A(f"s_or_b32 {sr(sT2)}, vcc_lo, {sr(own_s)}")
        A(f"s_cmp_eq_u32 {sr(sT2)}, 15")
        A(f"s_cbranch_scc1 {lg}")
    A(f"s_mov_b32 {sr(sSPIN)}, 0")
    if first_done:
        check(vT + 6)
    A(ld(vT + 6))
    A("s_sleep 4")
    A.lab(ls)
    A(ld(vT + 2)); A("s_waitcnt vmcnt(1)"); check(vT + 6)
    A(ld(vT + 6)); A("s_waitcnt vmcnt(1)"); check(vT + 2)
    A(f"s_cmp_lt_u32 {sr(sSPIN)}, 0x8000"); A(f"s_cbranch_scc1 {ls}")
    A.lab(lg)


def team_signal(A):
    l = A.newlab("L_sig")
    A(f"s_cmp_lg_u32 {sr(sWAVE)}, 0"); A(f"s_cbranch_scc1 {l}")
    A(f"s_lshl_b32 {sr(sT1)}, {sr(sHP)}, 3"); A(f"s_add_u32 {sr(sT1)}, {sr(sT1)}, {sr(sFL)}")
    A(f"v_lshlrev_b32 {vr(vT+5)}, 3, {vr(vLANE)}")
    A(f"v_add_u32 {vr(vT+5)}, {sr(sFL)}, {vr(vT+5)}")
    raise_flag(A, sT1)
    A.lab(l)


def team_wait(A):
    le = A.newlab("L_wend")
    A(f"s_cmp_lg_u32 {sr(sWAVE)}, 0"); A(f"s_cbranch_scc1 {le}")
    A("s_mov_b64 exec, 15")
    A(f"s_lshl_b32 {sr(sT3)}, 1, {sr(sHP)}")
    poll4(A, sT3, False)
    A("s_mov_b64 exec, -1")
    A.lab(le)


def next_chunk(seq, off, sh):
    return [f"s_lshr_b64 {sr(seq,2)}, {sr(seq,2)}, 4", f"s_and_b32 {sr(off)}, {sr(seq)}, 15", f"s_lshl_b32 {sr(off)}, {sr(off)}, {sh}"]


def seq_words(seq):
    v = sum(c << (4 * i) for i, c in enumerate(seq))
    return v & 0xffffffff, v >> 32


def seq_add(A, seq, add_s):
    A(f"s_mul_i32 {sr(sT0)}, {sr(add_s)}, 0x11111111")
    A(f"s_and_b32 {sr(sT1)}, {sr(sT0)}, 0x77777777")
    for w in (seq, seq + 1):
        A(f"s_xor_b32 {sr(sT2)}, {sr(w)}, {sr(sT0)}"); A(f"s_and_b32 {sr(sT2)}, {sr(sT2)}, 0x88888888")
        A(f"s_and_b32 {sr(w)}, {sr(w)}, 0x77777777"); A(f"s_add_u32 {sr(w)}, {sr(w)}, {sr(sT1)}"); A(f"s_xor_b32 {sr(w)}, {sr(w)}, {sr(sT2)}")


QSEQ = [0, 1, 4, 5, 2, 8, 9, 3, 12, 13, 6, 10, 14, 7, 11, 15]
GSEQ = [[0, 1, 2, 3] + [4 + ((3 * b >> 1) + i) % 12 for i in range(12)] for b in range(8)]


def dma_w(o, kind, j):
    fl = " nt" if kind in o.nt else ""
    sh = 13 if kind == "W" else 11
    g = [[f"buffer_load_dwordx4 {vr(vDW+(t&3))}, {sr(S_W,4)}, {sr(sWO_ if t < 4 else sWB)} offen offset:{(t&3)*1024}{fl} lds"] for t in range(8)]
    g[0] = [f"s_add_u32 m0, {sr(sW8)}, {(j%3)*WSL}", f"s_add_u32 {sr(sWB)}, {sr(sWO_)}, {32 << sh}"] + g[0]
    g[3] += next_chunk(sSW, sWO_, sh + 6)
    g[4] = [f"s_add_u32 m0, {sr(sW8)}, {(j%3)*WSL + 4096}", "s_nop 0"] + g[4]
    return g


def dma_x(o, kind, j):
    srd_, fl = (S_X, " nt" if "X" in o.nt else "") if kind == "X" else (S_O, " sc1")
    g = [[f"buffer_load_dwordx4 {vr(vDX+t)}, {sr(srd_,4)}, {sr(sXO)} offen offset:{t*1024}{fl} lds"] for t in range(4)]
    g[0] = [f"s_add_u32 m0, {sr(sW4)}, {XB + (j%3)*XSL}", "s_nop 0"] + g[0]
    g[3] += next_chunk(sSX, sXO, 7 if kind == "X" else 11)
    return g


aslot = lambda item: (3 + item) & 3


def dma_half(o, kv, tile):
    srd_, va, n, off, item = (S_K, vDK, 4, 16384, tile) if kv == "K" else (S_V, vDV, 2, 0, tile + 1)
    fl = " nt" if kv in o.nt else ""
    g = [[f"buffer_load_dwordx4 {vr(va+t%n)}, {sr(srd_,4)}, {sr(sKO)} offen offset:{t*1024}{fl} lds"] for t in range(4)]
    g[0] = [f"s_add_u32 m0, {sr(sW4)}, {ASL*(1+aslot(item)) + off}", f"s_lshl_b32 {sr(sKO)}, {sr(sC2)}, 12", f"s_add_u32 {sr(sKO)}, {sr(sKO)}, {tile*8192}"] + g[0]
    return g


def dma_tile(o, kv, slot):
    srd_, va, n, off, so = (S_K, vDK, 4, 16384, sKO) if kv == "K" else (S_V, vDV, 2, 0, sVO)
    fl = " nt" if kv in o.nt else ""
    w = [f"s_waitcnt vmcnt({o.win-1})"] if o.win else []
    g = [w + [f"buffer_load_dwordx4 {vr(va+t%n)}, {sr(srd_,4)}, {sr(so)} offen offset:{(t&3)*1024}{fl} lds"] for t in range(8)]
    g[0] = [f"s_add_u32 m0, {sr(sAM)}, {ASL*(1+slot) + off}", "s_nop 0"] + g[0]
    g[3] += [f"s_add_u32 {sr(so)}, {sr(so)}, 4096"]
    g[4] = [f"s_add_u32 m0, {sr(sAM)}, {ASL*(1+slot) + off + 4096}", "s_nop 0"] + g[4]
    g[7] += [f"s_add_u32 {sr(so)}, {sr(so)}, 12288"]
    return g


def w_offsets(A, dst, rshift, wflav):
    l3, t0, t1 = vT, vT + 1, vT + 2
    A(f"v_lshrrev_b32 {vr(l3)}, 3, {vr(vLANE)}")
    A(f"v_bfe_u32 {vr(t0)}, {vr(vLANE)}, 4, {1 if wflav else 2}")
    A(f"v_lshlrev_b32 {vr(t0)}, 1, {vr(t0)}")
    A(f"v_and_b32 {vr(t1)}, 7, {vr(vLANE)}")
    A(f"v_xor_b32 {vr(t0)}, {vr(t0)}, {vr(t1)}")
    A(f"v_lshlrev_b32 {vr(t0)}, 4, {vr(t0)}")
    A(f"s_lshl_b32 {sr(sT3)}, {sr(sWAVE)}, 7")
    A(f"v_lshl_add_u32 {vr(l3)}, {vr(l3)}, {rshift}, {sr(sT3)}")
    for t in range(4):
        A(f"v_xor_b32 {vr(t1)}, {64*(t&1) if wflav else 0}, {vr(t0)}")
        A(f"v_add_u32 {vr(t1)}, {vr(t1)}, {vr(l3)}")
        A(f"v_add_u32 {vr(dst+t)}, {(8*t << rshift) - 1024*t}, {vr(t1)}")


def gemm_tr_bases(A, dst, gshift, rot):
    g, r, c, x = vT, vT + 1, vT + 2, vT + 3
    A(f"v_lshrrev_b32 {vr(g)}, 4, {vr(vLANE)}")
    A(f"v_bfe_u32 {vr(r)}, {vr(vLANE)}, 2, 2")
    A(f"v_and_b32 {vr(c)}, 3, {vr(vLANE)}"); A(f"v_lshlrev_b32 {vr(c)}, 3, {vr(c)}")
    A(f"v_lshl_add_u32 {vr(c)}, {vr(g)}, {gshift}, {vr(c)}")
    A(f"v_lshl_add_u32 {vr(c)}, {vr(r)}, 7, {vr(c)}")
    A(f"v_lshrrev_b32 {vr(r)}, 1, {vr(r)}"); A(f"v_lshl_add_u32 {vr(c)}, {vr(r)}, 5, {vr(c)}")
    A(f"v_and_b32 {vr(g)}, 1, {vr(g)}"); A(f"v_lshl_add_u32 {vr(c)}, {vr(g)}, 6, {vr(c)}")
    A(f"v_add_u32 {vr(c)}, {sr(sW8)}, {vr(c)}")
    for ct in range(4):
        if rot:
            A(f"s_add_u32 {sr(sT0)}, {sr(sHG)}, {ct}"); A(f"s_and_b32 {sr(sT0)}, {sr(sT0)}, 3"); A(f"s_lshl_b32 {sr(sT0)}, {sr(sT0)}, 5")
            A(f"v_xor_b32 {vr(dst+ct)}, {sr(sT0)}, {vr(c)}")
        else:
            A(f"v_xor_b32 {vr(dst+ct)}, {32*ct}, {vr(c)}")
        A(f"v_add_u32 {vr(dst+4+ct)}, 0x10000, {vr(dst+ct)}")


def prologue(A, o):
    A(f"s_bfe_u32 {sr(sBR)}, s2, 0x10002")
    A(f"s_mul_i32 {sr(sT0)}, {sr(sBR)}, 40")
    A(f"s_add_u32 {sr(sKA)}, s0, {sr(sT0)}"); A(f"s_addc_u32 {sr(sKA+1)}, s1, 0")
    A(f"s_load_dwordx2 s[74:75], {sr(sKA,2)}, 0")
    A(f"s_load_dwordx2 s[70:71], {sr(sKA,2)}, 24")
    A(f"s_load_dwordx2 s[66:67], {sr(sKA,2)}, 8")
    A(f"s_load_dwordx2 s[68:69], {sr(sKA,2)}, 16")
    A(f"s_load_dwordx2 {sr(sWOP,2)}, {sr(sKA,2)}, 32")
    A(f"s_load_dwordx2 s[72:73], s[0:1], 80")
    A(f"s_load_dwordx2 {sr(sDBG,2)}, s[0:1], 88")
    A(f"s_load_dwordx2 {sr(sWS,2)}, s[0:1], 96")
    A(f"v_lshrrev_b32 v2, 6, v0")
    A(f"v_and_b32 {vr(vLANE)}, 63, v0")
    A(f"v_readfirstlane_b32 {sr(sWAVE)}, v2")
    A(f"s_and_b32 {sr(sHG)}, s2, 3")
    A(f"s_bfe_u32 {sr(sHP)}, s2, 0x20003")
    A(f"s_bfe_u32 {sr(sB)}, s2, 0x30005")
    A(f"s_lshl_b32 {sr(sH0)}, {sr(sHG)}, 2"); A(f"s_add_u32 {sr(sH0)}, {sr(sH0)}, {sr(sHP)}"); A(f"s_lshl_b32 {sr(sH0)}, {sr(sH0)}, 1")
    A(f"s_lshl_b32 {sr(sROT)}, {sr(sHP)}, 1"); A(f"s_add_u32 {sr(sROT)}, {sr(sROT)}, {sr(sB)}"); A(f"s_and_b32 {sr(sROT)}, {sr(sROT)}, 7")
    A(f"s_lshr_b32 {sr(sU)}, {sr(sWAVE)}, 1"); A(f"s_and_b32 {sr(sC2)}, {sr(sWAVE)}, 1")
    A(f"s_lshl_b32 {sr(sW8)}, {sr(sWAVE)}, 13")
    A(f"s_lshl_b32 {sr(sW4)}, {sr(sWAVE)}, 12")
    A(f"s_lshl_b32 {sr(sAM)}, {sr(sU)}, 13")
    A(f"s_lshl_b32 {sr(sXO)}, {sr(sROT)}, 8")
    A(f"s_lshl_b32 {sr(sWO_)}, {sr(sROT)}, 20")
    lo, hi = seq_words(QSEQ)
    A(f"s_mov_b32 {sr(sSW)}, {lo:#x}"); A(f"s_mov_b32 {sr(sSW+1)}, {hi:#x}")
    A(f"s_lshl_b32 {sr(sT3)}, {sr(sROT)}, 1")
    seq_add(A, sSW, sT3)
    A(f"s_mov_b64 {sr(sSX,2)}, {sr(sSW,2)}")
    w_offsets(A, vDW, 13, True)
    l3, l4, t0, t1 = vT, vT + 1, vT + 2, vT + 3
    A(f"v_lshrrev_b32 {vr(l3)}, 3, {vr(vLANE)}")
    A(f"v_lshrrev_b32 {vr(l4)}, 4, {vr(vLANE)}")
    A(f"s_lshl_b32 {sr(sT2)}, {sr(sWAVE)}, 16")
    A(f"v_and_b32 {vr(t1)}, 7, {vr(vLANE)}")
    A(f"v_xor_b32 {vr(t1)}, {vr(t1)}, {vr(l4)}")
    A(f"v_lshlrev_b32 {vr(t1)}, 4, {vr(t1)}")
    A(f"v_lshl_add_u32 {vr(l3)}, {vr(l3)}, 11, {sr(sT2)}")
    for t in range(4):
        A(f"v_xor_b32 {vr(t0)}, {64*(t&1)}, {vr(t1)}")
        A(f"v_add_u32 {vr(t0)}, {vr(t0)}, {vr(l3)}")
        A(f"v_add_u32 {vr(vDX+t)}, {8*t*2048 - 1024*t}, {vr(t0)}")
    A("s_waitcnt lgkmcnt(0)")
    A(f"s_lshl_b32 {sr(sT0)}, {sr(sH0)}, 8")
    srd(A, S_W, 70, sr(sT0), "0")
    A(f"s_sub_u32 {sr(S_W+2)}, 0x800000, {sr(sT0)}")
    A(f"s_mul_i32 {sr(sT0)}, {sr(sB)}, 229376")
    srd(A, S_X, 74, sr(sT0), "229376")
    A.groups(dma_w(o, "W", 0)); A.groups(dma_x(o, "X", 0)); A.groups((dma_w(o, "W", 1) + dma_x(o, "X", 1) + dma_w(o, "W", 2))[:o.wpre])
    l = A.newlab("L_notag")
    A(f"s_or_b32 {sr(sT0)}, s2, {sr(sWAVE)}"); A(f"s_cmp_lg_u32 {sr(sT0)}, 0"); A(f"s_cbranch_scc1 {l}")
    A(f"s_memrealtime {sr(sPTR,2)}"); A("s_waitcnt lgkmcnt(0)")
    A(f"v_mov_b32 {vr(vT+2)}, {sr(sPTR)}"); A(f"v_mov_b32 {vr(vT+3)}, {sr(sPTR+1)}"); A(f"v_mov_b32 {vr(vT+4)}, 0")
    A(f"v_or_b32 {vr(vT+3)}, 0x80000000, {vr(vT+3)}")
    A("s_mov_b64 exec, 1")
    A(f"global_store_dwordx2 {vr(vT+4)}, {vr(vT+2,2)}, {sr(sDBG,2)} sc1")
    A("s_mov_b64 exec, -1")
    A.lab(l)
    q, g, r = vT, vT + 1, vT + 2
    A(f"v_lshlrev_b32 {vr(vL16)}, 4, {vr(vLANE)}")
    A(f"v_and_b32 {vr(q)}, 15, {vr(vLANE)}")
    A(f"v_lshrrev_b32 {vr(g)}, 4, {vr(vLANE)}")
    A(f"v_bfe_u32 {vr(r)}, {vr(vLANE)}, 1, 3")
    A(f"v_xor_b32 {vr(r)}, {vr(r)}, {vr(g)}")
    A(f"v_lshlrev_b32 {vr(r)}, 4, {vr(r)}")
    A(f"v_lshl_add_u32 {vr(r)}, {vr(q)}, 7, {vr(r)}")
    A(f"v_add_u32 {vr(vXB)}, {XB}, {vr(r)}")
    A(f"v_xor_b32 {vr(vXB+1)}, 64, {vr(vXB)}")
    gemm_tr_bases(A, vTB, 10, False)


def late_setup(A, o):
    A(f"s_lshl_b32 {sr(sT0)}, {sr(sB)}, 5"); A(f"s_add_u32 {sr(sT0)}, {sr(sT0)}, {sr(sH0)}")
    A(f"s_add_u32 {sr(sT0)}, {sr(sT0)}, {sr(sU)}"); A(f"s_lshl_b32 {sr(sT0)}, {sr(sT0)}, 18")
    srd(A, S_K, 66, sr(sT0), "0" if o.nokv else "0x40000")
    srd(A, S_V, 68, sr(sT0), "0" if o.nokv else "0x40000")
    srd(A, S_OUT, 72, None, str(896 * 4096))
    srd(A, S_WS, sWS, None, str(X_OFF + X_BYTES))
    A(f"s_mov_b32 {sr(sC)}, {C_SCALE:#x}"); A(f"s_mov_b32 {sr(sTHR)}, {THR:#x}"); A(f"s_mov_b32 {sr(sPEND)}, 0")
    l4, t0, t1, t2 = vT, vT + 1, vT + 2, vT + 3
    A(f"v_lshrrev_b32 {vr(l4)}, 4, {vr(vLANE)}")
    A(f"v_and_b32 {vr(t1)}, 15, {vr(vLANE)}")
    A(f"v_lshlrev_b32 {vr(t2)}, 8, {vr(l4)}")
    A(f"v_xor_b32 {vr(t0)}, {vr(l4)}, {vr(t1)}")
    A(f"v_lshl_add_u32 {vr(vDK)}, {vr(t0)}, 4, {vr(t2)}")
    for t in range(1, 4):
        A(f"v_xor_b32 {vr(vDK+t)}, {64*t}, {vr(vDK)}")
    A(f"v_lshlrev_b32 {vr(t0)}, 1, {vr(l4)}")
    A(f"v_xor_b32 {vr(t0)}, {vr(t0)}, {vr(t1)}")
    A(f"v_lshl_add_u32 {vr(vDV)}, {vr(t0)}, 4, {vr(t2)}")
    A(f"v_xor_b32 {vr(vDV+1)}, 128, {vr(vDV)}")
    q, g, t0, r, c = vT, vT + 1, vT + 2, vT + 3, vT + 4
    A(f"v_and_b32 {vr(q)}, 15, {vr(vLANE)}"); A(f"v_lshrrev_b32 {vr(g)}, 4, {vr(vLANE)}")
    A(f"v_xor_b32 {vr(t0)}, {vr(g)}, {vr(q)}"); A(f"v_lshlrev_b32 {vr(t0)}, 4, {vr(t0)}")
    A(f"v_lshl_add_u32 {vr(t0)}, {vr(q)}, 8, {vr(t0)}")
    A(f"s_add_u32 {sr(sT1)}, {sr(sAM)}, {ASL}"); A(f"s_add_u32 {sr(sT0)}, {sr(sAM)}, {ASL + 16384}")
    A(f"v_add_u32 {vr(vKA)}, {sr(sT0)}, {vr(t0)}")
    for s in range(1, 4):
        A(f"v_xor_b32 {vr(vKA+s)}, {64*s}, {vr(vKA)}")
    for s in range(4):
        A(f"v_add_u32 {vr(vKA+4+s)}, 0x10000, {vr(vKA+s)}")
    A(f"v_bfe_u32 {vr(r)}, {vr(vLANE)}, 2, 2")
    A(f"v_and_b32 {vr(c)}, 3, {vr(vLANE)}"); A(f"v_lshlrev_b32 {vr(c)}, 3, {vr(c)}")
    A(f"v_lshl_add_u32 {vr(c)}, {vr(g)}, 10, {vr(c)}")
    A(f"v_lshl_add_u32 {vr(c)}, {vr(r)}, 8, {vr(c)}")
    A(f"v_lshl_add_u32 {vr(c)}, {vr(r)}, 5, {vr(c)}")
    A(f"v_and_b32 {vr(g)}, 1, {vr(g)}"); A(f"v_lshl_add_u32 {vr(c)}, {vr(g)}, 7, {vr(c)}")
    A(f"v_add_u32 {vr(vVA)}, {sr(sT1)}, {vr(c)}")
    for dt in range(1, 8):
        A(f"v_xor_b32 {vr(vVA+dt)}, {32*dt}, {vr(vVA)}")
    for dt in range(8):
        A(f"v_add_u32 {vr(vVA+8+dt)}, 0x10000, {vr(vVA+dt)}")
    for i in range(128):
        A(f"v_accvgpr_write_b32 {vr(aO+i)}, 0")
    A(f"v_mov_b32 {vr(vSC)}, {sr(sC)}"); A(f"v_mov_b32 {vr(vSC+1)}, {sr(sC)}")
    P = vNM
    for t in range(4):
        A(f"s_lshl_b32 {sr(sT1)}, {sr(sWAVE)}, 18")
        A(f"s_add_u32 {sr(sT1)}, {sr(sT1)}, {((t >> 1) << 17) + ((t & 1) << 10) - 1024*t}")
        A(f"v_add_u32 {vr(P+t)}, {sr(sT1)}, {vr(vL16)}")
    w_offsets(A, P + 4, 11, False)
    A(f"v_add_u32 {vr(P+8)}, {XB}, {vr(vL16)}"); A(f"v_add_u32 {vr(P+9)}, {XB + 1024}, {vr(vL16)}")
    gemm_tr_bases(A, P + 10, 9, True)
    for i in range(18):
        A(f"v_accvgpr_write_b32 {vr(aG+i)}, {vr(P+i)}")
    A(f"s_lshl_b32 {sr(sT0)}, {sr(sU)}, 15"); A(f"s_lshl_b32 {sr(sT1)}, {sr(sC2)}, 13"); A(f"s_add_u32 {sr(sT0)}, {sr(sT0)}, {sr(sT1)}")
    A(f"v_add_u32 {vr(vOW)}, {sr(sT0)}, {vr(P+8)}")
    for i in range(24):
        A(f"v_mov_b32 {vr(vNM+i)}, 0")
    for b, sq in enumerate(GSEQ):
        lo, hi = seq_words(sq)
        if b == 0:
            A(f"s_mov_b32 {sr(sGS)}, {lo:#x}"); A(f"s_mov_b32 {sr(sGS+1)}, {hi:#x}")
        else:
            A(f"s_cmp_eq_u32 {sr(sB)}, {b}")
            A(f"s_cselect_b32 {sr(sGS)}, {lo:#x}, {sr(sGS)}"); A(f"s_cselect_b32 {sr(sGS+1)}, {hi:#x}, {sr(sGS+1)}")
    A(f"s_lshl_b32 {sr(sT3)}, {sr(sHP)}, 2")
    seq_add(A, sGS, sT3)
    A(f"s_lshl_b32 {sr(sT3)}, {sr(sBR)}, 3"); A(f"s_add_u32 {sr(sT3)}, {sr(sT3)}, {sr(sB)}")
    A(f"s_mul_i32 {sr(sT0)}, {sr(sT3)}, {7 << 17}")
    A(f"s_lshl_b32 {sr(sOST)}, {sr(sC2)}, 19"); A(f"s_add_u32 {sr(sOST)}, {sr(sOST)}, {sr(sT0)}")
    A(f"s_add_u32 {sr(sT1)}, {sr(sH0)}, {sr(sU)}"); A(f"s_lshl_b32 {sr(sT1)}, {sr(sT1)}, 12"); A(f"s_add_u32 {sr(sOST)}, {sr(sOST)}, {sr(sT1)}")
    A(f"s_lshl_b32 {sr(sT1)}, {sr(sHG)}, 15"); A(f"s_add_u32 {sr(sT0)}, {sr(sT0)}, {sr(sT1)}")
    srd(A, S_O, sWS, sr(sT0), str(7 << 17))
    A(f"s_lshl_b32 {sr(sFL)}, {sr(sT3)}, 2"); A(f"s_add_u32 {sr(sFL)}, {sr(sFL)}, {sr(sHG)}")
    A(f"s_lshl_b32 {sr(sFL)}, {sr(sFL)}, 7"); A(f"s_add_u32 {sr(sFL)}, {sr(sFL)}, {F_RDY}")
    A(f"s_lshl_b32 {sr(sT0)}, {sr(sT3)}, 2"); A(f"s_add_u32 {sr(sT0)}, {sr(sT0)}, {sr(sHP)}")
    A(f"s_lshl_b32 {sr(sXF)}, {sr(sT0)}, 2"); A(f"s_add_u32 {sr(sXF)}, {sr(sXF)}, {sr(sWAVE)}")
    A(f"s_lshl_b32 {sr(sXF)}, {sr(sXF)}, 7"); A(f"s_add_u32 {sr(sXF)}, {sr(sXF)}, {F_XCH}")
    A(f"s_lshl_b32 {sr(sT0)}, {sr(sT0)}, 19"); A(f"s_add_u32 {sr(sT0)}, {sr(sT0)}, {sr(sW8)}"); A(f"s_add_u32 {sr(sT0)}, {sr(sT0)}, {X_OFF}")
    for k in range(1, 4):
        A(f"s_add_u32 {sr(sT1)}, {sr(sHG)}, {k}"); A(f"s_and_b32 {sr(sT1)}, {sr(sT1)}, 3")
        A(f"s_lshl_b32 {sr(sT2)}, {sr(sT1)}, 17"); A(f"s_lshl_b32 {sr(sT3)}, {sr(sHG)}, 15")
        A(f"s_add_u32 {sr(sXS+k-1)}, {sr(sT2)}, {sr(sT3)}"); A(f"s_add_u32 {sr(sXS+k-1)}, {sr(sXS+k-1)}, {sr(sT0)}")
        A(f"s_lshl_b32 {sr(sT2)}, {sr(sT1)}, 15"); A(f"s_lshl_b32 {sr(sT3)}, {sr(sHG)}, 17")
        A(f"s_add_u32 {sr(sXL[k-1])}, {sr(sT2)}, {sr(sT3)}"); A(f"s_add_u32 {sr(sXL[k-1])}, {sr(sXL[k-1])}, {sr(sT0)}")
    A(f"s_mul_i32 {sr(sOO)}, {sr(sB)}, {112*4096}")
    for reg, sh in ((sBR, 11), (sHP, 9), (sWAVE, 7), (sHG, 5)):
        A(f"s_lshl_b32 {sr(sT1)}, {sr(reg)}, {sh}"); A(f"s_add_u32 {sr(sOO)}, {sr(sOO)}, {sr(sT1)}")


def gemm(A, o, kind, vm0, fill):
    Q = kind == "Q"
    xk, wk = ("X", "W") if Q else ("O", "G")
    A.lazy = o.lazy

    def wr(j, s):
        L = []
        for ct in range(4):
            f = gW + 16 * s + 4 * ct
            for e in range(2):
                reg, off = (vTB + 4 + ct, 0) if j % 3 == 2 else (vTB + ct, (j % 3) * WSL)
                L.append(("ds", f"ds_read_b64_tr_b16 {vr(f+2*e,2)}, {vr(reg)} offset:{off + 4096*s + (512 if Q else 2048)*e}", f"w{s}{ct}"))
        return L

    def xr(j, s, rt):
        slot = 3 if (j == 3 and not Q) else j % 3
        return ("ds", f"ds_read_b128 {vr(gX+28*s+4*rt,4)}, {vr(vXB+s)} offset:{slot*XSL + 2048*rt}", f"x{s}{rt}")

    def carry(j):
        return wr(j, 0) + [xr(j, 0, rt) for rt in range(3)]

    W = lambda j: dma_w(o, wk, j)
    X = lambda j: dma_x(o, xk, j)

    def step(j, late, early, vm, hook=None):
        mf, after = [], {}
        for k_, v_ in (hook or {}).items():
            put(after, k_, v_)
        for s in range(2):
            tiles = [(rt, ct) for rt in range(7) for ct in range(4)]
            if j == 15 and s == 1 and not Q:
                tiles = [(rt, ct) for ct in (1, 2, 3, 0) for rt in range(7)]
            for rt, ct in tiles:
                a = gACC + 28 * ct + 4 * rt
                mf.append((mfma(a, gW + 16 * s + 4 * ct, gX + 28 * s + 4 * rt, "0" if (j == 0 and s == 0) else a),
                           [f"w{s}{ct}", f"x{s}{rt}"]))
        r = [xr(j, 0, rt) for rt in range(3, 7)] + wr(j, 1) + [xr(j, 1, rt) for rt in range(7)]
        spread(after, [(x, 1) for x in r], 2, 26 if j == 15 else 30)
        if late:
            spread(after, [(g, 1) for g in late], 0, 38)
        if j < 15:
            if j == 1 and not Q:
                put(after, 40, [("call", lambda: team_wait(A))])
            put(after, 40, [("bar", vm)])
            if j == 0 and not Q:
                put(after, 40, [("call", lambda: team_signal(A))])
            spread(after, [(x, 1) for x in carry(j + 1)], 40, 53)
            if early:
                spread(after, [(g, 1) for g in early], 41, 56)
        A.run(mf, after)

    E = 3
    A.emit(("bar", vm0))
    stamp(A, 6, o.stamps and (o.qst == Q))
    for it in carry(0): A.emit(it)
    if Q:
        pre = W(1) + X(1) + W(2)
        n0 = max(16, o.wpre)
        step(0, pre[o.wpre:n0], pre[n0:] + X(2)[:2], n0 - 12, None if o.early_setup else {39: [("call", lambda: late_setup(A, o))]})
        step(1, X(2)[2:] + W(3) + X(3), W(4)[:E], 12)
    else:
        step(0, [], W(3)[:E], 0)
        step(1, W(3)[E:], W(4)[:E], 63)
    steady = lambda j: step(j, W(j + 2)[E:] + X(j + 2), W(j + 3)[:E], 12)
    diag = o.steps == kind
    stamp(A, 1, diag)
    steady(2)
    stamp(A, 2, diag)
    steady(3)
    stamp(A, 3, diag)
    if diag:
        for j in range(4, 13):
            steady(j)
            if j in (5, 8): stamp(A, {5: 4, 8: 5}[j], True)
    else:
        A(f"s_mov_b32 {sr(sCNT)}, 3")
        q0 = list(A.q)
        l = A.newlab("L_gl")
        A.lab(l)
        for j in (4, 5, 6):
            steady(j)
        assert A.q == q0
        A(f"s_sub_u32 {sr(sCNT)}, {sr(sCNT)}, 1"); A(f"s_cmp_lg_u32 {sr(sCNT)}, 0"); A(f"s_cbranch_scc1 {l}")
    g = lambda k: fill.get(k, [])
    step(13, W(15)[E:] + X(15), g("13e"), 12)
    step(14, g("14l"), g("14e"), len(g("13e")) + len(g("14l")))
    step(15, g("15l"), [], 0, fill.get("hook"))
    A.lazy = 0
    stamp(A, 7, o.stamps and (o.qst == Q))
    if diag:
        A("s_waitcnt vmcnt(0)"); write_stamps(A); A("s_endpgm")


def q_finish(A, o):
    q, g, t0, t1 = vT, vT + 1, vT + 2, vT + 3
    ta = gX + 16
    A(f"v_mov_b32 {vr(t0)}, 0")
    A(f"global_load_dwordx2 {vr(vTAG,2)}, {vr(t0)}, {sr(sDBG,2)} sc1")
    A(f"v_and_b32 {vr(q)}, 15, {vr(vLANE)}")
    A(f"v_lshrrev_b32 {vr(g)}, 4, {vr(vLANE)}")
    A(f"v_lshrrev_b32 {vr(t0)}, 1, {vr(g)}")
    A(f"s_lshl_b32 {sr(sT0)}, {sr(sC2)}, 3")
    A(f"v_xor_b32 {vr(t0)}, {sr(sT0)}, {vr(t0)}")
    A(f"v_xor_b32 {vr(t0)}, {vr(t0)}, {vr(q)}")
    A(f"v_lshlrev_b32 {vr(t0)}, 4, {vr(t0)}")
    A(f"v_and_b32 {vr(t1)}, 1, {vr(g)}")
    A(f"v_lshl_add_u32 {vr(t0)}, {vr(t1)}, 3, {vr(t0)}")
    A(f"s_mul_i32 {sr(sT0)}, {sr(sU)}, {QIMG1}")
    A(f"v_lshl_add_u32 {vr(t1)}, {vr(q)}, 8, {sr(sT0)}")
    A(f"v_add_u32 {vr(vT+4)}, {vr(t0)}, {vr(t1)}")
    for ct in range(1, 4):
        A(f"v_xor_b32 {vr(vT+4+ct)}, {32*ct}, {vr(vT+4)}")
    A(f"v_xor_b32 {vr(t0)}, {vr(g)}, {vr(q)}")
    A(f"v_lshlrev_b32 {vr(t0)}, 4, {vr(t0)}")
    A(f"s_lshl_b32 {sr(sT0)}, {sr(sC2)}, 14")
    A(f"v_add3_u32 {vr(t1)}, {vr(t1)}, {vr(t0)}, {sr(sT0)}")
    first = True
    for rt in range(7):
        for ct in range(4):
            a = gACC + 28 * ct + 4 * rt
            A(f"v_pk_mul_f32 {vr(a,2)}, {vr(a,2)}, {vr(vSC,2)}")
            A(f"v_pk_mul_f32 {vr(a+2,2)}, {vr(a+2,2)}, {vr(vSC,2)}")
            A(f"v_cvt_pk_bf16_f32 {vr(a)}, {vr(a)}, {vr(a+1)}")
            A(f"v_cvt_pk_bf16_f32 {vr(a+1)}, {vr(a+2)}, {vr(a+3)}")
            if first:
                A("s_barrier")
                first = False
            A(f"ds_write_b64 {vr(vT+4+ct)}, {vr(a,2)} offset:{4096*rt}")
        if rt in (2, 5):
            A("s_waitcnt lgkmcnt(2)")
    for s in range(4):
        A(f"v_xor_b32 {vr(ta+s)}, {64*s}, {vr(t1)}")
    A.emit(("bar", 17))
    for x in kreads(aslot(0)): A(x[1])
    for qt in range(4):
        for s in range(4):
            A(f"ds_read_b128 {vr(aQ+16*qt+4*s,4)}, {vr(ta+s)} offset:{4096*qt}")
            if (qt, s) in ((1, 1), (3, 1)):
                A("s_waitcnt lgkmcnt(4)")
    for i in range(18):
        A(f"v_accvgpr_read_b32 {vr(vDX+i)}, {vr(aG+i)}")
    A(f"s_lshl_b32 {sr(sT0)}, {sr(sHG)}, 21"); A(f"s_lshl_b32 {sr(sT1)}, {sr(sHP)}, 9"); A(f"s_add_u32 {sr(sT0)}, {sr(sT0)}, {sr(sT1)}")
    srd(A, S_W, sWOP, sr(sT0), "0")
    A(f"s_sub_u32 {sr(S_W+2)}, 0x800000, {sr(sT0)}")
    A(f"s_lshl_b32 {sr(sWO_)}, {sr(sHP)}, 19")
    A(f"s_mov_b64 {sr(sSW,2)}, {sr(sGS,2)}")
    A(f"s_lshr_b64 {sr(sSX,2)}, {sr(sGS,2)}, 12")
    for x in next_chunk(sSX, sXO, 11): A(x)
    A(f"v_lshrrev_b32 {vr(vSC)}, 2, {vr(vLANE)}"); A(f"v_lshlrev_b32 {vr(vSC)}, 11, {vr(vSC)}")
    A(f"v_and_b32 {vr(vSC+1)}, 3, {vr(vLANE)}"); A(f"v_lshl_add_u32 {vr(vSC)}, {vr(vSC+1)}, 7, {vr(vSC)}")
    if o.whead:
        A(f"v_lshlrev_b32 {vr(vSC+1)}, 25, {vr(vLANE)}"); A(f"v_and_b32 {vr(vSC+1)}, {OOB}, {vr(vSC+1)}"); A(f"v_or_b32 {vr(vSC)}, {vr(vSC)}, {vr(vSC+1)}")
        A(f"s_lshl_b32 {sr(sTO)}, {sr(sB)}, 16"); A(f"s_lshl_b32 {sr(sT0)}, {sr(sWAVE)}, 14"); A(f"s_add_u32 {sr(sTO)}, {sr(sTO)}, {sr(sT0)}")
        A(f"s_add_u32 {sr(sTO)}, {sr(sTO)}, {sr(sWO_)}")
    else:
        A(f"s_lshl_b32 {sr(sTO)}, {sr(sB)}, 18"); A(f"s_lshl_b32 {sr(sT0)}, {sr(sWAVE)}, 15"); A(f"s_add_u32 {sr(sTO)}, {sr(sTO)}, {sr(sT0)}")
    A.emit(("bar", 63))
    A.groups(dma_half(o, "V", 2))
    A(f"s_add_u32 {sr(sKO)}, {sr(sC2)}, 3"); A(f"s_lshl_b32 {sr(sKO)}, {sr(sKO)}, 13"); A(f"s_mov_b32 {sr(sVO)}, {sr(sKO)}")


def kreads(slot):
    L = []
    for s in range(4):
        for kt in range(2):
            L.append(("ds", f"ds_read_b128 {vr(vKF+16*kt+4*s,4)}, {vr(vKA+4*(slot>>1)+s)} offset:{(slot&1)*ASL+4096*kt}", f"k{kt}{s}"))
    return L


def new_max(S, NT, clamp):
    L = []
    for qt in range(NT):
        mx, o2 = vT, vT + 1
        a, b = S + 4 * qt, S + 16 + 4 * qt
        L += [f"v_max3_f32 {vr(mx)}, {vr(a)}, {vr(a+1)}, {vr(a+2)}", f"v_max3_f32 {vr(mx)}, {vr(mx)}, {vr(a+3)}, {vr(b)}",
              f"v_max3_f32 {vr(mx)}, {vr(mx)}, {vr(b+1)}, {vr(b+2)}", f"v_max_f32 {vr(mx)}, {vr(mx)}, {vr(b+3)}"]
        for sw in ("16", "32"):
            L += [f"v_mov_b32 {vr(o2)}, {vr(mx)}", "s_nop 1", f"v_permlane{sw}_swap_b32 {vr(mx)}, {vr(o2)}", "s_nop 1",
                  f"v_max_f32 {vr(mx)}, {vr(mx)}, {vr(o2)}"]
        if clamp:
            L += [f"v_max_f32 {vr(mx)}, 0, {vr(mx)}", f"v_exp_f32 {vr(vFAC+qt)}, -{vr(mx)}"]
        L += [f"v_sub_f32 {vr(x+i)}, {vr(x+i)}, {vr(mx)}" for x in (a, b, vNM + 4 * qt) for i in range(4)]
        if clamp:
            L += [f"v_mul_f32 {vr(vLS+2*qt+i)}, {vr(vLS+2*qt+i)}, {vr(vFAC+qt)}" for i in range(2)]
    return L


def attention(A, o, NT, tail):
    NQ = 8 * NT
    NE = 2 * NT
    c2 = 4 - NT
    sreg = lambda S, i: S + 16 * ((i >> 2) & 1) + 4 * (i >> 3) + (i & 3)

    def vreads(slot):
        return [("ds", f"ds_read_b64_tr_b16 {vr(vVF+4*dt+2*e,2)}, {vr(vVA+8*(slot>>1)+dt)} offset:{(slot&1)*ASL+4096*e}", f"v{dt}")
                for dt in range(8) for e in range(2)]

    def part2(Sp, qt):
        st = []
        for i in range(8 * qt, 8 * qt + 8):
            if i + NE < NQ:
                r = sreg(Sp, i + NE)
                st.append((f"v_exp_f32 {vr(r)}, {vr(r)}", 8))
            if i & 1:
                r = sreg(Sp, i - 1)
                st.append((f"v_pk_add_f32 {vr(vLS+2*qt,2)}, {vr(vLS+2*qt,2)}, {vr(r,2)}", 4.5))
                st.append((f"v_cvt_pk_bf16_f32 {vr(vP+4*qt+((i&7)>>1))}, {vr(r)}, {vr(r+1)}", 4.5))
        return st

    def pend_check():
        l2, b2 = A.newlab("L_r2"), A.newlab("L_b2")
        tail.append(("r2", l2, b2, NT))
        return [f"s_cmp_lg_u32 {sr(sPEND)}, 0", f"s_cbranch_scc1 {l2}", ("lab", b2)]

    def group(t):
        return dma_tile(o, "V" if t & 1 else "K", aslot(t + 3 + c2))

    def it(u, late, early, vmb, first=False, knext=True):
        p = u & 1
        S, Sp = vS + 32 * p, vS + 32 * (1 - p)
        mf, after = [], {}
        allk = [f"k{kt}{s}" for kt in range(2) for s in range(4)]
        for s in range(4):
            for kt in range(2):
                for qt in range(NT):
                    d = S + 16 * kt + 4 * qt
                    mf.append((mfma(d, vKF + 16 * kt + 4 * s, aQ + 16 * qt + 4 * s, vNM + 4 * qt if s == 0 else d), allk))
        mx = vT
        order = [sreg(S, i) for i in range(NQ)]
        order.sort(key=lambda r: ((r - S) >> 4, (r - S) & 15))
        m1 = [f"v_max3_f32 {vr(mx)}, {vr(order[0])}, {vr(order[1])}, {vr(order[2])}"]
        m1 += [f"v_max3_f32 {vr(mx)}, {vr(mx)}, {vr(order[i])}, {vr(order[i+1])}" for i in range(3, NQ - 1, 2)]
        m1 += [f"v_max_f32 {vr(mx)}, {vr(mx)}, {vr(order[NQ-1])}"]
        E1 = [f"v_exp_f32 {vr(sreg(S,i))}, {vr(sreg(S,i))}" for i in range(NE)]
        kr = kreads(aslot(u + 1))
        if first:
            put(after, NQ - 1, [("bar", vmb)] + kr + sum(early, [])
                + [f"v_readfirstlane_b32 {sr(sNON)}, {vr(vTAG)}", f"v_readfirstlane_b32 {sr(sNON+1)}, {vr(vTAG+1)}"]
                + new_max(S, NT, False) + E1)
            A.run(mf, after)
            return
        for qt in range(NT):
            for dt in range(8):
                mf.append((mfma(aO + 16 * dt + 4 * qt, vVF + 4 * dt, vP + 4 * qt, aO + 16 * dt + 4 * qt), [f"v{dt}"]))
        spread(after, [(x, 1) for x in vreads(aslot(u))], 0, NQ - 2)
        if late:
            spread(after, [(g, 1) for g in late], 0, NQ + 2)
        put(after, 4, pend_check())
        st, due = [], {}
        for qt in range(NT):
            st += part2(Sp, qt)
            due[qt] = len(st) - 1
        i_m1 = len(st)
        l1, b1 = A.newlab("L_r1"), A.newlab("L_b1")
        tail.append(("r1", l1, b1, S, NT))
        st += [(x, 4.5) for x in m1]
        st.append(([f"v_cmp_lt_f32 vcc, {sr(sTHR)}, {vr(mx)}", f"s_cbranch_vccnz {l1}", ("lab", b1)], 9))
        st += [(x, 8) for x in E1]
        pos = spread(after, st, 0, 2 * NQ)
        for qt in range(NT):
            assert pos[due[qt]] < NQ + 8 * qt - 2, (qt, pos[due[qt]])
        assert pos[i_m1] >= NQ + 4, pos[i_m1]
        put(after, NQ + 2, [("bar", vmb)])
        if knext:
            spread(after, [(x, 1) for x in kr], NQ + 3, 2 * NQ - 6)
        if early:
            spread(after, [(g, 1) for g in early], NQ + 3, 2 * NQ)
        A.run(mf, after)

    A.q = []
    it(0, [], group(0)[:4], 4, first=True)
    q0 = list(A.q)
    A(f"s_mov_b32 {sr(sCNT)}, 7")
    A.lab(f"L_aloop_{NT}")
    def touch(trip):
        return [[f"s_cmp_eq_u32 {sr(sCNT)}, {trip}", f"s_cselect_b32 {sr(sT1)}, {sr(sTO)}, {OOB}", f"s_cselect_b32 {sr(sT2)}, 0x20000, 0",
                 f"buffer_load_dword {vr(aTCH)}, {vr(vSC)}, {sr(S_W,4)}, {sr(sT1)} offen", f"s_add_u32 {sr(sTO)}, {sr(sTO)}, {sr(sT2)}"]]
    tp = dict((int(x[0]), int(x[1])) for x in o.wtouch.split(",")) if o.wtouch else {}
    for u in (1, 2, 3, 0):
        it(u, group(u - 1)[4:], (touch(tp[u]) if u in tp else []) + group(u)[:4], 8)
    assert A.q == q0
    A(f"s_sub_u32 {sr(sCNT)}, {sr(sCNT)}, 1"); A(f"s_cmp_lg_u32 {sr(sCNT)}, 0"); A(f"s_cbranch_scc1 L_aloop_{NT}")
    last = group(29) if c2 == 0 else [[]] * 8
    it(1, group(28)[4:], [g for g in last[:4] if g], 8)
    it(2, [g for g in last[4:] if g], dma_w(o, "G", 0) + dma_w(o, "G", 1), 8 if c2 == 0 else 0)
    it(3, [], dma_w(o, "G", 2), 16, knext=False)
    stamp(A, 2, o.stamps)
    Sp = vS + 32
    for x in vreads(aslot(32)): A.emit(x)
    for x in pend_check(): A.emit(x)

    def lred(qt):
        a, b = vLS + 2 * qt, vLS + 2 * qt + 1
        L = [f"v_add_f32 {vr(a)}, {vr(a)}, {vr(b)}"]
        for sw in ("16", "32"):
            L += [f"v_mov_b32 {vr(b)}, {vr(a)}", "s_nop 1", f"v_permlane{sw}_swap_b32 {vr(a)}, {vr(b)}", "s_nop 1", f"v_add_f32 {vr(a)}, {vr(a)}, {vr(b)}"]
        return L + [f"v_rcp_f32 {vr(a)}, {vr(a)}", "s_nop 0", f"v_mov_b32 {vr(b)}, {vr(a)}"]

    def outq(qt):
        L = []
        for m in range(4):
            t = vS + 8 * m
            d = vKF + 4 * ((4 * qt + m) % 8)
            L += [f"v_accvgpr_read_b32 {vr(t+i)}, {vr(aO + 16*(2*m + (i>>2)) + 4*qt + (i&3))}" for i in range(8)]
            L += [f"v_pk_mul_f32 {vr(t+2*i,2)}, {vr(t+2*i,2)}, {vr(vLS+2*qt,2)}" for i in range(4)]
            L += [f"v_cvt_pk_bf16_f32 {vr(d+i)}, {vr(t+2*i)}, {vr(t+2*i+1)}" for i in range(4)]
            L.append(f"ds_write_b128 {vr(vOW)}, {vr(d,4)} offset:{(m>>1)*XSL + qt*2048 + (m&1)*1024}")
            L.append(f"buffer_store_dwordx4 {vr(d,4)}, {vr(vL16)}, {sr(S_WS,4)}, {sr(sOST)} offen offset:{m*1024} sc1")
        L.append(f"s_add_u32 {sr(sOST)}, {sr(sOST)}, 0x20000")
        return L

    for x, _ in part2(Sp, 0): A(x)
    mf, after = [], {}
    for qt in range(NT):
        for dt in range(8):
            mf.append((mfma(aO + 16 * dt + 4 * qt, vVF + 4 * dt, vP + 4 * qt, aO + 16 * dt + 4 * qt), [f"v{dt}"]))
        st = [(x, 1) for x in lred(qt)]
        if qt + 1 < NT:
            st = [(x, 1) for x, _ in part2(Sp, qt + 1)] + st
        spread(after, st, 8 * qt, 8 * qt + 7)
        put(after, 8 * qt + 7, ["s_nop 1"])
    put(after, 7, ["s_barrier"])
    A("s_nop 1")
    A.run(mf, after)
    A("s_nop 3")
    for qt in range(NT):
        for x in outq(qt): A(x)
    A(f"s_waitcnt vmcnt({4*NT})")


def rare_blocks(A, tail):
    r2, r1 = {}, {}
    for t in tail:
        if t[0] == "r1":
            _, l1, b1, S, NT = t
            k = len(r1.setdefault((NT, S), []))
            r1[(NT, S)].append(b1)
            A.lab(l1)
            A(f"s_mov_b32 {sr(sT0)}, {k}"); A(f"s_branch L_r1c_{NT}_{S}")
        else:
            _, l2, b2, NT = t
            k = len(r2.setdefault(NT, []))
            r2[NT].append(b2)
            A.lab(l2)
            A(f"s_mov_b32 {sr(sPEND)}, {k}"); A(f"s_branch L_r2c_{NT}")
    for (NT, S), backs in r1.items():
        A.lab(f"L_r1c_{NT}_{S}")
        for x in new_max(S, NT, True): A(x)
        A(f"s_mov_b32 {sr(sPEND)}, 1")
        for k, b in enumerate(backs[:-1]):
            A(f"s_cmp_eq_u32 {sr(sT0)}, {k}"); A(f"s_cbranch_scc1 {b}")
        A(f"s_branch {backs[-1]}")
    for NT, backs in r2.items():
        A.lab(f"L_r2c_{NT}")
        A("s_nop 7")
        for dt in range(8):
            for qt in range(NT):
                for i in range(4):
                    A(f"v_accvgpr_read_b32 {vr(vT+i)}, {vr(aO+16*dt+4*qt+i)}")
                for i in range(4):
                    A(f"v_mul_f32 {vr(vT+i)}, {vr(vT+i)}, {vr(vFAC+qt)}")
                for i in range(4):
                    A(f"v_accvgpr_write_b32 {vr(aO+16*dt+4*qt+i)}, {vr(vT+i)}")
        A(f"s_mov_b32 {sr(sT0)}, {sr(sPEND)}"); A(f"s_mov_b32 {sr(sPEND)}, 0")
        for k, b in enumerate(backs[:-1]):
            A(f"s_cmp_eq_u32 {sr(sT0)}, {k}"); A(f"s_cbranch_scc1 {b}")
        A(f"s_branch {backs[-1]}")


def x_send(k):
    t = gT + 16 * (k - 1)
    L = [f"v_cvt_pk_bf16_f32 {vr(t+i)}, {vr(gACC+28*k+2*i)}, {vr(gACC+28*k+2*i+1)}" for i in range(14)]
    for j in (2, 1, 0):
        L.insert(4 * j + 4, f"buffer_store_dwordx4 {vr(t+4*j,4)}, {vr(vL16)}, {sr(S_WS,4)}, {sr(sXS+k-1)} offen offset:{j*1024} sc1")
    L.append(f"buffer_store_dwordx2 {vr(t+12,2)}, {vr(vL16)}, {sr(S_WS,4)}, {sr(sXS+k-1)} offen offset:3072 sc1")
    return L


def x_hook():
    hook = {}
    for k in (1, 2):
        spread(hook, [(x, 1) for x in x_send(k)], 28 + 7 * k + 3, 28 + 7 * k + 10)
    return hook


def exchange(A, o):
    for x in x_send(3): A(x)
    stamp(A, 1, o.xst)
    A("s_mov_b64 exec, 15")
    A(f"v_lshlrev_b32 {vr(vT+5)}, 3, {vr(vLANE)}")
    A(f"v_add_u32 {vr(vT+5)}, {sr(sXF)}, {vr(vT+5)}")
    A(f"s_lshl_b32 {sr(sT1)}, {sr(sHG)}, 3"); A(f"s_add_u32 {sr(sT1)}, {sr(sT1)}, {sr(sXF)}")
    A(f"s_lshl_b32 {sr(sT3)}, 1, {sr(sHG)}")
    A(f"global_load_dwordx2 {vr(vT+6,2)}, {vr(vT+5)}, {sr(sWS,2)} sc1")
    A("s_waitcnt vmcnt(0)")
    stamp(A, 2, o.xst)
    raise_flag(A, sT1)
    A("s_mov_b64 exec, 15")
    poll4(A, sT3, True)
    A("s_mov_b64 exec, -1")
    stamp(A, 3, o.xst)
    for k in range(1, 4):
        for j in range(4):
            A(f"buffer_load_dwordx4 {vr(gX+16*(k-1)+4*j,4)}, {vr(vL16)}, {sr(S_WS,4)}, {sr(sXL[k-1])} offen offset:{j*1024} sc1")
    t1, t2 = vT, vT + 1
    A(f"v_and_b32 {vr(t1)}, 15, {vr(vLANE)}"); A(f"v_lshlrev_b32 {vr(t1)}, 12, {vr(t1)}")
    A(f"v_lshrrev_b32 {vr(t2)}, 4, {vr(vLANE)}"); A(f"v_lshl_add_u32 {vr(t1)}, {vr(t2)}, 3, {vr(t1)}")
    R = gACC
    for k in range(1, 4):
        A(f"s_waitcnt vmcnt({12 - 4*k})")
        if k == 3: stamp(A, 4, o.xst)
        for i in range(14):
            p, t = gX + 16 * (k - 1) + i, gACC + 28 + 2 * (i % 4)
            A(f"v_lshlrev_b32 {vr(t)}, 16, {vr(p)}"); A(f"v_and_b32 {vr(t+1)}, 0xffff0000, {vr(p)}")
            A(f"v_pk_add_f32 {vr(R+2*i,2)}, {vr(R+2*i,2)}, {vr(t,2)}")
            if k == 3 and i & 1:
                rt = i >> 1
                A(f"v_cvt_pk_bf16_f32 {vr(gT+2*rt)}, {vr(R+4*rt)}, {vr(R+4*rt+1)}")
                A(f"v_cvt_pk_bf16_f32 {vr(gT+2*rt+1)}, {vr(R+4*rt+2)}, {vr(R+4*rt+3)}")
                A(f"buffer_store_dwordx2 {vr(gT+2*rt,2)}, {vr(t1)}, {sr(S_OUT,4)}, {sr(sOO)} offen sc1")
                A(f"s_add_u32 {sr(sOO)}, {sr(sOO)}, {16*4096}")


def build(o):
    A = Asm()
    st = o.stamps
    for l in HEADER.splitlines(): A(l)
    A(f"; @launch grid=(256,1,1) block=(256,1,1) lds={LDS}")
    A('.amdgcn_target "amdgcn-amd-amdhsa--gfx950"'); A(".text")
    A(f".globl {KN}"); A(".p2align 8"); A(f".type {KN},@function"); A.lab(KN)
    A(f"s_cmp_ge_u32 s2, 256"); A("s_cbranch_scc1 L_exit")
    tail = []
    stamp(A, 0, st)
    prologue(A, o)
    if o.early_setup:
        late_setup(A, o)
    H = lambda s_: sum((dma_half(o, x[0], int(x[1])) for x in s_.split("+") if x), [])
    kvp = o.kvplan.split(",")
    gemm(A, o, "Q", o.wpre, {"13e": H(kvp[0]), "14l": H(kvp[1]), "14e": H(kvp[2]), "15l": H(kvp[3])})
    A.groups(H(kvp[4]))
    q_finish(A, o)
    stamp(A, 1, st)
    A(f"s_cmp_lg_u32 {sr(sC2)}, 0"); A(f"s_cbranch_scc1 L_att3")
    attention(A, o, 4, tail)
    A("s_branch L_attdone")
    A.lab("L_att3")
    attention(A, o, 3, tail)
    A.lab("L_attdone")
    stamp(A, 3, st)
    A.q = []
    gemm(A, o, "G", 63, {"hook": x_hook()})
    exchange(A, o)
    if o.xst:
        stamp(A, 6, True); A("s_waitcnt vmcnt(0)")
    stamp(A, 5, st)
    if st:
        write_stamps(A)
    A.lab("L_exit")
    A("s_endpgm")
    rare_blocks(A, tail)
    A('.section .rodata,"a"')
    A(".p2align 6")
    A(f".amdhsa_kernel {KN}")
    A("  .amdhsa_next_free_vgpr 504"); A("  .amdhsa_next_free_sgpr 102"); A("  .amdhsa_accum_offset 256")
    A("  .amdhsa_group_segment_fixed_size 0"); A("  .amdhsa_kernarg_size 104"); A("  .amdhsa_user_sgpr_count 2")
    A("  .amdhsa_user_sgpr_kernarg_segment_ptr 1"); A("  .amdhsa_system_sgpr_workgroup_id_x 1")
    A(".end_amdhsa_kernel")
    return A.text()


if __name__ == "__main__":
    ap = argparse.ArgumentParser()
    ap.add_argument("-o", default="concat_heads__mha_block_cached__gqa_block_cached__near_ridge.s")
    ap.add_argument("--stamps", action="store_true")
    ap.add_argument("--qst", action="store_true")
    ap.add_argument("--xst", action="store_true")
    ap.add_argument("--steps", default="")
    ap.add_argument("--nt", default="KV")
    ap.add_argument("--win", type=int, default=5)
    ap.add_argument("--lazy", type=int, default=5)
    ap.add_argument("--nokv", action="store_true")
    ap.add_argument("--wpre", type=int, default=6)
    ap.add_argument("--early_setup", type=int, default=1)
    ap.add_argument("--kvplan", default="K0+K1,V0,K2,V1,")
    ap.add_argument("--wtouch", default="")
    ap.add_argument("--whead", type=int, default=0)
    a = ap.parse_args()
    open(a.o, "w").write(build(a))
```

```python
import argparse, struct, math

KN = "concat_heads__mha_block_cached__gqa_block_cached__near_ridge_kernel"
WS_BYTES = 305659904
O_BYTES = 16 * 8 * 128 * 1024
X_OFF = O_BYTES
X_BYTES = 64 * (4 * 4 * 4 * 8192 + 16384)
F_RDY = X_OFF + X_BYTES
F_XCH = F_RDY + 64 * 128
WSL, XSL, XB = 32768, 16384, 98304
ASL = 32768
QIMG1 = 98304
LDS = 163840
f32 = lambda x: struct.unpack("<I", struct.pack("<f", x))[0]
C_SCALE = f32(math.log2(math.e) / math.sqrt(128.0))
THR = f32(8.0)
OOB = 0x40000000

HEADER = """\
; One launch, 256 workgroups of 4 waves, one per CU.  Workgroup = (branch, batch, two adjacent heads).
; -> output projection tile (112x256 over 8 heads) -> partial sums exchanged through ws between 4 workgroups -> out.
"""


class Asm:
    def __init__(self):
        self.L = []
        self.uid = 0
        self.q = []
        self.clock = 0
        self.born = {}
        self.lazy = 0

    def __call__(self, s):
        self.L.append(s)

    def lab(self, name):
        self.L.append(name + ":")

    def newlab(self, p="L"):
        self.uid += 1
        return f"{p}_{self.uid}"

    def need(self, tags):
        pos = max([i for i, t in enumerate(self.q) if t in tags], default=-1)
        if pos >= 0:
            while self.lazy and pos + 1 < len(self.q) and self.clock - self.born[self.q[pos + 1]] >= self.lazy:
                pos += 1
            self.L.append(f"s_waitcnt lgkmcnt({len(self.q) - pos - 1})")
            self.q = self.q[pos + 1:]

    def emit(self, it):
        if isinstance(it, str):
            self(it)
        elif it[0] == "ds":
            if len(self.q) >= 15:
                self.need([self.q[3]])
            self.L.append(it[1]); self.q.append(it[2]); self.born[it[2]] = self.clock
        elif it[0] == "bar":
            self(f"s_waitcnt vmcnt({it[1]}) lgkmcnt(0)"); self.q = []
            self("s_barrier")
        elif it[0] == "lab":
            self.lab(it[1])
        elif it[0] == "call":
            it[1]()

    def groups(self, gs):
        for g in gs:
            for s in g: self(s)

    def run(self, mf, after):
        for m, (txt, tags) in enumerate(mf):
            self.need(tags)
            self(txt)
            self.clock += 1
            for it in after.get(m, []): self.emit(it)

    def text(self):
        return "\n".join(self.L) + "\n"


def vr(a, n=1):
    p, a = ("a", a - 256) if a >= 256 else ("v", a)
    return f"{p}{a}" if n == 1 else f"{p}[{a}:{a+n-1}]"


def sr(a, n=1):
    return f"s{a}" if n == 1 else f"s[{a}:{a+n-1}]"


def mfma(d, a, b, c):
    return f"v_mfma_f32_16x16x32_bf16 {vr(d,4)}, {vr(a,4)}, {vr(b,4)}, {c if c == '0' else vr(c,4)}"


def put(after, m, items):
    after.setdefault(m, []).extend(items)


def spread(after, items, lo, hi):
    tot = sum(c for _, c in items)
    acc, pos = 0.0, []
    for its, c in items:
        g = lo + int((acc + c / 2) / tot * (hi - lo))
        put(after, g, its if isinstance(its, list) else [its])
        pos.append(g); acc += c
    return pos


S_X, S_W, S_K, S_V, S_O, S_WS, S_OUT = 4, 8, 12, 16, 20, 24, 28
sWAVE, sBR, sB, sH0, sHG, sHP = 32, 33, 34, 35, 38, 39
sKA = 36
sDBG = 40
sWS = 42
sT0, sT1, sT2, sT3 = 44, 45, 46, 47
sXS = 48
sXF = 51
sW8, sW4, sAM = 52, 80, 81
sCNT = 53
sXO, sWO_ = 54, 55
sKO, sVO = 56, 57
sC, sTHR = 58, 59
sGS = 60
sWOP = 62
sST = 64
sPEND = 82
sSPIN = 83
sU, sC2 = 84, 85
sWB = 86
sROT = 87
sTO = 88
sOST = 89
sNON = 90
sFL = 92
sOO = 93
sPTR = 94
sSW, sSX = 96, 98
sXL = [3, 100, 101]

vLANE = 1
vT = 2
vDX = 10
vDW = 14
vXB = 18
vTB = 20
vDK = 28
vDV = 32
vSC = 34
vL16 = 36
vOW = 37
vTAG = 38
vFAC = 40
vP = 44
vS = 60
vKF = 124
vVF = 156
vKA = 208
vVA = 216
vNM = 232
vLS = 248
aO = 256
aQ = 384
aG = 480
aTCH = 498
gACC = 40
gX = 152
gW = 448
gT = 208


def stamp(A, i, on):
    if on:
        q = list(A.q)
        A(f"s_memrealtime {sr(sST + 2*i, 2)}")
        A(f"s_memtime {sr(sPTR, 2)}")
        A("s_waitcnt lgkmcnt(0)")
        A(f"s_mov_b32 {sr(sST + 2*i + 1)}, {sr(sPTR)}")
        A.q = q


def write_stamps(A):
    l = A.newlab("L_st")
    A(f"s_cmp_lg_u32 {sr(sWAVE)}, 0"); A(f"s_cbranch_scc1 {l}")
    A(f"s_mov_b32 {sr(sT0)}, {WS_BYTES - 512*64}")
    A(f"s_lshl_b32 {sr(sT1)}, s2, 6")
    A(f"s_add_u32 {sr(sT0)}, {sr(sT0)}, {sr(sT1)}")
    A(f"s_add_u32 {sr(sPTR)}, {sr(sWS)}, {sr(sT0)}")
    A(f"s_addc_u32 {sr(sPTR+1)}, {sr(sWS+1)}, 0")
    A(f"v_mov_b32 v2, 0")
    for i in range(16):
        A(f"v_mov_b32 v{4+i}, {sr(sST+i)}")
    A("s_mov_b64 exec, 1")
    for i in range(4):
        A(f"global_store_dwordx4 v2, v[{4+4*i}:{7+4*i}], {sr(sPTR,2)} offset:{16*i}")
    A.lab(l)


def srd(A, d, lo, add, nrec):
    if add is None:
        A(f"s_mov_b32 {sr(d)}, {sr(lo)}"); A(f"s_mov_b32 {sr(d+1)}, {sr(lo+1)}")
    else:
        A(f"s_add_u32 {sr(d)}, {sr(lo)}, {add}"); A(f"s_addc_u32 {sr(d+1)}, {sr(lo+1)}, 0")
    A(f"s_mov_b32 {sr(d+2)}, {nrec}")
    A(f"s_mov_b32 {sr(d+3)}, 0x20000")


def raise_flag(A, sig_s):
    ls, lg = A.newlab("L_tag"), A.newlab("L_tagok")
    A("s_mov_b64 exec, 1")
    A(f"s_cmp_lg_u32 {sr(sNON+1)}, 0"); A(f"s_cbranch_scc1 {lg}")
    A(f"v_mov_b32 {vr(vT+4)}, 0")
    A(f"s_mov_b32 {sr(sSPIN)}, 0")
    A.lab(ls)
    A(f"global_load_dwordx2 {vr(vT+2,2)}, {vr(vT+4)}, {sr(sDBG,2)} sc1")
    A("s_waitcnt vmcnt(0)")
    A(f"v_readfirstlane_b32 {sr(sNON)}, {vr(vT+2)}")
    A(f"v_readfirstlane_b32 {sr(sNON+1)}, {vr(vT+3)}")
    A(f"s_add_u32 {sr(sSPIN)}, {sr(sSPIN)}, 1")
    A(f"s_cmp_lg_u32 {sr(sNON+1)}, 0"); A(f"s_cbranch_scc1 {lg}")
    A("s_sleep 4")
    A(f"s_cmp_lt_u32 {sr(sSPIN)}, 0x4000"); A(f"s_cbranch_scc1 {ls}")
    A.lab(lg)
    A(f"v_mov_b32 {vr(vT+4)}, {sr(sig_s)}"); A(f"v_mov_b32 {vr(vT+2)}, {sr(sNON)}"); A(f"v_mov_b32 {vr(vT+3)}, {sr(sNON+1)}")
    A(f"global_store_dwordx2 {vr(vT+4)}, {vr(vT+2,2)}, {sr(sWS,2)} sc1")
    A("s_mov_b64 exec, -1")


def poll4(A, own_s, first_done):
    ls, lg = A.newlab("L_spin"), A.newlab("L_go")
    ld = lambda r: f"global_load_dwordx2 {vr(r,2)}, {vr(vT+5)}, {sr(sWS,2)} sc1"

    def check(r):
        A(f"v_cmp_eq_u64 vcc, {sr(sNON,2)}, {vr(r,2)}")
        A(f"s_add_u32 {sr(sSPIN)}, {sr(sSPIN)}, 1")
        A(f"s_or_b32 {sr(sT2)}, vcc_lo, {sr(own_s)}")
        A(f"s_cmp_eq_u32 {sr(sT2)}, 15")
        A(f"s_cbranch_scc1 {lg}")
    A(f"s_mov_b32 {sr(sSPIN)}, 0")
    if first_done:
        check(vT + 6)
    A(ld(vT + 6))
    A("s_sleep 4")
    A.lab(ls)
    A(ld(vT + 2)); A("s_waitcnt vmcnt(1)"); check(vT + 6)
    A(ld(vT + 6)); A("s_waitcnt vmcnt(1)"); check(vT + 2)
    A(f"s_cmp_lt_u32 {sr(sSPIN)}, 0x8000"); A(f"s_cbranch_scc1 {ls}")
    A.lab(lg)


def team_signal(A):
    l = A.newlab("L_sig")
    A(f"s_cmp_lg_u32 {sr(sWAVE)}, 0"); A(f"s_cbranch_scc1 {l}")
    A(f"s_lshl_b32 {sr(sT1)}, {sr(sHP)}, 3"); A(f"s_add_u32 {sr(sT1)}, {sr(sT1)}, {sr(sFL)}")
    A(f"v_lshlrev_b32 {vr(vT+5)}, 3, {vr(vLANE)}")
    A(f"v_add_u32 {vr(vT+5)}, {sr(sFL)}, {vr(vT+5)}")
    raise_flag(A, sT1)
    A.lab(l)


def team_wait(A):
    le = A.newlab("L_wend")
    A(f"s_cmp_lg_u32 {sr(sWAVE)}, 0"); A(f"s_cbranch_scc1 {le}")
    A("s_mov_b64 exec, 15")
    A(f"s_lshl_b32 {sr(sT3)}, 1, {sr(sHP)}")
    poll4(A, sT3, False)
    A("s_mov_b64 exec, -1")
    A.lab(le)


def next_chunk(seq, off, sh):
    return [f"s_lshr_b64 {sr(seq,2)}, {sr(seq,2)}, 4", f"s_and_b32 {sr(off)}, {sr(seq)}, 15", f"s_lshl_b32 {sr(off)}, {sr(off)}, {sh}"]


def seq_words(seq):
    v = sum(c << (4 * i) for i, c in enumerate(seq))
    return v & 0xffffffff, v >> 32


def seq_add(A, seq, add_s):
    A(f"s_mul_i32 {sr(sT0)}, {sr(add_s)}, 0x11111111")
    A(f"s_and_b32 {sr(sT1)}, {sr(sT0)}, 0x77777777")
    for w in (seq, seq + 1):
        A(f"s_xor_b32 {sr(sT2)}, {sr(w)}, {sr(sT0)}"); A(f"s_and_b32 {sr(sT2)}, {sr(sT2)}, 0x88888888")
        A(f"s_and_b32 {sr(w)}, {sr(w)}, 0x77777777"); A(f"s_add_u32 {sr(w)}, {sr(w)}, {sr(sT1)}"); A(f"s_xor_b32 {sr(w)}, {sr(w)}, {sr(sT2)}")


QSEQ = [0, 1, 4, 5, 2, 8, 9, 3, 12, 13, 6, 10, 14, 7, 11, 15]
GSEQ = [[0, 1, 2, 3] + [4 + ((3 * b >> 1) + i) % 12 for i in range(12)] for b in range(8)]


def dma_w(o, kind, j):
    fl = " nt" if kind in o.nt else ""
    sh = 13 if kind == "W" else 11
    g = [[f"buffer_load_dwordx4 {vr(vDW+(t&3))}, {sr(S_W,4)}, {sr(sWO_ if t < 4 else sWB)} offen offset:{(t&3)*1024}{fl} lds"] for t in range(8)]
    g[0] = [f"s_add_u32 m0, {sr(sW8)}, {(j%3)*WSL}", f"s_add_u32 {sr(sWB)}, {sr(sWO_)}, {32 << sh}"] + g[0]
    g[3] += next_chunk(sSW, sWO_, sh + 6)
    g[4] = [f"s_add_u32 m0, {sr(sW8)}, {(j%3)*WSL + 4096}", "s_nop 0"] + g[4]
    return g


def dma_x(o, kind, j):
    srd_, fl = (S_X, " nt" if "X" in o.nt else "") if kind == "X" else (S_O, " sc1")
    g = [[f"buffer_load_dwordx4 {vr(vDX+t)}, {sr(srd_,4)}, {sr(sXO)} offen offset:{t*1024}{fl} lds"] for t in range(4)]
    g[0] = [f"s_add_u32 m0, {sr(sW4)}, {XB + (j%3)*XSL}", "s_nop 0"] + g[0]
    g[3] += next_chunk(sSX, sXO, 7 if kind == "X" else 11)
    return g


aslot = lambda item: (3 + item) & 3


def dma_half(o, kv, tile):
    srd_, va, n, off, item = (S_K, vDK, 4, 16384, tile) if kv == "K" else (S_V, vDV, 2, 0, tile + 1)
    fl = " nt" if kv in o.nt else ""
    g = [[f"buffer_load_dwordx4 {vr(va+t%n)}, {sr(srd_,4)}, {sr(sKO)} offen offset:{t*1024}{fl} lds"] for t in range(4)]
    g[0] = [f"s_add_u32 m0, {sr(sW4)}, {ASL*(1+aslot(item)) + off}", f"s_lshl_b32 {sr(sKO)}, {sr(sC2)}, 12", f"s_add_u32 {sr(sKO)}, {sr(sKO)}, {tile*8192}"] + g[0]
    return g


def dma_tile(o, kv, slot):
    srd_, va, n, off, so = (S_K, vDK, 4, 16384, sKO) if kv == "K" else (S_V, vDV, 2, 0, sVO)
    fl = " nt" if kv in o.nt else ""
    w = [f"s_waitcnt vmcnt({o.win-1})"] if o.win else []
    g = [w + [f"buffer_load_dwordx4 {vr(va+t%n)}, {sr(srd_,4)}, {sr(so)} offen offset:{(t&3)*1024}{fl} lds"] for t in range(8)]
    g[0] = [f"s_add_u32 m0, {sr(sAM)}, {ASL*(1+slot) + off}", "s_nop 0"] + g[0]
    g[3] += [f"s_add_u32 {sr(so)}, {sr(so)}, 4096"]
    g[4] = [f"s_add_u32 m0, {sr(sAM)}, {ASL*(1+slot) + off + 4096}", "s_nop 0"] + g[4]
    g[7] += [f"s_add_u32 {sr(so)}, {sr(so)}, 12288"]
    return g


def w_offsets(A, dst, rshift, wflav):
    l3, t0, t1 = vT, vT + 1, vT + 2
    A(f"v_lshrrev_b32 {vr(l3)}, 3, {vr(vLANE)}")
    A(f"v_bfe_u32 {vr(t0)}, {vr(vLANE)}, 4, {1 if wflav else 2}")
    A(f"v_lshlrev_b32 {vr(t0)}, 1, {vr(t0)}")
    A(f"v_and_b32 {vr(t1)}, 7, {vr(vLANE)}")
    A(f"v_xor_b32 {vr(t0)}, {vr(t0)}, {vr(t1)}")
    A(f"v_lshlrev_b32 {vr(t0)}, 4, {vr(t0)}")
    A(f"s_lshl_b32 {sr(sT3)}, {sr(sWAVE)}, 7")
    A(f"v_lshl_add_u32 {vr(l3)}, {vr(l3)}, {rshift}, {sr(sT3)}")
    for t in range(4):
        A(f"v_xor_b32 {vr(t1)}, {64*(t&1) if wflav else 0}, {vr(t0)}")
        A(f"v_add_u32 {vr(t1)}, {vr(t1)}, {vr(l3)}")
        A(f"v_add_u32 {vr(dst+t)}, {(8*t << rshift) - 1024*t}, {vr(t1)}")


def gemm_tr_bases(A, dst, gshift, rot):
    g, r, c, x = vT, vT + 1, vT + 2, vT + 3
    A(f"v_lshrrev_b32 {vr(g)}, 4, {vr(vLANE)}")
    A(f"v_bfe_u32 {vr(r)}, {vr(vLANE)}, 2, 2")
    A(f"v_and_b32 {vr(c)}, 3, {vr(vLANE)}"); A(f"v_lshlrev_b32 {vr(c)}, 3, {vr(c)}")
    A(f"v_lshl_add_u32 {vr(c)}, {vr(g)}, {gshift}, {vr(c)}")
    A(f"v_lshl_add_u32 {vr(c)}, {vr(r)}, 7, {vr(c)}")
    A(f"v_lshrrev_b32 {vr(r)}, 1, {vr(r)}"); A(f"v_lshl_add_u32 {vr(c)}, {vr(r)}, 5, {vr(c)}")
    A(f"v_and_b32 {vr(g)}, 1, {vr(g)}"); A(f"v_lshl_add_u32 {vr(c)}, {vr(g)}, 6, {vr(c)}")
    A(f"v_add_u32 {vr(c)}, {sr(sW8)}, {vr(c)}")
    for ct in range(4):
        if rot:
            A(f"s_add_u32 {sr(sT0)}, {sr(sHG)}, {ct}"); A(f"s_and_b32 {sr(sT0)}, {sr(sT0)}, 3"); A(f"s_lshl_b32 {sr(sT0)}, {sr(sT0)}, 5")
            A(f"v_xor_b32 {vr(dst+ct)}, {sr(sT0)}, {vr(c)}")
        else:
            A(f"v_xor_b32 {vr(dst+ct)}, {32*ct}, {vr(c)}")
        A(f"v_add_u32 {vr(dst+4+ct)}, 0x10000, {vr(dst+ct)}")


def qseqs(base, odd=None):
    out = []
    for rho in range(8):
        sq = [(c + 2 * rho) & 15 for c in (odd if (odd and rho & 1) else base)]
        assert sorted(sq) == list(range(16))
        sq.remove(0)
        out.append([0] + sq)
    return out


def prologue(A, o):
    A(f"s_bfe_u32 {sr(sBR)}, s2, 0x10002")
    A(f"s_mul_i32 {sr(sT0)}, {sr(sBR)}, 40")
    A(f"s_add_u32 {sr(sKA)}, s0, {sr(sT0)}"); A(f"s_addc_u32 {sr(sKA+1)}, s1, 0")
    A(f"s_load_dwordx2 s[70:71], {sr(sKA,2)}, 24")
    A(f"s_load_dwordx2 s[74:75], {sr(sKA,2)}, 0")
    A(f"v_lshrrev_b32 v2, 6, v0")
    A(f"v_and_b32 {vr(vLANE)}, 63, v0")
    A(f"v_readfirstlane_b32 {sr(sWAVE)}, v2")
    A(f"s_and_b32 {sr(sHG)}, s2, 3")
    A(f"s_bfe_u32 {sr(sHP)}, s2, 0x20003")
    A(f"s_bfe_u32 {sr(sB)}, s2, 0x30005")
    A(f"s_lshl_b32 {sr(sH0)}, {sr(sHG)}, 2"); A(f"s_add_u32 {sr(sH0)}, {sr(sH0)}, {sr(sHP)}"); A(f"s_lshl_b32 {sr(sH0)}, {sr(sH0)}, 1")
    A(f"s_lshl_b32 {sr(sW8)}, {sr(sWAVE)}, 13")
    A(f"s_lshl_b32 {sr(sW4)}, {sr(sWAVE)}, 12")
    A(f"s_lshl_b32 {sr(sROT)}, {sr(sHP)}, 1"); A(f"s_add_u32 {sr(sROT)}, {sr(sROT)}, {sr(sB)}"); A(f"s_and_b32 {sr(sROT)}, {sr(sROT)}, 7")
    if o.common:
        A(f"s_mov_b32 {sr(sXO)}, 0"); A(f"s_mov_b32 {sr(sWO_)}, 0")
    else:
        A(f"s_lshl_b32 {sr(sXO)}, {sr(sROT)}, 8"); A(f"s_lshl_b32 {sr(sWO_)}, {sr(sROT)}, 20")
    w_offsets(A, vDW, 13, True)
    A(f"s_lshl_b32 {sr(sT0)}, {sr(sH0)}, 8")
    A(f"s_mul_i32 {sr(sT1)}, {sr(sB)}, 229376")
    A("s_waitcnt lgkmcnt(0)")
    srd(A, S_W, 70, sr(sT0), "0")
    A(f"s_sub_u32 {sr(S_W+2)}, 0x800000, {sr(sT0)}")
    srd(A, S_X, 74, sr(sT1), "229376")
    strip = lambda gs: [[x for x in g if not any(x == y for y in next_chunk(sSW, sWO_, 19) + next_chunk(sSX, sXO, 7))] for g in gs]
    A.groups(strip(dma_w(o, "W", 0)))
    A(f"s_load_dwordx2 s[66:67], {sr(sKA,2)}, 8")
    A(f"s_load_dwordx2 s[68:69], {sr(sKA,2)}, 16")
    A(f"s_load_dwordx2 {sr(sWOP,2)}, {sr(sKA,2)}, 32")
    A(f"s_load_dwordx2 s[72:73], s[0:1], 80")
    A(f"s_load_dwordx2 {sr(sDBG,2)}, s[0:1], 88")
    A(f"s_load_dwordx2 {sr(sWS,2)}, s[0:1], 96")
    l3, l4, t0, t1 = vT, vT + 1, vT + 2, vT + 3
    A(f"v_lshrrev_b32 {vr(l3)}, 3, {vr(vLANE)}")
    A(f"v_lshrrev_b32 {vr(l4)}, 4, {vr(vLANE)}")
    A(f"s_lshl_b32 {sr(sT2)}, {sr(sWAVE)}, 16")
    A(f"v_and_b32 {vr(t1)}, 7, {vr(vLANE)}")
    A(f"v_xor_b32 {vr(t1)}, {vr(t1)}, {vr(l4)}")
    A(f"v_lshlrev_b32 {vr(t1)}, 4, {vr(t1)}")
    A(f"v_lshl_add_u32 {vr(l3)}, {vr(l3)}, 11, {sr(sT2)}")
    for t in range(4):
        A(f"v_xor_b32 {vr(t0)}, {64*(t&1)}, {vr(t1)}")
        A(f"v_add_u32 {vr(t0)}, {vr(t0)}, {vr(l3)}")
        A(f"v_add_u32 {vr(vDX+t)}, {8*t*2048 - 1024*t}, {vr(t0)}")
    A.groups(strip(dma_x(o, "X", 0)))
    base = [int(c, 16) for c in o.qseq]
    if o.common:
        for rho, sq in enumerate(qseqs(base, [int(c, 16) for c in o.qodd])):
            lo, hi = seq_words(sq)
            if rho == 0:
                A(f"s_mov_b32 {sr(sSW)}, {lo:#x}"); A(f"s_mov_b32 {sr(sSW+1)}, {hi:#x}")
            else:
                A(f"s_cmp_eq_u32 {sr(sROT)}, {rho}")
                A(f"s_cselect_b32 {sr(sSW)}, {lo:#x}, {sr(sSW)}"); A(f"s_cselect_b32 {sr(sSW+1)}, {hi:#x}, {sr(sSW+1)}")
    else:
        lo, hi = seq_words(base)
        A(f"s_mov_b32 {sr(sSW)}, {lo:#x}"); A(f"s_mov_b32 {sr(sSW+1)}, {hi:#x}")
        A(f"s_lshl_b32 {sr(sT3)}, {sr(sROT)}, 1")
        seq_add(A, sSW, sT3)
    A(f"s_mov_b64 {sr(sSX,2)}, {sr(sSW,2)}")
    for x in next_chunk(sSW, sWO_, 19) + next_chunk(sSX, sXO, 7): A(x)
    A.groups((dma_w(o, "W", 1) + dma_x(o, "X", 1) + dma_w(o, "W", 2))[:o.wpre])
    A(f"s_lshr_b32 {sr(sU)}, {sr(sWAVE)}, 1"); A(f"s_and_b32 {sr(sC2)}, {sr(sWAVE)}, 1")
    A(f"s_lshl_b32 {sr(sAM)}, {sr(sU)}, 13")
    A("s_waitcnt lgkmcnt(0)")
    l = A.newlab("L_notag")
    A(f"s_or_b32 {sr(sT0)}, s2, {sr(sWAVE)}"); A(f"s_cmp_lg_u32 {sr(sT0)}, 0"); A(f"s_cbranch_scc1 {l}")
    A(f"s_memrealtime {sr(sPTR,2)}"); A("s_waitcnt lgkmcnt(0)")
    A(f"v_mov_b32 {vr(vT+2)}, {sr(sPTR)}"); A(f"v_mov_b32 {vr(vT+3)}, {sr(sPTR+1)}"); A(f"v_mov_b32 {vr(vT+4)}, 0")
    A(f"v_or_b32 {vr(vT+3)}, 0x80000000, {vr(vT+3)}")
    A("s_mov_b64 exec, 1")
    A(f"global_store_dwordx2 {vr(vT+4)}, {vr(vT+2,2)}, {sr(sDBG,2)} sc1")
    A("s_mov_b64 exec, -1")
    A.lab(l)
    q, g, r = vT, vT + 1, vT + 2
    A(f"v_lshlrev_b32 {vr(vL16)}, 4, {vr(vLANE)}")
    A(f"v_and_b32 {vr(q)}, 15, {vr(vLANE)}")
    A(f"v_lshrrev_b32 {vr(g)}, 4, {vr(vLANE)}")
    A(f"v_bfe_u32 {vr(r)}, {vr(vLANE)}, 1, 3")
    A(f"v_xor_b32 {vr(r)}, {vr(r)}, {vr(g)}")
    A(f"v_lshlrev_b32 {vr(r)}, 4, {vr(r)}")
    A(f"v_lshl_add_u32 {vr(r)}, {vr(q)}, 7, {vr(r)}")
    A(f"v_add_u32 {vr(vXB)}, {XB}, {vr(r)}")
    A(f"v_xor_b32 {vr(vXB+1)}, 64, {vr(vXB)}")
    gemm_tr_bases(A, vTB, 10, False)


def late_setup(A, o):
    A(f"s_lshl_b32 {sr(sT0)}, {sr(sB)}, 5"); A(f"s_add_u32 {sr(sT0)}, {sr(sT0)}, {sr(sH0)}")
    A(f"s_add_u32 {sr(sT0)}, {sr(sT0)}, {sr(sU)}"); A(f"s_lshl_b32 {sr(sT0)}, {sr(sT0)}, 18")
    srd(A, S_K, 66, sr(sT0), "0" if o.nokv else "0x40000")
    srd(A, S_V, 68, sr(sT0), "0" if o.nokv else "0x40000")
    srd(A, S_OUT, 72, None, str(896 * 4096))
    srd(A, S_WS, sWS, None, str(X_OFF + X_BYTES))
    A(f"s_mov_b32 {sr(sC)}, {C_SCALE:#x}"); A(f"s_mov_b32 {sr(sTHR)}, {THR:#x}"); A(f"s_mov_b32 {sr(sPEND)}, 0")
    l4, t0, t1, t2 = vT, vT + 1, vT + 2, vT + 3
    A(f"v_lshrrev_b32 {vr(l4)}, 4, {vr(vLANE)}")
    A(f"v_and_b32 {vr(t1)}, 15, {vr(vLANE)}")
    A(f"v_lshlrev_b32 {vr(t2)}, 8, {vr(l4)}")
    A(f"v_xor_b32 {vr(t0)}, {vr(l4)}, {vr(t1)}")
    A(f"v_lshl_add_u32 {vr(vDK)}, {vr(t0)}, 4, {vr(t2)}")
    for t in range(1, 4):
        A(f"v_xor_b32 {vr(vDK+t)}, {64*t}, {vr(vDK)}")
    A(f"v_lshlrev_b32 {vr(t0)}, 1, {vr(l4)}")
    A(f"v_xor_b32 {vr(t0)}, {vr(t0)}, {vr(t1)}")
    A(f"v_lshl_add_u32 {vr(vDV)}, {vr(t0)}, 4, {vr(t2)}")
    A(f"v_xor_b32 {vr(vDV+1)}, 128, {vr(vDV)}")
    q, g, t0, r, c = vT, vT + 1, vT + 2, vT + 3, vT + 4
    A(f"v_and_b32 {vr(q)}, 15, {vr(vLANE)}"); A(f"v_lshrrev_b32 {vr(g)}, 4, {vr(vLANE)}")
    A(f"v_xor_b32 {vr(t0)}, {vr(g)}, {vr(q)}"); A(f"v_lshlrev_b32 {vr(t0)}, 4, {vr(t0)}")
    A(f"v_lshl_add_u32 {vr(t0)}, {vr(q)}, 8, {vr(t0)}")
    A(f"s_add_u32 {sr(sT1)}, {sr(sAM)}, {ASL}"); A(f"s_add_u32 {sr(sT0)}, {sr(sAM)}, {ASL + 16384}")
    A(f"v_add_u32 {vr(vKA)}, {sr(sT0)}, {vr(t0)}")
    for s in range(1, 4):
        A(f"v_xor_b32 {vr(vKA+s)}, {64*s}, {vr(vKA)}")
    for s in range(4):
        A(f"v_add_u32 {vr(vKA+4+s)}, 0x10000, {vr(vKA+s)}")
    A(f"v_bfe_u32 {vr(r)}, {vr(vLANE)}, 2, 2")
    A(f"v_and_b32 {vr(c)}, 3, {vr(vLANE)}"); A(f"v_lshlrev_b32 {vr(c)}, 3, {vr(c)}")
    A(f"v_lshl_add_u32 {vr(c)}, {vr(g)}, 10, {vr(c)}")
    A(f"v_lshl_add_u32 {vr(c)}, {vr(r)}, 8, {vr(c)}")
    A(f"v_lshl_add_u32 {vr(c)}, {vr(r)}, 5, {vr(c)}")
    A(f"v_and_b32 {vr(g)}, 1, {vr(g)}"); A(f"v_lshl_add_u32 {vr(c)}, {vr(g)}, 7, {vr(c)}")
    A(f"v_add_u32 {vr(vVA)}, {sr(sT1)}, {vr(c)}")
    for dt in range(1, 8):
        A(f"v_xor_b32 {vr(vVA+dt)}, {32*dt}, {vr(vVA)}")
    for dt in range(8):
        A(f"v_add_u32 {vr(vVA+8+dt)}, 0x10000, {vr(vVA+dt)}")
    for i in range(128):
        A(f"v_accvgpr_write_b32 {vr(aO+i)}, 0")
    A(f"v_mov_b32 {vr(vSC)}, {sr(sC)}"); A(f"v_mov_b32 {vr(vSC+1)}, {sr(sC)}")
    P = vNM
    for t in range(4):
        A(f"s_lshl_b32 {sr(sT1)}, {sr(sWAVE)}, 18")
        A(f"s_add_u32 {sr(sT1)}, {sr(sT1)}, {((t >> 1) << 17) + ((t & 1) << 10) - 1024*t}")
        A(f"v_add_u32 {vr(P+t)}, {sr(sT1)}, {vr(vL16)}")
    w_offsets(A, P + 4, 11, False)
    A(f"v_add_u32 {vr(P+8)}, {XB}, {vr(vL16)}"); A(f"v_add_u32 {vr(P+9)}, {XB + 1024}, {vr(vL16)}")
    gemm_tr_bases(A, P + 10, 9, True)
    for i in range(18):
        A(f"v_accvgpr_write_b32 {vr(aG+i)}, {vr(P+i)}")
    A(f"s_lshl_b32 {sr(sT0)}, {sr(sU)}, 15"); A(f"s_lshl_b32 {sr(sT1)}, {sr(sC2)}, 13"); A(f"s_add_u32 {sr(sT0)}, {sr(sT0)}, {sr(sT1)}")
    A(f"v_add_u32 {vr(vOW)}, {sr(sT0)}, {vr(P+8)}")
    for i in range(24):
        A(f"v_mov_b32 {vr(vNM+i)}, 0")
    offs = {0: [3 * b >> 1 for b in range(8)], 1: [3 * (b >> 1) for b in range(8)], 2: [6 * (b & 1) for b in range(8)], 3: [2 * (b % 6) for b in range(8)]}[o.gseq]
    for b, sq in enumerate([[0, 1, 2, 3] + [4 + (x + i) % 12 for i in range(12)] for x in offs]):
        lo, hi = seq_words(sq)
        if b == 0:
            A(f"s_mov_b32 {sr(sGS)}, {lo:#x}"); A(f"s_mov_b32 {sr(sGS+1)}, {hi:#x}")
        else:
            A(f"s_cmp_eq_u32 {sr(sB)}, {b}")
            A(f"s_cselect_b32 {sr(sGS)}, {lo:#x}, {sr(sGS)}"); A(f"s_cselect_b32 {sr(sGS+1)}, {hi:#x}, {sr(sGS+1)}")
    A(f"s_lshl_b32 {sr(sT3)}, {sr(sHP)}, 2")
    seq_add(A, sGS, sT3)
    A(f"s_lshl_b32 {sr(sT3)}, {sr(sBR)}, 3"); A(f"s_add_u32 {sr(sT3)}, {sr(sT3)}, {sr(sB)}")
    A(f"s_mul_i32 {sr(sT0)}, {sr(sT3)}, {(7 << 17) + o.opad}")
    A(f"s_lshl_b32 {sr(sOST)}, {sr(sC2)}, 19"); A(f"s_add_u32 {sr(sOST)}, {sr(sOST)}, {sr(sT0)}")
    A(f"s_add_u32 {sr(sT1)}, {sr(sH0)}, {sr(sU)}"); A(f"s_lshl_b32 {sr(sT1)}, {sr(sT1)}, 12"); A(f"s_add_u32 {sr(sOST)}, {sr(sOST)}, {sr(sT1)}")
    A(f"s_lshl_b32 {sr(sT1)}, {sr(sHG)}, 15"); A(f"s_add_u32 {sr(sT0)}, {sr(sT0)}, {sr(sT1)}")
    srd(A, S_O, sWS, sr(sT0), str(7 << 17))
    A(f"s_lshl_b32 {sr(sFL)}, {sr(sT3)}, 2"); A(f"s_add_u32 {sr(sFL)}, {sr(sFL)}, {sr(sHG)}")
    A(f"s_lshl_b32 {sr(sFL)}, {sr(sFL)}, 7"); A(f"s_add_u32 {sr(sFL)}, {sr(sFL)}, {F_RDY}")
    A(f"s_lshl_b32 {sr(sT0)}, {sr(sT3)}, 2"); A(f"s_add_u32 {sr(sT0)}, {sr(sT0)}, {sr(sHP)}")
    A(f"s_lshl_b32 {sr(sXF)}, {sr(sT0)}, 2"); A(f"s_add_u32 {sr(sXF)}, {sr(sXF)}, {sr(sWAVE)}")
    A(f"s_lshl_b32 {sr(sXF)}, {sr(sXF)}, 7"); A(f"s_add_u32 {sr(sXF)}, {sr(sXF)}, {F_XCH}")
    A(f"s_mul_i32 {sr(sT0)}, {sr(sT0)}, {(1 << 19) + o.xpad}"); A(f"s_add_u32 {sr(sT0)}, {sr(sT0)}, {sr(sW8)}"); A(f"s_add_u32 {sr(sT0)}, {sr(sT0)}, {X_OFF}")
    for k in range(1, 4):
        A(f"s_add_u32 {sr(sT1)}, {sr(sHG)}, {k}"); A(f"s_and_b32 {sr(sT1)}, {sr(sT1)}, 3")
        A(f"s_lshl_b32 {sr(sT2)}, {sr(sT1)}, 17"); A(f"s_lshl_b32 {sr(sT3)}, {sr(sHG)}, 15")
        A(f"s_add_u32 {sr(sXS+k-1)}, {sr(sT2)}, {sr(sT3)}"); A(f"s_add_u32 {sr(sXS+k-1)}, {sr(sXS+k-1)}, {sr(sT0)}")
        A(f"s_lshl_b32 {sr(sT2)}, {sr(sT1)}, 15"); A(f"s_lshl_b32 {sr(sT3)}, {sr(sHG)}, 17")
        A(f"s_add_u32 {sr(sXL[k-1])}, {sr(sT2)}, {sr(sT3)}"); A(f"s_add_u32 {sr(sXL[k-1])}, {sr(sXL[k-1])}, {sr(sT0)}")
    A(f"s_mul_i32 {sr(sOO)}, {sr(sB)}, {112*4096}")
    for reg, sh in ((sBR, 11), (sHP, 9), (sWAVE, 7), (sHG, 5)):
        A(f"s_lshl_b32 {sr(sT1)}, {sr(reg)}, {sh}"); A(f"s_add_u32 {sr(sOO)}, {sr(sOO)}, {sr(sT1)}")


def gemm(A, o, kind, vm0, fill):
    Q = kind == "Q"
    xk, wk = ("X", "W") if Q else ("O", "G")
    A.lazy = o.lazy

    def wr(j, s):
        L = []
        for ct in range(4):
            f = gW + 16 * s + 4 * ct
            for e in range(2):
                reg, off = (vTB + 4 + ct, 0) if j % 3 == 2 else (vTB + ct, (j % 3) * WSL)
                L.append(("ds", f"ds_read_b64_tr_b16 {vr(f+2*e,2)}, {vr(reg)} offset:{off + 4096*s + (512 if Q else 2048)*e}", f"w{s}{ct}"))
        return L

    def xr(j, s, rt):
        slot = 3 if (j == 3 and not Q) else j % 3
        return ("ds", f"ds_read_b128 {vr(gX+28*s+4*rt,4)}, {vr(vXB+s)} offset:{slot*XSL + 2048*rt}", f"x{s}{rt}")

    def carry(j):
        return wr(j, 0) + [xr(j, 0, rt) for rt in range(3)]

    W = lambda j: dma_w(o, wk, j)
    X = lambda j: dma_x(o, xk, j)

    def step(j, late, early, vm, hook=None):
        mf, after = [], {}
        for k_, v_ in (hook or {}).items():
            put(after, k_, v_)
        for s in range(2):
            tiles = [(rt, ct) for rt in range(7) for ct in range(4)]
            if j == 15 and s == 1 and not Q:
                tiles = [(rt, ct) for ct in (1, 2, 3, 0) for rt in range(7)]
            for rt, ct in tiles:
                a = gACC + 28 * ct + 4 * rt
                mf.append((mfma(a, gW + 16 * s + 4 * ct, gX + 28 * s + 4 * rt, "0" if (j == 0 and s == 0) else a),
                           [f"w{s}{ct}", f"x{s}{rt}"]))
        r = [xr(j, 0, rt) for rt in range(3, 7)] + wr(j, 1) + [xr(j, 1, rt) for rt in range(7)]
        spread(after, [(x, 1) for x in r], 2, 26 if j == 15 else 30)
        if late:
            spread(after, [(g, 1) for g in late], 0, 38)
        if j < 15:
            if j == 1 and not Q:
                put(after, 40, [("call", lambda: team_wait(A))])
            put(after, 40, [("bar", vm)])
            if j == 0 and not Q:
                put(after, 40, [("call", lambda: team_signal(A))])
            spread(after, [(x, 1) for x in carry(j + 1)], 40, 53)
            if early:
                spread(after, [(g, 1) for g in early], 41, 56)
        A.run(mf, after)

    E = 3
    A.emit(("bar", vm0))
    stamp(A, 6, o.stamps and (o.qst == Q))
    for it in carry(0): A.emit(it)
    if Q:
        pre = W(1) + X(1) + W(2)
        n0 = max(16, o.wpre)
        step(0, pre[o.wpre:n0], pre[n0:] + X(2)[:2], n0 - 12, None if o.early_setup else {39: [("call", lambda: late_setup(A, o))]})
        step(1, X(2)[2:] + W(3) + X(3), W(4)[:E], 12)
    else:
        wl = sum((W(int(c)) for c in o.wplan.split(",")[2]), [])
        if len(wl) == 16:
            step(0, wl, W(3)[:E], 8)
        else:
            step(0, wl, W(3)[:E], len(wl))
        step(1, W(3)[E:], W(4)[:E], 8)
    steady = lambda j: step(j, W(j + 2)[E:] + X(j + 2), W(j + 3)[:E], 12)
    diag = o.steps == kind
    stamp(A, 1, diag)
    steady(2)
    stamp(A, 2, diag)
    steady(3)
    stamp(A, 3, diag)
    if diag:
        for j in range(4, 13):
            steady(j)
            if j in (5, 8): stamp(A, {5: 4, 8: 5}[j], True)
    else:
        A(f"s_mov_b32 {sr(sCNT)}, 3")
        q0 = list(A.q)
        l = A.newlab("L_gl")
        A.lab(l)
        for j in (4, 5, 6):
            steady(j)
        assert A.q == q0
        A(f"s_sub_u32 {sr(sCNT)}, {sr(sCNT)}, 1"); A(f"s_cmp_lg_u32 {sr(sCNT)}, 0"); A(f"s_cbranch_scc1 {l}")
    g = lambda k: fill.get(k, [])
    step(13, W(15)[E:] + X(15), g("13e"), 12)
    step(14, g("14l"), g("14e"), len(g("13e")) + len(g("14l")))
    step(15, g("15l"), [], 0, fill.get("hook"))
    A.lazy = 0
    stamp(A, 7, o.stamps and (o.qst == Q))
    if diag:
        A("s_waitcnt vmcnt(0)"); write_stamps(A); A("s_endpgm")


def q_finish(A, o):
    q, g, t0, t1 = vT, vT + 1, vT + 2, vT + 3
    ta = gX + 16
    A(f"v_mov_b32 {vr(t0)}, 0")
    A(f"global_load_dwordx2 {vr(vTAG,2)}, {vr(t0)}, {sr(sDBG,2)} sc1")
    A(f"v_and_b32 {vr(q)}, 15, {vr(vLANE)}")
    A(f"v_lshrrev_b32 {vr(g)}, 4, {vr(vLANE)}")
    A(f"v_lshrrev_b32 {vr(t0)}, 1, {vr(g)}")
    A(f"s_lshl_b32 {sr(sT0)}, {sr(sC2)}, 3")
    A(f"v_xor_b32 {vr(t0)}, {sr(sT0)}, {vr(t0)}")
    A(f"v_xor_b32 {vr(t0)}, {vr(t0)}, {vr(q)}")
    A(f"v_lshlrev_b32 {vr(t0)}, 4, {vr(t0)}")
    A(f"v_and_b32 {vr(t1)}, 1, {vr(g)}")
    A(f"v_lshl_add_u32 {vr(t0)}, {vr(t1)}, 3, {vr(t0)}")
    A(f"s_mul_i32 {sr(sT0)}, {sr(sU)}, {QIMG1}")
    A(f"v_lshl_add_u32 {vr(t1)}, {vr(q)}, 8, {sr(sT0)}")
    A(f"v_add_u32 {vr(vT+4)}, {vr(t0)}, {vr(t1)}")
    for ct in range(1, 4):
        A(f"v_xor_b32 {vr(vT+4+ct)}, {32*ct}, {vr(vT+4)}")
    A(f"v_xor_b32 {vr(t0)}, {vr(g)}, {vr(q)}")
    A(f"v_lshlrev_b32 {vr(t0)}, 4, {vr(t0)}")
    A(f"s_lshl_b32 {sr(sT0)}, {sr(sC2)}, 14")
    A(f"v_add3_u32 {vr(t1)}, {vr(t1)}, {vr(t0)}, {sr(sT0)}")
    first = True
    for rt in range(7):
        for ct in range(4):
            a = gACC + 28 * ct + 4 * rt
            A(f"v_pk_mul_f32 {vr(a,2)}, {vr(a,2)}, {vr(vSC,2)}")
            A(f"v_pk_mul_f32 {vr(a+2,2)}, {vr(a+2,2)}, {vr(vSC,2)}")
            A(f"v_cvt_pk_bf16_f32 {vr(a)}, {vr(a)}, {vr(a+1)}")
            A(f"v_cvt_pk_bf16_f32 {vr(a+1)}, {vr(a+2)}, {vr(a+3)}")
            if first:
                A("s_barrier")
                first = False
            A(f"ds_write_b64 {vr(vT+4+ct)}, {vr(a,2)} offset:{4096*rt}")
        if rt in (2, 5):
            A("s_waitcnt lgkmcnt(2)")
    for s in range(4):
        A(f"v_xor_b32 {vr(ta+s)}, {64*s}, {vr(t1)}")
    A.emit(("bar", 17))
    for x in kreads(aslot(0)): A(x[1])
    for qt in range(4):
        for s in range(4):
            A(f"ds_read_b128 {vr(aQ+16*qt+4*s,4)}, {vr(ta+s)} offset:{4096*qt}")
            if (qt, s) in ((1, 1), (3, 1)):
                A("s_waitcnt lgkmcnt(4)")
    for i in range(18):
        A(f"v_accvgpr_read_b32 {vr(vDX+i)}, {vr(aG+i)}")
    A(f"s_lshl_b32 {sr(sT0)}, {sr(sHG)}, 21"); A(f"s_lshl_b32 {sr(sT1)}, {sr(sHP)}, 9"); A(f"s_add_u32 {sr(sT0)}, {sr(sT0)}, {sr(sT1)}")
    srd(A, S_W, sWOP, sr(sT0), "0")
    A(f"s_sub_u32 {sr(S_W+2)}, 0x800000, {sr(sT0)}")
    A(f"s_lshl_b32 {sr(sWO_)}, {sr(sHP)}, 19")
    A(f"s_mov_b64 {sr(sSW,2)}, {sr(sGS,2)}")
    A(f"s_lshr_b64 {sr(sSX,2)}, {sr(sGS,2)}, 12")
    for x in next_chunk(sSX, sXO, 11): A(x)
    A(f"v_lshrrev_b32 {vr(vSC)}, 2, {vr(vLANE)}"); A(f"v_lshlrev_b32 {vr(vSC)}, 11, {vr(vSC)}")
    A(f"v_and_b32 {vr(vSC+1)}, 3, {vr(vLANE)}"); A(f"v_lshl_add_u32 {vr(vSC)}, {vr(vSC+1)}, 7, {vr(vSC)}")
    if o.whead:
        A(f"v_lshlrev_b32 {vr(vSC+1)}, 25, {vr(vLANE)}"); A(f"v_and_b32 {vr(vSC+1)}, {OOB}, {vr(vSC+1)}"); A(f"v_or_b32 {vr(vSC)}, {vr(vSC)}, {vr(vSC+1)}")
        A(f"s_lshl_b32 {sr(sTO)}, {sr(sB)}, 16"); A(f"s_lshl_b32 {sr(sT0)}, {sr(sWAVE)}, 14"); A(f"s_add_u32 {sr(sTO)}, {sr(sTO)}, {sr(sT0)}")
        A(f"s_add_u32 {sr(sTO)}, {sr(sTO)}, {sr(sWO_)}")
    else:
        A(f"s_lshl_b32 {sr(sTO)}, {sr(sB)}, 18"); A(f"s_lshl_b32 {sr(sT0)}, {sr(sWAVE)}, 15"); A(f"s_add_u32 {sr(sTO)}, {sr(sTO)}, {sr(sT0)}")
    A.emit(("bar", 63))
    A.groups(dma_half(o, "V", 2))
    A(f"s_add_u32 {sr(sKO)}, {sr(sC2)}, 3"); A(f"s_lshl_b32 {sr(sKO)}, {sr(sKO)}, 13"); A(f"s_mov_b32 {sr(sVO)}, {sr(sKO)}")


def kreads(slot):
    L = []
    for s in range(4):
        for kt in range(2):
            L.append(("ds", f"ds_read_b128 {vr(vKF+16*kt+4*s,4)}, {vr(vKA+4*(slot>>1)+s)} offset:{(slot&1)*ASL+4096*kt}", f"k{kt}{s}"))
    return L


def new_max(S, NT, clamp):
    L = []
    for qt in range(NT):
        mx, o2 = vT, vT + 1
        a, b = S + 4 * qt, S + 16 + 4 * qt
        L += [f"v_max3_f32 {vr(mx)}, {vr(a)}, {vr(a+1)}, {vr(a+2)}", f"v_max3_f32 {vr(mx)}, {vr(mx)}, {vr(a+3)}, {vr(b)}",
              f"v_max3_f32 {vr(mx)}, {vr(mx)}, {vr(b+1)}, {vr(b+2)}", f"v_max_f32 {vr(mx)}, {vr(mx)}, {vr(b+3)}"]
        for sw in ("16", "32"):
            L += [f"v_mov_b32 {vr(o2)}, {vr(mx)}", "s_nop 1", f"v_permlane{sw}_swap_b32 {vr(mx)}, {vr(o2)}", "s_nop 1",
                  f"v_max_f32 {vr(mx)}, {vr(mx)}, {vr(o2)}"]
        if clamp:
            L += [f"v_max_f32 {vr(mx)}, 0, {vr(mx)}", f"v_exp_f32 {vr(vFAC+qt)}, -{vr(mx)}"]
        L += [f"v_sub_f32 {vr(x+i)}, {vr(x+i)}, {vr(mx)}" for x in (a, b, vNM + 4 * qt) for i in range(4)]
        if clamp:
            L += [f"v_mul_f32 {vr(vLS+2*qt+i)}, {vr(vLS+2*qt+i)}, {vr(vFAC+qt)}" for i in range(2)]
    return L


def attention(A, o, NT, tail):
    NQ = 8 * NT
    NE = 2 * NT
    c2 = 4 - NT
    sreg = lambda S, i: S + 16 * ((i >> 2) & 1) + 4 * (i >> 3) + (i & 3)

    def vreads(slot):
        return [("ds", f"ds_read_b64_tr_b16 {vr(vVF+4*dt+2*e,2)}, {vr(vVA+8*(slot>>1)+dt)} offset:{(slot&1)*ASL+4096*e}", f"v{dt}")
                for dt in range(8) for e in range(2)]

    def part2(Sp, qt):
        st = []
        for i in range(8 * qt, 8 * qt + 8):
            if i + NE < NQ:
                r = sreg(Sp, i + NE)
                st.append((f"v_exp_f32 {vr(r)}, {vr(r)}", 8))
            if i & 1:
                r = sreg(Sp, i - 1)
                st.append((f"v_pk_add_f32 {vr(vLS+2*qt,2)}, {vr(vLS+2*qt,2)}, {vr(r,2)}", 4.5))
                st.append((f"v_cvt_pk_bf16_f32 {vr(vP+4*qt+((i&7)>>1))}, {vr(r)}, {vr(r+1)}", 4.5))
        return st

    def pend_check():
        l2, b2 = A.newlab("L_r2"), A.newlab("L_b2")
        tail.append(("r2", l2, b2, NT))
        return [f"s_cmp_lg_u32 {sr(sPEND)}, 0", f"s_cbranch_scc1 {l2}", ("lab", b2)]

    def group(t):
        return dma_tile(o, "V" if t & 1 else "K", aslot(t + 3 + c2))

    def it(u, late, early, vmb, first=False, knext=True):
        p = u & 1
        S, Sp = vS + 32 * p, vS + 32 * (1 - p)
        mf, after = [], {}
        allk = [f"k{kt}{s}" for kt in range(2) for s in range(4)]
        for s in range(4):
            for kt in range(2):
                for qt in range(NT):
                    d = S + 16 * kt + 4 * qt
                    mf.append((mfma(d, vKF + 16 * kt + 4 * s, aQ + 16 * qt + 4 * s, vNM + 4 * qt if s == 0 else d), allk))
        mx = vT
        order = [sreg(S, i) for i in range(NQ)]
        order.sort(key=lambda r: ((r - S) >> 4, (r - S) & 15))
        m1 = [f"v_max3_f32 {vr(mx)}, {vr(order[0])}, {vr(order[1])}, {vr(order[2])}"]
        m1 += [f"v_max3_f32 {vr(mx)}, {vr(mx)}, {vr(order[i])}, {vr(order[i+1])}" for i in range(3, NQ - 1, 2)]
        m1 += [f"v_max_f32 {vr(mx)}, {vr(mx)}, {vr(order[NQ-1])}"]
        E1 = [f"v_exp_f32 {vr(sreg(S,i))}, {vr(sreg(S,i))}" for i in range(NE)]
        kr = kreads(aslot(u + 1))
        if first:
            put(after, NQ - 1, [("bar", vmb)] + kr + sum(early, [])
                + [f"v_readfirstlane_b32 {sr(sNON)}, {vr(vTAG)}", f"v_readfirstlane_b32 {sr(sNON+1)}, {vr(vTAG+1)}"]
                + new_max(S, NT, False) + E1)
            A.run(mf, after)
            return
        for qt in range(NT):
            for dt in range(8):
                mf.append((mfma(aO + 16 * dt + 4 * qt, vVF + 4 * dt, vP + 4 * qt, aO + 16 * dt + 4 * qt), [f"v{dt}"]))
        spread(after, [(x, 1) for x in vreads(aslot(u))], 0, NQ - 2)
        if late:
            spread(after, [(g, 1) for g in late], 0, NQ + 2)
        put(after, 4, pend_check())
        st, due = [], {}
        for qt in range(NT):
            st += part2(Sp, qt)
            due[qt] = len(st) - 1
        i_m1 = len(st)
        l1, b1 = A.newlab("L_r1"), A.newlab("L_b1")
        tail.append(("r1", l1, b1, S, NT))
        st += [(x, 4.5) for x in m1]
        st.append(([f"v_cmp_lt_f32 vcc, {sr(sTHR)}, {vr(mx)}", f"s_cbranch_vccnz {l1}", ("lab", b1)], 9))
        st += [(x, 8) for x in E1]
        pos = spread(after, st, 0, 2 * NQ)
        for qt in range(NT):
            assert pos[due[qt]] < NQ + 8 * qt - 2, (qt, pos[due[qt]])
        assert pos[i_m1] >= NQ + 4, pos[i_m1]
        put(after, NQ + 2, [("bar", vmb)])
        if knext:
            spread(after, [(x, 1) for x in kr], NQ + 3, 2 * NQ - 6)
        if early:
            spread(after, [(g, 1) for g in early], NQ + 3, 2 * NQ)
        A.run(mf, after)

    A.q = []
    it(0, [], group(0)[:4], 4, first=True)
    q0 = list(A.q)
    A(f"s_mov_b32 {sr(sCNT)}, 7")
    A.lab(f"L_aloop_{NT}")
    def touch(trip):
        return [[f"s_cmp_eq_u32 {sr(sCNT)}, {trip}", f"s_cselect_b32 {sr(sT1)}, {sr(sTO)}, {OOB}", f"s_cselect_b32 {sr(sT2)}, 0x20000, 0",
                 f"buffer_load_dword {vr(aTCH)}, {vr(vSC)}, {sr(S_W,4)}, {sr(sT1)} offen", f"s_add_u32 {sr(sTO)}, {sr(sTO)}, {sr(sT2)}"]]
    tp = dict((int(x[0]), int(x[1])) for x in o.wtouch.split(",")) if o.wtouch else {}
    for u in (1, 2, 3, 0):
        it(u, group(u - 1)[4:], (touch(tp[u]) if u in tp else []) + group(u)[:4], 8)
    assert A.q == q0
    A(f"s_sub_u32 {sr(sCNT)}, {sr(sCNT)}, 1"); A(f"s_cmp_lg_u32 {sr(sCNT)}, 0"); A(f"s_cbranch_scc1 L_aloop_{NT}")
    last = group(29) if c2 == 0 else [[]] * 8
    it(1, group(28)[4:], [g for g in last[:4] if g], 8)
    w30, w31 = [[dma_w(o, "G", int(c)) for c in x] for x in o.wplan.split(",")[:2]]
    it(2, [g for g in last[4:] if g], sum(w30, []), 8 if c2 == 0 else 0)
    it(3, [], sum(w31, []), 8 * len(w30), knext=False)
    stamp(A, 2, o.stamps)
    Sp = vS + 32
    for x in vreads(aslot(32)): A.emit(x)
    for x in pend_check(): A.emit(x)

    def lred(qt):
        a, b = vLS + 2 * qt, vLS + 2 * qt + 1
        L = [f"v_add_f32 {vr(a)}, {vr(a)}, {vr(b)}"]
        for sw in ("16", "32"):
            L += [f"v_mov_b32 {vr(b)}, {vr(a)}", "s_nop 1", f"v_permlane{sw}_swap_b32 {vr(a)}, {vr(b)}", "s_nop 1", f"v_add_f32 {vr(a)}, {vr(a)}, {vr(b)}"]
        return L + [f"v_rcp_f32 {vr(a)}, {vr(a)}", "s_nop 0", f"v_mov_b32 {vr(b)}, {vr(a)}"]

    def outq(qt):
        L = []
        for m in range(4):
            t = vS + 8 * m
            d = vKF + 4 * ((4 * qt + m) % 8)
            L += [f"v_accvgpr_read_b32 {vr(t+i)}, {vr(aO + 16*(2*m + (i>>2)) + 4*qt + (i&3))}" for i in range(8)]
            L += [f"v_pk_mul_f32 {vr(t+2*i,2)}, {vr(t+2*i,2)}, {vr(vLS+2*qt,2)}" for i in range(4)]
            L += [f"v_cvt_pk_bf16_f32 {vr(d+i)}, {vr(t+2*i)}, {vr(t+2*i+1)}" for i in range(4)]
            L.append(f"ds_write_b128 {vr(vOW)}, {vr(d,4)} offset:{(m>>1)*XSL + qt*2048 + (m&1)*1024}")
            L.append(f"buffer_store_dwordx4 {vr(d,4)}, {vr(vL16)}, {sr(S_WS,4)}, {sr(sOST)} offen offset:{m*1024} sc1")
        L.append(f"s_add_u32 {sr(sOST)}, {sr(sOST)}, 0x20000")
        return L

    for x, _ in part2(Sp, 0): A(x)
    mf, after = [], {}
    for qt in range(NT):
        for dt in range(8):
            mf.append((mfma(aO + 16 * dt + 4 * qt, vVF + 4 * dt, vP + 4 * qt, aO + 16 * dt + 4 * qt), [f"v{dt}"]))
        st = [(x, 1) for x in lred(qt)]
        if qt + 1 < NT:
            st = [(x, 1) for x, _ in part2(Sp, qt + 1)] + st
        spread(after, st, 8 * qt, 8 * qt + 7)
        put(after, 8 * qt + 7, ["s_nop 1"])
    put(after, 7, ["s_barrier"])
    A("s_nop 1")
    A.run(mf, after)
    A("s_nop 3")
    for qt in range(NT):
        for x in outq(qt): A(x)
    A(f"s_waitcnt vmcnt({4*NT})")


def rare_blocks(A, tail):
    r2, r1 = {}, {}
    for t in tail:
        if t[0] == "r1":
            _, l1, b1, S, NT = t
            k = len(r1.setdefault((NT, S), []))
            r1[(NT, S)].append(b1)
            A.lab(l1)
            A(f"s_mov_b32 {sr(sT0)}, {k}"); A(f"s_branch L_r1c_{NT}_{S}")
        else:
            _, l2, b2, NT = t
            k = len(r2.setdefault(NT, []))
            r2[NT].append(b2)
            A.lab(l2)
            A(f"s_mov_b32 {sr(sPEND)}, {k}"); A(f"s_branch L_r2c_{NT}")
    for (NT, S), backs in r1.items():
        A.lab(f"L_r1c_{NT}_{S}")
        for x in new_max(S, NT, True): A(x)
        A(f"s_mov_b32 {sr(sPEND)}, 1")
        for k, b in enumerate(backs[:-1]):
            A(f"s_cmp_eq_u32 {sr(sT0)}, {k}"); A(f"s_cbranch_scc1 {b}")
        A(f"s_branch {backs[-1]}")
    for NT, backs in r2.items():
        A.lab(f"L_r2c_{NT}")
        A("s_nop 7")
        for dt in range(8):
            for qt in range(NT):
                for i in range(4):
                    A(f"v_accvgpr_read_b32 {vr(vT+i)}, {vr(aO+16*dt+4*qt+i)}")
                for i in range(4):
                    A(f"v_mul_f32 {vr(vT+i)}, {vr(vT+i)}, {vr(vFAC+qt)}")
                for i in range(4):
                    A(f"v_accvgpr_write_b32 {vr(aO+16*dt+4*qt+i)}, {vr(vT+i)}")
        A(f"s_mov_b32 {sr(sT0)}, {sr(sPEND)}"); A(f"s_mov_b32 {sr(sPEND)}, 0")
        for k, b in enumerate(backs[:-1]):
            A(f"s_cmp_eq_u32 {sr(sT0)}, {k}"); A(f"s_cbranch_scc1 {b}")
        A(f"s_branch {backs[-1]}")


def x_send(k):
    t = gT + 16 * (k - 1)
    L = [f"v_cvt_pk_bf16_f32 {vr(t+i)}, {vr(gACC+28*k+2*i)}, {vr(gACC+28*k+2*i+1)}" for i in range(14)]
    for j in (2, 1, 0):
        L.insert(4 * j + 4, f"buffer_store_dwordx4 {vr(t+4*j,4)}, {vr(vL16)}, {sr(S_WS,4)}, {sr(sXS+k-1)} offen offset:{j*1024} sc1")
    L.append(f"buffer_store_dwordx2 {vr(t+12,2)}, {vr(vL16)}, {sr(S_WS,4)}, {sr(sXS+k-1)} offen offset:3072 sc1")
    return L


def x_hook():
    hook = {}
    for k in (1, 2):
        spread(hook, [(x, 1) for x in x_send(k)], 28 + 7 * k + 3, 28 + 7 * k + 10)
    return hook


def exchange(A, o):
    for x in x_send(3): A(x)
    stamp(A, 1, o.xst)
    A("s_mov_b64 exec, 15")
    A(f"v_lshlrev_b32 {vr(vT+5)}, 3, {vr(vLANE)}")
    A(f"v_add_u32 {vr(vT+5)}, {sr(sXF)}, {vr(vT+5)}")
    A(f"s_lshl_b32 {sr(sT1)}, {sr(sHG)}, 3"); A(f"s_add_u32 {sr(sT1)}, {sr(sT1)}, {sr(sXF)}")
    A(f"s_lshl_b32 {sr(sT3)}, 1, {sr(sHG)}")
    A(f"global_load_dwordx2 {vr(vT+6,2)}, {vr(vT+5)}, {sr(sWS,2)} sc1")
    A("s_waitcnt vmcnt(0)")
    stamp(A, 2, o.xst)
    raise_flag(A, sT1)
    A("s_mov_b64 exec, 15")
    poll4(A, sT3, True)
    A("s_mov_b64 exec, -1")
    stamp(A, 3, o.xst)
    for k in range(1, 4):
        for j in range(4):
            A(f"buffer_load_dwordx4 {vr(gX+16*(k-1)+4*j,4)}, {vr(vL16)}, {sr(S_WS,4)}, {sr(sXL[k-1])} offen offset:{j*1024} sc1")
    t1, t2 = vT, vT + 1
    A(f"v_and_b32 {vr(t1)}, 15, {vr(vLANE)}"); A(f"v_lshlrev_b32 {vr(t1)}, 12, {vr(t1)}")
    A(f"v_lshrrev_b32 {vr(t2)}, 4, {vr(vLANE)}"); A(f"v_lshl_add_u32 {vr(t1)}, {vr(t2)}, 3, {vr(t1)}")
    R = gACC
    for k in range(1, 4):
        A(f"s_waitcnt vmcnt({12 - 4*k})")
        if k == 3: stamp(A, 4, o.xst)
        for i in range(14):
            p, t = gX + 16 * (k - 1) + i, gACC + 28 + 2 * (i % 4)
            A(f"v_lshlrev_b32 {vr(t)}, 16, {vr(p)}"); A(f"v_and_b32 {vr(t+1)}, 0xffff0000, {vr(p)}")
            A(f"v_pk_add_f32 {vr(R+2*i,2)}, {vr(R+2*i,2)}, {vr(t,2)}")
            if k == 3 and i & 1:
                rt = i >> 1
                A(f"v_cvt_pk_bf16_f32 {vr(gT+2*rt)}, {vr(R+4*rt)}, {vr(R+4*rt+1)}")
                A(f"v_cvt_pk_bf16_f32 {vr(gT+2*rt+1)}, {vr(R+4*rt+2)}, {vr(R+4*rt+3)}")
                A(f"buffer_store_dwordx2 {vr(gT+2*rt,2)}, {vr(t1)}, {sr(S_OUT,4)}, {sr(sOO)} offen sc1")
                A(f"s_add_u32 {sr(sOO)}, {sr(sOO)}, {16*4096}")


def build(o):
    A = Asm()
    st = o.stamps
    for l in HEADER.splitlines(): A(l)
    A(f"; @launch grid=(256,1,1) block=(256,1,1) lds={LDS}")
    A('.amdgcn_target "amdgcn-amd-amdhsa--gfx950"'); A(".text")
    A(f".globl {KN}"); A(".p2align 8"); A(f".type {KN},@function"); A.lab(KN)
    A(f"s_cmp_ge_u32 s2, 256"); A("s_cbranch_scc1 L_exit")
    tail = []
    stamp(A, 0, st)
    prologue(A, o)
    if o.early_setup:
        late_setup(A, o)
    H = lambda s_: sum((dma_half(o, x[0], int(x[1])) for x in s_.split("+") if x), [])
    kvp = o.kvplan.split(",")
    gemm(A, o, "Q", o.wpre, {"13e": H(kvp[0]), "14l": H(kvp[1]), "14e": H(kvp[2]), "15l": H(kvp[3])})
    A.groups(H(kvp[4]))
    q_finish(A, o)
    stamp(A, 1, st)
    A(f"s_cmp_lg_u32 {sr(sC2)}, 0"); A(f"s_cbranch_scc1 L_att3")
    attention(A, o, 4, tail)
    A("s_branch L_attdone")
    A.lab("L_att3")
    attention(A, o, 3, tail)
    A.lab("L_attdone")
    stamp(A, 3, st)
    A.q = []
    gemm(A, o, "G", 63, {"hook": x_hook()})
    exchange(A, o)
    if o.xst:
        stamp(A, 6, True); A("s_waitcnt vmcnt(0)")
    stamp(A, 5, st)
    if st:
        write_stamps(A)
    A.lab("L_exit")
    A("s_endpgm")
    rare_blocks(A, tail)
    A('.section .rodata,"a"')
    A(".p2align 6")
    A(f".amdhsa_kernel {KN}")
    A("  .amdhsa_next_free_vgpr 504"); A("  .amdhsa_next_free_sgpr 102"); A("  .amdhsa_accum_offset 256")
    A("  .amdhsa_group_segment_fixed_size 0"); A("  .amdhsa_kernarg_size 104"); A("  .amdhsa_user_sgpr_count 2")
    A("  .amdhsa_user_sgpr_kernarg_segment_ptr 1"); A("  .amdhsa_system_sgpr_workgroup_id_x 1")
    A(".end_amdhsa_kernel")
    return A.text()


if __name__ == "__main__":
    ap = argparse.ArgumentParser()
    ap.add_argument("-o", default="concat_heads__mha_block_cached__gqa_block_cached__near_ridge.s")
    ap.add_argument("--stamps", action="store_true")
    ap.add_argument("--qst", action="store_true")
    ap.add_argument("--xst", action="store_true")
    ap.add_argument("--steps", default="")
    ap.add_argument("--nt", default="KV")
    ap.add_argument("--win", type=int, default=5)
    ap.add_argument("--lazy", type=int, default=5)
    ap.add_argument("--nokv", action="store_true")
    ap.add_argument("--common", type=int, default=1)
    ap.add_argument("--qodd", default="159d3742bf8c06ae")
    ap.add_argument("--gseq", type=int, default=0)
    ap.add_argument("--pst", default="")
    ap.add_argument("--qseq", default="159d236ae47bf8c0")
    ap.add_argument("--wplan", default="0,1,2")
    ap.add_argument("--opad", type=int, default=0)
    ap.add_argument("--xpad", type=int, default=0)
    ap.add_argument("--wpre", type=int, default=6)
    ap.add_argument("--early_setup", type=int, default=1)
    ap.add_argument("--kvplan", default="K0+K1,V0,K2,V1,")
    ap.add_argument("--wtouch", default="")
    ap.add_argument("--whead", type=int, default=0)
    a = ap.parse_args()
    open(a.o, "w").write(build(a))
```

```python
import argparse, struct, math

KN = "concat_heads__mha_block_cached__gqa_block_cached__near_ridge_kernel"
WS_BYTES = 305659904
O_BYTES = 16 * 8 * 128 * 1024
X_OFF = O_BYTES
X_BYTES = 64 * 4 * 4 * 16384
F_RDY = X_OFF + X_BYTES
F_XCH = F_RDY + 64 * 128
WSL, XSL, XB = 32768, 16384, 98304
ASL = 32768
QIMG1 = 98304
LDS = 163840
f32 = lambda x: struct.unpack("<I", struct.pack("<f", x))[0]
C_SCALE = f32(math.log2(math.e) / math.sqrt(128.0))
THR = f32(8.0)
OOB = 0x40000000

HEADER = """\
; One launch, 256 workgroups of 4 waves, one per CU.  Workgroup = (branch, batch, two adjacent heads).
; -> output projection tile (112x256 over 8 heads) -> partial sums exchanged through ws between 4 workgroups -> out.
"""


class Asm:
    def __init__(self):
        self.L = []
        self.uid = 0
        self.q = []
        self.clock = 0
        self.born = {}
        self.lazy = 0

    def __call__(self, s):
        self.L.append(s)

    def lab(self, name):
        self.L.append(name + ":")

    def newlab(self, p="L"):
        self.uid += 1
        return f"{p}_{self.uid}"

    def need(self, tags):
        pos = max([i for i, t in enumerate(self.q) if t in tags], default=-1)
        if pos >= 0:
            while self.lazy and pos + 1 < len(self.q) and self.clock - self.born[self.q[pos + 1]] >= self.lazy:
                pos += 1
            self.L.append(f"s_waitcnt lgkmcnt({len(self.q) - pos - 1})")
            self.q = self.q[pos + 1:]

    def emit(self, it):
        if isinstance(it, str):
            self(it)
        elif it[0] == "ds":
            if len(self.q) >= 15:
                self.need([self.q[3]])
            self.L.append(it[1]); self.q.append(it[2]); self.born[it[2]] = self.clock
        elif it[0] == "bar":
            self(f"s_waitcnt vmcnt({it[1]}) lgkmcnt(0)"); self.q = []
            self("s_barrier")
        elif it[0] == "lab":
            self.lab(it[1])
        elif it[0] == "call":
            it[1]()

    def groups(self, gs):
        for g in gs:
            for s in g: self(s)

    def run(self, mf, after):
        for m, (txt, tags) in enumerate(mf):
            self.need(tags)
            self(txt)
            self.clock += 1
            for it in after.get(m, []): self.emit(it)

    def text(self):
        return "\n".join(self.L) + "\n"


def vr(a, n=1):
    p, a = ("a", a - 256) if a >= 256 else ("v", a)
    return f"{p}{a}" if n == 1 else f"{p}[{a}:{a+n-1}]"


def sr(a, n=1):
    return f"s{a}" if n == 1 else f"s[{a}:{a+n-1}]"


def mfma(d, a, b, c):
    return f"v_mfma_f32_16x16x32_bf16 {vr(d,4)}, {vr(a,4)}, {vr(b,4)}, {c if c == '0' else vr(c,4)}"


def put(after, m, items):
    after.setdefault(m, []).extend(items)


def spread(after, items, lo, hi):
    tot = sum(c for _, c in items)
    acc, pos = 0.0, []
    for its, c in items:
        g = lo + int((acc + c / 2) / tot * (hi - lo))
        put(after, g, its if isinstance(its, list) else [its])
        pos.append(g); acc += c
    return pos


S_X, S_W, S_K, S_V, S_O, S_WS, S_OUT = 4, 8, 12, 16, 20, 24, 28
sWAVE, sBR, sB, sH0, sHG, sHP = 32, 33, 34, 35, 38, 39
sKA = 36
sDBG = 40
sWS = 42
sT0, sT1, sT2, sT3 = 44, 45, 46, 47
sXS = 48
sXF = 51
sW8, sW4, sAM = 52, 80, 81
sCNT = 53
sXO, sWO_ = 54, 55
sKO, sVO = 56, 57
sC, sTHR = 58, 59
sGS = 60
sWOP = 62
sST = 64
sPEND = 82
sSPIN = 83
sU, sC2 = 84, 85
sWB = 86
sROT = 87
sTO = 88
sOST = 89
sNON = 90
sFL = 92
sOO = 93
sPTR = 94
sSW, sSX = 96, 98
sXL = [3, 100, 101]

vLANE = 1
vT = 2
vDX = 10
vDW = 14
vXB = 18
vTB = 20
vDK = 28
vDV = 32
vSC = 34
vL16 = 36
vOW = 37
vTAG = 38
vFAC = 40
vP = 44
vS = 60
vKF = 124
vVF = 156
vKA = 208
vVA = 216
vNM = 232
vLS = 248
aO = 256
aQ = 384
aG = 480
aTCH = 498
gACC = 40
gX = 152
gW = 448
gT = 208


def stamp(A, i, on):
    if on:
        q = list(A.q)
        A(f"s_memrealtime {sr(sST + 2*i, 2)}")
        A(f"s_memtime {sr(sPTR, 2)}")
        A("s_waitcnt lgkmcnt(0)")
        A(f"s_mov_b32 {sr(sST + 2*i + 1)}, {sr(sPTR)}")
        A.q = q


def write_stamps(A):
    l = A.newlab("L_st")
    A(f"s_cmp_lg_u32 {sr(sWAVE)}, 0"); A(f"s_cbranch_scc1 {l}")
    A(f"s_mov_b32 {sr(sT0)}, {WS_BYTES - 512*64}")
    A(f"s_lshl_b32 {sr(sT1)}, s2, 6")
    A(f"s_add_u32 {sr(sT0)}, {sr(sT0)}, {sr(sT1)}")
    A(f"s_add_u32 {sr(sPTR)}, {sr(sWS)}, {sr(sT0)}")
    A(f"s_addc_u32 {sr(sPTR+1)}, {sr(sWS+1)}, 0")
    A(f"v_mov_b32 v2, 0")
    for i in range(16):
        A(f"v_mov_b32 v{4+i}, {sr(sST+i)}")
    A("s_mov_b64 exec, 1")
    for i in range(4):
        A(f"global_store_dwordx4 v2, v[{4+4*i}:{7+4*i}], {sr(sPTR,2)} offset:{16*i}")
    A.lab(l)


def srd(A, d, lo, add, nrec):
    if add is None:
        A(f"s_mov_b32 {sr(d)}, {sr(lo)}"); A(f"s_mov_b32 {sr(d+1)}, {sr(lo+1)}")
    else:
        A(f"s_add_u32 {sr(d)}, {sr(lo)}, {add}"); A(f"s_addc_u32 {sr(d+1)}, {sr(lo+1)}, 0")
    A(f"s_mov_b32 {sr(d+2)}, {nrec}")
    A(f"s_mov_b32 {sr(d+3)}, 0x20000")


def raise_flag(A, sig_s):
    ls, lg = A.newlab("L_tag"), A.newlab("L_tagok")
    A("s_mov_b64 exec, 1")
    A(f"s_cmp_lg_u32 {sr(sNON+1)}, 0"); A(f"s_cbranch_scc1 {lg}")
    A(f"v_mov_b32 {vr(vT+4)}, 0")
    A(f"s_mov_b32 {sr(sSPIN)}, 0")
    A.lab(ls)
    A(f"global_load_dwordx2 {vr(vT+2,2)}, {vr(vT+4)}, {sr(sDBG,2)} sc1")
    A("s_waitcnt vmcnt(0)")
    A(f"v_readfirstlane_b32 {sr(sNON)}, {vr(vT+2)}")
    A(f"v_readfirstlane_b32 {sr(sNON+1)}, {vr(vT+3)}")
    A(f"s_add_u32 {sr(sSPIN)}, {sr(sSPIN)}, 1")
    A(f"s_cmp_lg_u32 {sr(sNON+1)}, 0"); A(f"s_cbranch_scc1 {lg}")
    A("s_sleep 4")
    A(f"s_cmp_lt_u32 {sr(sSPIN)}, 0x4000"); A(f"s_cbranch_scc1 {ls}")
    A.lab(lg)
    A(f"v_mov_b32 {vr(vT+4)}, {sr(sig_s)}"); A(f"v_mov_b32 {vr(vT+2)}, {sr(sNON)}"); A(f"v_mov_b32 {vr(vT+3)}, {sr(sNON+1)}")
    A(f"global_store_dwordx2 {vr(vT+4)}, {vr(vT+2,2)}, {sr(sWS,2)} sc1")
    A("s_mov_b64 exec, -1")


def poll4(A, own_s, first_done):
    ls, lg = A.newlab("L_spin"), A.newlab("L_go")
    ld = lambda r: f"global_load_dwordx2 {vr(r,2)}, {vr(vT+5)}, {sr(sWS,2)} sc1"

    def check(r):
        A(f"v_cmp_eq_u64 vcc, {sr(sNON,2)}, {vr(r,2)}")
        A(f"s_add_u32 {sr(sSPIN)}, {sr(sSPIN)}, 1")
        A(f"s_or_b32 {sr(sT2)}, vcc_lo, {sr(own_s)}")
        A(f"s_cmp_eq_u32 {sr(sT2)}, 15")
        A(f"s_cbranch_scc1 {lg}")
    A(f"s_mov_b32 {sr(sSPIN)}, 0")
    if first_done:
        check(vT + 6)
    A(ld(vT + 6))
    A("s_sleep 4")
    A.lab(ls)
    A(ld(vT + 2)); A("s_waitcnt vmcnt(1)"); check(vT + 6)
    A(ld(vT + 6)); A("s_waitcnt vmcnt(1)"); check(vT + 2)
    A(f"s_cmp_lt_u32 {sr(sSPIN)}, 0x8000"); A(f"s_cbranch_scc1 {ls}")
    A.lab(lg)


def team_signal(A):
    l = A.newlab("L_sig")
    A(f"s_cmp_lg_u32 {sr(sWAVE)}, 0"); A(f"s_cbranch_scc1 {l}")
    A(f"s_lshl_b32 {sr(sT1)}, {sr(sHP)}, 3"); A(f"s_add_u32 {sr(sT1)}, {sr(sT1)}, {sr(sFL)}")
    A(f"v_lshlrev_b32 {vr(vT+5)}, 3, {vr(vLANE)}")
    A(f"v_add_u32 {vr(vT+5)}, {sr(sFL)}, {vr(vT+5)}")
    raise_flag(A, sT1)
    A.lab(l)


def team_wait(A):
    le = A.newlab("L_wend")
    A(f"s_cmp_lg_u32 {sr(sWAVE)}, 0"); A(f"s_cbranch_scc1 {le}")
    A("s_mov_b64 exec, 15")
    A(f"s_lshl_b32 {sr(sT3)}, 1, {sr(sHP)}")
    poll4(A, sT3, False)
    A("s_mov_b64 exec, -1")
    A.lab(le)


def next_chunk(seq, off, sh):
    return [f"s_lshr_b64 {sr(seq,2)}, {sr(seq,2)}, 4", f"s_and_b32 {sr(off)}, {sr(seq)}, 15", f"s_lshl_b32 {sr(off)}, {sr(off)}, {sh}"]


def seq_words(seq):
    v = sum(c << (4 * i) for i, c in enumerate(seq))
    return v & 0xffffffff, v >> 32


def seq_add(A, seq, add_s):
    A(f"s_mul_i32 {sr(sT0)}, {sr(add_s)}, 0x11111111")
    A(f"s_and_b32 {sr(sT1)}, {sr(sT0)}, 0x77777777")
    for w in (seq, seq + 1):
        A(f"s_xor_b32 {sr(sT2)}, {sr(w)}, {sr(sT0)}"); A(f"s_and_b32 {sr(sT2)}, {sr(sT2)}, 0x88888888")
        A(f"s_and_b32 {sr(w)}, {sr(w)}, 0x77777777"); A(f"s_add_u32 {sr(w)}, {sr(w)}, {sr(sT1)}"); A(f"s_xor_b32 {sr(w)}, {sr(w)}, {sr(sT2)}")


QSEQ = [0, 1, 4, 5, 2, 8, 9, 3, 12, 13, 6, 10, 14, 7, 11, 15]
GSEQ = [[0, 1, 2, 3] + [4 + ((3 * b >> 1) + i) % 12 for i in range(12)] for b in range(8)]


def dma_w(o, kind, j):
    fl = " nt" if kind in o.nt else ""
    sh = 13 if kind == "W" else 11
    g = [[f"buffer_load_dwordx4 {vr(vDW+(t&3))}, {sr(S_W,4)}, {sr(sWO_ if t < 4 else sWB)} offen offset:{(t&3)*1024}{fl} lds"] for t in range(8)]
    g[0] = [f"s_add_u32 m0, {sr(sW8)}, {(j%3)*WSL}", f"s_add_u32 {sr(sWB)}, {sr(sWO_)}, {32 << sh}"] + g[0]
    g[3] += next_chunk(sSW, sWO_, sh + 6)
    g[4] = [f"s_add_u32 m0, {sr(sW8)}, {(j%3)*WSL + 4096}", "s_nop 0"] + g[4]
    return g


def dma_x(o, kind, j):
    srd_, fl = (S_X, " nt" if "X" in o.nt else "") if kind == "X" else (S_O, " sc1")
    g = [[f"buffer_load_dwordx4 {vr(vDX+t)}, {sr(srd_,4)}, {sr(sXO)} offen offset:{t*1024}{fl} lds"] for t in range(4)]
    g[0] = [f"s_add_u32 m0, {sr(sW4)}, {XB + (j%3)*XSL}", "s_nop 0"] + g[0]
    g[3] += next_chunk(sSX, sXO, 7 if kind == "X" else 11)
    return g


aslot = lambda item: (3 + item) & 3


def dma_half(o, kv, tile):
    srd_, va, n, off, item = (S_K, vDK, 4, 16384, tile) if kv == "K" else (S_V, vDV, 2, 0, tile + 1)
    fl = " nt" if kv in o.nt else ""
    g = [[f"buffer_load_dwordx4 {vr(va+t%n)}, {sr(srd_,4)}, {sr(sKO)} offen offset:{t*1024}{fl} lds"] for t in range(4)]
    g[0] = [f"s_add_u32 m0, {sr(sW4)}, {ASL*(1+aslot(item)) + off}", f"s_lshl_b32 {sr(sKO)}, {sr(sC2)}, 12", f"s_add_u32 {sr(sKO)}, {sr(sKO)}, {tile*8192}"] + g[0]
    return g


def dma_tile(o, kv, slot):
    srd_, va, n, off, so = (S_K, vDK, 4, 16384, sKO) if kv == "K" else (S_V, vDV, 2, 0, sVO)
    fl = " nt" if kv in o.nt else ""
    w = [f"s_waitcnt vmcnt({o.win-1})"] if o.win else []
    g = [w + [f"buffer_load_dwordx4 {vr(va+t%n)}, {sr(srd_,4)}, {sr(so)} offen offset:{(t&3)*1024}{fl} lds"] for t in range(8)]
    g[0] = [f"s_add_u32 m0, {sr(sAM)}, {ASL*(1+slot) + off}", "s_nop 0"] + g[0]
    g[3] += [f"s_add_u32 {sr(so)}, {sr(so)}, 4096"]
    g[4] = [f"s_add_u32 m0, {sr(sAM)}, {ASL*(1+slot) + off + 4096}", "s_nop 0"] + g[4]
    g[7] += [f"s_add_u32 {sr(so)}, {sr(so)}, 12288"]
    return g


def w_offsets(A, dst, rshift, wflav):
    l3, t0, t1 = vT, vT + 1, vT + 2
    A(f"v_lshrrev_b32 {vr(l3)}, 3, {vr(vLANE)}")
    A(f"v_bfe_u32 {vr(t0)}, {vr(vLANE)}, 4, {1 if wflav else 2}")
    A(f"v_lshlrev_b32 {vr(t0)}, 1, {vr(t0)}")
    A(f"v_and_b32 {vr(t1)}, 7, {vr(vLANE)}")
    A(f"v_xor_b32 {vr(t0)}, {vr(t0)}, {vr(t1)}")
    A(f"v_lshlrev_b32 {vr(t0)}, 4, {vr(t0)}")
    A(f"s_lshl_b32 {sr(sT3)}, {sr(sWAVE)}, 7")
    A(f"v_lshl_add_u32 {vr(l3)}, {vr(l3)}, {rshift}, {sr(sT3)}")
    for t in range(4):
        A(f"v_xor_b32 {vr(t1)}, {64*(t&1) if wflav else 0}, {vr(t0)}")
        A(f"v_add_u32 {vr(t1)}, {vr(t1)}, {vr(l3)}")
        A(f"v_add_u32 {vr(dst+t)}, {(8*t << rshift) - 1024*t}, {vr(t1)}")


def gemm_tr_bases(A, dst, gshift, rot):
    g, r, c, x = vT, vT + 1, vT + 2, vT + 3
    A(f"v_lshrrev_b32 {vr(g)}, 4, {vr(vLANE)}")
    A(f"v_bfe_u32 {vr(r)}, {vr(vLANE)}, 2, 2")
    A(f"v_and_b32 {vr(c)}, 3, {vr(vLANE)}"); A(f"v_lshlrev_b32 {vr(c)}, 3, {vr(c)}")
    A(f"v_lshl_add_u32 {vr(c)}, {vr(g)}, {gshift}, {vr(c)}")
    A(f"v_lshl_add_u32 {vr(c)}, {vr(r)}, 7, {vr(c)}")
    A(f"v_lshrrev_b32 {vr(r)}, 1, {vr(r)}"); A(f"v_lshl_add_u32 {vr(c)}, {vr(r)}, 5, {vr(c)}")
    A(f"v_and_b32 {vr(g)}, 1, {vr(g)}"); A(f"v_lshl_add_u32 {vr(c)}, {vr(g)}, 6, {vr(c)}")
    A(f"v_add_u32 {vr(c)}, {sr(sW8)}, {vr(c)}")
    for ct in range(4):
        if rot:
            A(f"s_add_u32 {sr(sT0)}, {sr(sHG)}, {ct}"); A(f"s_and_b32 {sr(sT0)}, {sr(sT0)}, 3"); A(f"s_lshl_b32 {sr(sT0)}, {sr(sT0)}, 5")
            A(f"v_xor_b32 {vr(dst+ct)}, {sr(sT0)}, {vr(c)}")
        else:
            A(f"v_xor_b32 {vr(dst+ct)}, {32*ct}, {vr(c)}")
        A(f"v_add_u32 {vr(dst+4+ct)}, 0x10000, {vr(dst+ct)}")


def qseqs(base, odd=None):
    out = []
    for rho in range(8):
        sq = [(c + 2 * rho) & 15 for c in (odd if (odd and rho & 1) else base)]
        assert sorted(sq) == list(range(16))
        sq.remove(0)
        out.append([0] + sq)
    return out


def prologue(A, o):
    A(f"s_bfe_u32 {sr(sBR)}, s2, 0x10002")
    A(f"s_mul_i32 {sr(sT0)}, {sr(sBR)}, 40")
    A(f"s_add_u32 {sr(sKA)}, s0, {sr(sT0)}"); A(f"s_addc_u32 {sr(sKA+1)}, s1, 0")
    A(f"s_load_dwordx2 s[70:71], {sr(sKA,2)}, 24")
    A(f"s_load_dwordx2 s[74:75], {sr(sKA,2)}, 0")
    A(f"v_lshrrev_b32 v2, 6, v0")
    A(f"v_and_b32 {vr(vLANE)}, 63, v0")
    A(f"v_readfirstlane_b32 {sr(sWAVE)}, v2")
    A(f"s_and_b32 {sr(sHG)}, s2, 3")
    A(f"s_bfe_u32 {sr(sHP)}, s2, 0x20003")
    A(f"s_bfe_u32 {sr(sB)}, s2, 0x30005")
    A(f"s_lshl_b32 {sr(sH0)}, {sr(sHG)}, 2"); A(f"s_add_u32 {sr(sH0)}, {sr(sH0)}, {sr(sHP)}"); A(f"s_lshl_b32 {sr(sH0)}, {sr(sH0)}, 1")
    A(f"s_lshl_b32 {sr(sW8)}, {sr(sWAVE)}, 13")
    A(f"s_lshl_b32 {sr(sW4)}, {sr(sWAVE)}, 12")
    A(f"s_lshl_b32 {sr(sROT)}, {sr(sHP)}, 1"); A(f"s_add_u32 {sr(sROT)}, {sr(sROT)}, {sr(sB)}"); A(f"s_and_b32 {sr(sROT)}, {sr(sROT)}, 7")
    if o.common:
        A(f"s_mov_b32 {sr(sXO)}, 0"); A(f"s_mov_b32 {sr(sWO_)}, 0")
    else:
        A(f"s_lshl_b32 {sr(sXO)}, {sr(sROT)}, 8"); A(f"s_lshl_b32 {sr(sWO_)}, {sr(sROT)}, 20")
    w_offsets(A, vDW, 13, True)
    A(f"s_lshl_b32 {sr(sT0)}, {sr(sH0)}, 8")
    A(f"s_mul_i32 {sr(sT1)}, {sr(sB)}, 229376")
    A("s_waitcnt lgkmcnt(0)")
    srd(A, S_W, 70, sr(sT0), "0")
    A(f"s_sub_u32 {sr(S_W+2)}, 0x800000, {sr(sT0)}")
    srd(A, S_X, 74, sr(sT1), "229376")
    strip = lambda gs: [[x for x in g if not any(x == y for y in next_chunk(sSW, sWO_, 19) + next_chunk(sSX, sXO, 7))] for g in gs]
    A.groups(strip(dma_w(o, "W", 0)))
    A(f"s_load_dwordx2 s[66:67], {sr(sKA,2)}, 8")
    A(f"s_load_dwordx2 s[68:69], {sr(sKA,2)}, 16")
    A(f"s_load_dwordx2 {sr(sWOP,2)}, {sr(sKA,2)}, 32")
    A(f"s_load_dwordx2 s[72:73], s[0:1], 80")
    A(f"s_load_dwordx2 {sr(sDBG,2)}, s[0:1], 88")
    A(f"s_load_dwordx2 {sr(sWS,2)}, s[0:1], 96")
    l3, l4, t0, t1 = vT, vT + 1, vT + 2, vT + 3
    A(f"v_lshrrev_b32 {vr(l3)}, 3, {vr(vLANE)}")
    A(f"v_lshrrev_b32 {vr(l4)}, 4, {vr(vLANE)}")
    A(f"s_lshl_b32 {sr(sT2)}, {sr(sWAVE)}, 16")
    A(f"v_and_b32 {vr(t1)}, 7, {vr(vLANE)}")
    A(f"v_xor_b32 {vr(t1)}, {vr(t1)}, {vr(l4)}")
    A(f"v_lshlrev_b32 {vr(t1)}, 4, {vr(t1)}")
    A(f"v_lshl_add_u32 {vr(l3)}, {vr(l3)}, 11, {sr(sT2)}")
    for t in range(4):
        A(f"v_xor_b32 {vr(t0)}, {64*(t&1)}, {vr(t1)}")
        A(f"v_add_u32 {vr(t0)}, {vr(t0)}, {vr(l3)}")
        A(f"v_add_u32 {vr(vDX+t)}, {8*t*2048 - 1024*t}, {vr(t0)}")
    A.groups(strip(dma_x(o, "X", 0)))
    base = [int(c, 16) for c in o.qseq]
    if o.common:
        for rho, sq in enumerate([[int(c, 16) for c in x] for x in o.qtab.split(',')] if o.qtab else qseqs(base, [int(c, 16) for c in o.qodd])):
            lo, hi = seq_words(sq)
            if rho == 0:
                A(f"s_mov_b32 {sr(sSW)}, {lo:#x}"); A(f"s_mov_b32 {sr(sSW+1)}, {hi:#x}")
            else:
                A(f"s_cmp_eq_u32 {sr(sROT)}, {rho}")
                A(f"s_cselect_b32 {sr(sSW)}, {lo:#x}, {sr(sSW)}"); A(f"s_cselect_b32 {sr(sSW+1)}, {hi:#x}, {sr(sSW+1)}")
    else:
        lo, hi = seq_words(base)
        A(f"s_mov_b32 {sr(sSW)}, {lo:#x}"); A(f"s_mov_b32 {sr(sSW+1)}, {hi:#x}")
        A(f"s_lshl_b32 {sr(sT3)}, {sr(sROT)}, 1")
        seq_add(A, sSW, sT3)
    A(f"s_mov_b64 {sr(sSX,2)}, {sr(sSW,2)}")
    for x in next_chunk(sSW, sWO_, 19) + next_chunk(sSX, sXO, 7): A(x)
    A.groups((dma_w(o, "W", 1) + dma_x(o, "X", 1) + dma_w(o, "W", 2))[:o.wpre])
    A(f"s_lshr_b32 {sr(sU)}, {sr(sWAVE)}, 1"); A(f"s_and_b32 {sr(sC2)}, {sr(sWAVE)}, 1")
    A(f"s_lshl_b32 {sr(sAM)}, {sr(sU)}, 13")
    A("s_waitcnt lgkmcnt(0)")
    l = A.newlab("L_notag")
    A(f"s_or_b32 {sr(sT0)}, s2, {sr(sWAVE)}"); A(f"s_cmp_lg_u32 {sr(sT0)}, 0"); A(f"s_cbranch_scc1 {l}")
    A(f"s_memrealtime {sr(sPTR,2)}"); A("s_waitcnt lgkmcnt(0)")
    A(f"v_mov_b32 {vr(vT+2)}, {sr(sPTR)}"); A(f"v_mov_b32 {vr(vT+3)}, {sr(sPTR+1)}"); A(f"v_mov_b32 {vr(vT+4)}, 0")
    A(f"v_or_b32 {vr(vT+3)}, 0x80000000, {vr(vT+3)}")
    A("s_mov_b64 exec, 1")
    A(f"global_store_dwordx2 {vr(vT+4)}, {vr(vT+2,2)}, {sr(sDBG,2)} sc1")
    A("s_mov_b64 exec, -1")
    A.lab(l)
    q, g, r = vT, vT + 1, vT + 2
    A(f"v_lshlrev_b32 {vr(vL16)}, 4, {vr(vLANE)}")
    A(f"v_and_b32 {vr(q)}, 15, {vr(vLANE)}")
    A(f"v_lshrrev_b32 {vr(g)}, 4, {vr(vLANE)}")
    A(f"v_bfe_u32 {vr(r)}, {vr(vLANE)}, 1, 3")
    A(f"v_xor_b32 {vr(r)}, {vr(r)}, {vr(g)}")
    A(f"v_lshlrev_b32 {vr(r)}, 4, {vr(r)}")
    A(f"v_lshl_add_u32 {vr(r)}, {vr(q)}, 7, {vr(r)}")
    A(f"v_add_u32 {vr(vXB)}, {XB}, {vr(r)}")
    A(f"v_xor_b32 {vr(vXB+1)}, 64, {vr(vXB)}")
    gemm_tr_bases(A, vTB, 10, False)


def late_setup(A, o):
    A(f"s_lshl_b32 {sr(sT0)}, {sr(sB)}, 5"); A(f"s_add_u32 {sr(sT0)}, {sr(sT0)}, {sr(sH0)}")
    A(f"s_add_u32 {sr(sT0)}, {sr(sT0)}, {sr(sU)}"); A(f"s_lshl_b32 {sr(sT0)}, {sr(sT0)}, 18")
    srd(A, S_K, 66, sr(sT0), "0" if o.nokv else "0x40000")
    srd(A, S_V, 68, sr(sT0), "0" if o.nokv else "0x40000")
    srd(A, S_OUT, 72, None, str(896 * 4096))
    srd(A, S_WS, sWS, None, str(X_OFF + X_BYTES))
    A(f"s_mov_b32 {sr(sC)}, {C_SCALE:#x}"); A(f"s_mov_b32 {sr(sTHR)}, {THR:#x}"); A(f"s_mov_b32 {sr(sPEND)}, 0")
    l4, t0, t1, t2 = vT, vT + 1, vT + 2, vT + 3
    A(f"v_lshrrev_b32 {vr(l4)}, 4, {vr(vLANE)}")
    A(f"v_and_b32 {vr(t1)}, 15, {vr(vLANE)}")
    A(f"v_lshlrev_b32 {vr(t2)}, 8, {vr(l4)}")
    A(f"v_xor_b32 {vr(t0)}, {vr(l4)}, {vr(t1)}")
    A(f"v_lshl_add_u32 {vr(vDK)}, {vr(t0)}, 4, {vr(t2)}")
    for t in range(1, 4):
        A(f"v_xor_b32 {vr(vDK+t)}, {64*t}, {vr(vDK)}")
    A(f"v_lshlrev_b32 {vr(t0)}, 1, {vr(l4)}")
    A(f"v_xor_b32 {vr(t0)}, {vr(t0)}, {vr(t1)}")
    A(f"v_lshl_add_u32 {vr(vDV)}, {vr(t0)}, 4, {vr(t2)}")
    A(f"v_xor_b32 {vr(vDV+1)}, 128, {vr(vDV)}")
    q, g, t0, r, c = vT, vT + 1, vT + 2, vT + 3, vT + 4
    A(f"v_and_b32 {vr(q)}, 15, {vr(vLANE)}"); A(f"v_lshrrev_b32 {vr(g)}, 4, {vr(vLANE)}")
    A(f"v_xor_b32 {vr(t0)}, {vr(g)}, {vr(q)}"); A(f"v_lshlrev_b32 {vr(t0)}, 4, {vr(t0)}")
    A(f"v_lshl_add_u32 {vr(t0)}, {vr(q)}, 8, {vr(t0)}")
    A(f"s_add_u32 {sr(sT1)}, {sr(sAM)}, {ASL}"); A(f"s_add_u32 {sr(sT0)}, {sr(sAM)}, {ASL + 16384}")
    A(f"v_add_u32 {vr(vKA)}, {sr(sT0)}, {vr(t0)}")
    for s in range(1, 4):
        A(f"v_xor_b32 {vr(vKA+s)}, {64*s}, {vr(vKA)}")
    for s in range(4):
        A(f"v_add_u32 {vr(vKA+4+s)}, 0x10000, {vr(vKA+s)}")
    A(f"v_bfe_u32 {vr(r)}, {vr(vLANE)}, 2, 2")
    A(f"v_and_b32 {vr(c)}, 3, {vr(vLANE)}"); A(f"v_lshlrev_b32 {vr(c)}, 3, {vr(c)}")
    A(f"v_lshl_add_u32 {vr(c)}, {vr(g)}, 10, {vr(c)}")
    A(f"v_lshl_add_u32 {vr(c)}, {vr(r)}, 8, {vr(c)}")
    A(f"v_lshl_add_u32 {vr(c)}, {vr(r)}, 5, {vr(c)}")
    A(f"v_and_b32 {vr(g)}, 1, {vr(g)}"); A(f"v_lshl_add_u32 {vr(c)}, {vr(g)}, 7, {vr(c)}")
    A(f"v_add_u32 {vr(vVA)}, {sr(sT1)}, {vr(c)}")
    for dt in range(1, 8):
        A(f"v_xor_b32 {vr(vVA+dt)}, {32*dt}, {vr(vVA)}")
    for dt in range(8):
        A(f"v_add_u32 {vr(vVA+8+dt)}, 0x10000, {vr(vVA+dt)}")
    for i in range(128):
        A(f"v_accvgpr_write_b32 {vr(aO+i)}, 0")
    A(f"v_mov_b32 {vr(vSC)}, {sr(sC)}"); A(f"v_mov_b32 {vr(vSC+1)}, {sr(sC)}")
    P = vNM
    for t in range(4):
        A(f"s_lshl_b32 {sr(sT1)}, {sr(sWAVE)}, 18")
        A(f"s_add_u32 {sr(sT1)}, {sr(sT1)}, {((t >> 1) << 17) + ((t & 1) << 10) - 1024*t}")
        A(f"v_add_u32 {vr(P+t)}, {sr(sT1)}, {vr(vL16)}")
    w_offsets(A, P + 4, 11, False)
    A(f"v_add_u32 {vr(P+8)}, {XB}, {vr(vL16)}"); A(f"v_add_u32 {vr(P+9)}, {XB + 1024}, {vr(vL16)}")
    gemm_tr_bases(A, P + 10, 9, False)
    for i in range(18):
        A(f"v_accvgpr_write_b32 {vr(aG+i)}, {vr(P+i)}")
    A(f"s_lshl_b32 {sr(sT0)}, {sr(sU)}, 15"); A(f"s_lshl_b32 {sr(sT1)}, {sr(sC2)}, 13"); A(f"s_add_u32 {sr(sT0)}, {sr(sT0)}, {sr(sT1)}")
    A(f"v_add_u32 {vr(vOW)}, {sr(sT0)}, {vr(P+8)}")
    for i in range(24):
        A(f"v_mov_b32 {vr(vNM+i)}, 0")
    offs = {0: [3 * b >> 1 for b in range(8)], 1: [3 * (b >> 1) for b in range(8)], 2: [6 * (b & 1) for b in range(8)], 3: [2 * (b % 6) for b in range(8)], 4: [0] * 8, 5: [4 * (b % 3) for b in range(8)]}[o.gseq]
    for b, sq in enumerate([[0, 1, 2, 3] + [4 + (x + i) % 12 for i in range(12)] for x in offs]):
        lo, hi = seq_words(sq)
        if b == 0:
            A(f"s_mov_b32 {sr(sGS)}, {lo:#x}"); A(f"s_mov_b32 {sr(sGS+1)}, {hi:#x}")
        else:
            A(f"s_cmp_eq_u32 {sr(sB)}, {b}")
            A(f"s_cselect_b32 {sr(sGS)}, {lo:#x}, {sr(sGS)}"); A(f"s_cselect_b32 {sr(sGS+1)}, {hi:#x}, {sr(sGS+1)}")
    A(f"s_lshl_b32 {sr(sT3)}, {sr(sHP)}, 2")
    seq_add(A, sGS, sT3)
    A(f"s_lshl_b32 {sr(sT3)}, {sr(sBR)}, 3"); A(f"s_add_u32 {sr(sT3)}, {sr(sT3)}, {sr(sB)}")
    A(f"s_mul_i32 {sr(sT0)}, {sr(sT3)}, {(7 << 17) + o.opad}")
    A(f"s_lshl_b32 {sr(sOST)}, {sr(sC2)}, 19"); A(f"s_add_u32 {sr(sOST)}, {sr(sOST)}, {sr(sT0)}")
    A(f"s_add_u32 {sr(sT1)}, {sr(sH0)}, {sr(sU)}"); A(f"s_lshl_b32 {sr(sT1)}, {sr(sT1)}, 12"); A(f"s_add_u32 {sr(sOST)}, {sr(sOST)}, {sr(sT1)}")
    A(f"s_lshl_b32 {sr(sT1)}, {sr(sHG)}, 15"); A(f"s_add_u32 {sr(sT0)}, {sr(sT0)}, {sr(sT1)}")
    srd(A, S_O, sWS, sr(sT0), str(7 << 17))
    A(f"s_lshl_b32 {sr(sFL)}, {sr(sT3)}, 2"); A(f"s_add_u32 {sr(sFL)}, {sr(sFL)}, {sr(sHG)}")
    A(f"s_lshl_b32 {sr(sFL)}, {sr(sFL)}, 7"); A(f"s_add_u32 {sr(sFL)}, {sr(sFL)}, {F_RDY}")
    A(f"s_lshl_b32 {sr(sT0)}, {sr(sT3)}, 2"); A(f"s_add_u32 {sr(sT0)}, {sr(sT0)}, {sr(sHP)}")
    A(f"s_lshl_b32 {sr(sT0)}, {sr(sT0)}, 2")
    A(f"s_add_u32 {sr(sT1)}, {sr(sT0)}, {sr(sWAVE)}"); A(f"s_add_u32 {sr(sT2)}, {sr(sT0)}, {sr(sHG)}")
    A(f"s_lshl_b32 {sr(sXF)}, {sr(sT2)}, 7"); A(f"s_add_u32 {sr(sXF)}, {sr(sXF)}, {F_XCH}")
    A(f"s_lshl_b32 {sr(sXS+1)}, {sr(sT1)}, 7"); A(f"s_lshl_b32 {sr(sT3)}, {sr(sHG)}, 3")
    A(f"s_add_u32 {sr(sXS+1)}, {sr(sXS+1)}, {sr(sT3)}"); A(f"s_add_u32 {sr(sXS+1)}, {sr(sXS+1)}, {F_XCH}")
    A(f"s_lshl_b32 {sr(sXS)}, {sr(sT1)}, 2"); A(f"s_add_u32 {sr(sXS)}, {sr(sXS)}, {sr(sHG)}")
    A(f"s_lshl_b32 {sr(sXS)}, {sr(sXS)}, 14"); A(f"s_add_u32 {sr(sXS)}, {sr(sXS)}, {X_OFF}")
    A(f"s_lshl_b32 {sr(sT2)}, {sr(sT2)}, 16"); A(f"s_add_u32 {sr(sT2)}, {sr(sT2)}, {sr(sW4)}"); A(f"s_add_u32 {sr(sT2)}, {sr(sT2)}, {X_OFF}")
    for k in range(1, 4):
        A(f"s_add_u32 {sr(sT1)}, {sr(sHG)}, {k}"); A(f"s_and_b32 {sr(sT1)}, {sr(sT1)}, 3"); A(f"s_lshl_b32 {sr(sT1)}, {sr(sT1)}, 14")
        A(f"s_add_u32 {sr(sXL[k-1])}, {sr(sT1)}, {sr(sT2)}")
    A(f"s_mul_i32 {sr(sOO)}, {sr(sB)}, {112*4096}")
    for reg, sh in ((sBR, 11), (sHP, 9), (sHG, 7), (sWAVE, 17)):
        A(f"s_lshl_b32 {sr(sT1)}, {sr(reg)}, {sh}"); A(f"s_add_u32 {sr(sOO)}, {sr(sOO)}, {sr(sT1)}")


def gemm(A, o, kind, vm0, fill):
    Q = kind == "Q"
    xk, wk = ("X", "W") if Q else ("O", "G")
    A.lazy = o.lazy

    defer = (not Q) and o.defer
    dj = lambda j: defer and j >= 13
    xreg = lambda j, s, rt: (aO + 56 * (j - 13) if dj(j) else gX) + 28 * s + 4 * rt
    wreg = lambda j, s, ct: aO + 168 + 8 * (j - 13) + 4 * s if (dj(j) and ct == 0) else gW + 16 * s + 4 * ct

    def wr(j, s):
        L = []
        for ct in range(4):
            f = wreg(j, s, ct)
            for e in range(2):
                reg, off = (vTB + 4 + ct, 0) if j % 3 == 2 else (vTB + ct, (j % 3) * WSL)
                L.append(("ds", f"ds_read_b64_tr_b16 {vr(f+2*e,2)}, {vr(reg)} offset:{off + 4096*s + (512 if Q else 2048)*e}", f"w{s}{ct}"))
        return L[2:] + L[:2] if dj(j) else L

    def xr(j, s, rt):
        slot = 3 if (j == 3 and not Q) else j % 3
        return ("ds", f"ds_read_b128 {vr(xreg(j,s,rt),4)}, {vr(vXB+s)} offset:{slot*XSL + 2048*rt}", f"x{s}{rt}")

    def carry(j):
        return wr(j, 0) + [xr(j, 0, rt) for rt in range(3)]

    W = lambda j: dma_w(o, wk, j)
    X = lambda j: dma_x(o, xk, j)

    def step(j, late, early, vm, hook=None):
        mf, after = [], {}
        for k_, v_ in (hook or {}).items():
            put(after, k_, v_)
        cts = (1, 2, 3) if dj(j) else (0, 1, 2, 3)
        sc = lambda x: x * len(cts) // 4
        for s in range(2):
            tiles = [(rt, ct) for rt in range(7) for ct in cts]
            for rt, ct in tiles:
                a = gACC + 28 * ct + 4 * rt
                mf.append((mfma(a, wreg(j, s, ct), xreg(j, s, rt), "0" if (j == 0 and s == 0) else a),
                           [f"w{s}{ct}", f"x{s}{rt}"]))
        r = [xr(j, 0, rt) for rt in range(3, 7)] + wr(j, 1) + [xr(j, 1, rt) for rt in range(7)]
        spread(after, [(x, 1) for x in r], 2, sc(30))
        if late:
            spread(after, [(g, 1) for g in late], 0, sc(38))
        if j < 15:
            if j == 1 and not Q:
                put(after, 40, [("call", lambda: team_wait(A))])
            put(after, sc(40), [("bar", vm)])
            if j == 0 and not Q:
                put(after, 40, [("call", lambda: team_signal(A))])
            spread(after, [(x, 1) for x in carry(j + 1)], sc(40), sc(53))
            if early:
                spread(after, [(g, 1) for g in early], sc(41), sc(56))
        elif defer:
            A.lazy = 0
            for jj in (13, 14, 15):
                for s in range(2):
                    for rt in range(7):
                        a = gACC + 4 * rt
                        mf.append((mfma(a, wreg(jj, s, 0), xreg(jj, s, rt), a), ["w00", "w10"]))
        A.run(mf, after)

    E = 3
    A.emit(("bar", vm0))
    stamp(A, 6, o.stamps and (o.qst == Q))
    for it in carry(0): A.emit(it)
    if Q:
        pre = W(1) + X(1) + W(2)
        n0 = max(16, o.wpre)
        step(0, pre[o.wpre:n0], pre[n0:] + X(2)[:2], n0 - 12, None if o.early_setup else {39: [("call", lambda: late_setup(A, o))]})
        step(1, X(2)[2:] + W(3) + X(3), W(4)[:E], 12)
    else:
        wl = sum((W(int(c)) for c in o.wplan.split(",")[2]), [])
        if len(wl) == 16:
            step(0, wl, W(3)[:E], 8)
        else:
            step(0, wl, W(3)[:E], len(wl))
        step(1, W(3)[E:], W(4)[:E], 8)
    steady = lambda j: step(j, W(j + 2)[E:] + X(j + 2), W(j + 3)[:E], 12)
    diag = o.steps == kind
    stamp(A, 1, diag)
    steady(2)
    stamp(A, 2, diag)
    steady(3)
    stamp(A, 3, diag)
    if diag:
        for j in range(4, 13):
            steady(j)
            if j in (5, 8): stamp(A, {5: 4, 8: 5}[j], True)
    else:
        A(f"s_mov_b32 {sr(sCNT)}, 3")
        q0 = list(A.q)
        l = A.newlab("L_gl")
        A.lab(l)
        for j in (4, 5, 6):
            steady(j)
        assert A.q == q0
        A(f"s_sub_u32 {sr(sCNT)}, {sr(sCNT)}, 1"); A(f"s_cmp_lg_u32 {sr(sCNT)}, 0"); A(f"s_cbranch_scc1 {l}")
    g = lambda k: fill.get(k, [])
    step(13, W(15)[E:] + X(15), g("13e"), 12)
    step(14, g("14l"), g("14e"), len(g("13e")) + len(g("14l")))
    if Q:
        step(15, g("15l"), [], 0)
    else:
        q0, lo, lj = list(A.q), A.newlab("L_own"), A.newlab("L_sent")
        A(f"s_cmp_eq_u32 {sr(sWAVE)}, {sr(sHG)}"); A(f"s_cbranch_scc1 {lo}")
        for own in (False, True):
            if own: A.lab(lo)
            A.q = list(q0)
            hook = {}
            for rt in range(5):
                spread(hook, [(x, 1) for x in x_rows(rt, own)], 28 + 4 * rt + 8, 28 + 4 * rt + 12)
            step(15, [], [], 0, hook)
            for x in x_rows(5, own) + ["s_nop 1"] + x_rows(6, own): A(x)
            if not own:
                A("s_waitcnt vmcnt(0)")
                stamp(A, 2, o.xst)
                raise_flag(A, sXS + 1)
                A(f"s_branch {lj}")
        A.lab(lj)
    A.lazy = 0
    stamp(A, 7, o.stamps and (o.qst == Q))
    if diag:
        A("s_waitcnt vmcnt(0)"); write_stamps(A); A("s_endpgm")


def q_finish(A, o):
    q, g, t0, t1 = vT, vT + 1, vT + 2, vT + 3
    ta = gX + 16
    A(f"v_mov_b32 {vr(t0)}, 0")
    A(f"global_load_dwordx2 {vr(vTAG,2)}, {vr(t0)}, {sr(sDBG,2)} sc1")
    A(f"v_and_b32 {vr(q)}, 15, {vr(vLANE)}")
    A(f"v_lshrrev_b32 {vr(g)}, 4, {vr(vLANE)}")
    A(f"v_lshrrev_b32 {vr(t0)}, 1, {vr(g)}")
    A(f"s_lshl_b32 {sr(sT0)}, {sr(sC2)}, 3")
    A(f"v_xor_b32 {vr(t0)}, {sr(sT0)}, {vr(t0)}")
    A(f"v_xor_b32 {vr(t0)}, {vr(t0)}, {vr(q)}")
    A(f"v_lshlrev_b32 {vr(t0)}, 4, {vr(t0)}")
    A(f"v_and_b32 {vr(t1)}, 1, {vr(g)}")
    A(f"v_lshl_add_u32 {vr(t0)}, {vr(t1)}, 3, {vr(t0)}")
    A(f"s_mul_i32 {sr(sT0)}, {sr(sU)}, {QIMG1}")
    A(f"v_lshl_add_u32 {vr(t1)}, {vr(q)}, 8, {sr(sT0)}")
    A(f"v_add_u32 {vr(vT+4)}, {vr(t0)}, {vr(t1)}")
    for ct in range(1, 4):
        A(f"v_xor_b32 {vr(vT+4+ct)}, {32*ct}, {vr(vT+4)}")
    A(f"v_xor_b32 {vr(t0)}, {vr(g)}, {vr(q)}")
    A(f"v_lshlrev_b32 {vr(t0)}, 4, {vr(t0)}")
    A(f"s_lshl_b32 {sr(sT0)}, {sr(sC2)}, 14")
    A(f"v_add3_u32 {vr(t1)}, {vr(t1)}, {vr(t0)}, {sr(sT0)}")
    first = True
    for rt in range(7):
        for ct in range(4):
            a = gACC + 28 * ct + 4 * rt
            A(f"v_pk_mul_f32 {vr(a,2)}, {vr(a,2)}, {vr(vSC,2)}")
            A(f"v_pk_mul_f32 {vr(a+2,2)}, {vr(a+2,2)}, {vr(vSC,2)}")
            A(f"v_cvt_pk_bf16_f32 {vr(a)}, {vr(a)}, {vr(a+1)}")
            A(f"v_cvt_pk_bf16_f32 {vr(a+1)}, {vr(a+2)}, {vr(a+3)}")
            if first:
                A("s_barrier")
                first = False
            A(f"ds_write_b64 {vr(vT+4+ct)}, {vr(a,2)} offset:{4096*rt}")
        if rt in (2, 5):
            A("s_waitcnt lgkmcnt(2)")
    for s in range(4):
        A(f"v_xor_b32 {vr(ta+s)}, {64*s}, {vr(t1)}")
    A.emit(("bar", 17))
    for x in kreads(aslot(0)): A(x[1])
    for qt in range(4):
        for s in range(4):
            A(f"ds_read_b128 {vr(aQ+16*qt+4*s,4)}, {vr(ta+s)} offset:{4096*qt}")
            if (qt, s) in ((1, 1), (3, 1)):
                A("s_waitcnt lgkmcnt(4)")
    for i in range(18):
        A(f"v_accvgpr_read_b32 {vr(vDX+i)}, {vr(aG+i)}")
    A(f"s_lshl_b32 {sr(sT0)}, {sr(sHG)}, 21"); A(f"s_lshl_b32 {sr(sT1)}, {sr(sHP)}, 9"); A(f"s_add_u32 {sr(sT0)}, {sr(sT0)}, {sr(sT1)}")
    srd(A, S_W, sWOP, sr(sT0), "0")
    A(f"s_sub_u32 {sr(S_W+2)}, 0x800000, {sr(sT0)}")
    A(f"s_lshl_b32 {sr(sWO_)}, {sr(sHP)}, 19")
    A(f"s_mov_b64 {sr(sSW,2)}, {sr(sGS,2)}")
    A(f"s_lshr_b64 {sr(sSX,2)}, {sr(sGS,2)}, 12")
    for x in next_chunk(sSX, sXO, 11): A(x)
    A(f"v_lshrrev_b32 {vr(vSC)}, 2, {vr(vLANE)}"); A(f"v_lshlrev_b32 {vr(vSC)}, 11, {vr(vSC)}")
    A(f"v_and_b32 {vr(vSC+1)}, 3, {vr(vLANE)}"); A(f"v_lshl_add_u32 {vr(vSC)}, {vr(vSC+1)}, 7, {vr(vSC)}")
    if o.whead:
        A(f"v_lshlrev_b32 {vr(vSC+1)}, 25, {vr(vLANE)}"); A(f"v_and_b32 {vr(vSC+1)}, {OOB}, {vr(vSC+1)}"); A(f"v_or_b32 {vr(vSC)}, {vr(vSC)}, {vr(vSC+1)}")
        A(f"s_lshl_b32 {sr(sTO)}, {sr(sB)}, 16"); A(f"s_lshl_b32 {sr(sT0)}, {sr(sWAVE)}, 14"); A(f"s_add_u32 {sr(sTO)}, {sr(sTO)}, {sr(sT0)}")
        A(f"s_add_u32 {sr(sTO)}, {sr(sTO)}, {sr(sWO_)}")
    else:
        A(f"s_lshl_b32 {sr(sTO)}, {sr(sB)}, 18"); A(f"s_lshl_b32 {sr(sT0)}, {sr(sWAVE)}, 15"); A(f"s_add_u32 {sr(sTO)}, {sr(sTO)}, {sr(sT0)}")
    A.emit(("bar", 63))
    A.groups(dma_half(o, "V", 2))
    A(f"s_add_u32 {sr(sKO)}, {sr(sC2)}, 3"); A(f"s_lshl_b32 {sr(sKO)}, {sr(sKO)}, 13"); A(f"s_mov_b32 {sr(sVO)}, {sr(sKO)}")


def kreads(slot):
    L = []
    for s in range(4):
        for kt in range(2):
            L.append(("ds", f"ds_read_b128 {vr(vKF+16*kt+4*s,4)}, {vr(vKA+4*(slot>>1)+s)} offset:{(slot&1)*ASL+4096*kt}", f"k{kt}{s}"))
    return L


def new_max(S, NT, clamp):
    L = []
    for qt in range(NT):
        mx, o2 = vT, vT + 1
        a, b = S + 4 * qt, S + 16 + 4 * qt
        L += [f"v_max3_f32 {vr(mx)}, {vr(a)}, {vr(a+1)}, {vr(a+2)}", f"v_max3_f32 {vr(mx)}, {vr(mx)}, {vr(a+3)}, {vr(b)}",
              f"v_max3_f32 {vr(mx)}, {vr(mx)}, {vr(b+1)}, {vr(b+2)}", f"v_max_f32 {vr(mx)}, {vr(mx)}, {vr(b+3)}"]
        for sw in ("16", "32"):
            L += [f"v_mov_b32 {vr(o2)}, {vr(mx)}", "s_nop 1", f"v_permlane{sw}_swap_b32 {vr(mx)}, {vr(o2)}", "s_nop 1",
                  f"v_max_f32 {vr(mx)}, {vr(mx)}, {vr(o2)}"]
        if clamp:
            L += [f"v_max_f32 {vr(mx)}, 0, {vr(mx)}", f"v_exp_f32 {vr(vFAC+qt)}, -{vr(mx)}"]
        L += [f"v_sub_f32 {vr(x+i)}, {vr(x+i)}, {vr(mx)}" for x in (a, b, vNM + 4 * qt) for i in range(4)]
        if clamp:
            L += [f"v_mul_f32 {vr(vLS+2*qt+i)}, {vr(vLS+2*qt+i)}, {vr(vFAC+qt)}" for i in range(2)]
    return L


def attention(A, o, NT, tail):
    NQ = 8 * NT
    NE = 2 * NT
    c2 = 4 - NT
    sreg = lambda S, i: S + 16 * ((i >> 2) & 1) + 4 * (i >> 3) + (i & 3)

    def vreads(slot):
        return [("ds", f"ds_read_b64_tr_b16 {vr(vVF+4*dt+2*e,2)}, {vr(vVA+8*(slot>>1)+dt)} offset:{(slot&1)*ASL+4096*e}", f"v{dt}")
                for dt in range(8) for e in range(2)]

    def part2(Sp, qt):
        st = []
        for i in range(8 * qt, 8 * qt + 8):
            if i + NE < NQ:
                r = sreg(Sp, i + NE)
                st.append((f"v_exp_f32 {vr(r)}, {vr(r)}", 8))
            if i & 1:
                r = sreg(Sp, i - 1)
                st.append((f"v_pk_add_f32 {vr(vLS+2*qt,2)}, {vr(vLS+2*qt,2)}, {vr(r,2)}", 4.5))
                st.append((f"v_cvt_pk_bf16_f32 {vr(vP+4*qt+((i&7)>>1))}, {vr(r)}, {vr(r+1)}", 4.5))
        return st

    def pend_check():
        l2, b2 = A.newlab("L_r2"), A.newlab("L_b2")
        tail.append(("r2", l2, b2, NT))
        return [f"s_cmp_lg_u32 {sr(sPEND)}, 0", f"s_cbranch_scc1 {l2}", ("lab", b2)]

    def group(t):
        return dma_tile(o, "V" if t & 1 else "K", aslot(t + 3 + c2))

    def it(u, late, early, vmb, first=False, knext=True):
        p = u & 1
        S, Sp = vS + 32 * p, vS + 32 * (1 - p)
        mf, after = [], {}
        allk = [f"k{kt}{s}" for kt in range(2) for s in range(4)]
        for s in range(4):
            for kt in range(2):
                for qt in range(NT):
                    d = S + 16 * kt + 4 * qt
                    mf.append((mfma(d, vKF + 16 * kt + 4 * s, aQ + 16 * qt + 4 * s, vNM + 4 * qt if s == 0 else d), allk))
        mx = vT
        order = [sreg(S, i) for i in range(NQ)]
        order.sort(key=lambda r: ((r - S) >> 4, (r - S) & 15))
        m1 = [f"v_max3_f32 {vr(mx)}, {vr(order[0])}, {vr(order[1])}, {vr(order[2])}"]
        m1 += [f"v_max3_f32 {vr(mx)}, {vr(mx)}, {vr(order[i])}, {vr(order[i+1])}" for i in range(3, NQ - 1, 2)]
        m1 += [f"v_max_f32 {vr(mx)}, {vr(mx)}, {vr(order[NQ-1])}"]
        E1 = [f"v_exp_f32 {vr(sreg(S,i))}, {vr(sreg(S,i))}" for i in range(NE)]
        kr = kreads(aslot(u + 1))
        if first:
            put(after, NQ - 1, [("bar", vmb)] + kr + sum(early, [])
                + [f"v_readfirstlane_b32 {sr(sNON)}, {vr(vTAG)}", f"v_readfirstlane_b32 {sr(sNON+1)}, {vr(vTAG+1)}"]
                + new_max(S, NT, False) + E1)
            A.run(mf, after)
            return
        for qt in range(NT):
            for dt in range(8):
                mf.append((mfma(aO + 16 * dt + 4 * qt, vVF + 4 * dt, vP + 4 * qt, aO + 16 * dt + 4 * qt), [f"v{dt}"]))
        spread(after, [(x, 1) for x in vreads(aslot(u))], 0, NQ - 2)
        if late:
            spread(after, [(g, 1) for g in late], 0, NQ + 2)
        put(after, 4, pend_check())
        st, due = [], {}
        for qt in range(NT):
            st += part2(Sp, qt)
            due[qt] = len(st) - 1
        i_m1 = len(st)
        l1, b1 = A.newlab("L_r1"), A.newlab("L_b1")
        tail.append(("r1", l1, b1, S, NT))
        st += [(x, 4.5) for x in m1]
        st.append(([f"v_cmp_lt_f32 vcc, {sr(sTHR)}, {vr(mx)}", f"s_cbranch_vccnz {l1}", ("lab", b1)], 9))
        st += [(x, 8) for x in E1]
        pos = spread(after, st, 0, 2 * NQ)
        for qt in range(NT):
            assert pos[due[qt]] < NQ + 8 * qt - 2, (qt, pos[due[qt]])
        assert pos[i_m1] >= NQ + 4, pos[i_m1]
        put(after, NQ + 2, [("bar", vmb)])
        if knext:
            spread(after, [(x, 1) for x in kr], NQ + 3, 2 * NQ - 6)
        if early:
            spread(after, [(g, 1) for g in early], NQ + 3, 2 * NQ)
        A.run(mf, after)

    A.q = []
    it(0, [], group(0)[:4], 4, first=True)
    q0 = list(A.q)
    A(f"s_mov_b32 {sr(sCNT)}, 7")
    A.lab(f"L_aloop_{NT}")
    def touch(trip):
        return [[f"s_cmp_eq_u32 {sr(sCNT)}, {trip}", f"s_cselect_b32 {sr(sT1)}, {sr(sTO)}, {OOB}", f"s_cselect_b32 {sr(sT2)}, 0x20000, 0",
                 f"buffer_load_dword {vr(aTCH)}, {vr(vSC)}, {sr(S_W,4)}, {sr(sT1)} offen", f"s_add_u32 {sr(sTO)}, {sr(sTO)}, {sr(sT2)}"]]
    tp = dict((int(x[0]), int(x[1])) for x in o.wtouch.split(",")) if o.wtouch else {}
    for u in (1, 2, 3, 0):
        it(u, group(u - 1)[4:], (touch(tp[u]) if u in tp else []) + group(u)[:4], 8)
    assert A.q == q0
    A(f"s_sub_u32 {sr(sCNT)}, {sr(sCNT)}, 1"); A(f"s_cmp_lg_u32 {sr(sCNT)}, 0"); A(f"s_cbranch_scc1 L_aloop_{NT}")
    last = group(29) if c2 == 0 else [[]] * 8
    it(1, group(28)[4:], [g for g in last[:4] if g], 8)
    w30, w31 = [[dma_w(o, "G", int(c)) for c in x] for x in o.wplan.split(",")[:2]]
    it(2, [g for g in last[4:] if g], sum(w30, []), 8 if c2 == 0 else 0)
    it(3, [], sum(w31, []), 8 * len(w30), knext=False)
    stamp(A, 2, o.stamps)
    Sp = vS + 32
    for x in vreads(aslot(32)): A.emit(x)
    for x in pend_check(): A.emit(x)

    def lred(qt):
        a, b = vLS + 2 * qt, vLS + 2 * qt + 1
        L = [f"v_add_f32 {vr(a)}, {vr(a)}, {vr(b)}"]
        for sw in ("16", "32"):
            L += [f"v_mov_b32 {vr(b)}, {vr(a)}", "s_nop 1", f"v_permlane{sw}_swap_b32 {vr(a)}, {vr(b)}", "s_nop 1", f"v_add_f32 {vr(a)}, {vr(a)}, {vr(b)}"]
        return L + [f"v_rcp_f32 {vr(a)}, {vr(a)}", "s_nop 0", f"v_mov_b32 {vr(b)}, {vr(a)}"]

    def outq(qt):
        L = []
        for m in range(4):
            t = vS + 8 * m
            d = vKF + 4 * ((4 * qt + m) % 8)
            L += [f"v_accvgpr_read_b32 {vr(t+i)}, {vr(aO + 16*(2*m + (i>>2)) + 4*qt + (i&3))}" for i in range(8)]
            L += [f"v_pk_mul_f32 {vr(t+2*i,2)}, {vr(t+2*i,2)}, {vr(vLS+2*qt,2)}" for i in range(4)]
            L += [f"v_cvt_pk_bf16_f32 {vr(d+i)}, {vr(t+2*i)}, {vr(t+2*i+1)}" for i in range(4)]
            L.append(f"ds_write_b128 {vr(vOW)}, {vr(d,4)} offset:{(m>>1)*XSL + qt*2048 + (m&1)*1024}")
            L.append(f"buffer_store_dwordx4 {vr(d,4)}, {vr(vL16)}, {sr(S_WS,4)}, {sr(sOST)} offen offset:{m*1024} sc1")
        L.append(f"s_add_u32 {sr(sOST)}, {sr(sOST)}, 0x20000")
        return L

    for x, _ in part2(Sp, 0): A(x)
    mf, after = [], {}
    for qt in range(NT):
        for dt in range(8):
            mf.append((mfma(aO + 16 * dt + 4 * qt, vVF + 4 * dt, vP + 4 * qt, aO + 16 * dt + 4 * qt), [f"v{dt}"]))
        st = [(x, 1) for x in lred(qt)]
        if qt + 1 < NT:
            st = [(x, 1) for x, _ in part2(Sp, qt + 1)] + st
        spread(after, st, 8 * qt, 8 * qt + 7)
        put(after, 8 * qt + 7, ["s_nop 1"])
    put(after, 7, ["s_barrier"])
    A("s_nop 1")
    A.run(mf, after)
    A("s_nop 3")
    for qt in range(NT):
        for x in outq(qt): A(x)
    A(f"s_waitcnt vmcnt({4*NT})")


def rare_blocks(A, tail):
    r2, r1 = {}, {}
    for t in tail:
        if t[0] == "r1":
            _, l1, b1, S, NT = t
            k = len(r1.setdefault((NT, S), []))
            r1[(NT, S)].append(b1)
            A.lab(l1)
            A(f"s_mov_b32 {sr(sT0)}, {k}"); A(f"s_branch L_r1c_{NT}_{S}")
        else:
            _, l2, b2, NT = t
            k = len(r2.setdefault(NT, []))
            r2[NT].append(b2)
            A.lab(l2)
            A(f"s_mov_b32 {sr(sPEND)}, {k}"); A(f"s_branch L_r2c_{NT}")
    for (NT, S), backs in r1.items():
        A.lab(f"L_r1c_{NT}_{S}")
        for x in new_max(S, NT, True): A(x)
        A(f"s_mov_b32 {sr(sPEND)}, 1")
        for k, b in enumerate(backs[:-1]):
            A(f"s_cmp_eq_u32 {sr(sT0)}, {k}"); A(f"s_cbranch_scc1 {b}")
        A(f"s_branch {backs[-1]}")
    for NT, backs in r2.items():
        A.lab(f"L_r2c_{NT}")
        A("s_nop 7")
        for dt in range(8):
            for qt in range(NT):
                for i in range(4):
                    A(f"v_accvgpr_read_b32 {vr(vT+i)}, {vr(aO+16*dt+4*qt+i)}")
                for i in range(4):
                    A(f"v_mul_f32 {vr(vT+i)}, {vr(vT+i)}, {vr(vFAC+qt)}")
                for i in range(4):
                    A(f"v_accvgpr_write_b32 {vr(aO+16*dt+4*qt+i)}, {vr(vT+i)}")
        A(f"s_mov_b32 {sr(sT0)}, {sr(sPEND)}"); A(f"s_mov_b32 {sr(sPEND)}, 0")
        for k, b in enumerate(backs[:-1]):
            A(f"s_cmp_eq_u32 {sr(sT0)}, {k}"); A(f"s_cbranch_scc1 {b}")
        A(f"s_branch {backs[-1]}")


XLDS = 32768


def x_rows(rt, own):
    if own:
        return [f"ds_write_b128 {vr(vL16)}, {vr(gACC+28*ct+4*rt,4)} offset:{XLDS + (4*rt+ct)*1024}" for ct in range(4)]
    L = []
    t = gT + 8 * (rt % 6)
    for h in range(2):
        for ct in (2 * h, 2 * h + 1):
            a = gACC + 28 * ct + 4 * rt
            L += [f"v_cvt_pk_bf16_f32 {vr(t+2*ct)}, {vr(a)}, {vr(a+1)}", f"v_cvt_pk_bf16_f32 {vr(t+2*ct+1)}, {vr(a+2)}, {vr(a+3)}"]
        L.append(f"buffer_store_dwordx4 {vr(t+4*h,4)}, {vr(vL16)}, {sr(S_WS,4)}, {sr(sXS)} offen offset:{((2*rt+h)&3)*1024} sc1")
    if rt & 1:
        L.append(f"s_add_u32 {sr(sXS)}, {sr(sXS)}, 4096")
    return L


def exchange(A, o):
    R, D = gACC, gX
    A("s_mov_b64 exec, 15")
    A(f"v_lshlrev_b32 {vr(vT+5)}, 3, {vr(vLANE)}")
    A(f"v_add_u32 {vr(vT+5)}, {sr(sXF)}, {vr(vT+5)}")
    A("s_mov_b64 exec, -1")
    A(f"s_lshl_b32 {sr(sT3)}, 1, {sr(sHG)}")
    q, g, wa, ra, oa, rd = vT, vT + 1, gT, gT + 4, gT + 5, gT + 6
    A(f"v_and_b32 {vr(q)}, 15, {vr(vLANE)}"); A(f"v_lshrrev_b32 {vr(g)}, 4, {vr(vLANE)}")
    A(f"v_add_u32 {vr(rd)}, {sr(sW8)}, {vr(vL16)}")
    A("s_waitcnt lgkmcnt(0)")
    A("s_barrier")
    for i in range(8):
        A(f"ds_read_b128 {vr(R+4*i,4)}, {vr(rd)} offset:{XLDS + i*1024}")
    A(f"v_lshrrev_b32 {vr(wa)}, 1, {vr(g)}"); A(f"v_and_b32 {vr(ra)}, 7, {vr(q)}"); A(f"v_xor_b32 {vr(wa)}, {vr(wa)}, {vr(ra)}")
    A(f"v_lshlrev_b32 {vr(wa)}, 4, {vr(wa)}"); A(f"v_and_b32 {vr(g)}, 1, {vr(g)}"); A(f"v_lshl_add_u32 {vr(wa)}, {vr(g)}, 3, {vr(wa)}")
    A(f"v_lshl_add_u32 {vr(wa)}, {vr(q)}, 7, {vr(wa)}")
    A(f"s_add_u32 {sr(sT0)}, {sr(sW4)}, {XLDS + 32768}"); A(f"v_add_u32 {vr(wa)}, {sr(sT0)}, {vr(wa)}")
    for ct in range(1, 4):
        A(f"v_xor_b32 {vr(wa+ct)}, {32*ct}, {vr(wa)}")
    A(f"v_lshrrev_b32 {vr(q)}, 3, {vr(vLANE)}"); A(f"v_and_b32 {vr(g)}, 7, {vr(vLANE)}")
    A(f"v_lshlrev_b32 {vr(oa)}, 12, {vr(q)}"); A(f"v_lshl_add_u32 {vr(oa)}, {vr(g)}, 4, {vr(oa)}")
    A(f"v_xor_b32 {vr(ra)}, {vr(g)}, {vr(q)}"); A(f"v_lshlrev_b32 {vr(ra)}, 4, {vr(ra)}"); A(f"v_lshl_add_u32 {vr(ra)}, {vr(q)}, 7, {vr(ra)}")
    A(f"v_add_u32 {vr(ra)}, {sr(sT0)}, {vr(ra)}")
    A("s_mov_b64 exec, 15")
    poll4(A, sT3, False)
    A("s_mov_b64 exec, -1")
    stamp(A, 3, o.xst)
    l3, lj = A.newlab("L_w3"), A.newlab("L_xj")
    A(f"s_cmp_eq_u32 {sr(sWAVE)}, 3"); A(f"s_cbranch_scc1 {l3}")
    for n in (2, 1):
        if n == 1: A.lab(l3)
        for r in range(n):
            for k in range(3):
                for h in range(2):
                    A(f"buffer_load_dwordx4 {vr(D+24*r+8*k+4*h,4)}, {vr(vL16)}, {sr(S_WS,4)}, {sr(sXL[k])} offen offset:{(2*r+h)*1024} sc1")
        A("s_waitcnt lgkmcnt(0)")
        for r in range(n):
            for k in range(3):
                A(f"s_waitcnt vmcnt({6*(n-1-r) + 4 - 2*k + 2*r})")
                for i in range(8):
                    p, t = D + 24 * r + 8 * k + i, gACC + 40 + 2 * (i % 4)
                    A(f"v_lshlrev_b32 {vr(t)}, 16, {vr(p)}"); A(f"v_and_b32 {vr(t+1)}, 0xffff0000, {vr(p)}")
                    A(f"v_pk_add_f32 {vr(R+16*r+2*i,2)}, {vr(R+16*r+2*i,2)}, {vr(t,2)}")
            for ct in range(4):
                a = R + 16 * r + 4 * ct
                A(f"v_cvt_pk_bf16_f32 {vr(a)}, {vr(a)}, {vr(a+1)}"); A(f"v_cvt_pk_bf16_f32 {vr(a+1)}, {vr(a+2)}, {vr(a+3)}")
                A(f"ds_write_b64 {vr(wa+ct)}, {vr(a,2)} offset:{2048*r}")
            A("s_waitcnt lgkmcnt(0)")
            t = gACC + 48 + 8 * r
            for h in range(2):
                A(f"ds_read_b128 {vr(t+4*h,4)}, {vr(ra)} offset:{2048*r + 1024*h}")
            for h in range(2):
                A(f"s_waitcnt lgkmcnt({1-h})")
                A(f"buffer_store_dwordx4 {vr(t+4*h,4)}, {vr(oa)}, {sr(S_OUT,4)}, {sr(sOO)} offen sc1")
                A(f"s_add_u32 {sr(sOO)}, {sr(sOO)}, {8*4096}")
        if n == 2: A(f"s_branch {lj}")
    A.lab(lj)


def build(o):
    A = Asm()
    st = o.stamps
    for l in HEADER.splitlines(): A(l)
    A(f"; @launch grid=(256,1,1) block=(256,1,1) lds={LDS}")
    A('.amdgcn_target "amdgcn-amd-amdhsa--gfx950"'); A(".text")
    A(f".globl {KN}"); A(".p2align 8"); A(f".type {KN},@function"); A.lab(KN)
    A(f"s_cmp_ge_u32 s2, 256"); A("s_cbranch_scc1 L_exit")
    tail = []
    stamp(A, 0, st)
    prologue(A, o)
    if o.early_setup:
        late_setup(A, o)
    H = lambda s_: sum((dma_half(o, x[0], int(x[1])) for x in s_.split("+") if x), [])
    kvp = o.kvplan.split(",")
    gemm(A, o, "Q", o.wpre, {"13e": H(kvp[0]), "14l": H(kvp[1]), "14e": H(kvp[2]), "15l": H(kvp[3])})
    A.groups(H(kvp[4]))
    q_finish(A, o)
    stamp(A, 1, st)
    A(f"s_cmp_lg_u32 {sr(sC2)}, 0"); A(f"s_cbranch_scc1 L_att3")
    attention(A, o, 4, tail)
    A("s_branch L_attdone")
    A.lab("L_att3")
    attention(A, o, 3, tail)
    A.lab("L_attdone")
    stamp(A, 3, st)
    A.q = []
    gemm(A, o, "G", 63, {})
    exchange(A, o)
    if o.xst:
        stamp(A, 6, True); A("s_waitcnt vmcnt(0)")
    stamp(A, 5, st)
    if st:
        write_stamps(A)
    A.lab("L_exit")
    A("s_endpgm")
    rare_blocks(A, tail)
    A('.section .rodata,"a"')
    A(".p2align 6")
    A(f".amdhsa_kernel {KN}")
    A("  .amdhsa_next_free_vgpr 504"); A("  .amdhsa_next_free_sgpr 102"); A("  .amdhsa_accum_offset 256")
    A("  .amdhsa_group_segment_fixed_size 0"); A("  .amdhsa_kernarg_size 104"); A("  .amdhsa_user_sgpr_count 2")
    A("  .amdhsa_user_sgpr_kernarg_segment_ptr 1"); A("  .amdhsa_system_sgpr_workgroup_id_x 1")
    A(".end_amdhsa_kernel")
    return A.text()


if __name__ == "__main__":
    ap = argparse.ArgumentParser()
    ap.add_argument("-o", default="concat_heads__mha_block_cached__gqa_block_cached__near_ridge.s")
    ap.add_argument("--stamps", action="store_true")
    ap.add_argument("--qst", action="store_true")
    ap.add_argument("--xst", action="store_true")
    ap.add_argument("--steps", default="")
    ap.add_argument("--nt", default="KV")
    ap.add_argument("--win", type=int, default=5)
    ap.add_argument("--lazy", type=int, default=5)
    ap.add_argument("--nokv", action="store_true")
    ap.add_argument("--defer", type=int, default=0)
    ap.add_argument("--common", type=int, default=1)
    ap.add_argument("--qodd", default="159d3742bf8c06ae")
    ap.add_argument("--gseq", type=int, default=2)
    ap.add_argument("--qtab", default="")
    ap.add_argument("--pst", default="")
    ap.add_argument("--qseq", default="159d236ae47bf8c0")
    ap.add_argument("--wplan", default="0,1,2")
    ap.add_argument("--opad", type=int, default=0)
    ap.add_argument("--xpad", type=int, default=0)
    ap.add_argument("--wpre", type=int, default=6)
    ap.add_argument("--early_setup", type=int, default=1)
    ap.add_argument("--kvplan", default="K0+K1,V0,K2,V1,")
    ap.add_argument("--wtouch", default="")
    ap.add_argument("--whead", type=int, default=0)
    a = ap.parse_args()
    open(a.o, "w").write(build(a))
```

```python
import argparse, struct, math

KN = "concat_heads__mha_block_cached__gqa_block_cached__near_ridge_kernel"
WS_BYTES = 305659904
O_BYTES = 16 * 8 * 128 * 1024
X_OFF = O_BYTES
X_BYTES = 64 * 4 * 4 * 16384
F_RDY = X_OFF + X_BYTES
F_XCH = F_RDY + 64 * 128
WSL, XSL, XB = 32768, 16384, 98304
ASL = 32768
QIMG1 = 98304
LDS = 163840
f32 = lambda x: struct.unpack("<I", struct.pack("<f", x))[0]
C_SCALE = f32(math.log2(math.e) / math.sqrt(128.0))
THR = f32(8.0)
OOB = 0x40000000

HEADER = """\
; One launch, 256 workgroups of 4 waves, one per CU.  Workgroup = (branch, batch, two adjacent heads).
; -> output projection tile (112x256 over 8 heads) -> partial sums exchanged through ws between 4 workgroups -> out.
"""


class Asm:
    def __init__(self):
        self.L = []
        self.uid = 0
        self.q = []
        self.clock = 0
        self.born = {}
        self.lazy = 0

    def __call__(self, s):
        self.L.append(s)

    def lab(self, name):
        self.L.append(name + ":")

    def newlab(self, p="L"):
        self.uid += 1
        return f"{p}_{self.uid}"

    def need(self, tags):
        pos = max([i for i, t in enumerate(self.q) if t in tags], default=-1)
        if pos >= 0:
            while self.lazy and pos + 1 < len(self.q) and self.clock - self.born[self.q[pos + 1]] >= self.lazy:
                pos += 1
            self.L.append(f"s_waitcnt lgkmcnt({len(self.q) - pos - 1})")
            self.q = self.q[pos + 1:]

    def emit(self, it):
        if isinstance(it, str):
            self(it)
        elif it[0] == "ds":
            if len(self.q) >= 15:
                self.need([self.q[3]])
            self.L.append(it[1]); self.q.append(it[2]); self.born[it[2]] = self.clock
        elif it[0] == "bar":
            self(f"s_waitcnt vmcnt({it[1]}) lgkmcnt(0)"); self.q = []
            self("s_barrier")
        elif it[0] == "lab":
            self.lab(it[1])
        elif it[0] == "call":
            it[1]()

    def groups(self, gs):
        for g in gs:
            for s in g: self(s)

    def run(self, mf, after):
        for m, (txt, tags) in enumerate(mf):
            self.need(tags)
            self(txt)
            self.clock += 1
            for it in after.get(m, []): self.emit(it)

    def text(self):
        return "\n".join(self.L) + "\n"


def vr(a, n=1):
    p, a = ("a", a - 256) if a >= 256 else ("v", a)
    return f"{p}{a}" if n == 1 else f"{p}[{a}:{a+n-1}]"


def sr(a, n=1):
    return f"s{a}" if n == 1 else f"s[{a}:{a+n-1}]"


def mfma(d, a, b, c):
    return f"v_mfma_f32_16x16x32_bf16 {vr(d,4)}, {vr(a,4)}, {vr(b,4)}, {c if c == '0' else vr(c,4)}"


def put(after, m, items):
    after.setdefault(m, []).extend(items)


def spread(after, items, lo, hi):
    tot = sum(c for _, c in items)
    acc, pos = 0.0, []
    for its, c in items:
        g = lo + int((acc + c / 2) / tot * (hi - lo))
        put(after, g, its if isinstance(its, list) else [its])
        pos.append(g); acc += c
    return pos


S_X, S_W, S_K, S_V, S_O, S_WS, S_OUT = 4, 8, 12, 16, 20, 24, 28
sWAVE, sBR, sB, sH0, sHG, sHP = 32, 33, 34, 35, 38, 39
sKA = 36
sDBG = 40
sWS = 42
sT0, sT1, sT2, sT3 = 44, 45, 46, 47
sXS = 48
sXF = 51
sW8, sW4, sAM = 52, 80, 81
sCNT = 53
sXO, sWO_ = 54, 55
sKO, sVO = 56, 57
sC, sTHR = 58, 59
sGS = 60
sWOP = 62
sST = 64
sPEND = 82
sSPIN = 83
sU, sC2 = 84, 85
sWB = 86
sROT = 87
sTO = 88
sOST = 89
sNON = 90
sFL = 92
sOO = 93
sPTR = 94
sSW, sSX = 96, 98
sXL = [3, 100, 101]

vLANE = 1
vT = 2
vDX = 10
vDW = 14
vXB = 18
vTB = 20
vDK = 28
vDV = 32
vSC = 34
vL16 = 36
vOW = 37
vTAG = 38
vFAC = 40
vP = 44
vS = 60
vKF = 124
vVF = 156
vKA = 208
vVA = 216
vNM = 232
vLS = 248
aO = 256
aQ = 384
aG = 480
aTCH = 498
gACC = 40
gX = 152
gW = 448
gT = 208


def stamp(A, i, on):
    if on:
        q = list(A.q)
        A(f"s_memrealtime {sr(sST + 2*i, 2)}")
        A(f"s_memtime {sr(sPTR, 2)}")
        A("s_waitcnt lgkmcnt(0)")
        A(f"s_mov_b32 {sr(sST + 2*i + 1)}, {sr(sPTR)}")
        A.q = q


def write_stamps(A):
    l = A.newlab("L_st")
    A(f"s_cmp_lg_u32 {sr(sWAVE)}, 0"); A(f"s_cbranch_scc1 {l}")
    A(f"s_mov_b32 {sr(sT0)}, {WS_BYTES - 512*64}")
    A(f"s_lshl_b32 {sr(sT1)}, s2, 6")
    A(f"s_add_u32 {sr(sT0)}, {sr(sT0)}, {sr(sT1)}")
    A(f"s_add_u32 {sr(sPTR)}, {sr(sWS)}, {sr(sT0)}")
    A(f"s_addc_u32 {sr(sPTR+1)}, {sr(sWS+1)}, 0")
    A(f"v_mov_b32 v2, 0")
    for i in range(16):
        A(f"v_mov_b32 v{4+i}, {sr(sST+i)}")
    A("s_mov_b64 exec, 1")
    for i in range(4):
        A(f"global_store_dwordx4 v2, v[{4+4*i}:{7+4*i}], {sr(sPTR,2)} offset:{16*i}")
    A.lab(l)


def srd(A, d, lo, add, nrec):
    if add is None:
        A(f"s_mov_b32 {sr(d)}, {sr(lo)}"); A(f"s_mov_b32 {sr(d+1)}, {sr(lo+1)}")
    else:
        A(f"s_add_u32 {sr(d)}, {sr(lo)}, {add}"); A(f"s_addc_u32 {sr(d+1)}, {sr(lo+1)}, 0")
    A(f"s_mov_b32 {sr(d+2)}, {nrec}")
    A(f"s_mov_b32 {sr(d+3)}, 0x20000")


def raise_flag(A, sig_s):
    ls, lg = A.newlab("L_tag"), A.newlab("L_tagok")
    A("s_mov_b64 exec, 1")
    A(f"s_cmp_lg_u32 {sr(sNON+1)}, 0"); A(f"s_cbranch_scc1 {lg}")
    A(f"v_mov_b32 {vr(vT+4)}, 0")
    A(f"s_mov_b32 {sr(sSPIN)}, 0")
    A.lab(ls)
    A(f"global_load_dwordx2 {vr(vT+2,2)}, {vr(vT+4)}, {sr(sDBG,2)} sc1")
    A("s_waitcnt vmcnt(0)")
    A(f"v_readfirstlane_b32 {sr(sNON)}, {vr(vT+2)}")
    A(f"v_readfirstlane_b32 {sr(sNON+1)}, {vr(vT+3)}")
    A(f"s_add_u32 {sr(sSPIN)}, {sr(sSPIN)}, 1")
    A(f"s_cmp_lg_u32 {sr(sNON+1)}, 0"); A(f"s_cbranch_scc1 {lg}")
    A("s_sleep 4")
    A(f"s_cmp_lt_u32 {sr(sSPIN)}, 0x4000"); A(f"s_cbranch_scc1 {ls}")
    A.lab(lg)
    A(f"v_mov_b32 {vr(vT+4)}, {sr(sig_s)}"); A(f"v_mov_b32 {vr(vT+2)}, {sr(sNON)}"); A(f"v_mov_b32 {vr(vT+3)}, {sr(sNON+1)}")
    A(f"global_store_dwordx2 {vr(vT+4)}, {vr(vT+2,2)}, {sr(sWS,2)} sc1")
    A("s_mov_b64 exec, -1")


def poll4(A, own_s, first_done):
    ls, lg = A.newlab("L_spin"), A.newlab("L_go")
    ld = lambda r: f"global_load_dwordx2 {vr(r,2)}, {vr(vT+5)}, {sr(sWS,2)} sc1"

    def check(r):
        A(f"v_cmp_eq_u64 vcc, {sr(sNON,2)}, {vr(r,2)}")
        A(f"s_add_u32 {sr(sSPIN)}, {sr(sSPIN)}, 1")
        A(f"s_or_b32 {sr(sT2)}, vcc_lo, {sr(own_s)}")
        A(f"s_cmp_eq_u32 {sr(sT2)}, 15")
        A(f"s_cbranch_scc1 {lg}")
    A(f"s_mov_b32 {sr(sSPIN)}, 0")
    if first_done:
        check(vT + 6)
    A(ld(vT + 6))
    A("s_sleep 4")
    A.lab(ls)
    A(ld(vT + 2)); A("s_waitcnt vmcnt(1)"); check(vT + 6)
    A(ld(vT + 6)); A("s_waitcnt vmcnt(1)"); check(vT + 2)
    A(f"s_cmp_lt_u32 {sr(sSPIN)}, 0x8000"); A(f"s_cbranch_scc1 {ls}")
    A.lab(lg)


def team_signal(A):
    l = A.newlab("L_sig")
    A(f"s_cmp_lg_u32 {sr(sWAVE)}, 0"); A(f"s_cbranch_scc1 {l}")
    A(f"s_lshl_b32 {sr(sT1)}, {sr(sHP)}, 3"); A(f"s_add_u32 {sr(sT1)}, {sr(sT1)}, {sr(sFL)}")
    A(f"v_lshlrev_b32 {vr(vT+5)}, 3, {vr(vLANE)}")
    A(f"v_add_u32 {vr(vT+5)}, {sr(sFL)}, {vr(vT+5)}")
    raise_flag(A, sT1)
    A.lab(l)


def team_wait(A):
    le = A.newlab("L_wend")
    A(f"s_cmp_lg_u32 {sr(sWAVE)}, 0"); A(f"s_cbranch_scc1 {le}")
    A("s_mov_b64 exec, 15")
    A(f"s_lshl_b32 {sr(sT3)}, 1, {sr(sHP)}")
    poll4(A, sT3, False)
    A("s_mov_b64 exec, -1")
    A.lab(le)


def next_chunk(seq, off, sh):
    return [f"s_lshr_b64 {sr(seq,2)}, {sr(seq,2)}, 4", f"s_and_b32 {sr(off)}, {sr(seq)}, 15", f"s_lshl_b32 {sr(off)}, {sr(off)}, {sh}"]


def seq_words(seq):
    v = sum(c << (4 * i) for i, c in enumerate(seq))
    return v & 0xffffffff, v >> 32


def seq_add(A, seq, add_s):
    A(f"s_mul_i32 {sr(sT0)}, {sr(add_s)}, 0x11111111")
    A(f"s_and_b32 {sr(sT1)}, {sr(sT0)}, 0x77777777")
    for w in (seq, seq + 1):
        A(f"s_xor_b32 {sr(sT2)}, {sr(w)}, {sr(sT0)}"); A(f"s_and_b32 {sr(sT2)}, {sr(sT2)}, 0x88888888")
        A(f"s_and_b32 {sr(w)}, {sr(w)}, 0x77777777"); A(f"s_add_u32 {sr(w)}, {sr(w)}, {sr(sT1)}"); A(f"s_xor_b32 {sr(w)}, {sr(w)}, {sr(sT2)}")


QSEQ = [0, 1, 4, 5, 2, 8, 9, 3, 12, 13, 6, 10, 14, 7, 11, 15]
GSEQ = [[0, 1, 2, 3] + [4 + ((3 * b >> 1) + i) % 12 for i in range(12)] for b in range(8)]


def dma_w(o, kind, j):
    fl = " nt" if kind in o.nt else ""
    sh = 13 if kind == "W" else 11
    g = [[f"buffer_load_dwordx4 {vr(vDW+(t&3))}, {sr(S_W,4)}, {sr(sWO_ if t < 4 else sWB)} offen offset:{(t&3)*1024}{fl} lds"] for t in range(8)]
    g[0] = [f"s_add_u32 m0, {sr(sW8)}, {(j%3)*WSL}", f"s_add_u32 {sr(sWB)}, {sr(sWO_)}, {32 << sh}"] + g[0]
    g[3] += next_chunk(sSW, sWO_, sh + 6)
    g[4] = [f"s_add_u32 m0, {sr(sW8)}, {(j%3)*WSL + 4096}", "s_nop 0"] + g[4]
    return g


def dma_x(o, kind, j):
    srd_, fl = (S_X, " nt" if "X" in o.nt else "") if kind == "X" else (S_O, " sc1")
    g = [[f"buffer_load_dwordx4 {vr(vDX+t)}, {sr(srd_,4)}, {sr(sXO)} offen offset:{t*1024}{fl} lds"] for t in range(4)]
    g[0] = [f"s_add_u32 m0, {sr(sW4)}, {XB + (j%3)*XSL}", "s_nop 0"] + g[0]
    g[3] += next_chunk(sSX, sXO, 7 if kind == "X" else 11)
    return g


aslot = lambda item: (3 + item) & 3


def dma_half(o, kv, tile):
    srd_, va, n, off, item = (S_K, vDK, 4, 16384, tile) if kv == "K" else (S_V, vDV, 2, 0, tile + 1)
    fl = " nt" if kv in o.nt else ""
    g = [[f"buffer_load_dwordx4 {vr(va+t%n)}, {sr(srd_,4)}, {sr(sKO)} offen offset:{t*1024}{fl} lds"] for t in range(4)]
    g[0] = [f"s_add_u32 m0, {sr(sW4)}, {ASL*(1+aslot(item)) + off}", f"s_lshl_b32 {sr(sKO)}, {sr(sC2)}, 12", f"s_add_u32 {sr(sKO)}, {sr(sKO)}, {tile*8192}"] + g[0]
    return g


def dma_tile(o, kv, slot):
    srd_, va, n, off, so = (S_K, vDK, 4, 16384, sKO) if kv == "K" else (S_V, vDV, 2, 0, sVO)
    fl = " nt" if kv in o.nt else ""
    w = [f"s_waitcnt vmcnt({o.win-1})"] if o.win else []
    g = [w + [f"buffer_load_dwordx4 {vr(va+t%n)}, {sr(srd_,4)}, {sr(so)} offen offset:{(t&3)*1024}{fl} lds"] for t in range(8)]
    g[0] = [f"s_add_u32 m0, {sr(sAM)}, {ASL*(1+slot) + off}", "s_nop 0"] + g[0]
    g[3] += [f"s_add_u32 {sr(so)}, {sr(so)}, 4096"]
    g[4] = [f"s_add_u32 m0, {sr(sAM)}, {ASL*(1+slot) + off + 4096}", "s_nop 0"] + g[4]
    g[7] += [f"s_add_u32 {sr(so)}, {sr(so)}, 12288"]
    return g


def w_offsets(A, dst, rshift, wflav):
    l3, t0, t1 = vT, vT + 1, vT + 2
    A(f"v_lshrrev_b32 {vr(l3)}, 3, {vr(vLANE)}")
    A(f"v_bfe_u32 {vr(t0)}, {vr(vLANE)}, 4, {1 if wflav else 2}")
    A(f"v_lshlrev_b32 {vr(t0)}, 1, {vr(t0)}")
    A(f"v_and_b32 {vr(t1)}, 7, {vr(vLANE)}")
    A(f"v_xor_b32 {vr(t0)}, {vr(t0)}, {vr(t1)}")
    A(f"v_lshlrev_b32 {vr(t0)}, 4, {vr(t0)}")
    A(f"s_lshl_b32 {sr(sT3)}, {sr(sWAVE)}, 7")
    A(f"v_lshl_add_u32 {vr(l3)}, {vr(l3)}, {rshift}, {sr(sT3)}")
    for t in range(4):
        A(f"v_xor_b32 {vr(t1)}, {64*(t&1) if wflav else 0}, {vr(t0)}")
        A(f"v_add_u32 {vr(t1)}, {vr(t1)}, {vr(l3)}")
        A(f"v_add_u32 {vr(dst+t)}, {(8*t << rshift) - 1024*t}, {vr(t1)}")


def gemm_tr_bases(A, dst, gshift, rot):
    g, r, c, x = vT, vT + 1, vT + 2, vT + 3
    A(f"v_lshrrev_b32 {vr(g)}, 4, {vr(vLANE)}")
    A(f"v_bfe_u32 {vr(r)}, {vr(vLANE)}, 2, 2")
    A(f"v_and_b32 {vr(c)}, 3, {vr(vLANE)}"); A(f"v_lshlrev_b32 {vr(c)}, 3, {vr(c)}")
    A(f"v_lshl_add_u32 {vr(c)}, {vr(g)}, {gshift}, {vr(c)}")
    A(f"v_lshl_add_u32 {vr(c)}, {vr(r)}, 7, {vr(c)}")
    A(f"v_lshrrev_b32 {vr(r)}, 1, {vr(r)}"); A(f"v_lshl_add_u32 {vr(c)}, {vr(r)}, 5, {vr(c)}")
    A(f"v_and_b32 {vr(g)}, 1, {vr(g)}"); A(f"v_lshl_add_u32 {vr(c)}, {vr(g)}, 6, {vr(c)}")
    A(f"v_add_u32 {vr(c)}, {sr(sW8)}, {vr(c)}")
    for ct in range(4):
        if rot:
            A(f"s_add_u32 {sr(sT0)}, {sr(sHG)}, {ct}"); A(f"s_and_b32 {sr(sT0)}, {sr(sT0)}, 3"); A(f"s_lshl_b32 {sr(sT0)}, {sr(sT0)}, 5")
            A(f"v_xor_b32 {vr(dst+ct)}, {sr(sT0)}, {vr(c)}")
        else:
            A(f"v_xor_b32 {vr(dst+ct)}, {32*ct}, {vr(c)}")
        A(f"v_add_u32 {vr(dst+4+ct)}, 0x10000, {vr(dst+ct)}")


def qseqs(base, odd=None):
    out = []
    for rho in range(8):
        sq = [(c + 2 * rho) & 15 for c in (odd if (odd and rho & 1) else base)]
        assert sorted(sq) == list(range(16))
        sq.remove(0)
        out.append([0] + sq)
    return out


def prologue(A, o):
    A(f"s_bfe_u32 {sr(sBR)}, s2, 0x10002")
    A(f"s_mul_i32 {sr(sT0)}, {sr(sBR)}, 40")
    A(f"s_add_u32 {sr(sKA)}, s0, {sr(sT0)}"); A(f"s_addc_u32 {sr(sKA+1)}, s1, 0")
    A(f"s_load_dwordx2 s[70:71], {sr(sKA,2)}, 24")
    A(f"s_load_dwordx2 s[74:75], {sr(sKA,2)}, 0")
    A(f"v_lshrrev_b32 v2, 6, v0")
    A(f"v_and_b32 {vr(vLANE)}, 63, v0")
    A(f"v_readfirstlane_b32 {sr(sWAVE)}, v2")
    A(f"s_and_b32 {sr(sHG)}, s2, 3")
    A(f"s_bfe_u32 {sr(sHP)}, s2, 0x20003")
    A(f"s_bfe_u32 {sr(sB)}, s2, 0x30005")
    A(f"s_lshl_b32 {sr(sH0)}, {sr(sHG)}, 2"); A(f"s_add_u32 {sr(sH0)}, {sr(sH0)}, {sr(sHP)}"); A(f"s_lshl_b32 {sr(sH0)}, {sr(sH0)}, 1")
    A(f"s_lshl_b32 {sr(sW8)}, {sr(sWAVE)}, 13")
    A(f"s_lshl_b32 {sr(sW4)}, {sr(sWAVE)}, 12")
    A(f"s_lshl_b32 {sr(sROT)}, {sr(sHP)}, 1"); A(f"s_add_u32 {sr(sROT)}, {sr(sROT)}, {sr(sB)}"); A(f"s_and_b32 {sr(sROT)}, {sr(sROT)}, 7")
    if o.common:
        A(f"s_mov_b32 {sr(sXO)}, 0"); A(f"s_mov_b32 {sr(sWO_)}, 0")
    else:
        A(f"s_lshl_b32 {sr(sXO)}, {sr(sROT)}, 8"); A(f"s_lshl_b32 {sr(sWO_)}, {sr(sROT)}, 20")
    w_offsets(A, vDW, 13, True)
    A(f"s_lshl_b32 {sr(sT0)}, {sr(sH0)}, 8")
    A(f"s_mul_i32 {sr(sT1)}, {sr(sB)}, 229376")
    A("s_waitcnt lgkmcnt(0)")
    srd(A, S_W, 70, sr(sT0), "0")
    A(f"s_sub_u32 {sr(S_W+2)}, 0x800000, {sr(sT0)}")
    srd(A, S_X, 74, sr(sT1), "229376")
    strip = lambda gs: [[x for x in g if not any(x == y for y in next_chunk(sSW, sWO_, 19) + next_chunk(sSX, sXO, 7))] for g in gs]
    A.groups(strip(dma_w(o, "W", 0)))
    A(f"s_load_dwordx2 s[66:67], {sr(sKA,2)}, 8")
    A(f"s_load_dwordx2 s[68:69], {sr(sKA,2)}, 16")
    A(f"s_load_dwordx2 {sr(sWOP,2)}, {sr(sKA,2)}, 32")
    A(f"s_load_dwordx2 s[72:73], s[0:1], 80")
    A(f"s_load_dwordx2 {sr(sDBG,2)}, s[0:1], 88")
    A(f"s_load_dwordx2 {sr(sWS,2)}, s[0:1], 96")
    l3, l4, t0, t1 = vT, vT + 1, vT + 2, vT + 3
    A(f"v_lshrrev_b32 {vr(l3)}, 3, {vr(vLANE)}")
    A(f"v_lshrrev_b32 {vr(l4)}, 4, {vr(vLANE)}")
    A(f"s_lshl_b32 {sr(sT2)}, {sr(sWAVE)}, 16")
    A(f"v_and_b32 {vr(t1)}, 7, {vr(vLANE)}")
    A(f"v_xor_b32 {vr(t1)}, {vr(t1)}, {vr(l4)}")
    A(f"v_lshlrev_b32 {vr(t1)}, 4, {vr(t1)}")
    A(f"v_lshl_add_u32 {vr(l3)}, {vr(l3)}, 11, {sr(sT2)}")
    for t in range(4):
        A(f"v_xor_b32 {vr(t0)}, {64*(t&1)}, {vr(t1)}")
        A(f"v_add_u32 {vr(t0)}, {vr(t0)}, {vr(l3)}")
        A(f"v_add_u32 {vr(vDX+t)}, {8*t*2048 - 1024*t}, {vr(t0)}")
    A.groups(strip(dma_x(o, "X", 0)))
    base = [int(c, 16) for c in o.qseq]
    if o.common:
        for rho, sq in enumerate([[int(c, 16) for c in x] for x in o.qtab.split(',')] if o.qtab else qseqs(base, [int(c, 16) for c in o.qodd])):
            lo, hi = seq_words(sq)
            if rho == 0:
                A(f"s_mov_b32 {sr(sSW)}, {lo:#x}"); A(f"s_mov_b32 {sr(sSW+1)}, {hi:#x}")
            else:
                A(f"s_cmp_eq_u32 {sr(sROT)}, {rho}")
                A(f"s_cselect_b32 {sr(sSW)}, {lo:#x}, {sr(sSW)}"); A(f"s_cselect_b32 {sr(sSW+1)}, {hi:#x}, {sr(sSW+1)}")
    else:
        lo, hi = seq_words(base)
        A(f"s_mov_b32 {sr(sSW)}, {lo:#x}"); A(f"s_mov_b32 {sr(sSW+1)}, {hi:#x}")
        A(f"s_lshl_b32 {sr(sT3)}, {sr(sROT)}, 1")
        seq_add(A, sSW, sT3)
    A(f"s_mov_b64 {sr(sSX,2)}, {sr(sSW,2)}")
    for x in next_chunk(sSW, sWO_, 19) + next_chunk(sSX, sXO, 7): A(x)
    A.groups((dma_w(o, "W", 1) + dma_x(o, "X", 1) + dma_w(o, "W", 2))[:o.wpre])
    A(f"s_lshr_b32 {sr(sU)}, {sr(sWAVE)}, 1"); A(f"s_and_b32 {sr(sC2)}, {sr(sWAVE)}, 1")
    A(f"s_lshl_b32 {sr(sAM)}, {sr(sU)}, 13")
    A("s_waitcnt lgkmcnt(0)")
    l = A.newlab("L_notag")
    A(f"s_or_b32 {sr(sT0)}, s2, {sr(sWAVE)}"); A(f"s_cmp_lg_u32 {sr(sT0)}, 0"); A(f"s_cbranch_scc1 {l}")
    A(f"s_memrealtime {sr(sPTR,2)}"); A("s_waitcnt lgkmcnt(0)")
    A(f"v_mov_b32 {vr(vT+2)}, {sr(sPTR)}"); A(f"v_mov_b32 {vr(vT+3)}, {sr(sPTR+1)}"); A(f"v_mov_b32 {vr(vT+4)}, 0")
    A(f"v_or_b32 {vr(vT+3)}, 0x80000000, {vr(vT+3)}")
    A("s_mov_b64 exec, 1")
    A(f"global_store_dwordx2 {vr(vT+4)}, {vr(vT+2,2)}, {sr(sDBG,2)} sc1")
    A("s_mov_b64 exec, -1")
    A.lab(l)
    q, g, r = vT, vT + 1, vT + 2
    A(f"v_lshlrev_b32 {vr(vL16)}, 4, {vr(vLANE)}")
    A(f"v_and_b32 {vr(q)}, 15, {vr(vLANE)}")
    A(f"v_lshrrev_b32 {vr(g)}, 4, {vr(vLANE)}")
    A(f"v_bfe_u32 {vr(r)}, {vr(vLANE)}, 1, 3")
    A(f"v_xor_b32 {vr(r)}, {vr(r)}, {vr(g)}")
    A(f"v_lshlrev_b32 {vr(r)}, 4, {vr(r)}")
    A(f"v_lshl_add_u32 {vr(r)}, {vr(q)}, 7, {vr(r)}")
    A(f"v_add_u32 {vr(vXB)}, {XB}, {vr(r)}")
    A(f"v_xor_b32 {vr(vXB+1)}, 64, {vr(vXB)}")
    gemm_tr_bases(A, vTB, 10, False)


def late_setup(A, o):
    A(f"s_lshl_b32 {sr(sT0)}, {sr(sB)}, 5"); A(f"s_add_u32 {sr(sT0)}, {sr(sT0)}, {sr(sH0)}")
    A(f"s_add_u32 {sr(sT0)}, {sr(sT0)}, {sr(sU)}"); A(f"s_lshl_b32 {sr(sT0)}, {sr(sT0)}, 18")
    srd(A, S_K, 66, sr(sT0), "0" if o.nokv else "0x40000")
    srd(A, S_V, 68, sr(sT0), "0" if o.nokv else "0x40000")
    srd(A, S_OUT, 72, None, str(896 * 4096))
    srd(A, S_WS, sWS, None, str(X_OFF + X_BYTES))
    A(f"s_mov_b32 {sr(sC)}, {C_SCALE:#x}"); A(f"s_mov_b32 {sr(sTHR)}, {THR:#x}"); A(f"s_mov_b32 {sr(sPEND)}, 0")
    l4, t0, t1, t2 = vT, vT + 1, vT + 2, vT + 3
    A(f"v_lshrrev_b32 {vr(l4)}, 4, {vr(vLANE)}")
    A(f"v_and_b32 {vr(t1)}, 15, {vr(vLANE)}")
    A(f"v_lshlrev_b32 {vr(t2)}, 8, {vr(l4)}")
    A(f"v_xor_b32 {vr(t0)}, {vr(l4)}, {vr(t1)}")
    A(f"v_lshl_add_u32 {vr(vDK)}, {vr(t0)}, 4, {vr(t2)}")
    for t in range(1, 4):
        A(f"v_xor_b32 {vr(vDK+t)}, {64*t}, {vr(vDK)}")
    A(f"v_lshlrev_b32 {vr(t0)}, 1, {vr(l4)}")
    A(f"v_xor_b32 {vr(t0)}, {vr(t0)}, {vr(t1)}")
    A(f"v_lshl_add_u32 {vr(vDV)}, {vr(t0)}, 4, {vr(t2)}")
    A(f"v_xor_b32 {vr(vDV+1)}, 128, {vr(vDV)}")
    q, g, t0, r, c = vT, vT + 1, vT + 2, vT + 3, vT + 4
    A(f"v_and_b32 {vr(q)}, 15, {vr(vLANE)}"); A(f"v_lshrrev_b32 {vr(g)}, 4, {vr(vLANE)}")
    A(f"v_xor_b32 {vr(t0)}, {vr(g)}, {vr(q)}"); A(f"v_lshlrev_b32 {vr(t0)}, 4, {vr(t0)}")
    A(f"v_lshl_add_u32 {vr(t0)}, {vr(q)}, 8, {vr(t0)}")
    A(f"s_add_u32 {sr(sT1)}, {sr(sAM)}, {ASL}"); A(f"s_add_u32 {sr(sT0)}, {sr(sAM)}, {ASL + 16384}")
    A(f"v_add_u32 {vr(vKA)}, {sr(sT0)}, {vr(t0)}")
    for s in range(1, 4):
        A(f"v_xor_b32 {vr(vKA+s)}, {64*s}, {vr(vKA)}")
    for s in range(4):
        A(f"v_add_u32 {vr(vKA+4+s)}, 0x10000, {vr(vKA+s)}")
    A(f"v_bfe_u32 {vr(r)}, {vr(vLANE)}, 2, 2")
    A(f"v_and_b32 {vr(c)}, 3, {vr(vLANE)}"); A(f"v_lshlrev_b32 {vr(c)}, 3, {vr(c)}")
    A(f"v_lshl_add_u32 {vr(c)}, {vr(g)}, 10, {vr(c)}")
    A(f"v_lshl_add_u32 {vr(c)}, {vr(r)}, 8, {vr(c)}")
    A(f"v_lshl_add_u32 {vr(c)}, {vr(r)}, 5, {vr(c)}")
    A(f"v_and_b32 {vr(g)}, 1, {vr(g)}"); A(f"v_lshl_add_u32 {vr(c)}, {vr(g)}, 7, {vr(c)}")
    A(f"v_add_u32 {vr(vVA)}, {sr(sT1)}, {vr(c)}")
    for dt in range(1, 8):
        A(f"v_xor_b32 {vr(vVA+dt)}, {32*dt}, {vr(vVA)}")
    for dt in range(8):
        A(f"v_add_u32 {vr(vVA+8+dt)}, 0x10000, {vr(vVA+dt)}")
    for i in range(128):
        A(f"v_accvgpr_write_b32 {vr(aO+i)}, 0")
    A(f"v_mov_b32 {vr(vSC)}, {sr(sC)}"); A(f"v_mov_b32 {vr(vSC+1)}, {sr(sC)}")
    P = vNM
    for t in range(4):
        A(f"s_lshl_b32 {sr(sT1)}, {sr(sWAVE)}, 18")
        A(f"s_add_u32 {sr(sT1)}, {sr(sT1)}, {((t >> 1) << 17) + ((t & 1) << 10) - 1024*t}")
        A(f"v_add_u32 {vr(P+t)}, {sr(sT1)}, {vr(vL16)}")
    w_offsets(A, P + 4, 11, False)
    A(f"v_add_u32 {vr(P+8)}, {XB}, {vr(vL16)}"); A(f"v_add_u32 {vr(P+9)}, {XB + 1024}, {vr(vL16)}")
    gemm_tr_bases(A, P + 10, 9, False)
    for i in range(18):
        A(f"v_accvgpr_write_b32 {vr(aG+i)}, {vr(P+i)}")
    A(f"s_lshl_b32 {sr(sT0)}, {sr(sU)}, 15"); A(f"s_lshl_b32 {sr(sT1)}, {sr(sC2)}, 13"); A(f"s_add_u32 {sr(sT0)}, {sr(sT0)}, {sr(sT1)}")
    A(f"v_add_u32 {vr(vOW)}, {sr(sT0)}, {vr(P+8)}")
    for i in range(24):
        A(f"v_mov_b32 {vr(vNM+i)}, 0")
    offs = {0: [3 * b >> 1 for b in range(8)], 1: [3 * (b >> 1) for b in range(8)], 2: [6 * (b & 1) for b in range(8)], 3: [2 * (b % 6) for b in range(8)], 4: [0] * 8, 5: [4 * (b % 3) for b in range(8)]}[o.gseq]
    for b, sq in enumerate([[0, 1, 2, 3] + [4 + (x + i) % 12 for i in range(12)] for x in offs]):
        lo, hi = seq_words(sq)
        if b == 0:
            A(f"s_mov_b32 {sr(sGS)}, {lo:#x}"); A(f"s_mov_b32 {sr(sGS+1)}, {hi:#x}")
        else:
            A(f"s_cmp_eq_u32 {sr(sB)}, {b}")
            A(f"s_cselect_b32 {sr(sGS)}, {lo:#x}, {sr(sGS)}"); A(f"s_cselect_b32 {sr(sGS+1)}, {hi:#x}, {sr(sGS+1)}")
    A(f"s_lshl_b32 {sr(sT3)}, {sr(sHP)}, 2")
    seq_add(A, sGS, sT3)
    A(f"s_lshl_b32 {sr(sT3)}, {sr(sBR)}, 3"); A(f"s_add_u32 {sr(sT3)}, {sr(sT3)}, {sr(sB)}")
    A(f"s_mul_i32 {sr(sT0)}, {sr(sT3)}, {(7 << 17) + o.opad}")
    A(f"s_lshl_b32 {sr(sOST)}, {sr(sC2)}, 19"); A(f"s_add_u32 {sr(sOST)}, {sr(sOST)}, {sr(sT0)}")
    A(f"s_add_u32 {sr(sT1)}, {sr(sH0)}, {sr(sU)}"); A(f"s_lshl_b32 {sr(sT1)}, {sr(sT1)}, 12"); A(f"s_add_u32 {sr(sOST)}, {sr(sOST)}, {sr(sT1)}")
    A(f"s_lshl_b32 {sr(sT1)}, {sr(sHG)}, 15"); A(f"s_add_u32 {sr(sT0)}, {sr(sT0)}, {sr(sT1)}")
    srd(A, S_O, sWS, sr(sT0), str(7 << 17))
    A(f"s_lshl_b32 {sr(sFL)}, {sr(sT3)}, 2"); A(f"s_add_u32 {sr(sFL)}, {sr(sFL)}, {sr(sHG)}")
    A(f"s_lshl_b32 {sr(sFL)}, {sr(sFL)}, 7"); A(f"s_add_u32 {sr(sFL)}, {sr(sFL)}, {F_RDY}")
    A(f"s_lshl_b32 {sr(sT0)}, {sr(sT3)}, 2"); A(f"s_add_u32 {sr(sT0)}, {sr(sT0)}, {sr(sHP)}")
    A(f"s_lshl_b32 {sr(sT0)}, {sr(sT0)}, 2")
    A(f"s_add_u32 {sr(sT1)}, {sr(sT0)}, {sr(sWAVE)}"); A(f"s_add_u32 {sr(sT2)}, {sr(sT0)}, {sr(sHG)}")
    A(f"s_lshl_b32 {sr(sXF)}, {sr(sT2)}, 7"); A(f"s_add_u32 {sr(sXF)}, {sr(sXF)}, {F_XCH}")
    A(f"s_lshl_b32 {sr(sXS+1)}, {sr(sT1)}, 7"); A(f"s_lshl_b32 {sr(sT3)}, {sr(sHG)}, 3")
    A(f"s_add_u32 {sr(sXS+1)}, {sr(sXS+1)}, {sr(sT3)}"); A(f"s_add_u32 {sr(sXS+1)}, {sr(sXS+1)}, {F_XCH}")
    A(f"s_lshl_b32 {sr(sXS)}, {sr(sT1)}, 2"); A(f"s_add_u32 {sr(sXS)}, {sr(sXS)}, {sr(sHG)}")
    A(f"s_lshl_b32 {sr(sXS)}, {sr(sXS)}, 14"); A(f"s_add_u32 {sr(sXS)}, {sr(sXS)}, {X_OFF}")
    A(f"s_lshl_b32 {sr(sT2)}, {sr(sT2)}, 16"); A(f"s_add_u32 {sr(sT2)}, {sr(sT2)}, {sr(sW4)}"); A(f"s_add_u32 {sr(sT2)}, {sr(sT2)}, {X_OFF}")
    for k in range(1, 4):
        A(f"s_add_u32 {sr(sT1)}, {sr(sHG)}, {k}"); A(f"s_and_b32 {sr(sT1)}, {sr(sT1)}, 3"); A(f"s_lshl_b32 {sr(sT1)}, {sr(sT1)}, 14")
        A(f"s_add_u32 {sr(sXL[k-1])}, {sr(sT1)}, {sr(sT2)}")
    A(f"s_mul_i32 {sr(sOO)}, {sr(sB)}, {112*4096}")
    for reg, sh in ((sBR, 11), (sHP, 9), (sHG, 7), (sWAVE, 17)):
        A(f"s_lshl_b32 {sr(sT1)}, {sr(reg)}, {sh}"); A(f"s_add_u32 {sr(sOO)}, {sr(sOO)}, {sr(sT1)}")


def gemm(A, o, kind, vm0, fill):
    Q = kind == "Q"
    xk, wk = ("X", "W") if Q else ("O", "G")
    A.lazy = o.lazy

    defer = (not Q) and o.defer
    dj = lambda j: defer and j >= 13
    xreg = lambda j, s, rt: (aO + 56 * (j - 13) if dj(j) else gX) + 28 * s + 4 * rt
    wreg = lambda j, s, ct: aO + 168 + 8 * (j - 13) + 4 * s if (dj(j) and ct == 0) else gW + 16 * s + 4 * ct

    def wr(j, s):
        L = []
        for ct in range(4):
            f = wreg(j, s, ct)
            for e in range(2):
                reg, off = (vTB + 4 + ct, 0) if j % 3 == 2 else (vTB + ct, (j % 3) * WSL)
                L.append(("ds", f"ds_read_b64_tr_b16 {vr(f+2*e,2)}, {vr(reg)} offset:{off + 4096*s + (512 if Q else 2048)*e}", f"w{s}{ct}"))
        return L[2:] + L[:2] if dj(j) else L

    def xr(j, s, rt):
        slot = 3 if (j == 3 and not Q) else j % 3
        return ("ds", f"ds_read_b128 {vr(xreg(j,s,rt),4)}, {vr(vXB+s)} offset:{slot*XSL + 2048*rt}", f"x{s}{rt}")

    def carry(j):
        if o.a7:
            return wr(j, 0)[:2] + [xr(j, 0, rt) for rt in range(7)] + wr(j, 0)[2:4]
        return wr(j, 0) + [xr(j, 0, rt) for rt in range(3)]

    W = lambda j: dma_w(o, wk, j)
    X = lambda j: dma_x(o, xk, j)

    def step(j, late, early, vm, hook=None):
        mf, after = [], {}
        for k_, v_ in (hook or {}).items():
            put(after, k_, v_)
        cts = (1, 2, 3) if dj(j) else (0, 1, 2, 3)
        sc = lambda x: x * len(cts) // 4
        for s in range(2):
            tiles = [(rt, ct) for rt in range(7) for ct in cts]
            if o.a7 and not (j == 15 and s == 1):
                tiles = [(rt, ct) for ct in cts for rt in range(7)]
            for rt, ct in tiles:
                a = gACC + 28 * ct + 4 * rt
                mf.append((mfma(a, wreg(j, s, ct), xreg(j, s, rt), "0" if (j == 0 and s == 0) else a),
                           [f"w{s}{ct}", f"x{s}{rt}"]))
        r = [xr(j, 0, rt) for rt in range(3, 7)] + wr(j, 1) + [xr(j, 1, rt) for rt in range(7)]
        if o.a7:
            r = wr(j, 0)[4:] + wr(j, 1)[:2] + [xr(j, 1, rt) for rt in range(7)] + wr(j, 1)[2:]
            if j == 15: r = wr(j, 0)[4:] + wr(j, 1) + [xr(j, 1, rt) for rt in range(7)]
        spread(after, [(x, 1) for x in r], 2, sc(30))
        if late:
            spread(after, [(g, 1) for g in late], 0, sc(38))
        if j < 15:
            if j == 1 and not Q:
                put(after, 40, [("call", lambda: team_wait(A))])
            put(after, sc(40), [("bar", vm)])
            if j == 0 and not Q:
                put(after, 40, [("call", lambda: team_signal(A))])
            spread(after, [(x, 1) for x in carry(j + 1)], sc(40), sc(53))
            if early:
                spread(after, [(g, 1) for g in early], sc(41), sc(56))
        elif defer:
            A.lazy = 0
            for jj in (13, 14, 15):
                for s in range(2):
                    for rt in range(7):
                        a = gACC + 4 * rt
                        mf.append((mfma(a, wreg(jj, s, 0), xreg(jj, s, rt), a), ["w00", "w10"]))
        A.run(mf, after)

    E = 3
    A.emit(("bar", vm0))
    stamp(A, 6, o.stamps and (o.qst == Q))
    for it in carry(0): A.emit(it)
    if Q:
        pre = W(1) + X(1) + W(2)
        n0 = max(16, o.wpre)
        step(0, pre[o.wpre:n0], pre[n0:] + X(2)[:2], n0 - 12, None if o.early_setup else {39: [("call", lambda: late_setup(A, o))]})
        step(1, X(2)[2:] + W(3) + X(3), W(4)[:E], 12)
    else:
        wl = sum((W(int(c)) for c in o.wplan.split(",")[2]), [])
        if len(wl) == 16:
            step(0, wl, W(3)[:E], 8)
        else:
            step(0, wl, W(3)[:E], len(wl))
        step(1, W(3)[E:], W(4)[:E], 8)
    steady = lambda j: step(j, W(j + 2)[E:] + X(j + 2), W(j + 3)[:E], 12)
    diag = o.steps == kind
    stamp(A, 1, diag)
    steady(2)
    stamp(A, 2, diag)
    steady(3)
    stamp(A, 3, diag)
    if diag:
        for j in range(4, 13):
            steady(j)
            if j in (5, 8): stamp(A, {5: 4, 8: 5}[j], True)
    else:
        A(f"s_mov_b32 {sr(sCNT)}, 3")
        q0 = list(A.q)
        l = A.newlab("L_gl")
        A.lab(l)
        for j in (4, 5, 6):
            steady(j)
        assert A.q == q0
        A(f"s_sub_u32 {sr(sCNT)}, {sr(sCNT)}, 1"); A(f"s_cmp_lg_u32 {sr(sCNT)}, 0"); A(f"s_cbranch_scc1 {l}")
    g = lambda k: fill.get(k, [])
    step(13, W(15)[E:] + X(15), g("13e"), 12)
    step(14, g("14l"), g("14e"), len(g("13e")) + len(g("14l")))
    if Q:
        step(15, g("15l"), [], 0)
    else:
        q0, lo, lj = list(A.q), A.newlab("L_own"), A.newlab("L_sent")
        A(f"s_cmp_eq_u32 {sr(sWAVE)}, {sr(sHG)}"); A(f"s_cbranch_scc1 {lo}")
        for own in (False, True):
            if own: A.lab(lo)
            A.q = list(q0)
            hook = {}
            for rt in range(5):
                spread(hook, [(x, 1) for x in x_rows(rt, own)], 28 + 4 * rt + 8, 28 + 4 * rt + 12)
            step(15, [], [], 0, hook)
            for x in x_rows(5, own) + ["s_nop 1"] + x_rows(6, own): A(x)
            if not own:
                A("s_waitcnt vmcnt(0)")
                stamp(A, 2, o.xst)
                raise_flag(A, sXS + 1)
                A(f"s_branch {lj}")
        A.lab(lj)
    A.lazy = 0
    stamp(A, 7, o.stamps and (o.qst == Q))
    if diag:
        A("s_waitcnt vmcnt(0)"); write_stamps(A); A("s_endpgm")


def q_finish(A, o):
    q, g, t0, t1 = vT, vT + 1, vT + 2, vT + 3
    ta = gX + 16
    A(f"v_mov_b32 {vr(t0)}, 0")
    A(f"global_load_dwordx2 {vr(vTAG,2)}, {vr(t0)}, {sr(sDBG,2)} sc1")
    A(f"v_and_b32 {vr(q)}, 15, {vr(vLANE)}")
    A(f"v_lshrrev_b32 {vr(g)}, 4, {vr(vLANE)}")
    A(f"v_lshrrev_b32 {vr(t0)}, 1, {vr(g)}")
    A(f"s_lshl_b32 {sr(sT0)}, {sr(sC2)}, 3")
    A(f"v_xor_b32 {vr(t0)}, {sr(sT0)}, {vr(t0)}")
    A(f"v_xor_b32 {vr(t0)}, {vr(t0)}, {vr(q)}")
    A(f"v_lshlrev_b32 {vr(t0)}, 4, {vr(t0)}")
    A(f"v_and_b32 {vr(t1)}, 1, {vr(g)}")
    A(f"v_lshl_add_u32 {vr(t0)}, {vr(t1)}, 3, {vr(t0)}")
    A(f"s_mul_i32 {sr(sT0)}, {sr(sU)}, {QIMG1}")
    A(f"v_lshl_add_u32 {vr(t1)}, {vr(q)}, 8, {sr(sT0)}")
    A(f"v_add_u32 {vr(vT+4)}, {vr(t0)}, {vr(t1)}")
    for ct in range(1, 4):
        A(f"v_xor_b32 {vr(vT+4+ct)}, {32*ct}, {vr(vT+4)}")
    A(f"v_xor_b32 {vr(t0)}, {vr(g)}, {vr(q)}")
    A(f"v_lshlrev_b32 {vr(t0)}, 4, {vr(t0)}")
    A(f"s_lshl_b32 {sr(sT0)}, {sr(sC2)}, 14")
    A(f"v_add3_u32 {vr(t1)}, {vr(t1)}, {vr(t0)}, {sr(sT0)}")
    first = True
    for rt in range(7):
        for ct in range(4):
            a = gACC + 28 * ct + 4 * rt
            A(f"v_pk_mul_f32 {vr(a,2)}, {vr(a,2)}, {vr(vSC,2)}")
            A(f"v_pk_mul_f32 {vr(a+2,2)}, {vr(a+2,2)}, {vr(vSC,2)}")
            A(f"v_cvt_pk_bf16_f32 {vr(a)}, {vr(a)}, {vr(a+1)}")
            A(f"v_cvt_pk_bf16_f32 {vr(a+1)}, {vr(a+2)}, {vr(a+3)}")
            if first:
                A("s_barrier")
                first = False
            A(f"ds_write_b64 {vr(vT+4+ct)}, {vr(a,2)} offset:{4096*rt}")
        if rt in (2, 5):
            A("s_waitcnt lgkmcnt(2)")
    for s in range(4):
        A(f"v_xor_b32 {vr(ta+s)}, {64*s}, {vr(t1)}")
    A.emit(("bar", 17))
    for x in kreads(aslot(0)): A(x[1])
    for qt in range(4):
        for s in range(4):
            A(f"ds_read_b128 {vr(aQ+16*qt+4*s,4)}, {vr(ta+s)} offset:{4096*qt}")
            if (qt, s) in ((1, 1), (3, 1)):
                A("s_waitcnt lgkmcnt(4)")
    for i in range(18):
        A(f"v_accvgpr_read_b32 {vr(vDX+i)}, {vr(aG+i)}")
    A(f"s_lshl_b32 {sr(sT0)}, {sr(sHG)}, 21"); A(f"s_lshl_b32 {sr(sT1)}, {sr(sHP)}, 9"); A(f"s_add_u32 {sr(sT0)}, {sr(sT0)}, {sr(sT1)}")
    srd(A, S_W, sWOP, sr(sT0), "0")
    A(f"s_sub_u32 {sr(S_W+2)}, 0x800000, {sr(sT0)}")
    A(f"s_lshl_b32 {sr(sWO_)}, {sr(sHP)}, 19")
    A(f"s_mov_b64 {sr(sSW,2)}, {sr(sGS,2)}")
    A(f"s_lshr_b64 {sr(sSX,2)}, {sr(sGS,2)}, 12")
    for x in next_chunk(sSX, sXO, 11): A(x)
    A(f"v_lshrrev_b32 {vr(vSC)}, 2, {vr(vLANE)}"); A(f"v_lshlrev_b32 {vr(vSC)}, 11, {vr(vSC)}")
    A(f"v_and_b32 {vr(vSC+1)}, 3, {vr(vLANE)}"); A(f"v_lshl_add_u32 {vr(vSC)}, {vr(vSC+1)}, 7, {vr(vSC)}")
    if o.whead:
        A(f"v_lshlrev_b32 {vr(vSC+1)}, 25, {vr(vLANE)}"); A(f"v_and_b32 {vr(vSC+1)}, {OOB}, {vr(vSC+1)}"); A(f"v_or_b32 {vr(vSC)}, {vr(vSC)}, {vr(vSC+1)}")
        A(f"s_lshl_b32 {sr(sTO)}, {sr(sB)}, 16"); A(f"s_lshl_b32 {sr(sT0)}, {sr(sWAVE)}, 14"); A(f"s_add_u32 {sr(sTO)}, {sr(sTO)}, {sr(sT0)}")
        A(f"s_add_u32 {sr(sTO)}, {sr(sTO)}, {sr(sWO_)}")
    else:
        A(f"s_lshl_b32 {sr(sTO)}, {sr(sB)}, 18"); A(f"s_lshl_b32 {sr(sT0)}, {sr(sWAVE)}, 15"); A(f"s_add_u32 {sr(sTO)}, {sr(sTO)}, {sr(sT0)}")
    A.emit(("bar", 63))
    A.groups(dma_half(o, "V", 2))
    A(f"s_add_u32 {sr(sKO)}, {sr(sC2)}, 3"); A(f"s_lshl_b32 {sr(sKO)}, {sr(sKO)}, 13"); A(f"s_mov_b32 {sr(sVO)}, {sr(sKO)}")


def kreads(slot):
    L = []
    for s in range(4):
        for kt in range(2):
            L.append(("ds", f"ds_read_b128 {vr(vKF+16*kt+4*s,4)}, {vr(vKA+4*(slot>>1)+s)} offset:{(slot&1)*ASL+4096*kt}", f"k{kt}{s}"))
    return L


def new_max(S, NT, clamp):
    L = []
    for qt in range(NT):
        mx, o2 = vT, vT + 1
        a, b = S + 4 * qt, S + 16 + 4 * qt
        L += [f"v_max3_f32 {vr(mx)}, {vr(a)}, {vr(a+1)}, {vr(a+2)}", f"v_max3_f32 {vr(mx)}, {vr(mx)}, {vr(a+3)}, {vr(b)}",
              f"v_max3_f32 {vr(mx)}, {vr(mx)}, {vr(b+1)}, {vr(b+2)}", f"v_max_f32 {vr(mx)}, {vr(mx)}, {vr(b+3)}"]
        for sw in ("16", "32"):
            L += [f"v_mov_b32 {vr(o2)}, {vr(mx)}", "s_nop 1", f"v_permlane{sw}_swap_b32 {vr(mx)}, {vr(o2)}", "s_nop 1",
                  f"v_max_f32 {vr(mx)}, {vr(mx)}, {vr(o2)}"]
        if clamp:
            L += [f"v_max_f32 {vr(mx)}, 0, {vr(mx)}", f"v_exp_f32 {vr(vFAC+qt)}, -{vr(mx)}"]
        L += [f"v_sub_f32 {vr(x+i)}, {vr(x+i)}, {vr(mx)}" for x in (a, b, vNM + 4 * qt) for i in range(4)]
        if clamp:
            L += [f"v_mul_f32 {vr(vLS+2*qt+i)}, {vr(vLS+2*qt+i)}, {vr(vFAC+qt)}" for i in range(2)]
    return L


def attention(A, o, NT, tail):
    NQ = 8 * NT
    NE = 2 * NT
    c2 = 4 - NT
    sreg = lambda S, i: S + 16 * ((i >> 2) & 1) + 4 * (i >> 3) + (i & 3)

    def vreads(slot):
        return [("ds", f"ds_read_b64_tr_b16 {vr(vVF+4*dt+2*e,2)}, {vr(vVA+8*(slot>>1)+dt)} offset:{(slot&1)*ASL+4096*e}", f"v{dt}")
                for dt in range(8) for e in range(2)]

    def part2(Sp, qt):
        st = []
        for i in range(8 * qt, 8 * qt + 8):
            if i + NE < NQ:
                r = sreg(Sp, i + NE)
                st.append((f"v_exp_f32 {vr(r)}, {vr(r)}", 8))
            if i & 1:
                r = sreg(Sp, i - 1)
                st.append((f"v_pk_add_f32 {vr(vLS+2*qt,2)}, {vr(vLS+2*qt,2)}, {vr(r,2)}", 4.5))
                st.append((f"v_cvt_pk_bf16_f32 {vr(vP+4*qt+((i&7)>>1))}, {vr(r)}, {vr(r+1)}", 4.5))
        return st

    def pend_check():
        l2, b2 = A.newlab("L_r2"), A.newlab("L_b2")
        tail.append(("r2", l2, b2, NT))
        return [f"s_cmp_lg_u32 {sr(sPEND)}, 0", f"s_cbranch_scc1 {l2}", ("lab", b2)]

    def group(t):
        return dma_tile(o, "V" if t & 1 else "K", aslot(t + 3 + c2))

    def it(u, late, early, vmb, first=False, knext=True):
        p = u & 1
        S, Sp = vS + 32 * p, vS + 32 * (1 - p)
        mf, after = [], {}
        allk = [f"k{kt}{s}" for kt in range(2) for s in range(4)]
        for s in range(4):
            for kt in range(2):
                for qt in range(NT):
                    d = S + 16 * kt + 4 * qt
                    mf.append((mfma(d, vKF + 16 * kt + 4 * s, aQ + 16 * qt + 4 * s, vNM + 4 * qt if s == 0 else d), allk))
        mx = vT
        order = [sreg(S, i) for i in range(NQ)]
        order.sort(key=lambda r: ((r - S) >> 4, (r - S) & 15))
        m1 = [f"v_max3_f32 {vr(mx)}, {vr(order[0])}, {vr(order[1])}, {vr(order[2])}"]
        m1 += [f"v_max3_f32 {vr(mx)}, {vr(mx)}, {vr(order[i])}, {vr(order[i+1])}" for i in range(3, NQ - 1, 2)]
        m1 += [f"v_max_f32 {vr(mx)}, {vr(mx)}, {vr(order[NQ-1])}"]
        E1 = [f"v_exp_f32 {vr(sreg(S,i))}, {vr(sreg(S,i))}" for i in range(NE)]
        kr = kreads(aslot(u + 1))
        if first:
            put(after, NQ - 1, [("bar", vmb)] + kr + sum(early, [])
                + [f"v_readfirstlane_b32 {sr(sNON)}, {vr(vTAG)}", f"v_readfirstlane_b32 {sr(sNON+1)}, {vr(vTAG+1)}"]
                + new_max(S, NT, False) + E1)
            A.run(mf, after)
            return
        for qt in range(NT):
            for dt in range(8):
                mf.append((mfma(aO + 16 * dt + 4 * qt, vVF + 4 * dt, vP + 4 * qt, aO + 16 * dt + 4 * qt), [f"v{dt}"]))
        spread(after, [(x, 1) for x in vreads(aslot(u))], 0, NQ - 2)
        if late:
            spread(after, [(g, 1) for g in late], 0, NQ + 2)
        put(after, 4, pend_check())
        st, due = [], {}
        for qt in range(NT):
            st += part2(Sp, qt)
            due[qt] = len(st) - 1
        i_m1 = len(st)
        l1, b1 = A.newlab("L_r1"), A.newlab("L_b1")
        tail.append(("r1", l1, b1, S, NT))
        st += [(x, 4.5) for x in m1]
        st.append(([f"v_cmp_lt_f32 vcc, {sr(sTHR)}, {vr(mx)}", f"s_cbranch_vccnz {l1}", ("lab", b1)], 9))
        st += [(x, 8) for x in E1]
        pos = spread(after, st, 0, 2 * NQ)
        for qt in range(NT):
            assert pos[due[qt]] < NQ + 8 * qt - 2, (qt, pos[due[qt]])
        assert pos[i_m1] >= NQ + 4, pos[i_m1]
        put(after, NQ + 2, [("bar", vmb)])
        if knext:
            spread(after, [(x, 1) for x in kr], NQ + 3, 2 * NQ - 6)
        if early:
            spread(after, [(g, 1) for g in early], NQ + 3, 2 * NQ)
        A.run(mf, after)

    A.q = []
    it(0, [], group(0)[:4], 4, first=True)
    q0 = list(A.q)
    A(f"s_mov_b32 {sr(sCNT)}, 7")
    A.lab(f"L_aloop_{NT}")
    def touch(trip):
        return [[f"s_cmp_eq_u32 {sr(sCNT)}, {trip}", f"s_cselect_b32 {sr(sT1)}, {sr(sTO)}, {OOB}", f"s_cselect_b32 {sr(sT2)}, 0x20000, 0",
                 f"buffer_load_dword {vr(aTCH)}, {vr(vSC)}, {sr(S_W,4)}, {sr(sT1)} offen", f"s_add_u32 {sr(sTO)}, {sr(sTO)}, {sr(sT2)}"]]
    tp = dict((int(x[0]), int(x[1])) for x in o.wtouch.split(",")) if o.wtouch else {}
    for u in (1, 2, 3, 0):
        it(u, group(u - 1)[4:], (touch(tp[u]) if u in tp else []) + group(u)[:4], 8)
    assert A.q == q0
    A(f"s_sub_u32 {sr(sCNT)}, {sr(sCNT)}, 1"); A(f"s_cmp_lg_u32 {sr(sCNT)}, 0"); A(f"s_cbranch_scc1 L_aloop_{NT}")
    last = group(29) if c2 == 0 else [[]] * 8
    it(1, group(28)[4:], [g for g in last[:4] if g], 8)
    w30, w31 = [[dma_w(o, "G", int(c)) for c in x] for x in o.wplan.split(",")[:2]]
    it(2, [g for g in last[4:] if g], sum(w30, []), 8 if c2 == 0 else 0)
    it(3, [], sum(w31, []), 8 * len(w30), knext=False)
    stamp(A, 2, o.stamps)
    Sp = vS + 32
    for x in vreads(aslot(32)): A.emit(x)
    for x in pend_check(): A.emit(x)

    def lred(qt):
        a, b = vLS + 2 * qt, vLS + 2 * qt + 1
        L = [f"v_add_f32 {vr(a)}, {vr(a)}, {vr(b)}"]
        for sw in ("16", "32"):
            L += [f"v_mov_b32 {vr(b)}, {vr(a)}", "s_nop 1", f"v_permlane{sw}_swap_b32 {vr(a)}, {vr(b)}", "s_nop 1", f"v_add_f32 {vr(a)}, {vr(a)}, {vr(b)}"]
        return L + [f"v_rcp_f32 {vr(a)}, {vr(a)}", "s_nop 0", f"v_mov_b32 {vr(b)}, {vr(a)}"]

    def outq(qt):
        L = []
        for m in range(4):
            t = vS + 8 * m
            d = vKF + 4 * ((4 * qt + m) % 8)
            L += [f"v_accvgpr_read_b32 {vr(t+i)}, {vr(aO + 16*(2*m + (i>>2)) + 4*qt + (i&3))}" for i in range(8)]
            L += [f"v_pk_mul_f32 {vr(t+2*i,2)}, {vr(t+2*i,2)}, {vr(vLS+2*qt,2)}" for i in range(4)]
            L += [f"v_cvt_pk_bf16_f32 {vr(d+i)}, {vr(t+2*i)}, {vr(t+2*i+1)}" for i in range(4)]
            L.append(f"ds_write_b128 {vr(vOW)}, {vr(d,4)} offset:{(m>>1)*XSL + qt*2048 + (m&1)*1024}")
            L.append(f"buffer_store_dwordx4 {vr(d,4)}, {vr(vL16)}, {sr(S_WS,4)}, {sr(sOST)} offen offset:{m*1024} sc1")
        L.append(f"s_add_u32 {sr(sOST)}, {sr(sOST)}, 0x20000")
        return L

    for x, _ in part2(Sp, 0): A(x)
    mf, after = [], {}
    for qt in range(NT):
        for dt in range(8):
            mf.append((mfma(aO + 16 * dt + 4 * qt, vVF + 4 * dt, vP + 4 * qt, aO + 16 * dt + 4 * qt), [f"v{dt}"]))
        st = [(x, 1) for x in lred(qt)]
        if qt + 1 < NT:
            st = [(x, 1) for x, _ in part2(Sp, qt + 1)] + st
        spread(after, st, 8 * qt, 8 * qt + 7)
        put(after, 8 * qt + 7, ["s_nop 1"])
    put(after, 7, ["s_barrier"])
    A("s_nop 1")
    A.run(mf, after)
    A("s_nop 3")
    for qt in range(NT):
        for x in outq(qt): A(x)
    A(f"s_waitcnt vmcnt({4*NT})")


def rare_blocks(A, tail):
    r2, r1 = {}, {}
    for t in tail:
        if t[0] == "r1":
            _, l1, b1, S, NT = t
            k = len(r1.setdefault((NT, S), []))
            r1[(NT, S)].append(b1)
            A.lab(l1)
            A(f"s_mov_b32 {sr(sT0)}, {k}"); A(f"s_branch L_r1c_{NT}_{S}")
        else:
            _, l2, b2, NT = t
            k = len(r2.setdefault(NT, []))
            r2[NT].append(b2)
            A.lab(l2)
            A(f"s_mov_b32 {sr(sPEND)}, {k}"); A(f"s_branch L_r2c_{NT}")
    for (NT, S), backs in r1.items():
        A.lab(f"L_r1c_{NT}_{S}")
        for x in new_max(S, NT, True): A(x)
        A(f"s_mov_b32 {sr(sPEND)}, 1")
        for k, b in enumerate(backs[:-1]):
            A(f"s_cmp_eq_u32 {sr(sT0)}, {k}"); A(f"s_cbranch_scc1 {b}")
        A(f"s_branch {backs[-1]}")
    for NT, backs in r2.items():
        A.lab(f"L_r2c_{NT}")
        A("s_nop 7")
        for dt in range(8):
            for qt in range(NT):
                for i in range(4):
                    A(f"v_accvgpr_read_b32 {vr(vT+i)}, {vr(aO+16*dt+4*qt+i)}")
                for i in range(4):
                    A(f"v_mul_f32 {vr(vT+i)}, {vr(vT+i)}, {vr(vFAC+qt)}")
                for i in range(4):
                    A(f"v_accvgpr_write_b32 {vr(aO+16*dt+4*qt+i)}, {vr(vT+i)}")
        A(f"s_mov_b32 {sr(sT0)}, {sr(sPEND)}"); A(f"s_mov_b32 {sr(sPEND)}, 0")
        for k, b in enumerate(backs[:-1]):
            A(f"s_cmp_eq_u32 {sr(sT0)}, {k}"); A(f"s_cbranch_scc1 {b}")
        A(f"s_branch {backs[-1]}")


XLDS = 32768


def x_rows(rt, own):
    if own:
        return [f"ds_write_b128 {vr(vL16)}, {vr(gACC+28*ct+4*rt,4)} offset:{XLDS + (4*rt+ct)*1024}" for ct in range(4)]
    L = []
    t = gT + 8 * (rt % 6)
    for h in range(2):
        for ct in (2 * h, 2 * h + 1):
            a = gACC + 28 * ct + 4 * rt
            L += [f"v_cvt_pk_bf16_f32 {vr(t+2*ct)}, {vr(a)}, {vr(a+1)}", f"v_cvt_pk_bf16_f32 {vr(t+2*ct+1)}, {vr(a+2)}, {vr(a+3)}"]
        L.append(f"buffer_store_dwordx4 {vr(t+4*h,4)}, {vr(vL16)}, {sr(S_WS,4)}, {sr(sXS)} offen offset:{((2*rt+h)&3)*1024} sc1")
    if rt & 1:
        L.append(f"s_add_u32 {sr(sXS)}, {sr(sXS)}, 4096")
    return L


def exchange(A, o):
    R, D = gACC, gX
    A("s_mov_b64 exec, 15")
    A(f"v_lshlrev_b32 {vr(vT+5)}, 3, {vr(vLANE)}")
    A(f"v_add_u32 {vr(vT+5)}, {sr(sXF)}, {vr(vT+5)}")
    A("s_mov_b64 exec, -1")
    A(f"s_lshl_b32 {sr(sT3)}, 1, {sr(sHG)}")
    q, g, wa, ra, oa, rd = vT, vT + 1, gT, gT + 4, gT + 5, gT + 6
    A(f"v_and_b32 {vr(q)}, 15, {vr(vLANE)}"); A(f"v_lshrrev_b32 {vr(g)}, 4, {vr(vLANE)}")
    A(f"v_add_u32 {vr(rd)}, {sr(sW8)}, {vr(vL16)}")
    A("s_waitcnt lgkmcnt(0)")
    A("s_barrier")
    for i in range(8):
        A(f"ds_read_b128 {vr(R+4*i,4)}, {vr(rd)} offset:{XLDS + i*1024}")
    A(f"v_lshrrev_b32 {vr(wa)}, 1, {vr(g)}"); A(f"v_and_b32 {vr(ra)}, 7, {vr(q)}"); A(f"v_xor_b32 {vr(wa)}, {vr(wa)}, {vr(ra)}")
    A(f"v_lshlrev_b32 {vr(wa)}, 4, {vr(wa)}"); A(f"v_and_b32 {vr(g)}, 1, {vr(g)}"); A(f"v_lshl_add_u32 {vr(wa)}, {vr(g)}, 3, {vr(wa)}")
    A(f"v_lshl_add_u32 {vr(wa)}, {vr(q)}, 7, {vr(wa)}")
    A(f"s_add_u32 {sr(sT0)}, {sr(sW4)}, {XLDS + 32768}"); A(f"v_add_u32 {vr(wa)}, {sr(sT0)}, {vr(wa)}")
    for ct in range(1, 4):
        A(f"v_xor_b32 {vr(wa+ct)}, {32*ct}, {vr(wa)}")
    A(f"v_lshrrev_b32 {vr(q)}, 3, {vr(vLANE)}"); A(f"v_and_b32 {vr(g)}, 7, {vr(vLANE)}")
    A(f"v_lshlrev_b32 {vr(oa)}, 12, {vr(q)}"); A(f"v_lshl_add_u32 {vr(oa)}, {vr(g)}, 4, {vr(oa)}")
    A(f"v_xor_b32 {vr(ra)}, {vr(g)}, {vr(q)}"); A(f"v_lshlrev_b32 {vr(ra)}, 4, {vr(ra)}"); A(f"v_lshl_add_u32 {vr(ra)}, {vr(q)}, 7, {vr(ra)}")
    A(f"v_add_u32 {vr(ra)}, {sr(sT0)}, {vr(ra)}")
    A("s_mov_b64 exec, 15")
    poll4(A, sT3, False)
    A("s_mov_b64 exec, -1")
    stamp(A, 3, o.xst)
    l3, lj = A.newlab("L_w3"), A.newlab("L_xj")
    A(f"s_cmp_eq_u32 {sr(sWAVE)}, 3"); A(f"s_cbranch_scc1 {l3}")
    for n in (2, 1):
        if n == 1: A.lab(l3)
        for r in range(n):
            for k in range(3):
                for h in range(2):
                    A(f"buffer_load_dwordx4 {vr(D+24*r+8*k+4*h,4)}, {vr(vL16)}, {sr(S_WS,4)}, {sr(sXL[k])} offen offset:{(2*r+h)*1024} sc1")
        A("s_waitcnt lgkmcnt(0)")
        for r in range(n):
            for k in range(3):
                A(f"s_waitcnt vmcnt({6*(n-1-r) + 4 - 2*k + 2*r})")
                for i in range(8):
                    p, t = D + 24 * r + 8 * k + i, gACC + 40 + 2 * (i % 4)
                    A(f"v_lshlrev_b32 {vr(t)}, 16, {vr(p)}"); A(f"v_and_b32 {vr(t+1)}, 0xffff0000, {vr(p)}")
                    A(f"v_pk_add_f32 {vr(R+16*r+2*i,2)}, {vr(R+16*r+2*i,2)}, {vr(t,2)}")
            for ct in range(4):
                a = R + 16 * r + 4 * ct
                A(f"v_cvt_pk_bf16_f32 {vr(a)}, {vr(a)}, {vr(a+1)}"); A(f"v_cvt_pk_bf16_f32 {vr(a+1)}, {vr(a+2)}, {vr(a+3)}")
                A(f"ds_write_b64 {vr(wa+ct)}, {vr(a,2)} offset:{2048*r}")
            A("s_waitcnt lgkmcnt(0)")
            t = gACC + 48 + 8 * r
            for h in range(2):
                A(f"ds_read_b128 {vr(t+4*h,4)}, {vr(ra)} offset:{2048*r + 1024*h}")
            for h in range(2):
                A(f"s_waitcnt lgkmcnt({1-h})")
                A(f"buffer_store_dwordx4 {vr(t+4*h,4)}, {vr(oa)}, {sr(S_OUT,4)}, {sr(sOO)} offen sc1")
                A(f"s_add_u32 {sr(sOO)}, {sr(sOO)}, {8*4096}")
        if n == 2: A(f"s_branch {lj}")
    A.lab(lj)


def build(o):
    A = Asm()
    st = o.stamps
    for l in HEADER.splitlines(): A(l)
    A(f"; @launch grid=(256,1,1) block=(256,1,1) lds={LDS}")
    A('.amdgcn_target "amdgcn-amd-amdhsa--gfx950"'); A(".text")
    A(f".globl {KN}"); A(".p2align 8"); A(f".type {KN},@function"); A.lab(KN)
    A(f"s_cmp_ge_u32 s2, 256"); A("s_cbranch_scc1 L_exit")
    tail = []
    stamp(A, 0, st)
    prologue(A, o)
    if o.early_setup:
        late_setup(A, o)
    H = lambda s_: sum((dma_half(o, x[0], int(x[1])) for x in s_.split("+") if x), [])
    kvp = o.kvplan.split(",")
    gemm(A, o, "Q", o.wpre, {"13e": H(kvp[0]), "14l": H(kvp[1]), "14e": H(kvp[2]), "15l": H(kvp[3])})
    A.groups(H(kvp[4]))
    q_finish(A, o)
    stamp(A, 1, st)
    A(f"s_cmp_lg_u32 {sr(sC2)}, 0"); A(f"s_cbranch_scc1 L_att3")
    attention(A, o, 4, tail)
    A("s_branch L_attdone")
    A.lab("L_att3")
    attention(A, o, 3, tail)
    A.lab("L_attdone")
    stamp(A, 3, st)
    A.q = []
    gemm(A, o, "G", 63, {})
    exchange(A, o)
    if o.xst:
        stamp(A, 6, True); A("s_waitcnt vmcnt(0)")
    stamp(A, 5, st)
    if st:
        write_stamps(A)
    A.lab("L_exit")
    A("s_endpgm")
    rare_blocks(A, tail)
    A('.section .rodata,"a"')
    A(".p2align 6")
    A(f".amdhsa_kernel {KN}")
    A("  .amdhsa_next_free_vgpr 504"); A("  .amdhsa_next_free_sgpr 102"); A("  .amdhsa_accum_offset 256")
    A("  .amdhsa_group_segment_fixed_size 0"); A("  .amdhsa_kernarg_size 104"); A("  .amdhsa_user_sgpr_count 2")
    A("  .amdhsa_user_sgpr_kernarg_segment_ptr 1"); A("  .amdhsa_system_sgpr_workgroup_id_x 1")
    A(".end_amdhsa_kernel")
    return A.text()


if __name__ == "__main__":
    ap = argparse.ArgumentParser()
    ap.add_argument("-o", default="concat_heads__mha_block_cached__gqa_block_cached__near_ridge.s")
    ap.add_argument("--stamps", action="store_true")
    ap.add_argument("--qst", action="store_true")
    ap.add_argument("--xst", action="store_true")
    ap.add_argument("--steps", default="")
    ap.add_argument("--nt", default="KV")
    ap.add_argument("--win", type=int, default=5)
    ap.add_argument("--lazy", type=int, default=5)
    ap.add_argument("--nokv", action="store_true")
    ap.add_argument("--a7", type=int, default=0)
    ap.add_argument("--defer", type=int, default=0)
    ap.add_argument("--common", type=int, default=1)
    ap.add_argument("--qodd", default="159d3742bf8c06ae")
    ap.add_argument("--gseq", type=int, default=2)
    ap.add_argument("--qtab", default="")
    ap.add_argument("--pst", default="")
    ap.add_argument("--qseq", default="159d236ae47bf8c0")
    ap.add_argument("--wplan", default="0,1,2")
    ap.add_argument("--opad", type=int, default=0)
    ap.add_argument("--xpad", type=int, default=0)
    ap.add_argument("--wpre", type=int, default=6)
    ap.add_argument("--early_setup", type=int, default=1)
    ap.add_argument("--kvplan", default="K0+K1,V0,K2,V1,")
    ap.add_argument("--wtouch", default="")
    ap.add_argument("--whead", type=int, default=0)
    a = ap.parse_args()
    open(a.o, "w").write(build(a))
```

```python
import argparse, struct, math

KN = "concat_heads__mha_block_cached__gqa_block_cached__near_ridge_kernel"
WS_BYTES = 305659904
O_BYTES = 16 * 8 * 128 * 1024
X_OFF = O_BYTES
X_BYTES = 64 * 4 * 4 * 16384
F_RDY = X_OFF + X_BYTES
F_XCH = F_RDY + 64 * 128
WSL, XSL, XB = 32768, 16384, 98304
ASL = 32768
QIMG1 = 98304
LDS = 163840
f32 = lambda x: struct.unpack("<I", struct.pack("<f", x))[0]
C_SCALE = f32(math.log2(math.e) / math.sqrt(128.0))
THR = f32(8.0)
OOB = 0x40000000

HEADER = """\
; One launch, 256 workgroups of 4 waves, one per CU.  Workgroup = (branch, batch, two adjacent heads).
; -> output projection tile (112x256 over 8 heads) -> partial sums exchanged through ws between 4 workgroups -> out.
"""


class Asm:
    def __init__(self):
        self.L = []
        self.uid = 0
        self.q = []
        self.clock = 0
        self.born = {}
        self.lazy = 0

    def __call__(self, s):
        self.L.append(s)

    def lab(self, name):
        self.L.append(name + ":")

    def newlab(self, p="L"):
        self.uid += 1
        return f"{p}_{self.uid}"

    def need(self, tags):
        pos = max([i for i, t in enumerate(self.q) if t in tags], default=-1)
        if pos >= 0:
            while self.lazy and pos + 1 < len(self.q) and self.clock - self.born[self.q[pos + 1]] >= self.lazy:
                pos += 1
            self.L.append(f"s_waitcnt lgkmcnt({len(self.q) - pos - 1})")
            self.q = self.q[pos + 1:]

    def emit(self, it):
        if isinstance(it, str):
            self(it)
        elif it[0] == "ds":
            if len(self.q) >= 15:
                self.need([self.q[3]])
            self.L.append(it[1]); self.q.append(it[2]); self.born[it[2]] = self.clock
        elif it[0] == "bar":
            self(f"s_waitcnt vmcnt({it[1]}) lgkmcnt(0)"); self.q = []
            self("s_barrier")
        elif it[0] == "lab":
            self.lab(it[1])
        elif it[0] == "call":
            it[1]()

    def groups(self, gs):
        for g in gs:
            for s in g: self(s)

    def run(self, mf, after):
        for m, (txt, tags) in enumerate(mf):
            self.need(tags)
            self(txt)
            self.clock += 1
            for it in after.get(m, []): self.emit(it)

    def text(self):
        return "\n".join(self.L) + "\n"


def vr(a, n=1):
    p, a = ("a", a - 256) if a >= 256 else ("v", a)
    return f"{p}{a}" if n == 1 else f"{p}[{a}:{a+n-1}]"


def sr(a, n=1):
    return f"s{a}" if n == 1 else f"s[{a}:{a+n-1}]"


def mfma(d, a, b, c):
    return f"v_mfma_f32_16x16x32_bf16 {vr(d,4)}, {vr(a,4)}, {vr(b,4)}, {c if c == '0' else vr(c,4)}"


def put(after, m, items):
    after.setdefault(m, []).extend(items)


def spread(after, items, lo, hi):
    tot = sum(c for _, c in items)
    acc, pos = 0.0, []
    for its, c in items:
        g = lo + int((acc + c / 2) / tot * (hi - lo))
        put(after, g, its if isinstance(its, list) else [its])
        pos.append(g); acc += c
    return pos


S_X, S_W, S_K, S_V, S_O, S_WS, S_OUT = 4, 8, 12, 16, 20, 24, 28
sWAVE, sBR, sB, sH0, sHG, sHP = 32, 33, 34, 35, 38, 39
sKA = 36
sDBG = 40
sWS = 42
sT0, sT1, sT2, sT3 = 44, 45, 46, 47
sXS = 48
sXF = 51
sW8, sW4, sAM = 52, 80, 81
sCNT = 53
sXO, sWO_ = 54, 55
sKO, sVO = 56, 57
sC, sTHR = 58, 59
sGS = 60
sWOP = 62
sST = 64
sPEND = 82
sSPIN = 83
sU, sC2 = 84, 85
sWB = 86
sROT = 87
sTO = 88
sOST = 89
sNON = 90
sFL = 92
sOO = 93
sPTR = 94
sSW, sSX = 96, 98
sXL = [3, 100, 101]

vLANE = 1
vT = 2
vDX = 10
vDW = 14
vXB = 18
vTB = 20
vDK = 28
vDV = 32
vSC = 34
vL16 = 36
vOW = 37
vTAG = 38
vFAC = 40
vP = 44
vS = 60
vKF = 124
vVF = 156
vKA = 208
vVA = 216
vNM = 232
vLS = 248
aO = 256
aQ = 384
aG = 480
aTCH = 498
gACC = 40
gX = 152
gW = 448
gT = 208


def stamp(A, i, on):
    if on:
        q = list(A.q)
        A(f"s_memrealtime {sr(sST + 2*i, 2)}")
        A(f"s_memtime {sr(sPTR, 2)}")
        A("s_waitcnt lgkmcnt(0)")
        A(f"s_mov_b32 {sr(sST + 2*i + 1)}, {sr(sPTR)}")
        A.q = q


def write_stamps(A):
    l = A.newlab("L_st")
    A(f"s_cmp_lg_u32 {sr(sWAVE)}, 0"); A(f"s_cbranch_scc1 {l}")
    A(f"s_mov_b32 {sr(sT0)}, {WS_BYTES - 512*64}")
    A(f"s_lshl_b32 {sr(sT1)}, s2, 6")
    A(f"s_add_u32 {sr(sT0)}, {sr(sT0)}, {sr(sT1)}")
    A(f"s_add_u32 {sr(sPTR)}, {sr(sWS)}, {sr(sT0)}")
    A(f"s_addc_u32 {sr(sPTR+1)}, {sr(sWS+1)}, 0")
    A(f"v_mov_b32 v2, 0")
    for i in range(16):
        A(f"v_mov_b32 v{4+i}, {sr(sST+i)}")
    A("s_mov_b64 exec, 1")
    for i in range(4):
        A(f"global_store_dwordx4 v2, v[{4+4*i}:{7+4*i}], {sr(sPTR,2)} offset:{16*i}")
    A.lab(l)


def srd(A, d, lo, add, nrec):
    if add is None:
        A(f"s_mov_b32 {sr(d)}, {sr(lo)}"); A(f"s_mov_b32 {sr(d+1)}, {sr(lo+1)}")
    else:
        A(f"s_add_u32 {sr(d)}, {sr(lo)}, {add}"); A(f"s_addc_u32 {sr(d+1)}, {sr(lo+1)}, 0")
    A(f"s_mov_b32 {sr(d+2)}, {nrec}")
    A(f"s_mov_b32 {sr(d+3)}, 0x20000")


def raise_flag(A, sig_s):
    ls, lg = A.newlab("L_tag"), A.newlab("L_tagok")
    A("s_mov_b64 exec, 1")
    A(f"s_cmp_lg_u32 {sr(sNON+1)}, 0"); A(f"s_cbranch_scc1 {lg}")
    A(f"v_mov_b32 {vr(vT+4)}, 0")
    A(f"s_mov_b32 {sr(sSPIN)}, 0")
    A.lab(ls)
    A(f"global_load_dwordx2 {vr(vT+2,2)}, {vr(vT+4)}, {sr(sDBG,2)} sc1")
    A("s_waitcnt vmcnt(0)")
    A(f"v_readfirstlane_b32 {sr(sNON)}, {vr(vT+2)}")
    A(f"v_readfirstlane_b32 {sr(sNON+1)}, {vr(vT+3)}")
    A(f"s_add_u32 {sr(sSPIN)}, {sr(sSPIN)}, 1")
    A(f"s_cmp_lg_u32 {sr(sNON+1)}, 0"); A(f"s_cbranch_scc1 {lg}")
    A("s_sleep 4")
    A(f"s_cmp_lt_u32 {sr(sSPIN)}, 0x4000"); A(f"s_cbranch_scc1 {ls}")
    A.lab(lg)
    A(f"v_mov_b32 {vr(vT+4)}, {sr(sig_s)}"); A(f"v_mov_b32 {vr(vT+2)}, {sr(sNON)}"); A(f"v_mov_b32 {vr(vT+3)}, {sr(sNON+1)}")
    A(f"global_store_dwordx2 {vr(vT+4)}, {vr(vT+2,2)}, {sr(sWS,2)} sc1")
    A("s_mov_b64 exec, -1")


def poll4(A, own_s, first_done):
    ls, lg = A.newlab("L_spin"), A.newlab("L_go")
    ld = lambda r: f"global_load_dwordx2 {vr(r,2)}, {vr(vT+5)}, {sr(sWS,2)} sc1"

    def check(r):
        A(f"v_cmp_eq_u64 vcc, {sr(sNON,2)}, {vr(r,2)}")
        A(f"s_add_u32 {sr(sSPIN)}, {sr(sSPIN)}, 1")
        A(f"s_or_b32 {sr(sT2)}, vcc_lo, {sr(own_s)}")
        A(f"s_cmp_eq_u32 {sr(sT2)}, 15")
        A(f"s_cbranch_scc1 {lg}")
    A(f"s_mov_b32 {sr(sSPIN)}, 0")
    if first_done:
        check(vT + 6)
    A(ld(vT + 6))
    A("s_sleep 4")
    A.lab(ls)
    A(ld(vT + 2)); A("s_waitcnt vmcnt(1)"); check(vT + 6)
    A(ld(vT + 6)); A("s_waitcnt vmcnt(1)"); check(vT + 2)
    A(f"s_cmp_lt_u32 {sr(sSPIN)}, 0x8000"); A(f"s_cbranch_scc1 {ls}")
    A.lab(lg)


def team_signal(A):
    l = A.newlab("L_sig")
    A(f"s_cmp_lg_u32 {sr(sWAVE)}, 0"); A(f"s_cbranch_scc1 {l}")
    A(f"s_lshl_b32 {sr(sT1)}, {sr(sHP)}, 3"); A(f"s_add_u32 {sr(sT1)}, {sr(sT1)}, {sr(sFL)}")
    A(f"v_lshlrev_b32 {vr(vT+5)}, 3, {vr(vLANE)}")
    A(f"v_add_u32 {vr(vT+5)}, {sr(sFL)}, {vr(vT+5)}")
    raise_flag(A, sT1)
    A.lab(l)


def team_wait(A):
    le = A.newlab("L_wend")
    A(f"s_cmp_lg_u32 {sr(sWAVE)}, 0"); A(f"s_cbranch_scc1 {le}")
    A("s_mov_b64 exec, 15")
    A(f"s_lshl_b32 {sr(sT3)}, 1, {sr(sHP)}")
    poll4(A, sT3, False)
    A("s_mov_b64 exec, -1")
    A.lab(le)


def next_chunk(seq, off, sh):
    return [f"s_lshr_b64 {sr(seq,2)}, {sr(seq,2)}, 4", f"s_and_b32 {sr(off)}, {sr(seq)}, 15", f"s_lshl_b32 {sr(off)}, {sr(off)}, {sh}"]


def seq_words(seq):
    v = sum(c << (4 * i) for i, c in enumerate(seq))
    return v & 0xffffffff, v >> 32


def seq_add(A, seq, add_s):
    A(f"s_mul_i32 {sr(sT0)}, {sr(add_s)}, 0x11111111")
    A(f"s_and_b32 {sr(sT1)}, {sr(sT0)}, 0x77777777")
    for w in (seq, seq + 1):
        A(f"s_xor_b32 {sr(sT2)}, {sr(w)}, {sr(sT0)}"); A(f"s_and_b32 {sr(sT2)}, {sr(sT2)}, 0x88888888")
        A(f"s_and_b32 {sr(w)}, {sr(w)}, 0x77777777"); A(f"s_add_u32 {sr(w)}, {sr(w)}, {sr(sT1)}"); A(f"s_xor_b32 {sr(w)}, {sr(w)}, {sr(sT2)}")


QSEQ = [0, 1, 4, 5, 2, 8, 9, 3, 12, 13, 6, 10, 14, 7, 11, 15]
GSEQ = [[0, 1, 2, 3] + [4 + ((3 * b >> 1) + i) % 12 for i in range(12)] for b in range(8)]


def dma_w(o, kind, j):
    fl = " nt" if kind in o.nt else ""
    sh = 13 if kind == "W" else 11
    g = [[f"buffer_load_dwordx4 {vr(vDW+(t&3))}, {sr(S_W,4)}, {sr(sWO_ if t < 4 else sWB)} offen offset:{(t&3)*1024}{fl} lds"] for t in range(8)]
    g[0] = [f"s_add_u32 m0, {sr(sW8)}, {(j%3)*WSL}", f"s_add_u32 {sr(sWB)}, {sr(sWO_)}, {32 << sh}"] + g[0]
    g[3] += next_chunk(sSW, sWO_, sh + 6)
    g[4] = [f"s_add_u32 m0, {sr(sW8)}, {(j%3)*WSL + 4096}", "s_nop 0"] + g[4]
    return g


def dma_x(o, kind, j):
    srd_, fl = (S_X, " nt" if "X" in o.nt else "") if kind == "X" else (S_O, " sc1")
    g = [[f"buffer_load_dwordx4 {vr(vDX+t)}, {sr(srd_,4)}, {sr(sXO)} offen offset:{t*1024}{fl} lds"] for t in range(4)]
    g[0] = [f"s_add_u32 m0, {sr(sW4)}, {XB + (j%3)*XSL}", "s_nop 0"] + g[0]
    g[3] += next_chunk(sSX, sXO, 7 if kind == "X" else 11)
    return g


aslot = lambda item: (3 + item) & 3


def dma_half(o, kv, tile):
    srd_, va, n, off, item = (S_K, vDK, 4, 16384, tile) if kv == "K" else (S_V, vDV, 2, 0, tile + 1)
    fl = " nt" if kv in o.nt else ""
    g = [[f"buffer_load_dwordx4 {vr(va+t%n)}, {sr(srd_,4)}, {sr(sKO)} offen offset:{t*1024}{fl} lds"] for t in range(4)]
    g[0] = [f"s_add_u32 m0, {sr(sW4)}, {ASL*(1+aslot(item)) + off}", f"s_lshl_b32 {sr(sKO)}, {sr(sC2)}, 12", f"s_add_u32 {sr(sKO)}, {sr(sKO)}, {tile*8192}"] + g[0]
    return g


def dma_tile(o, kv, slot):
    srd_, va, n, off, so = (S_K, vDK, 4, 16384, sKO) if kv == "K" else (S_V, vDV, 2, 0, sVO)
    fl = " nt" if kv in o.nt else ""
    w = [f"s_waitcnt vmcnt({o.win-1})"] if o.win else []
    g = [w + [f"buffer_load_dwordx4 {vr(va+t%n)}, {sr(srd_,4)}, {sr(so)} offen offset:{(t&3)*1024}{fl} lds"] for t in range(8)]
    g[0] = [f"s_add_u32 m0, {sr(sAM)}, {ASL*(1+slot) + off}", "s_nop 0"] + g[0]
    g[3] += [f"s_add_u32 {sr(so)}, {sr(so)}, 4096"]
    g[4] = [f"s_add_u32 m0, {sr(sAM)}, {ASL*(1+slot) + off + 4096}", "s_nop 0"] + g[4]
    g[7] += [f"s_add_u32 {sr(so)}, {sr(so)}, 12288"]
    return g


def w_offsets(A, dst, rshift, wflav):
    l3, t0, t1 = vT, vT + 1, vT + 2
    A(f"v_lshrrev_b32 {vr(l3)}, 3, {vr(vLANE)}")
    A(f"v_bfe_u32 {vr(t0)}, {vr(vLANE)}, 4, {1 if wflav else 2}")
    A(f"v_lshlrev_b32 {vr(t0)}, 1, {vr(t0)}")
    A(f"v_and_b32 {vr(t1)}, 7, {vr(vLANE)}")
    A(f"v_xor_b32 {vr(t0)}, {vr(t0)}, {vr(t1)}")
    A(f"v_lshlrev_b32 {vr(t0)}, 4, {vr(t0)}")
    A(f"s_lshl_b32 {sr(sT3)}, {sr(sWAVE)}, 7")
    A(f"v_lshl_add_u32 {vr(l3)}, {vr(l3)}, {rshift}, {sr(sT3)}")
    for t in range(4):
        A(f"v_xor_b32 {vr(t1)}, {64*(t&1) if wflav else 0}, {vr(t0)}")
        A(f"v_add_u32 {vr(t1)}, {vr(t1)}, {vr(l3)}")
        A(f"v_add_u32 {vr(dst+t)}, {(8*t << rshift) - 1024*t}, {vr(t1)}")


def gemm_tr_bases(A, dst, gshift, rot):
    g, r, c, x = vT, vT + 1, vT + 2, vT + 3
    A(f"v_lshrrev_b32 {vr(g)}, 4, {vr(vLANE)}")
    A(f"v_bfe_u32 {vr(r)}, {vr(vLANE)}, 2, 2")
    A(f"v_and_b32 {vr(c)}, 3, {vr(vLANE)}"); A(f"v_lshlrev_b32 {vr(c)}, 3, {vr(c)}")
    A(f"v_lshl_add_u32 {vr(c)}, {vr(g)}, {gshift}, {vr(c)}")
    A(f"v_lshl_add_u32 {vr(c)}, {vr(r)}, 7, {vr(c)}")
    A(f"v_lshrrev_b32 {vr(r)}, 1, {vr(r)}"); A(f"v_lshl_add_u32 {vr(c)}, {vr(r)}, 5, {vr(c)}")
    A(f"v_and_b32 {vr(g)}, 1, {vr(g)}"); A(f"v_lshl_add_u32 {vr(c)}, {vr(g)}, 6, {vr(c)}")
    A(f"v_add_u32 {vr(c)}, {sr(sW8)}, {vr(c)}")
    for ct in range(4):
        if rot:
            A(f"s_add_u32 {sr(sT0)}, {sr(sHG)}, {ct}"); A(f"s_and_b32 {sr(sT0)}, {sr(sT0)}, 3"); A(f"s_lshl_b32 {sr(sT0)}, {sr(sT0)}, 5")
            A(f"v_xor_b32 {vr(dst+ct)}, {sr(sT0)}, {vr(c)}")
        else:
            A(f"v_xor_b32 {vr(dst+ct)}, {32*ct}, {vr(c)}")
        A(f"v_add_u32 {vr(dst+4+ct)}, 0x10000, {vr(dst+ct)}")


def qseqs(base, odd=None):
    out = []
    for rho in range(8):
        sq = [(c + 2 * rho) & 15 for c in (odd if (odd and rho & 1) else base)]
        assert sorted(sq) == list(range(16))
        sq.remove(0)
        out.append([0] + sq)
    return out


def prologue(A, o):
    A(f"s_bfe_u32 {sr(sBR)}, s2, 0x10002")
    A(f"s_mul_i32 {sr(sT0)}, {sr(sBR)}, 40")
    A(f"s_add_u32 {sr(sKA)}, s0, {sr(sT0)}"); A(f"s_addc_u32 {sr(sKA+1)}, s1, 0")
    A(f"s_load_dwordx2 s[70:71], {sr(sKA,2)}, 24")
    A(f"s_load_dwordx2 s[74:75], {sr(sKA,2)}, 0")
    A(f"v_lshrrev_b32 v2, 6, v0")
    A(f"v_and_b32 {vr(vLANE)}, 63, v0")
    A(f"v_readfirstlane_b32 {sr(sWAVE)}, v2")
    A(f"s_and_b32 {sr(sHG)}, s2, 3")
    A(f"s_bfe_u32 {sr(sHP)}, s2, 0x20003")
    A(f"s_bfe_u32 {sr(sB)}, s2, 0x30005")
    A(f"s_lshl_b32 {sr(sH0)}, {sr(sHG)}, 2"); A(f"s_add_u32 {sr(sH0)}, {sr(sH0)}, {sr(sHP)}"); A(f"s_lshl_b32 {sr(sH0)}, {sr(sH0)}, 1")
    A(f"s_lshl_b32 {sr(sW8)}, {sr(sWAVE)}, 13")
    A(f"s_lshl_b32 {sr(sW4)}, {sr(sWAVE)}, 12")
    A(f"s_lshl_b32 {sr(sROT)}, {sr(sHP)}, 1"); A(f"s_add_u32 {sr(sROT)}, {sr(sROT)}, {sr(sB)}"); A(f"s_and_b32 {sr(sROT)}, {sr(sROT)}, 7")
    if o.common:
        A(f"s_mov_b32 {sr(sXO)}, 0"); A(f"s_mov_b32 {sr(sWO_)}, 0")
    else:
        A(f"s_lshl_b32 {sr(sXO)}, {sr(sROT)}, 8"); A(f"s_lshl_b32 {sr(sWO_)}, {sr(sROT)}, 20")
    w_offsets(A, vDW, 13, True)
    A(f"s_lshl_b32 {sr(sT0)}, {sr(sH0)}, 8")
    A(f"s_mul_i32 {sr(sT1)}, {sr(sB)}, 229376")
    A("s_waitcnt lgkmcnt(0)")
    srd(A, S_W, 70, sr(sT0), "0")
    A(f"s_sub_u32 {sr(S_W+2)}, 0x800000, {sr(sT0)}")
    srd(A, S_X, 74, sr(sT1), "229376")
    strip = lambda gs: [[x for x in g if not any(x == y for y in next_chunk(sSW, sWO_, 19) + next_chunk(sSX, sXO, 7))] for g in gs]
    A.groups(strip(dma_w(o, "W", 0)))
    A(f"s_load_dwordx2 s[66:67], {sr(sKA,2)}, 8")
    A(f"s_load_dwordx2 s[68:69], {sr(sKA,2)}, 16")
    A(f"s_load_dwordx2 {sr(sWOP,2)}, {sr(sKA,2)}, 32")
    A(f"s_load_dwordx2 s[72:73], s[0:1], 80")
    A(f"s_load_dwordx2 {sr(sDBG,2)}, s[0:1], 88")
    A(f"s_load_dwordx2 {sr(sWS,2)}, s[0:1], 96")
    l3, l4, t0, t1 = vT, vT + 1, vT + 2, vT + 3
    A(f"v_lshrrev_b32 {vr(l3)}, 3, {vr(vLANE)}")
    A(f"v_lshrrev_b32 {vr(l4)}, 4, {vr(vLANE)}")
    A(f"s_lshl_b32 {sr(sT2)}, {sr(sWAVE)}, 16")
    A(f"v_and_b32 {vr(t1)}, 7, {vr(vLANE)}")
    A(f"v_xor_b32 {vr(t1)}, {vr(t1)}, {vr(l4)}")
    A(f"v_lshlrev_b32 {vr(t1)}, 4, {vr(t1)}")
    A(f"v_lshl_add_u32 {vr(l3)}, {vr(l3)}, 11, {sr(sT2)}")
    for t in range(4):
        A(f"v_xor_b32 {vr(t0)}, {64*(t&1)}, {vr(t1)}")
        A(f"v_add_u32 {vr(t0)}, {vr(t0)}, {vr(l3)}")
        A(f"v_add_u32 {vr(vDX+t)}, {8*t*2048 - 1024*t}, {vr(t0)}")
    A.groups(strip(dma_x(o, "X", 0)))
    base = [int(c, 16) for c in o.qseq]
    if o.common:
        for rho, sq in enumerate([[int(c, 16) for c in x] for x in o.qtab.split(',')] if o.qtab else qseqs(base, [int(c, 16) for c in o.qodd])):
            lo, hi = seq_words(sq)
            if rho == 0:
                A(f"s_mov_b32 {sr(sSW)}, {lo:#x}"); A(f"s_mov_b32 {sr(sSW+1)}, {hi:#x}")
            else:
                A(f"s_cmp_eq_u32 {sr(sROT)}, {rho}")
                A(f"s_cselect_b32 {sr(sSW)}, {lo:#x}, {sr(sSW)}"); A(f"s_cselect_b32 {sr(sSW+1)}, {hi:#x}, {sr(sSW+1)}")
    else:
        lo, hi = seq_words(base)
        A(f"s_mov_b32 {sr(sSW)}, {lo:#x}"); A(f"s_mov_b32 {sr(sSW+1)}, {hi:#x}")
        A(f"s_lshl_b32 {sr(sT3)}, {sr(sROT)}, 1")
        seq_add(A, sSW, sT3)
    A(f"s_mov_b64 {sr(sSX,2)}, {sr(sSW,2)}")
    for x in next_chunk(sSW, sWO_, 19) + next_chunk(sSX, sXO, 7): A(x)
    A.groups((dma_w(o, "W", 1) + dma_x(o, "X", 1) + dma_w(o, "W", 2))[:o.wpre])
    A(f"s_lshr_b32 {sr(sU)}, {sr(sWAVE)}, 1"); A(f"s_and_b32 {sr(sC2)}, {sr(sWAVE)}, 1")
    A(f"s_lshl_b32 {sr(sAM)}, {sr(sU)}, 13")
    A("s_waitcnt lgkmcnt(0)")
    l = A.newlab("L_notag")
    A(f"s_or_b32 {sr(sT0)}, s2, {sr(sWAVE)}"); A(f"s_cmp_lg_u32 {sr(sT0)}, 0"); A(f"s_cbranch_scc1 {l}")
    A(f"s_memrealtime {sr(sPTR,2)}"); A("s_waitcnt lgkmcnt(0)")
    A(f"v_mov_b32 {vr(vT+2)}, {sr(sPTR)}"); A(f"v_mov_b32 {vr(vT+3)}, {sr(sPTR+1)}"); A(f"v_mov_b32 {vr(vT+4)}, 0")
    A(f"v_or_b32 {vr(vT+3)}, 0x80000000, {vr(vT+3)}")
    A("s_mov_b64 exec, 1")
    A(f"global_store_dwordx2 {vr(vT+4)}, {vr(vT+2,2)}, {sr(sDBG,2)} sc1")
    A("s_mov_b64 exec, -1")
    A.lab(l)
    q, g, r = vT, vT + 1, vT + 2
    A(f"v_lshlrev_b32 {vr(vL16)}, 4, {vr(vLANE)}")
    A(f"v_and_b32 {vr(q)}, 15, {vr(vLANE)}")
    A(f"v_lshrrev_b32 {vr(g)}, 4, {vr(vLANE)}")
    A(f"v_bfe_u32 {vr(r)}, {vr(vLANE)}, 1, 3")
    A(f"v_xor_b32 {vr(r)}, {vr(r)}, {vr(g)}")
    A(f"v_lshlrev_b32 {vr(r)}, 4, {vr(r)}")
    A(f"v_lshl_add_u32 {vr(r)}, {vr(q)}, 7, {vr(r)}")
    A(f"v_add_u32 {vr(vXB)}, {XB}, {vr(r)}")
    A(f"v_xor_b32 {vr(vXB+1)}, 64, {vr(vXB)}")
    gemm_tr_bases(A, vTB, 10, False)


def late_setup(A, o):
    A(f"s_lshl_b32 {sr(sT0)}, {sr(sB)}, 5"); A(f"s_add_u32 {sr(sT0)}, {sr(sT0)}, {sr(sH0)}")
    A(f"s_add_u32 {sr(sT0)}, {sr(sT0)}, {sr(sU)}"); A(f"s_lshl_b32 {sr(sT0)}, {sr(sT0)}, 18")
    srd(A, S_K, 66, sr(sT0), "0" if o.nokv else "0x40000")
    srd(A, S_V, 68, sr(sT0), "0" if o.nokv else "0x40000")
    srd(A, S_OUT, 72, None, str(896 * 4096))
    srd(A, S_WS, sWS, None, str(X_OFF + X_BYTES))
    A(f"s_mov_b32 {sr(sC)}, {C_SCALE:#x}"); A(f"s_mov_b32 {sr(sTHR)}, {THR:#x}"); A(f"s_mov_b32 {sr(sPEND)}, 0")
    l4, t0, t1, t2 = vT, vT + 1, vT + 2, vT + 3
    A(f"v_lshrrev_b32 {vr(l4)}, 4, {vr(vLANE)}")
    A(f"v_and_b32 {vr(t1)}, 15, {vr(vLANE)}")
    A(f"v_lshlrev_b32 {vr(t2)}, 8, {vr(l4)}")
    A(f"v_xor_b32 {vr(t0)}, {vr(l4)}, {vr(t1)}")
    A(f"v_lshl_add_u32 {vr(vDK)}, {vr(t0)}, 4, {vr(t2)}")
    for t in range(1, 4):
        A(f"v_xor_b32 {vr(vDK+t)}, {64*t}, {vr(vDK)}")
    A(f"v_lshlrev_b32 {vr(t0)}, 1, {vr(l4)}")
    A(f"v_xor_b32 {vr(t0)}, {vr(t0)}, {vr(t1)}")
    A(f"v_lshl_add_u32 {vr(vDV)}, {vr(t0)}, 4, {vr(t2)}")
    A(f"v_xor_b32 {vr(vDV+1)}, 128, {vr(vDV)}")
    q, g, t0, r, c = vT, vT + 1, vT + 2, vT + 3, vT + 4
    A(f"v_and_b32 {vr(q)}, 15, {vr(vLANE)}"); A(f"v_lshrrev_b32 {vr(g)}, 4, {vr(vLANE)}")
    A(f"v_xor_b32 {vr(t0)}, {vr(g)}, {vr(q)}"); A(f"v_lshlrev_b32 {vr(t0)}, 4, {vr(t0)}")
    A(f"v_lshl_add_u32 {vr(t0)}, {vr(q)}, 8, {vr(t0)}")
    A(f"s_add_u32 {sr(sT1)}, {sr(sAM)}, {ASL}"); A(f"s_add_u32 {sr(sT0)}, {sr(sAM)}, {ASL + 16384}")
    A(f"v_add_u32 {vr(vKA)}, {sr(sT0)}, {vr(t0)}")
    for s in range(1, 4):
        A(f"v_xor_b32 {vr(vKA+s)}, {64*s}, {vr(vKA)}")
    for s in range(4):
        A(f"v_add_u32 {vr(vKA+4+s)}, 0x10000, {vr(vKA+s)}")
    A(f"v_bfe_u32 {vr(r)}, {vr(vLANE)}, 2, 2")
    A(f"v_and_b32 {vr(c)}, 3, {vr(vLANE)}"); A(f"v_lshlrev_b32 {vr(c)}, 3, {vr(c)}")
    A(f"v_lshl_add_u32 {vr(c)}, {vr(g)}, 10, {vr(c)}")
    A(f"v_lshl_add_u32 {vr(c)}, {vr(r)}, 8, {vr(c)}")
    A(f"v_lshl_add_u32 {vr(c)}, {vr(r)}, 5, {vr(c)}")
    A(f"v_and_b32 {vr(g)}, 1, {vr(g)}"); A(f"v_lshl_add_u32 {vr(c)}, {vr(g)}, 7, {vr(c)}")
    A(f"v_add_u32 {vr(vVA)}, {sr(sT1)}, {vr(c)}")
    for dt in range(1, 8):
        A(f"v_xor_b32 {vr(vVA+dt)}, {32*dt}, {vr(vVA)}")
    for dt in range(8):
        A(f"v_add_u32 {vr(vVA+8+dt)}, 0x10000, {vr(vVA+dt)}")
    for i in range(128):
        A(f"v_accvgpr_write_b32 {vr(aO+i)}, 0")
    A(f"v_mov_b32 {vr(vSC)}, {sr(sC)}"); A(f"v_mov_b32 {vr(vSC+1)}, {sr(sC)}")
    P = vNM
    for t in range(4):
        A(f"s_lshl_b32 {sr(sT1)}, {sr(sWAVE)}, 18")
        A(f"s_add_u32 {sr(sT1)}, {sr(sT1)}, {((t >> 1) << 17) + ((t & 1) << 10) - 1024*t}")
        A(f"v_add_u32 {vr(P+t)}, {sr(sT1)}, {vr(vL16)}")
    w_offsets(A, P + 4, 11, False)
    A(f"v_add_u32 {vr(P+8)}, {XB}, {vr(vL16)}"); A(f"v_add_u32 {vr(P+9)}, {XB + 1024}, {vr(vL16)}")
    gemm_tr_bases(A, P + 10, 9, False)
    for i in range(18):
        A(f"v_accvgpr_write_b32 {vr(aG+i)}, {vr(P+i)}")
    A(f"s_lshl_b32 {sr(sT0)}, {sr(sU)}, 15"); A(f"s_lshl_b32 {sr(sT1)}, {sr(sC2)}, 13"); A(f"s_add_u32 {sr(sT0)}, {sr(sT0)}, {sr(sT1)}")
    A(f"v_add_u32 {vr(vOW)}, {sr(sT0)}, {vr(P+8)}")
    for i in range(24):
        A(f"v_mov_b32 {vr(vNM+i)}, 0")
    offs = {0: [3 * b >> 1 for b in range(8)], 1: [3 * (b >> 1) for b in range(8)], 2: [6 * (b & 1) for b in range(8)], 3: [2 * (b % 6) for b in range(8)], 4: [0] * 8, 5: [4 * (b % 3) for b in range(8)]}[o.gseq]
    for b, sq in enumerate([[0, 1, 2, 3] + [4 + (x + i) % 12 for i in range(12)] for x in offs]):
        lo, hi = seq_words(sq)
        if b == 0:
            A(f"s_mov_b32 {sr(sGS)}, {lo:#x}"); A(f"s_mov_b32 {sr(sGS+1)}, {hi:#x}")
        else:
            A(f"s_cmp_eq_u32 {sr(sB)}, {b}")
            A(f"s_cselect_b32 {sr(sGS)}, {lo:#x}, {sr(sGS)}"); A(f"s_cselect_b32 {sr(sGS+1)}, {hi:#x}, {sr(sGS+1)}")
    A(f"s_lshl_b32 {sr(sT3)}, {sr(sHP)}, 2")
    seq_add(A, sGS, sT3)
    A(f"s_lshl_b32 {sr(sT3)}, {sr(sBR)}, 3"); A(f"s_add_u32 {sr(sT3)}, {sr(sT3)}, {sr(sB)}")
    A(f"s_mul_i32 {sr(sT0)}, {sr(sT3)}, {(7 << 17) + o.opad}")
    A(f"s_lshl_b32 {sr(sOST)}, {sr(sC2)}, 19"); A(f"s_add_u32 {sr(sOST)}, {sr(sOST)}, {sr(sT0)}")
    A(f"s_add_u32 {sr(sT1)}, {sr(sH0)}, {sr(sU)}"); A(f"s_lshl_b32 {sr(sT1)}, {sr(sT1)}, 12"); A(f"s_add_u32 {sr(sOST)}, {sr(sOST)}, {sr(sT1)}")
    A(f"s_lshl_b32 {sr(sT1)}, {sr(sHG)}, 15"); A(f"s_add_u32 {sr(sT0)}, {sr(sT0)}, {sr(sT1)}")
    srd(A, S_O, sWS, sr(sT0), str(7 << 17))
    A(f"s_lshl_b32 {sr(sFL)}, {sr(sT3)}, 2"); A(f"s_add_u32 {sr(sFL)}, {sr(sFL)}, {sr(sHG)}")
    A(f"s_lshl_b32 {sr(sFL)}, {sr(sFL)}, 7"); A(f"s_add_u32 {sr(sFL)}, {sr(sFL)}, {F_RDY}")
    A(f"s_lshl_b32 {sr(sT0)}, {sr(sT3)}, 2"); A(f"s_add_u32 {sr(sT0)}, {sr(sT0)}, {sr(sHP)}")
    A(f"s_lshl_b32 {sr(sT0)}, {sr(sT0)}, 2")
    A(f"s_add_u32 {sr(sT1)}, {sr(sT0)}, {sr(sWAVE)}"); A(f"s_add_u32 {sr(sT2)}, {sr(sT0)}, {sr(sHG)}")
    A(f"s_lshl_b32 {sr(sXF)}, {sr(sT2)}, 7"); A(f"s_add_u32 {sr(sXF)}, {sr(sXF)}, {F_XCH}")
    A(f"s_lshl_b32 {sr(sXS+1)}, {sr(sT1)}, 7"); A(f"s_lshl_b32 {sr(sT3)}, {sr(sHG)}, 3")
    A(f"s_add_u32 {sr(sXS+1)}, {sr(sXS+1)}, {sr(sT3)}"); A(f"s_add_u32 {sr(sXS+1)}, {sr(sXS+1)}, {F_XCH}")
    A(f"s_lshl_b32 {sr(sXS)}, {sr(sT1)}, 2"); A(f"s_add_u32 {sr(sXS)}, {sr(sXS)}, {sr(sHG)}")
    A(f"s_lshl_b32 {sr(sXS)}, {sr(sXS)}, 14"); A(f"s_add_u32 {sr(sXS)}, {sr(sXS)}, {X_OFF}")
    A(f"s_lshl_b32 {sr(sT2)}, {sr(sT2)}, 16"); A(f"s_add_u32 {sr(sT2)}, {sr(sT2)}, {sr(sW4)}"); A(f"s_add_u32 {sr(sT2)}, {sr(sT2)}, {X_OFF}")
    for k in range(1, 4):
        A(f"s_add_u32 {sr(sT1)}, {sr(sHG)}, {k}"); A(f"s_and_b32 {sr(sT1)}, {sr(sT1)}, 3"); A(f"s_lshl_b32 {sr(sT1)}, {sr(sT1)}, 14")
        A(f"s_add_u32 {sr(sXL[k-1])}, {sr(sT1)}, {sr(sT2)}")
    A(f"s_mul_i32 {sr(sOO)}, {sr(sB)}, {112*4096}")
    for reg, sh in ((sBR, 11), (sHP, 9), (sHG, 7), (sWAVE, 17)):
        A(f"s_lshl_b32 {sr(sT1)}, {sr(reg)}, {sh}"); A(f"s_add_u32 {sr(sOO)}, {sr(sOO)}, {sr(sT1)}")


def gemm(A, o, kind, vm0, fill):
    Q = kind == "Q"
    xk, wk = ("X", "W") if Q else ("O", "G")
    A.lazy = o.lazy

    defer = (not Q) and o.defer
    dj = lambda j: defer and j >= 13
    xreg = lambda j, s, rt: (aO + 56 * (j - 13) if dj(j) else gX) + 28 * s + 4 * rt
    wreg = lambda j, s, ct: aO + 168 + 8 * (j - 13) + 4 * s if (dj(j) and ct == 0) else gW + 16 * s + 4 * ct

    def wr(j, s):
        L = []
        for ct in range(4):
            f = wreg(j, s, ct)
            for e in range(2):
                reg, off = (vTB + 4 + ct, 0) if j % 3 == 2 else (vTB + ct, (j % 3) * WSL)
                L.append(("ds", f"ds_read_b64_tr_b16 {vr(f+2*e,2)}, {vr(reg)} offset:{off + 4096*s + (512 if Q else 2048)*e}", f"w{s}{ct}"))
        return L[2:] + L[:2] if dj(j) else L

    def xr(j, s, rt):
        slot = 3 if (j == 3 and not Q) else j % 3
        return ("ds", f"ds_read_b128 {vr(xreg(j,s,rt),4)}, {vr(vXB+s)} offset:{slot*XSL + 2048*rt}", f"x{s}{rt}")

    def carry(j):
        if o.a7:
            return wr(j, 0)[:2] + [xr(j, 0, rt) for rt in range(7)] + wr(j, 0)[2:4]
        return wr(j, 0) + [xr(j, 0, rt) for rt in range(3)]

    W = lambda j: dma_w(o, wk, j)
    X = lambda j: dma_x(o, xk, j)

    def step(j, late, early, vm, hook=None):
        mf, after = [], {}
        for k_, v_ in (hook or {}).items():
            put(after, k_, v_)
        cts = (1, 2, 3) if dj(j) else (0, 1, 2, 3)
        sc = lambda x: x * len(cts) // 4
        for s in range(2):
            tiles = [(rt, ct) for rt in range(7) for ct in cts]
            if o.a7 and not (j == 15 and s == 1):
                tiles = [(rt, ct) for ct in cts for rt in range(7)]
            for rt, ct in tiles:
                a = gACC + 28 * ct + 4 * rt
                mf.append((mfma(a, wreg(j, s, ct), xreg(j, s, rt), "0" if (j == 0 and s == 0) else a),
                           [f"w{s}{ct}", f"x{s}{rt}"]))
        r = [xr(j, 0, rt) for rt in range(3, 7)] + wr(j, 1) + [xr(j, 1, rt) for rt in range(7)]
        if o.a7:
            r = wr(j, 0)[4:] + wr(j, 1)[:2] + [xr(j, 1, rt) for rt in range(7)] + wr(j, 1)[2:]
            if j == 15: r = wr(j, 0)[4:] + wr(j, 1) + [xr(j, 1, rt) for rt in range(7)]
        spread(after, [(x, 1) for x in r], 2, sc(30))
        if late:
            spread(after, [(g, 1) for g in late], 0, sc(38))
        if j < 15:
            if j == 1 and not Q:
                put(after, 40, [("call", lambda: team_wait(A))])
            put(after, sc(40), [("bar", vm)])
            if j == 0 and not Q:
                put(after, 40, [("call", lambda: team_signal(A))])
            spread(after, [(x, 1) for x in carry(j + 1)], sc(40), sc(53))
            if early:
                spread(after, [(g, 1) for g in early], sc(41), sc(56))
        elif defer:
            A.lazy = 0
            for jj in (13, 14, 15):
                for s in range(2):
                    for rt in range(7):
                        a = gACC + 4 * rt
                        mf.append((mfma(a, wreg(jj, s, 0), xreg(jj, s, rt), a), ["w00", "w10"]))
        A.run(mf, after)

    E = 3
    A.emit(("bar", vm0))
    stamp(A, 6, o.stamps and (o.qst == Q))
    for it in carry(0): A.emit(it)
    if Q:
        pre = W(1) + X(1) + W(2)
        n0 = max(16, o.wpre)
        step(0, pre[o.wpre:n0], pre[n0:] + X(2)[:2], n0 - 12, None if o.early_setup else {39: [("call", lambda: late_setup(A, o))]})
        step(1, X(2)[2:] + W(3) + X(3), W(4)[:E], 12)
    else:
        wl = sum((W(int(c)) for c in o.wplan.split(",")[3]), [])
        if len(wl) == 16:
            step(0, wl, W(3)[:E], 8)
        else:
            step(0, wl, W(3)[:E], len(wl))
        step(1, W(3)[E:], W(4)[:E], 8)
    steady = lambda j: step(j, W(j + 2)[E:] + X(j + 2), W(j + 3)[:E], 12)
    diag = o.steps == kind
    stamp(A, 1, diag)
    steady(2)
    stamp(A, 2, diag)
    steady(3)
    stamp(A, 3, diag)
    if diag:
        for j in range(4, 13):
            steady(j)
            if j in (5, 8): stamp(A, {5: 4, 8: 5}[j], True)
    else:
        A(f"s_mov_b32 {sr(sCNT)}, 3")
        q0 = list(A.q)
        l = A.newlab("L_gl")
        A.lab(l)
        for j in (4, 5, 6):
            steady(j)
        assert A.q == q0
        A(f"s_sub_u32 {sr(sCNT)}, {sr(sCNT)}, 1"); A(f"s_cmp_lg_u32 {sr(sCNT)}, 0"); A(f"s_cbranch_scc1 {l}")
    g = lambda k: fill.get(k, [])
    step(13, W(15)[E:] + X(15), g("13e"), 12)
    step(14, g("14l"), g("14e"), len(g("13e")) + len(g("14l")))
    if Q:
        step(15, g("15l"), [], 0)
    else:
        q0, lo, lj = list(A.q), A.newlab("L_own"), A.newlab("L_sent")
        A(f"s_cmp_eq_u32 {sr(sWAVE)}, {sr(sHG)}"); A(f"s_cbranch_scc1 {lo}")
        for own in (False, True):
            if own: A.lab(lo)
            A.q = list(q0)
            hook = {}
            for rt in range(5):
                spread(hook, [(x, 1) for x in x_rows(rt, own)], 28 + 4 * rt + 8, 28 + 4 * rt + 12)
            step(15, [], [], 0, hook)
            for x in x_rows(5, own) + ["s_nop 1"] + x_rows(6, own): A(x)
            if not own:
                A("s_waitcnt vmcnt(0)")
                stamp(A, 2, o.xst)
                raise_flag(A, sXS + 1)
                A(f"s_branch {lj}")
        A.lab(lj)
    A.lazy = 0
    stamp(A, 7, o.stamps and (o.qst == Q))
    if diag:
        A("s_waitcnt vmcnt(0)"); write_stamps(A); A("s_endpgm")


def q_finish(A, o):
    q, g, t0, t1 = vT, vT + 1, vT + 2, vT + 3
    ta = gX + 16
    A(f"v_mov_b32 {vr(t0)}, 0")
    A(f"global_load_dwordx2 {vr(vTAG,2)}, {vr(t0)}, {sr(sDBG,2)} sc1")
    A(f"v_and_b32 {vr(q)}, 15, {vr(vLANE)}")
    A(f"v_lshrrev_b32 {vr(g)}, 4, {vr(vLANE)}")
    A(f"v_lshrrev_b32 {vr(t0)}, 1, {vr(g)}")
    A(f"s_lshl_b32 {sr(sT0)}, {sr(sC2)}, 3")
    A(f"v_xor_b32 {vr(t0)}, {sr(sT0)}, {vr(t0)}")
    A(f"v_xor_b32 {vr(t0)}, {vr(t0)}, {vr(q)}")
    A(f"v_lshlrev_b32 {vr(t0)}, 4, {vr(t0)}")
    A(f"v_and_b32 {vr(t1)}, 1, {vr(g)}")
    A(f"v_lshl_add_u32 {vr(t0)}, {vr(t1)}, 3, {vr(t0)}")
    A(f"s_mul_i32 {sr(sT0)}, {sr(sU)}, {QIMG1}")
    A(f"v_lshl_add_u32 {vr(t1)}, {vr(q)}, 8, {sr(sT0)}")
    A(f"v_add_u32 {vr(vT+4)}, {vr(t0)}, {vr(t1)}")
    for ct in range(1, 4):
        A(f"v_xor_b32 {vr(vT+4+ct)}, {32*ct}, {vr(vT+4)}")
    A(f"s_lshl_b32 {sr(sT1)}, {sr(sU)}, 14")
    for ct in range(4):
        A(f"v_add_u32 {vr(gX+ct)}, {sr(sT1)}, {vr(vT+4+ct)}")
    A(f"v_xor_b32 {vr(t0)}, {vr(g)}, {vr(q)}")
    A(f"v_lshlrev_b32 {vr(t0)}, 4, {vr(t0)}")
    A(f"s_add_u32 {sr(sT1)}, {sr(sT1)}, 16384"); A(f"s_mul_i32 {sr(sT0)}, {sr(sC2)}, {sr(sT1)}")
    A(f"v_add3_u32 {vr(t1)}, {vr(t1)}, {vr(t0)}, {sr(sT0)}")
    first = True
    for rt in range(7):
        for ct in range(4):
            a = gACC + 28 * ct + 4 * rt
            A(f"v_pk_mul_f32 {vr(a,2)}, {vr(a,2)}, {vr(vSC,2)}")
            A(f"v_pk_mul_f32 {vr(a+2,2)}, {vr(a+2,2)}, {vr(vSC,2)}")
            A(f"v_cvt_pk_bf16_f32 {vr(a)}, {vr(a)}, {vr(a+1)}")
            A(f"v_cvt_pk_bf16_f32 {vr(a+1)}, {vr(a+2)}, {vr(a+3)}")
            if first:
                A("s_barrier")
                first = False
            A(f"ds_write_b64 {vr((vT+4 if rt < 4 else gX)+ct)}, {vr(a,2)} offset:{4096*rt}")
        if rt in (2, 5):
            A("s_waitcnt lgkmcnt(2)")
    for s in range(4):
        A(f"v_xor_b32 {vr(ta+s)}, {64*s}, {vr(t1)}")
    A.emit(("bar", 21))
    for x in kreads(aslot(0)): A(x[1])
    for qt in range(4):
        for s in range(4):
            A(f"ds_read_b128 {vr(aQ+16*qt+4*s,4)}, {vr(ta+s)} offset:{4096*qt}")
            if (qt, s) in ((1, 1), (3, 1)):
                A("s_waitcnt lgkmcnt(4)")
    for i in range(18):
        A(f"v_accvgpr_read_b32 {vr(vDX+i)}, {vr(aG+i)}")
    A(f"s_lshl_b32 {sr(sT0)}, {sr(sHG)}, 21"); A(f"s_lshl_b32 {sr(sT1)}, {sr(sHP)}, 9"); A(f"s_add_u32 {sr(sT0)}, {sr(sT0)}, {sr(sT1)}")
    srd(A, S_W, sWOP, sr(sT0), "0")
    A(f"s_sub_u32 {sr(S_W+2)}, 0x800000, {sr(sT0)}")
    A(f"s_lshl_b32 {sr(sWO_)}, {sr(sHP)}, 19")
    A(f"s_mov_b64 {sr(sSW,2)}, {sr(sGS,2)}")
    A(f"s_lshr_b64 {sr(sSX,2)}, {sr(sGS,2)}, 12")
    for x in next_chunk(sSX, sXO, 11): A(x)
    A(f"v_lshrrev_b32 {vr(vSC)}, 2, {vr(vLANE)}"); A(f"v_lshlrev_b32 {vr(vSC)}, 11, {vr(vSC)}")
    A(f"v_and_b32 {vr(vSC+1)}, 3, {vr(vLANE)}"); A(f"v_lshl_add_u32 {vr(vSC)}, {vr(vSC+1)}, 7, {vr(vSC)}")
    if o.whead:
        A(f"v_lshlrev_b32 {vr(vSC+1)}, 25, {vr(vLANE)}"); A(f"v_and_b32 {vr(vSC+1)}, {OOB}, {vr(vSC+1)}"); A(f"v_or_b32 {vr(vSC)}, {vr(vSC)}, {vr(vSC+1)}")
        A(f"s_lshl_b32 {sr(sTO)}, {sr(sB)}, 16"); A(f"s_lshl_b32 {sr(sT0)}, {sr(sWAVE)}, 14"); A(f"s_add_u32 {sr(sTO)}, {sr(sTO)}, {sr(sT0)}")
        A(f"s_add_u32 {sr(sTO)}, {sr(sTO)}, {sr(sWO_)}")
    else:
        A(f"s_lshl_b32 {sr(sTO)}, {sr(sB)}, 18"); A(f"s_lshl_b32 {sr(sT0)}, {sr(sWAVE)}, 15"); A(f"s_add_u32 {sr(sTO)}, {sr(sTO)}, {sr(sT0)}")
    A.emit(("bar", 63))
    A(f"s_add_u32 {sr(sKO)}, {sr(sC2)}, 4"); A(f"s_lshl_b32 {sr(sKO)}, {sr(sKO)}, 13"); A(f"s_sub_u32 {sr(sVO)}, {sr(sKO)}, 16384")


def kreads(slot):
    L = []
    for s in range(4):
        for kt in range(2):
            L.append(("ds", f"ds_read_b128 {vr(vKF+16*kt+4*s,4)}, {vr(vKA+4*(slot>>1)+s)} offset:{(slot&1)*ASL+4096*kt}", f"k{kt}{s}"))
    return L


def new_max(S, NT, clamp):
    L = []
    for qt in range(NT):
        mx, o2 = vT, vT + 1
        a, b = S + 4 * qt, S + 16 + 4 * qt
        L += [f"v_max3_f32 {vr(mx)}, {vr(a)}, {vr(a+1)}, {vr(a+2)}", f"v_max3_f32 {vr(mx)}, {vr(mx)}, {vr(a+3)}, {vr(b)}",
              f"v_max3_f32 {vr(mx)}, {vr(mx)}, {vr(b+1)}, {vr(b+2)}", f"v_max_f32 {vr(mx)}, {vr(mx)}, {vr(b+3)}"]
        for sw in ("16", "32"):
            L += [f"v_mov_b32 {vr(o2)}, {vr(mx)}", "s_nop 1", f"v_permlane{sw}_swap_b32 {vr(mx)}, {vr(o2)}", "s_nop 1",
                  f"v_max_f32 {vr(mx)}, {vr(mx)}, {vr(o2)}"]
        if clamp:
            L += [f"v_max_f32 {vr(mx)}, 0, {vr(mx)}", f"v_exp_f32 {vr(vFAC+qt)}, -{vr(mx)}"]
        L += [f"v_sub_f32 {vr(x+i)}, {vr(x+i)}, {vr(mx)}" for x in (a, b, vNM + 4 * qt) for i in range(4)]
        if clamp:
            L += [f"v_mul_f32 {vr(vLS+2*qt+i)}, {vr(vLS+2*qt+i)}, {vr(vFAC+qt)}" for i in range(2)]
    return L


def attention(A, o, NT, tail):
    NQ = 8 * NT
    NE = 2 * NT
    c2 = 4 - NT
    sreg = lambda S, i: S + 16 * ((i >> 2) & 1) + 4 * (i >> 3) + (i & 3)

    def vreads(slot):
        return [("ds", f"ds_read_b64_tr_b16 {vr(vVF+4*dt+2*e,2)}, {vr(vVA+8*(slot>>1)+dt)} offset:{(slot&1)*ASL+4096*e}", f"v{dt}")
                for dt in range(8) for e in range(2)]

    def part2(Sp, qt):
        st = []
        for i in range(8 * qt, 8 * qt + 8):
            if i + NE < NQ:
                r = sreg(Sp, i + NE)
                st.append((f"v_exp_f32 {vr(r)}, {vr(r)}", 8))
            if i & 1:
                r = sreg(Sp, i - 1)
                st.append((f"v_pk_add_f32 {vr(vLS+2*qt,2)}, {vr(vLS+2*qt,2)}, {vr(r,2)}", 4.5))
                st.append((f"v_cvt_pk_bf16_f32 {vr(vP+4*qt+((i&7)>>1))}, {vr(r)}, {vr(r+1)}", 4.5))
        return st

    def pend_check():
        l2, b2 = A.newlab("L_r2"), A.newlab("L_b2")
        tail.append(("r2", l2, b2, NT))
        return [f"s_cmp_lg_u32 {sr(sPEND)}, 0", f"s_cbranch_scc1 {l2}", ("lab", b2)]

    def group(t):
        return dma_tile(o, "K" if t & 1 else "V", aslot(t + 3 + c2))

    def it(u, late, early, vmb, first=False, knext=True):
        p = u & 1
        S, Sp = vS + 32 * p, vS + 32 * (1 - p)
        mf, after = [], {}
        allk = [f"k{kt}{s}" for kt in range(2) for s in range(4)]
        for s in range(4):
            for kt in range(2):
                for qt in range(NT):
                    d = S + 16 * kt + 4 * qt
                    mf.append((mfma(d, vKF + 16 * kt + 4 * s, aQ + 16 * qt + 4 * s, vNM + 4 * qt if s == 0 else d), allk))
        mx = vT
        order = [sreg(S, i) for i in range(NQ)]
        order.sort(key=lambda r: ((r - S) >> 4, (r - S) & 15))
        m1 = [f"v_max3_f32 {vr(mx)}, {vr(order[0])}, {vr(order[1])}, {vr(order[2])}"]
        m1 += [f"v_max3_f32 {vr(mx)}, {vr(mx)}, {vr(order[i])}, {vr(order[i+1])}" for i in range(3, NQ - 1, 2)]
        m1 += [f"v_max_f32 {vr(mx)}, {vr(mx)}, {vr(order[NQ-1])}"]
        E1 = [f"v_exp_f32 {vr(sreg(S,i))}, {vr(sreg(S,i))}" for i in range(NE)]
        kr = kreads(aslot(u + 1))
        if first:
            put(after, NQ - 1, [("bar", vmb)] + kr + sum(early, [])
                + [f"v_readfirstlane_b32 {sr(sNON)}, {vr(vTAG)}", f"v_readfirstlane_b32 {sr(sNON+1)}, {vr(vTAG+1)}"]
                + new_max(S, NT, False) + E1)
            A.run(mf, after)
            return
        for qt in range(NT):
            for dt in range(8):
                mf.append((mfma(aO + 16 * dt + 4 * qt, vVF + 4 * dt, vP + 4 * qt, aO + 16 * dt + 4 * qt), [f"v{dt}"]))
        spread(after, [(x, 1) for x in vreads(aslot(u))], 0, NQ - 2)
        if late:
            spread(after, [(g, 1) for g in late], 0, NQ + 2)
        put(after, 4, pend_check())
        st, due = [], {}
        for qt in range(NT):
            st += part2(Sp, qt)
            due[qt] = len(st) - 1
        i_m1 = len(st)
        l1, b1 = A.newlab("L_r1"), A.newlab("L_b1")
        tail.append(("r1", l1, b1, S, NT))
        st += [(x, 4.5) for x in m1]
        st.append(([f"v_cmp_lt_f32 vcc, {sr(sTHR)}, {vr(mx)}", f"s_cbranch_vccnz {l1}", ("lab", b1)], 9))
        st += [(x, 8) for x in E1]
        pos = spread(after, st, 0, 2 * NQ)
        for qt in range(NT):
            assert pos[due[qt]] < NQ + 8 * qt - 2, (qt, pos[due[qt]])
        assert pos[i_m1] >= NQ + 4, pos[i_m1]
        put(after, NQ + 2, [("bar", vmb)])
        if knext:
            spread(after, [(x, 1) for x in kr], NQ + 3, 2 * NQ - 6)
        if early:
            spread(after, [(g, 1) for g in early], NQ + 3, 2 * NQ)
        A.run(mf, after)

    A.q = []
    A.groups([[x for x in g if not x.startswith("s_waitcnt")] for g in group(0)[:o.g0]])
    it(0, [], group(0)[o.g0:4], o.g0, first=True)
    q0 = list(A.q)
    A(f"s_mov_b32 {sr(sCNT)}, 7")
    A.lab(f"L_aloop_{NT}")
    for u in (1, 2, 3, 0):
        it(u, group(u - 1)[4:], group(u)[:4], 8)
    assert A.q == q0
    A(f"s_sub_u32 {sr(sCNT)}, {sr(sCNT)}, 1"); A(f"s_cmp_lg_u32 {sr(sCNT)}, 0"); A(f"s_cbranch_scc1 L_aloop_{NT}")
    wp = [sum((dma_w(o, "G", int(c)) for c in x), []) for x in o.wplan.split(",")]
    it(1, group(28)[4:], wp[0], 8)
    it(2, [], wp[1], len(wp[0]))
    it(3, [], wp[2], 63, knext=False)
    stamp(A, 2, o.stamps)
    Sp = vS + 32
    for x in vreads(aslot(32)): A.emit(x)
    for x in pend_check(): A.emit(x)

    def lred(qt):
        a, b = vLS + 2 * qt, vLS + 2 * qt + 1
        L = [f"v_add_f32 {vr(a)}, {vr(a)}, {vr(b)}"]
        for sw in ("16", "32"):
            L += [f"v_mov_b32 {vr(b)}, {vr(a)}", "s_nop 1", f"v_permlane{sw}_swap_b32 {vr(a)}, {vr(b)}", "s_nop 1", f"v_add_f32 {vr(a)}, {vr(a)}, {vr(b)}"]
        return L + [f"v_rcp_f32 {vr(a)}, {vr(a)}", "s_nop 0", f"v_mov_b32 {vr(b)}, {vr(a)}"]

    def outq(qt):
        L = []
        for m in range(4):
            t = vS + 8 * m
            d = vKF + 4 * ((4 * qt + m) % 8)
            L += [f"v_accvgpr_read_b32 {vr(t+i)}, {vr(aO + 16*(2*m + (i>>2)) + 4*qt + (i&3))}" for i in range(8)]
            L += [f"v_pk_mul_f32 {vr(t+2*i,2)}, {vr(t+2*i,2)}, {vr(vLS+2*qt,2)}" for i in range(4)]
            L += [f"v_cvt_pk_bf16_f32 {vr(d+i)}, {vr(t+2*i)}, {vr(t+2*i+1)}" for i in range(4)]
            L.append(f"ds_write_b128 {vr(vOW)}, {vr(d,4)} offset:{(m>>1)*XSL + qt*2048 + (m&1)*1024}")
            L.append(f"buffer_store_dwordx4 {vr(d,4)}, {vr(vL16)}, {sr(S_WS,4)}, {sr(sOST)} offen offset:{m*1024} sc1")
        L.append(f"s_add_u32 {sr(sOST)}, {sr(sOST)}, 0x20000")
        return L

    for x, _ in part2(Sp, 0): A(x)
    mf, after = [], {}
    for qt in range(NT):
        for dt in range(8):
            mf.append((mfma(aO + 16 * dt + 4 * qt, vVF + 4 * dt, vP + 4 * qt, aO + 16 * dt + 4 * qt), [f"v{dt}"]))
        st = [(x, 1) for x in lred(qt)]
        if qt + 1 < NT:
            st = [(x, 1) for x, _ in part2(Sp, qt + 1)] + st
        spread(after, st, 8 * qt, 8 * qt + 7)
        put(after, 8 * qt + 7, ["s_nop 1"])
    put(after, 7, ["s_barrier"])
    A("s_nop 1")
    A.run(mf, after)
    A("s_nop 3")
    for qt in range(NT):
        for x in outq(qt): A(x)
    A(f"s_waitcnt vmcnt({4*NT})")


def rare_blocks(A, tail):
    r2, r1 = {}, {}
    for t in tail:
        if t[0] == "alt":
            A.lab(t[1])
            for x in t[2]: A(x)
            A(f"s_branch {t[1]}b")
        elif t[0] == "r1":
            _, l1, b1, S, NT = t
            k = len(r1.setdefault((NT, S), []))
            r1[(NT, S)].append(b1)
            A.lab(l1)
            A(f"s_mov_b32 {sr(sT0)}, {k}"); A(f"s_branch L_r1c_{NT}_{S}")
        else:
            _, l2, b2, NT = t
            k = len(r2.setdefault(NT, []))
            r2[NT].append(b2)
            A.lab(l2)
            A(f"s_mov_b32 {sr(sPEND)}, {k}"); A(f"s_branch L_r2c_{NT}")
    for (NT, S), backs in r1.items():
        A.lab(f"L_r1c_{NT}_{S}")
        for x in new_max(S, NT, True): A(x)
        A(f"s_mov_b32 {sr(sPEND)}, 1")
        for k, b in enumerate(backs[:-1]):
            A(f"s_cmp_eq_u32 {sr(sT0)}, {k}"); A(f"s_cbranch_scc1 {b}")
        A(f"s_branch {backs[-1]}")
    for NT, backs in r2.items():
        A.lab(f"L_r2c_{NT}")
        A("s_nop 7")
        for dt in range(8):
            for qt in range(NT):
                for i in range(4):
                    A(f"v_accvgpr_read_b32 {vr(vT+i)}, {vr(aO+16*dt+4*qt+i)}")
                for i in range(4):
                    A(f"v_mul_f32 {vr(vT+i)}, {vr(vT+i)}, {vr(vFAC+qt)}")
                for i in range(4):
                    A(f"v_accvgpr_write_b32 {vr(aO+16*dt+4*qt+i)}, {vr(vT+i)}")
        A(f"s_mov_b32 {sr(sT0)}, {sr(sPEND)}"); A(f"s_mov_b32 {sr(sPEND)}, 0")
        for k, b in enumerate(backs[:-1]):
            A(f"s_cmp_eq_u32 {sr(sT0)}, {k}"); A(f"s_cbranch_scc1 {b}")
        A(f"s_branch {backs[-1]}")


XLDS = 32768


def x_rows(rt, own):
    if own:
        return [f"ds_write_b128 {vr(vL16)}, {vr(gACC+28*ct+4*rt,4)} offset:{XLDS + (4*rt+ct)*1024}" for ct in range(4)]
    L = []
    t = gT + 8 * (rt % 6)
    for h in range(2):
        for ct in (2 * h, 2 * h + 1):
            a = gACC + 28 * ct + 4 * rt
            L += [f"v_cvt_pk_bf16_f32 {vr(t+2*ct)}, {vr(a)}, {vr(a+1)}", f"v_cvt_pk_bf16_f32 {vr(t+2*ct+1)}, {vr(a+2)}, {vr(a+3)}"]
        L.append(f"buffer_store_dwordx4 {vr(t+4*h,4)}, {vr(vL16)}, {sr(S_WS,4)}, {sr(sXS)} offen offset:{((2*rt+h)&3)*1024} sc1")
    if rt & 1:
        L.append(f"s_add_u32 {sr(sXS)}, {sr(sXS)}, 4096")
    return L


def exchange(A, o):
    R, D = gACC, gX
    A("s_mov_b64 exec, 15")
    A(f"v_lshlrev_b32 {vr(vT+5)}, 3, {vr(vLANE)}")
    A(f"v_add_u32 {vr(vT+5)}, {sr(sXF)}, {vr(vT+5)}")
    A("s_mov_b64 exec, -1")
    A(f"s_lshl_b32 {sr(sT3)}, 1, {sr(sHG)}")
    q, g, wa, ra, oa, rd = vT, vT + 1, gT, gT + 4, gT + 5, gT + 6
    A(f"v_and_b32 {vr(q)}, 15, {vr(vLANE)}"); A(f"v_lshrrev_b32 {vr(g)}, 4, {vr(vLANE)}")
    A(f"v_add_u32 {vr(rd)}, {sr(sW8)}, {vr(vL16)}")
    A("s_waitcnt lgkmcnt(0)")
    A("s_barrier")
    for i in range(8):
        A(f"ds_read_b128 {vr(R+4*i,4)}, {vr(rd)} offset:{XLDS + i*1024}")
    A(f"v_lshrrev_b32 {vr(wa)}, 1, {vr(g)}"); A(f"v_and_b32 {vr(ra)}, 7, {vr(q)}"); A(f"v_xor_b32 {vr(wa)}, {vr(wa)}, {vr(ra)}")
    A(f"v_lshlrev_b32 {vr(wa)}, 4, {vr(wa)}"); A(f"v_and_b32 {vr(g)}, 1, {vr(g)}"); A(f"v_lshl_add_u32 {vr(wa)}, {vr(g)}, 3, {vr(wa)}")
    A(f"v_lshl_add_u32 {vr(wa)}, {vr(q)}, 7, {vr(wa)}")
    A(f"s_add_u32 {sr(sT0)}, {sr(sW4)}, {XLDS + 32768}"); A(f"v_add_u32 {vr(wa)}, {sr(sT0)}, {vr(wa)}")
    for ct in range(1, 4):
        A(f"v_xor_b32 {vr(wa+ct)}, {32*ct}, {vr(wa)}")
    A(f"v_lshrrev_b32 {vr(q)}, 3, {vr(vLANE)}"); A(f"v_and_b32 {vr(g)}, 7, {vr(vLANE)}")
    A(f"v_lshlrev_b32 {vr(oa)}, 12, {vr(q)}"); A(f"v_lshl_add_u32 {vr(oa)}, {vr(g)}, 4, {vr(oa)}")
    A(f"v_xor_b32 {vr(ra)}, {vr(g)}, {vr(q)}"); A(f"v_lshlrev_b32 {vr(ra)}, 4, {vr(ra)}"); A(f"v_lshl_add_u32 {vr(ra)}, {vr(q)}, 7, {vr(ra)}")
    A(f"v_add_u32 {vr(ra)}, {sr(sT0)}, {vr(ra)}")
    A("s_mov_b64 exec, 15")
    poll4(A, sT3, False)
    A("s_mov_b64 exec, -1")
    stamp(A, 3, o.xst)
    l3, lj = A.newlab("L_w3"), A.newlab("L_xj")
    A(f"s_cmp_eq_u32 {sr(sWAVE)}, 3"); A(f"s_cbranch_scc1 {l3}")
    for n in (2, 1):
        if n == 1: A.lab(l3)
        for r in range(n):
            for k in range(3):
                for h in range(2):
                    A(f"buffer_load_dwordx4 {vr(D+24*r+8*k+4*h,4)}, {vr(vL16)}, {sr(S_WS,4)}, {sr(sXL[k])} offen offset:{(2*r+h)*1024} sc1")
        A("s_waitcnt lgkmcnt(0)")
        for r in range(n):
            for k in range(3):
                A(f"s_waitcnt vmcnt({6*(n-1-r) + 4 - 2*k + 2*r})")
                for i in range(8):
                    p, t = D + 24 * r + 8 * k + i, gACC + 40 + 2 * (i % 4)
                    A(f"v_lshlrev_b32 {vr(t)}, 16, {vr(p)}"); A(f"v_and_b32 {vr(t+1)}, 0xffff0000, {vr(p)}")
                    A(f"v_pk_add_f32 {vr(R+16*r+2*i,2)}, {vr(R+16*r+2*i,2)}, {vr(t,2)}")
            for ct in range(4):
                a = R + 16 * r + 4 * ct
                A(f"v_cvt_pk_bf16_f32 {vr(a)}, {vr(a)}, {vr(a+1)}"); A(f"v_cvt_pk_bf16_f32 {vr(a+1)}, {vr(a+2)}, {vr(a+3)}")
                A(f"ds_write_b64 {vr(wa+ct)}, {vr(a,2)} offset:{2048*r}")
            A("s_waitcnt lgkmcnt(0)")
            t = gACC + 48 + 8 * r
            for h in range(2):
                A(f"ds_read_b128 {vr(t+4*h,4)}, {vr(ra)} offset:{2048*r + 1024*h}")
            for h in range(2):
                A(f"s_waitcnt lgkmcnt({1-h})")
                A(f"buffer_store_dwordx4 {vr(t+4*h,4)}, {vr(oa)}, {sr(S_OUT,4)}, {sr(sOO)} offen sc1")
                A(f"s_add_u32 {sr(sOO)}, {sr(sOO)}, {8*4096}")
        if n == 2: A(f"s_branch {lj}")
    A.lab(lj)


def build(o):
    A = Asm()
    st = o.stamps
    for l in HEADER.splitlines(): A(l)
    A(f"; @launch grid=(256,1,1) block=(256,1,1) lds={LDS}")
    A('.amdgcn_target "amdgcn-amd-amdhsa--gfx950"'); A(".text")
    A(f".globl {KN}"); A(".p2align 8"); A(f".type {KN},@function"); A.lab(KN)
    A(f"s_cmp_ge_u32 s2, 256"); A("s_cbranch_scc1 L_exit")
    tail = []
    stamp(A, 0, st)
    prologue(A, o)
    if o.early_setup:
        late_setup(A, o)
    H = lambda s_: sum((dma_half(o, x[0], int(x[1])) for x in s_.split("+") if x), [])
    kvp = o.kvplan.split(",")
    gemm(A, o, "Q", o.wpre, {"13e": H(kvp[0]), "14l": H(kvp[1]), "14e": H(kvp[2]), "15l": H(kvp[3])})
    A.groups(H(kvp[4]))
    q_finish(A, o)
    stamp(A, 1, st)
    A(f"s_cmp_lg_u32 {sr(sC2)}, 0"); A(f"s_cbranch_scc1 L_att3")
    attention(A, o, 4, tail)
    A("s_branch L_attdone")
    A.lab("L_att3")
    attention(A, o, 3, tail)
    A.lab("L_attdone")
    stamp(A, 3, st)
    A.q = []
    gemm(A, o, "G", 63, {})
    exchange(A, o)
    if o.xst:
        stamp(A, 6, True); A("s_waitcnt vmcnt(0)")
    stamp(A, 5, st)
    if st:
        write_stamps(A)
    A.lab("L_exit")
    A("s_endpgm")
    rare_blocks(A, tail)
    A('.section .rodata,"a"')
    A(".p2align 6")
    A(f".amdhsa_kernel {KN}")
    A("  .amdhsa_next_free_vgpr 504"); A("  .amdhsa_next_free_sgpr 102"); A("  .amdhsa_accum_offset 256")
    A("  .amdhsa_group_segment_fixed_size 0"); A("  .amdhsa_kernarg_size 104"); A("  .amdhsa_user_sgpr_count 2")
    A("  .amdhsa_user_sgpr_kernarg_segment_ptr 1"); A("  .amdhsa_system_sgpr_workgroup_id_x 1")
    A(".end_amdhsa_kernel")
    return A.text()


if __name__ == "__main__":
    ap = argparse.ArgumentParser()
    ap.add_argument("-o", default="concat_heads__mha_block_cached__gqa_block_cached__near_ridge.s")
    ap.add_argument("--stamps", action="store_true")
    ap.add_argument("--qst", action="store_true")
    ap.add_argument("--xst", action="store_true")
    ap.add_argument("--steps", default="")
    ap.add_argument("--nt", default="KV")
    ap.add_argument("--win", type=int, default=5)
    ap.add_argument("--lazy", type=int, default=5)
    ap.add_argument("--nokv", action="store_true")
    ap.add_argument("--g0", type=int, default=4)
    ap.add_argument("--a7", type=int, default=1)
    ap.add_argument("--v31", type=int, default=1)
    ap.add_argument("--defer", type=int, default=0)
    ap.add_argument("--common", type=int, default=1)
    ap.add_argument("--qodd", default="159d3742bf8c06ae")
    ap.add_argument("--gseq", type=int, default=2)
    ap.add_argument("--qtab", default="")
    ap.add_argument("--pst", default="")
    ap.add_argument("--qseq", default="159d236ae47bf8c0")
    ap.add_argument("--wplan", default="0,1,,2")
    ap.add_argument("--opad", type=int, default=0)
    ap.add_argument("--xpad", type=int, default=0)
    ap.add_argument("--wpre", type=int, default=6)
    ap.add_argument("--early_setup", type=int, default=1)
    ap.add_argument("--kvplan", default="K0+K1,V0+K3,K2,V1,")
    ap.add_argument("--wtouch", default="")
    ap.add_argument("--whead", type=int, default=0)
    a = ap.parse_args()
    open(a.o, "w").write(build(a))
```
